```python
import torch

def _softmax(x, axis=-1):
    return torch.softmax(x, dim=axis)
def _gelu(x):
    return torch.nn.functional.gelu(x, approximate="tanh")
def _silu(x):
    return torch.nn.functional.silu(x)
def _sigmoid(x):
    return torch.sigmoid(x)
def _layernorm(x, axis=-1, eps=1e-5):
    m = x.mean(dim=axis, keepdim=True)
    v = x.var(dim=axis, keepdim=True, unbiased=False)
    return (x - m) / torch.sqrt(v + eps)
def _scatter_add(tgt, idx, src, axis=0):
    return tgt.clone().index_add_(axis, idx, src)
def _segment_sum(src, seg, n):
    out = torch.zeros((n,) + src.shape[1:], dtype=src.dtype)
    return out.index_add_(0, seg, src)
def _pad(x, pw):
    flat = tuple(v for pair in reversed(pw) for v in pair)
    return torch.nn.functional.pad(x, flat)

kernel_name = 'concat_heads__gqa_block_cached__mha_block_cached__near_ridge'

def setup_inputs():

    _w = (lambda a: (lambda t: t.to(torch.bfloat16) if t.is_floating_point() else t)(torch.as_tensor(a)))
    def _A_setup():
        B, Sq, D = 8, 96, 640
        Hq, Hkv, Sk, Dh = 32, 32, 512, 192
        assert Hq % Hkv == 0, (Hq, Hkv)
        return {
            "x": _w((lambda *s: torch.randn(*s, dtype=torch.bfloat16) * 0.8)(B, Sq, D)),
            "k_cache": _w((lambda *s: torch.randn(*s, dtype=torch.bfloat16) * 0.8)(B, Hkv, Sk, Dh)),
            "v_cache": _w((lambda *s: torch.randn(*s, dtype=torch.bfloat16) * 0.05)(B, Hkv, Sk, Dh)),
            "wq": _w((lambda *s: torch.randn(*s, dtype=torch.bfloat16) * 0.8)(D, Hq * Dh) * (D ** -0.5)),
            "wo": _w((lambda *s: torch.randn(*s, dtype=torch.bfloat16) * 0.05)(Hq * Dh, D) * ((Hq * Dh) ** -0.5)),
        }
    _A_in = _A_setup()

    def _B_setup():
        B, Sq, D = 8, 96, 640
        H, Sk, Dh = 32, 512, 192
        return {
            "x": _w((lambda *s: torch.randn(*s, dtype=torch.bfloat16) * 0.8)(B, Sq, D)),
            "k_cache": _w((lambda *s: torch.randn(*s, dtype=torch.bfloat16) * 0.8)(B, H, Sk, Dh)),
            "v_cache": _w((lambda *s: torch.randn(*s, dtype=torch.bfloat16) * 0.05)(B, H, Sk, Dh)),
            "wq": _w((lambda *s: torch.randn(*s, dtype=torch.bfloat16) * 0.8)(D, H * Dh) * (D ** -0.5)),
            "wo": _w((lambda *s: torch.randn(*s, dtype=torch.bfloat16) * 0.05)(H * Dh, D) * ((H * Dh) ** -0.5)),
        }
    _B_in = _B_setup()

    return {
        "A_x": _A_in["x"],
        "A_k_cache": _A_in["k_cache"],
        "A_v_cache": _A_in["v_cache"],
        "A_wq": _A_in["wq"],
        "A_wo": _A_in["wo"],
        "B_x": _B_in["x"],
        "B_k_cache": _B_in["k_cache"],
        "B_v_cache": _B_in["v_cache"],
        "B_wq": _B_in["wq"],
        "B_wo": _B_in["wo"],
    }

def reference(A_x, A_k_cache, A_v_cache, A_wq, A_wo, B_x, B_k_cache, B_v_cache, B_wq, B_wo):
    def _A_ref(x, k_cache, v_cache, wq, wo):
        B, Sq, D = x.shape
        Hq, Dh = 32, 192
        Hkv = k_cache.shape[1]
        rep = Hq // Hkv
        q = (lambda x, *d: x.permute(*d))((x @ wq).reshape(B, Sq, Hq, Dh), 0, 2, 1, 3)
        k = (lambda x, n, axis: torch.repeat_interleave(x, n, dim=axis))(k_cache, rep, axis=1)
        v = (lambda x, n, axis: torch.repeat_interleave(x, n, dim=axis))(v_cache, rep, axis=1)
        scores = torch.einsum("bhqd,bhkd->bhqk", q, k) * (Dh ** -0.5)
        p = _softmax(scores, axis=-1)
        o = torch.einsum("bhqk,bhkd->bhqd", p, v)
        return (lambda x, *d: x.permute(*d))(o, 0, 2, 1, 3).reshape(B, Sq, Hq * Dh) @ wo

    def _B_ref(x, k_cache, v_cache, wq, wo):
        B, Sq, D = x.shape
        H, Dh = 32, 192
        q = (lambda x, *d: x.permute(*d))((x @ wq).reshape(B, Sq, H, Dh), 0, 2, 1, 3)
        scores = torch.einsum("bhqd,bhkd->bhqk", q, k_cache) * (Dh ** -0.5)
        p = _softmax(scores, axis=-1)
        o = torch.einsum("bhqk,bhkd->bhqd", p, v_cache)
        return (lambda x, *d: x.permute(*d))(o, 0, 2, 1, 3).reshape(B, Sq, H * Dh) @ wo

    a = _A_ref(A_x, A_k_cache, A_v_cache, A_wq, A_wo)
    b = _B_ref(B_x, B_k_cache, B_v_cache, B_wq, B_wo)
    return torch.concatenate([a, b], axis=-1)
```

```python
import re

REG_RE = re.compile(r'^(-|\|)?(abs\()?([vas])(\d+|\[(\d+):(\d+)\])\)?\|?$')

def regs_of(op):
    op = op.strip()
    if op in ("vcc", "vcc_lo", "vcc_hi"): return {("s", "vcc")}
    if op in ("exec",): return {("s", "exec")}
    if op in ("m0",): return {("s", "m0")}
    m = REG_RE.match(op)
    if not m: return set()
    k = m.group(3)
    if m.group(5) is not None:
        return {(k, i) for i in range(int(m.group(5)), int(m.group(6)) + 1)}
    return {(k, int(m.group(4)))}

TRANS = ("v_exp_f32", "v_log_f32", "v_rcp_f32", "v_rsq_f32", "v_sqrt_f32")

class Ins:
    __slots__ = ("text", "op", "kind", "dst", "src", "srcA", "srcB", "srcC", "passes", "lds_dma", "label", "target", "wide_store", "data")
    def __init__(self, text):
        self.text = text
        self.label = None; self.target = None
        self.dst = set(); self.src = set(); self.srcA = self.srcB = self.srcC = set()
        self.passes = 0; self.lds_dma = False; self.wide_store = False; self.data = set()
        t = text.split(";")[0].strip()
        if not t or t.startswith("."):
            self.kind = "none"; self.op = ""; return
        if t.endswith(":"):
            self.kind = "label"; self.op = ""; self.label = t[:-1]; return
        parts = t.split(None, 1)
        self.op = op = parts[0]
        rest = parts[1] if len(parts) > 1 else ""
        ops = [o.strip() for o in re.split(r",(?![^\[]*\])", rest)] if rest else []
        mods = ""
        if ops:
            last = ops[-1].split(None, 1)
            ops[-1] = last[0]
            mods = last[1] if len(last) > 1 else ""
        R = [regs_of(o) for o in ops]
        if op.startswith("v_mfma"):
            self.kind = "mfma"; self.passes = 8 if "32x32" in op else 4
            self.dst = R[0]; self.srcA = R[1]; self.srcB = R[2]; self.srcC = R[3]
            self.src = R[1] | R[2] | R[3]
        elif op.startswith("v_"):
            self.kind = "valu"
            if op.startswith("v_permlane"):
                self.dst = R[0] | R[1]; self.src = R[0] | R[1]
            elif op.startswith("v_cmp"):
                self.dst = R[0]; self.src = set().union(*R[1:])
            elif op in ("v_nop",):
                pass
            else:
                self.dst = R[0]; self.src = set().union(*R[1:]) if len(R) > 1 else set()
                if op.startswith("v_fmac") or op.startswith("v_writelane"): self.src |= R[0]
                if "_co_" in op: self.dst |= R[1]
        elif op.startswith("ds_"):
            self.kind = "ds"
            if op.startswith("ds_read"):
                self.dst = R[0]; self.src = R[1]
            else:
                self.src = set().union(*R)
        elif op.startswith("buffer_") or op.startswith("global_"):
            self.kind = "vmem"
            if "load" in op:
                if "lds" in mods.split():
                    self.lds_dma = True; self.src = set().union(*R) | {("s", "m0")}
                else:
                    self.dst = R[0]; self.src = set().union(*R[1:])
            elif "store" in op:
                self.src = set().union(*R)
                self.data = R[0] if op.startswith("buffer_") else R[1]
                self.wide_store = op.endswith("x4") or op.endswith("x3")
            elif "atomic" in op:
                self.src = set().union(*R)
                if "sc0" in mods.split(): self.dst = R[0]
            else:
                pass
        elif op.startswith("s_"):
            self.kind = "salu"
            if op.startswith("s_cbranch") or op == "s_branch":
                self.kind = "branch"; self.target = ops[0]
            elif op in ("s_nop", "s_waitcnt", "s_barrier", "s_endpgm", "s_setprio", "s_sleep"):
                self.kind = op
            elif op.startswith("s_cmp"):
                self.src = set().union(*R)
            elif op.startswith("s_load") or op.startswith("s_memtime") or op.startswith("s_memrealtime"):
                self.kind = "smem"; self.dst = R[0]; self.src = set().union(*R[1:]) if len(R) > 1 else set()
            else:
                self.dst = R[0]; self.src = set().union(*R[1:]) if len(R) > 1 else set()
                if "saveexec" in op: self.dst = self.dst | {("s", "exec")}
        else:
            raise ValueError("unknown instruction: " + text)

    def states(self):
        if self.kind in ("none", "label"): return 0
        if self.kind == "s_nop": return int(self.text.split(";")[0].split()[1]) + 1
        return 1

def vec(s): return {r for r in s if r[0] in "va"}
def sca(s): return {r for r in s if r[0] == "s"}

def need(p, c):
    n = 0
    if p.kind == "valu":
        w = vec(p.dst)
        if c.kind == "mfma" and w & c.src: n = max(n, 2)
        if c.kind == "valu":
            if c.op.startswith("v_permlane") and w & c.src: n = max(n, 2)
            if (c.op.startswith("v_readfirstlane") or c.op.startswith("v_readlane")) and w & c.src: n = max(n, 1)
            if p.op.replace("_e32", "").replace("_e64", "") in TRANS and w & c.src: n = max(n, 1)
            if "dpp" in c.text and w & c.src: n = max(n, 2)
        sw = sca(p.dst)
        if sw:
            if c.kind == "vmem" and sw & c.src: n = max(n, 5)
            if c.kind == "valu" and sw & c.src: n = max(n, 4 if "lane" in c.op else 2)
            if c.kind in ("salu",) and sw & c.src: n = max(n, 1)
    if p.kind == "mfma":
        big = p.passes + 4
        if c.kind == "mfma":
            if p.dst & (c.srcA | c.srcB): n = max(n, big)
            if p.dst & c.srcC and not (p.dst == c.srcC and p.passes == c.passes): n = max(n, p.passes + 2)
            if p.dst & c.dst and p.passes != c.passes: n = max(n, big)
        elif c.kind in ("valu", "ds", "vmem"):
            if p.dst & (c.src | c.dst): n = max(n, big)
            if c.kind == "valu" and p.srcC & c.dst: n = max(n, p.passes - 1)
    if p.kind == "salu" and ("s", "m0") in p.dst and c.kind == "vmem" and c.lds_dma: n = max(n, 1)
    if p.kind == "vmem" and p.wide_store and p.data & c.dst: n = max(n, 2)
    return n

class Prog:
    def __init__(self):
        self.ins = []
    def __call__(self, text):
        for line in text.split("\n"):
            line = line.strip()
            if line: self.ins.append(Ins(line))
    def ext(self, seq):
        for t in seq: self(t)

    def auto_lgkm(self):
        out = []; q = []
        smem = False
        for i in self.ins:
            if i.kind in ("label", "branch"):
                pend = [d for d in q if d]
                assert not pend, f"pending ds reads across control flow at {i.text}"
                q = []
            if i.kind == "s_waitcnt":
                m = re.search(r"lgkmcnt\((\d+)\)", i.text)
                if m:
                    n = int(m.group(1))
                    q = q[len(q) - n:] if n < len(q) else q
                    if n == 0: smem = False; q = []
            touched = i.src | i.dst
            idx = -1
            for k, d in enumerate(q):
                if d & touched: idx = k
            if idx >= 0:
                n = len(q) - 1 - idx
                if smem: n = 0
                n = min(n, 15)
                out.append(Ins(f"s_waitcnt lgkmcnt({n})"))
                q = q[len(q) - n:] if n else []
                if n == 0: smem = False
            if i.kind == "ds": q.append(set(i.dst))
            if i.kind == "smem": q.append(set(i.dst)); smem = True
            out.append(i)
        self.ins = out

    def auto_nop(self):
        W = 24
        def preds_need(hist, c):
            worst = 0; dist = 0
            for p in reversed(hist):
                n = need(p, c)
                if n > dist: worst = max(worst, n - dist)
                dist += p.states()
                if dist >= 20: break
            return worst
        out = []
        for c in self.ins:
            if c.states():
                k = preds_need(out[-W*2:], c)
                while k > 0:
                    n = min(k, 16); out.append(Ins(f"s_nop {n-1}")); k -= n
            out.append(c)
        changed = True
        while changed:
            changed = False
            labels = {i.label: k for k, i in enumerate(out) if i.kind == "label"}
            for k, b in enumerate(out):
                if b.kind != "branch" or b.target not in labels: continue
                hist = out[max(0, k - W*2):k + 1]
                t = labels[b.target]
                worst = 0
                seq = list(hist)
                cnt = 0
                for c in out[t:t + W*2]:
                    if c.states():
                        worst = max(worst, preds_need(seq, c)); cnt += c.states()
                    seq.append(c)
                    if cnt >= 20 or c.op in ("s_branch", "s_endpgm"): break
                if worst > 0:
                    out.insert(k, Ins(f"s_nop {min(worst,16)-1}")); changed = True; break
        self.ins = out

    def text(self):
        return "\n".join(("" if i.kind == "label" else "    ") + i.text for i in self.ins) + "\n"

def weave(main, fill, lo=0, hi=None, first=False):
    if hi is None: hi = len(main)
    n = hi - lo
    slots = [[] for _ in main]
    for k, f in enumerate(fill):
        pos = lo + (k * n) // max(len(fill), 1)
        slots[pos].extend([f] if isinstance(f, str) else f)
    out = []
    for m, s in zip(main, slots):
        out.extend([m] if isinstance(m, str) else m)
        out.extend(s)
    return out

def weave2(main, tracks):
    slots = [[] for _ in main]
    for fill, lo, hi in tracks:
        n = hi - lo
        for k, f in enumerate(fill):
            pos = lo + (k * n) // max(len(fill), 1)
            slots[pos].extend([f] if isinstance(f, str) else f)
    out = []
    for m, s in zip(main, slots):
        out.extend([m] if isinstance(m, str) else m)
        out.extend(s)
    return out
```

```python
import sys, struct, math
from asmlib import *

NAME = "concat_heads__gqa_block_cached__mha_block_cached__near_ridge"
OPT = dict(stamps=0, kv="nt", wq="nt", x="nt", wo="nt", pst="sc1", pld="", kburst=3, vburst=6)
for a in sys.argv[2:]:
    k, v = a.split("=", 1)
    OPT[k] = int(v) if v.lstrip("-").isdigit() else v

SLOT = 24576
S = [i * SLOT for i in range(6)]
LDS_BYTES = 6 * SLOT
PART = 122880
STAMP_OFF = 64 << 20

sX, sWQ, sK, sV, sWO, sP = 28, 32, 36, 40, 44, 48
def srd(b): return f"s[{b}:{b+3}]"
sW, sB, sHP, sBR, sC = "s52", "s53", "s54", "s55", "s56"
sWQo, sWQlim, sXo, sWQm, sXm, sRd, sI = "s57", "s58", "s59", "s60", "s61", "s62", "s63"
sKo, sVo, sKm, sVm, sDK, sDV = "s64", "s65", "s66", "s67", "s68", "s69"
sT0, sT1, sT2, sT3 = "s70", "s71", "s72", "s73"
sW6, sXd, sCrot, sKrot = "s74", "s75", "s76", "s77"
sCo = ["s78", "s79", "s80", "s81", "s82"]
sKq = ["s83", "s84", "s85", "s86"]
sJ = "s87"
sST = 88
def ACC(t, qb): return (t * 3 + qb) * 4
def SS(kb, qb): return 144 + (kb * 3 + qb) * 4
def PP(qb): return 168 + qb * 4
vM = [180, 181, 182]; vL = [183, 184, 185]; vAl = [186, 188, 190]; vMx = [192, 193, 194]; vTm = [195, 196, 197]; vMc = [187, 189, 191]
vKs = list(range(200, 206)); vVs = [206, 207, 208]; vWs = [209, 210, 211]; vXs = [212, 213, 214]; vOs = [215, 216, 217]
vKr = [218, 219]; vVr = [220, 221, 222, 223]; vXr = [224, 225]; vOr = [226, 227, 228]; vOw = [229, 230, 231]; vBr = [232, 233]; vPs = [234, 235]
vLn = 236; T = list(range(237, 256))
def v4(r): return f"v[{r}:{r+3}]"
def a4(r): return f"a[{r}:{r+3}]"
def QF(ks, qb): return (ks * 3 + qb) * 4
def FA(p, t): return 72 + 48 * p + 4 * t
def FB(p, qb): return 168 + 12 * p + 4 * qb

M16 = "v_mfma_f32_16x16x32_bf16"
M32 = "v_mfma_f32_32x32x16_bf16"

class VM:
    def __init__(self, q): self.q = list(q)
    def issue(self, tag, n=1): self.q += [tag] * n
    def wait(self, *tags):
        idx = max((k for k, t in enumerate(self.q) if t in tags), default=-1)
        n = len(self.q) - 1 - idx
        self.q = self.q[idx + 1:]
        assert n <= 63
        return f"s_waitcnt vmcnt({n})"

nstamp = [0]
def stamp(p):
    if OPT["stamps"]:
        k = nstamp[0]; nstamp[0] += 1
        p(f"s_memrealtime s[{sST}:{sST+1}]")
        p("s_waitcnt lgkmcnt(0)")
        p(f"v_writelane_b32 v255, s{sST}, {k}")

def dma6(vs, srdb, so, mbase, flags, src_step, six=False):
    def val(dst, x, extra):
        if isinstance(x, tuple): r, imm = x
        else: r, imm = x, 0
        imm += extra
        return f"s_add_u32 {dst}, {r}, {imm}" if imm else f"s_mov_b32 {dst}, {r}"
    g = []
    for j in range(6):
        pre = []
        if j % 3 == 0:
            pre = [val("m0", mbase, 3072 * (j // 3)), val(sT3, so, src_step * (j // 3))]
        v = vs[j] if six else vs[j % 3]
        g.append(pre + [f"buffer_load_dwordx4 v{v}, {srd(srdb)}, {sT3} offen offset:{1024*(j%3)} {flags} lds"])
    return g
def dma_k(): return dma6(vKs, sK, sKo, sKm, OPT["kv"], 3072, six=True)
def dma_v(): return dma6(vVs, sV, sVo, sVm, OPT["kv"], 3072)
def dma_wq(): return dma6(vWs, sWQ, sWQo, sWQm, OPT["wq"], 16 * 12288)
def dma_x():
    g = []
    for j in range(3):
        pre = [f"s_mov_b32 m0, {sXm}"] if j == 0 else []
        g.append(pre + [f"buffer_load_dwordx4 v{vXs[j]}, {srd(sX)}, {sXo} offen offset:{1024*j} {OPT['x']} lds"])
    return g
def dma_wo(sig, slot):
    ci, kq = divmod(sig, 4)
    g = dma6(vOs, sWO, sT2, (sW6, S[slot]), OPT["wo"], 12 * 1280)
    g[0] = [f"s_add_u32 {sT2}, {sCo[ci]}, {sKq[kq]}"] + g[0]
    return g
def adv_wq():
    return [f"s_add_u32 {sWQo}, {sWQo}, {32*12288}", f"s_cmp_ge_u32 {sWQo}, {sWQlim}",
            f"s_cselect_b32 {sT0}, {640*12288}, 0", f"s_sub_u32 {sWQo}, {sWQo}, {sT0}",
            f"s_add_u32 {sWQm}, {sWQm}, {SLOT}", f"s_cmp_ge_u32 {sWQm}, {3*SLOT}",
            f"s_cselect_b32 {sT0}, {3*SLOT}, 0", f"s_sub_u32 {sWQm}, {sWQm}, {sT0}"]
def adv_x():
    return [f"s_add_u32 {sXo}, {sXo}, 128", f"s_cmp_ge_u32 {sXo}, 1280", f"s_cselect_b32 {sXo}, 0, {sXo}",
            f"s_xor_b32 {sXm}, {sXm}, {sXd}"]
def adv_k(): return [f"s_add_u32 {sKo}, {sKo}, 12288", f"s_xor_b32 {sKm}, {sKm}, {S[4]}"]
def adv_v(): return [f"s_add_u32 {sVo}, {sVo}, 12288", f"s_sub_u32 {sVm}, {sT1}, {sVm}"]
def flat(g): return [x for y in g for x in ([y] if isinstance(y, str) else y)]

def reads_t(dstf, n=12):
    g = []
    for t in range(n):
        r = dstf(t)
        o = (t >> 2) * 128
        g.append(f"ds_read_b64_tr_b16 a[{r}:{r+1}], v{vVr[t&3]} offset:{o}")
        g.append(f"ds_read_b64_tr_b16 a[{r+2}:{r+3}], v{vVr[t&3]} offset:{o+6144}")
    return g
def reads_x(p, e): return [f"ds_read_b128 {a4(FB(p, qb))}, v{vXr[e]} offset:{qb*2048}" for qb in range(3)]
def adv_rd_wq():
    return [[f"s_add_u32 {sRd}, {sRd}, 1", f"s_cmp_ge_u32 {sRd}, 3", f"s_cselect_b32 {sRd}, 0, {sRd}",
             f"s_cselect_b32 {sT0}, {-2*SLOT & 0xffffffff}, {sT2}"]] + [f"v_add_u32 v{r}, {sT0}, v{r}" for r in vVr]

def main_kernel():
    p = Prog()
    p(f"attn_kernel:")
    p("s_cmp_ge_u32 s2, 256\ns_cbranch_scc1 L_exit")
    p("s_load_dwordx16 s[4:19], s[0:1], 0\ns_load_dwordx4 s[20:23], s[0:1], 64\ns_load_dwordx2 s[24:25], s[0:1], 96")
    if OPT["stamps"]: p("v_mov_b32 v255, 0")
    p(f"v_lshrrev_b32 v{T[0]}, 6, v0\nv_and_b32 v{vLn}, 63, v0")
    p(f"v_readfirstlane_b32 {sW}, v{T[0]}")
    p(f"s_bfe_u32 {sBR}, s2, 0x10002\ns_and_b32 {sT0}, s2, 3\ns_bfe_u32 {sB}, s2, 0x30003\ns_lshr_b32 {sJ}, s2, 6")
    p(f"s_lshl_b32 {sHP}, {sT0}, 2\ns_add_u32 {sHP}, {sHP}, {sJ}")
    p(f"s_mul_i32 {sW6}, {sW}, 6144")
    p(f"s_mul_i32 {sT0}, {sJ}, 5\ns_lshr_b32 {sT0}, {sT0}, 1\ns_add_u32 {sT0}, {sT0}, {sB}")
    p(f"s_cmp_ge_u32 {sT0}, 10\ns_cselect_b32 {sT1}, 10, 0\ns_sub_u32 {sT0}, {sT0}, {sT1}")
    p(f"s_lshl_b32 {sXo}, {sT0}, 7")
    p(f"s_and_b32 {sT1}, {sW}, 1\ns_lshr_b32 {sT2}, {sW}, 1")
    p(f"s_mul_i32 {sWQlim}, {sT1}, {4*12288}\ns_mul_i32 {sT3}, {sT2}, 384\ns_add_u32 {sWQlim}, {sWQlim}, {sT3}")
    p(f"s_mul_i32 {sWQo}, {sT0}, {64*12288}\ns_add_u32 {sWQo}, {sWQo}, {sWQlim}\ns_add_u32 {sWQlim}, {sWQlim}, {640*12288}")
    p(f"s_add_u32 {sWQm}, {sW6}, {S[1]}")
    p(f"s_mul_i32 {sXm}, {sW}, 3072\ns_add_u32 {sXm}, {sXm}, {S[3]}")
    p(f"s_add_u32 {sXd}, {sXm}, 12288\ns_xor_b32 {sXd}, {sXd}, {sXm}")
    p(f"s_mul_i32 {sKo}, {sT2}, 196608\ns_mul_i32 {sT3}, {sT1}, 6144\ns_add_u32 {sKo}, {sKo}, {sT3}\ns_mov_b32 {sVo}, {sKo}")
    p(f"s_add_u32 {sKm}, {sW6}, {S[4]}\ns_add_u32 {sVm}, {sW6}, {S[5]}")
    l = f"v{vLn}"
    t0, t1, t2, t3, t4 = (f"v{r}" for r in T[:5])
    p(f"s_mul_i32 {sT0}, {sW}, 24")
    for j in range(3):
        p(f"v_lshrrev_b32 {t0}, 3, {l}\nv_add_u32 {t0}, {sT0}, {t0}\nv_add_u32 {t0}, {8*j}, {t0}")
        p(f"v_bfe_u32 {t1}, {t0}, 1, 3\nv_and_b32 {t2}, 7, {l}\nv_xor_b32 {t1}, {t1}, {t2}\nv_lshlrev_b32 {t1}, 4, {t1}")
        p(f"v_mul_u32_u24 {t0}, 1280, {t0}\nv_add_u32 {t0}, {t0}, {t1}\nv_subrev_u32 v{vXs[j]}, {1024*j}, {t0}")
    for j in range(6):
        p(f"v_add_u32 {t0}, {64*j}, {l}\nv_mul_u32_u24 {t1}, 2731, {t0}\nv_lshrrev_b32 {t1}, 16, {t1}")
        p(f"v_bfe_u32 {t2}, {t1}, 1, 3\nv_xor_b32 {t2}, {t2}, {l}\nv_lshlrev_b32 v{vKs[j]}, 4, {t2}")
        if j < 3:
            p(f"v_and_b32 {t2}, 6, {t1}\nv_xor_b32 {t3}, {t2}, {l}\nv_lshlrev_b32 v{vVs[j]}, 4, {t3}")
            p(f"v_mul_u32_u24 {t3}, 24, {t1}\nv_sub_u32 {t3}, {t0}, {t3}\nv_xor_b32 {t3}, {t3}, {t2}\nv_lshlrev_b32 {t3}, 4, {t3}")
            p(f"v_lshrrev_b32 {t2}, 2, {t1}\nv_and_b32 {t4}, 3, {t1}\nv_lshl_add_u32 {t2}, {t2}, 3, {t4}")
            p(f"v_mul_u32_u24 {t2}, 12288, {t2}\nv_add_u32 {t2}, {t2}, {t3}\nv_subrev_u32 v{vWs[j]}, {1024*j}, {t2}")
    p("s_waitcnt lgkmcnt(0)")
    stamp(p)
    p(f"s_cmp_eq_u32 {sBR}, 0")
    for k in range(5):
        p(f"s_cselect_b64 s[{4+2*k}:{5+2*k}], s[{4+2*k}:{5+2*k}], s[{14+2*k}:{15+2*k}]")
    def mk(b, ptr, off_s, size):
        p(f"s_add_u32 s{b}, s{ptr}, {off_s}\ns_addc_u32 s{b+1}, s{ptr+1}, 0\ns_and_b32 s{b+1}, s{b+1}, 0xffff")
        p(f"s_mov_b32 s{b+2}, {size}\ns_mov_b32 s{b+3}, 0x20000")
    p(f"s_mul_i32 {sT0}, {sB}, 122880"); mk(sX, 4, sT0, 122880)
    p(f"s_mul_i32 {sT0}, {sHP}, 768"); mk(sWQ, 10, sT0, 639 * 12288 + 768)
    p.ext(flat(dma_x())); p.ext(adv_x())
    p.ext(flat(dma_wq())); p.ext(adv_wq())
    p.ext(flat(dma_wq())); p.ext(adv_wq())
    p.ext(flat(dma_x())); p.ext(adv_x())
    p.ext(flat(dma_wq())); p.ext(adv_wq())
    p(f"s_lshl_b32 {sT0}, {sB}, 4\ns_add_u32 {sT0}, {sT0}, {sHP}\ns_mul_i32 {sT1}, {sT0}, 393216")
    mk(sK, 6, sT1, 393216); mk(sV, 8, sT1, 393216)
    p(f"s_lshl_b32 {sT1}, {sBR}, 7\ns_add_u32 {sT0}, {sT0}, {sT1}\ns_mul_i32 {sT1}, {sT0}, {PART}"); mk(sP, 24, sT1, PART)
    p(f"s_mul_i32 {sT0}, {sHP}, 491520"); mk(sWO, 12, sT0, 491520)
    c = (192 ** -0.5) * math.log2(math.e)
    p(f"s_mov_b32 {sC}, {struct.unpack('<I', struct.pack('<f', c))[0]:#x}")
    p(f"s_lshr_b32 {sCrot}, {sB}, 1\ns_and_b32 {sKrot}, {sB}, 1\ns_lshl_b32 {sKrot}, {sKrot}, 1")
    for ci in range(5):
        p(f"s_add_u32 {sT0}, {sCrot}, {ci}\ns_cmp_ge_u32 {sT0}, 5\ns_cselect_b32 {sT1}, 5, 0\ns_sub_u32 {sT0}, {sT0}, {sT1}\ns_lshl_b32 {sCo[ci]}, {sT0}, 8")
    for kq in range(4):
        p(f"s_xor_b32 {sT0}, {sKrot}, {kq}\ns_mul_i32 {sKq[kq]}, {sT0}, {96*1280}")
    p(f"s_and_b32 {sT1}, {sW}, 1\ns_lshr_b32 {sT2}, {sW}, 1\ns_mul_i32 {sT0}, {sT2}, 12288")
    p(f"v_and_b32 {t0}, 15, {l}\nv_lshrrev_b32 {t1}, 4, {l}\nv_lshrrev_b32 {t2}, 1, {t0}\nv_xor_b32 {t2}, {t2}, {t1}")
    p(f"v_mul_u32_u24 {t3}, 384, {t0}\nv_add_u32 {t3}, {sT0}, {t3}\nv_add_u32 {t3}, {S[4]}, {t3}")
    p(f"v_lshl_add_u32 v{vKr[0]}, {t2}, 4, {t3}\nv_xor_b32 {t4}, 4, {t2}\nv_lshl_add_u32 v{vKr[1]}, {t4}, 4, {t3}")
    p(f"s_mul_i32 {sT3}, {sT1}, {48*128}\ns_add_u32 {sT3}, {sT3}, {S[3]}")
    p(f"v_lshlrev_b32 {t3}, 7, {t0}\nv_add_u32 {t3}, {sT3}, {t3}")
    p(f"v_lshl_add_u32 v{vXr[0]}, {t2}, 4, {t3}\nv_lshl_add_u32 v{vXr[1]}, {t4}, 4, {t3}")
    p(f"v_lshrrev_b32 {t2}, 1, {t1}\nv_mul_u32_u24 {t2}, 3072, {t2}\nv_and_b32 {t3}, 1, {t1}\nv_lshl_add_u32 {t2}, {t3}, 9, {t2}\nv_lshl_add_u32 {t2}, {t0}, 4, {t2}")
    for qb in range(3):
        p(f"s_mul_i32 {sI}, {sT1}, 3\ns_add_u32 {sI}, {sI}, {qb}\ns_lshr_b32 {sT3}, {sI}, 1\ns_lshl_b32 {sT3}, {sT3}, 10")
        p(f"s_and_b32 {sI}, {sI}, 1\ns_lshl_b32 {sI}, {sI}, 8\ns_add_u32 {sT3}, {sT3}, {sI}")
        p(f"s_mul_i32 {sI}, {sT2}, 36864\ns_add_u32 {sT3}, {sT3}, {sI}\ns_add_u32 {sT3}, {sT3}, {S[1]}")
        p(f"v_add_u32 v{vOw[qb]}, {sT3}, {t2}")
    p(f"s_mul_i32 {sT3}, {sW}, 24\nv_lshlrev_b32 {t2}, 2, {t1}\nv_xor_b32 {t2}, {t2}, {t0}\nv_add_u32 {t3}, {sT3}, {t1}")
    p(f"v_mul_u32_u24 {t3}, 1280, {t3}\nv_lshl_add_u32 v{vOs[0]}, {t2}, 4, {t3}")
    p(f"v_add_u32 v{vOs[1]}, 4096, v{vOs[0]}\nv_add_u32 v{vOs[2]}, 8192, v{vOs[0]}")
    p(f"v_lshrrev_b32 {t0}, 2, {l}\nv_and_b32 {t1}, 3, {l}\nv_bfe_u32 {t2}, {l}, 3, 2")
    p(f"v_mul_u32_u24 {t3}, 384, {t0}\nv_lshl_add_u32 {t3}, {t1}, 3, {t3}\nv_add_u32 {t3}, {sT0}, {t3}\nv_add_u32 {t3}, {S[1]}, {t3}")
    for dl in range(4):
        p(f"v_xor_b32 {t4}, {dl}, {t2}\nv_lshl_add_u32 v{vVr[dl]}, {t4}, 5, {t3}")
    p(f"v_and_b32 {t0}, 3, {t0}\nv_lshrrev_b32 {t2}, 5, {l}\nv_lshl_add_u32 {t2}, {t2}, 2, {t0}\nv_lshlrev_b32 {t2}, 8, {t2}")
    p(f"v_xor_b32 {t0}, {sW}, {t0}\nv_lshl_add_u32 {t2}, {t0}, 6, {t2}")
    p(f"v_and_b32 {t0}, 1, {l}\nv_lshl_add_u32 {t2}, {t0}, 5, {t2}\nv_bfe_u32 {t0}, {l}, 4, 1\nv_lshl_add_u32 {t2}, {t0}, 4, {t2}")
    p(f"v_bfe_u32 {t0}, {l}, 1, 1\nv_lshl_add_u32 v{vOr[0]}, {t0}, 3, {t2}")
    p(f"v_add_u32 v{vOr[1]}, {S[2]}, v{vOr[0]}\nv_add_u32 v{vOr[2]}, {S[4]}, v{vOr[0]}")
    p(f"v_lshlrev_b32 {t0}, 4, {l}\ns_mul_i32 {sT3}, {sKrot}, 18432\ns_add_u32 {sT3}, {sT3}, {S[1]}\nv_add_u32 v{vBr[0]}, {sT3}, {t0}")
    p(f"s_xor_b32 {sT3}, {sKrot}, 2\ns_mul_i32 {sT3}, {sT3}, 18432\ns_add_u32 {sT3}, {sT3}, {S[1]}\nv_add_u32 v{vBr[1]}, {sT3}, {t0}")
    p(f"v_add_u32 v{vPs[0]}, {sW6}, {t0}\nv_add_u32 v{vPs[1]}, 3072, v{vPs[0]}")
    for r in range(144): p(f"v_mov_b32 v{r}, 0")
    for qb in range(3): p(f"v_mov_b32 v{vM[qb]}, 0xff7fffff\nv_mov_b32 v{vL[qb]}, 0")
    p(f"s_mov_b32 {sRd}, 1\ns_mov_b32 {sT2}, {SLOT}\ns_mov_b32 {sI}, 0\ns_mov_b32 {sDK}, 12288")
    p(f"s_lshl_b32 {sT1}, {sW6}, 1\ns_add_u32 {sT1}, {sT1}, {S[5]+S[3]}")
    p("s_waitcnt vmcnt(15)\ns_barrier")
    stamp(p)
    p.ext(reads_x(0, 0) + reads_t(lambda t: FA(0, t)))
    p.ext(flat(adv_rd_wq()))
    p(f"v_add_u32 v{vXr[0]}, {sDK}, v{vXr[0]}")
    def qstep(par, wait, dmas, do_reads=True, extra=None):
        p(wait); p("s_waitcnt lgkmcnt(0)\ns_barrier")
        mf = [f"{M16} {v4(ACC(t, qb))}, {a4(FA(par, t))}, {a4(FB(par, qb))}, {v4(ACC(t, qb))}" for t in range(12) for qb in range(3)]
        tr = []
        if do_reads:
            rd = reads_x(1 - par, 1 - par) + reads_t(lambda t: FA(1 - par, t))
            tr.append((rd, 0, 27))
            post = adv_rd_wq()
            if par == 0: post.append(f"v_add_u32 v{vXr[1]}, {sDK}, v{vXr[1]}")
            else: post.append([f"s_sub_u32 {sDK}, 0, {sDK}", f"v_add_u32 v{vXr[0]}, {sDK}, v{vXr[0]}"])
            tr.append((post, 28, 34))
        if dmas: tr.append((dmas, 0, 27))
        p.ext(weave2(mf, tr))
    p("s_waitcnt lgkmcnt(0)")
    p("L_q:")
    qstep(0, "s_waitcnt vmcnt(9)", dma_wq() + [adv_wq()])
    qstep(1, "s_waitcnt vmcnt(6)", dma_x() + [adv_x()] + dma_wq() + [adv_wq()])
    p("s_waitcnt lgkmcnt(0)")
    p(f"s_cmp_lg_u32 {sI}, {OPT['kburst']}\ns_cbranch_scc1 L_q1")
    p.ext(flat(dma_k())); p.ext(adv_k())
    p("L_q1:")
    p(f"s_cmp_lg_u32 {sI}, {OPT['vburst']}\ns_cbranch_scc1 L_q2")
    p.ext(flat(dma_v())); p.ext(adv_v())
    p("L_q2:")
    p(f"s_add_u32 {sI}, {sI}, 1\ns_cmp_lt_u32 {sI}, 8\ns_cbranch_scc1 L_q")
    vm = VM(["wq17"] * 6 + ["x9"] * 3 + ["wq18"] * 6)
    w = vm.wait("wq17"); vm.issue("wq19", 6); qstep(0, w, dma_wq())
    w = vm.wait("wq18"); vm.issue("t2", 6); qstep(1, w, dma_k() + [adv_k()])
    w = vm.wait("wq19"); qstep(0, w, None)
    qstep(1, "s_nop 0", None, do_reads=False)
    stamp(p)
    for ks in range(6):
        for qb in range(3):
            a, b = ACC(2 * ks, qb), ACC(2 * ks + 1, qb)
            r = 144 + 4 * qb + 12 * (ks & 1)
            p(f"v_cvt_pk_bf16_f32 v{r}, v{a}, v{a+1}\nv_cvt_pk_bf16_f32 v{r+1}, v{a+2}, v{a+3}")
            p(f"v_cvt_pk_bf16_f32 v{r+2}, v{b}, v{b+1}\nv_cvt_pk_bf16_f32 v{r+3}, v{b+2}, v{b+3}")
        for op in ("v_permlane32_swap_b32", "v_permlane16_swap_b32"):
            for qb in range(3):
                r = 144 + 4 * qb + 12 * (ks & 1)
                p(f"{op} v{r}, v{r+2}\n{op} v{r+1}, v{r+3}")
        for qb in range(3):
            r = 144 + 4 * qb + 12 * (ks & 1)
            for i in range(4): p(f"v_accvgpr_write_b32 a{QF(ks, qb)+i}, v{r+i}")
    for r in vVr: p(f"v_add_u32 v{r}, {S[5]}, v{r}")
    p(f"s_mov_b32 {sDK}, {-4*SLOT & 0xffffffff}\ns_mov_b32 {sDV}, {-2*SLOT & 0xffffffff}\ns_mov_b32 {sI}, 0")
    stamp(p)

    def kstep(wait, dmas):
        p(wait); p("s_barrier")
        rd = [f"ds_read_b128 {a4(FA(0, ks*2+kb))}, v{vKr[ks&1]} offset:{kb*6144+(ks>>1)*128}" for ks in range(6) for kb in range(2)]
        mf = [f"{M16} {v4(SS(kb, qb))}, {a4(FA(0, ks*2+kb))}, {a4(QF(ks, qb))}, {'0' if ks == 0 else v4(SS(kb, qb))}"
              for ks in range(6) for kb in range(2) for qb in range(3)]
        p.ext(rd[:6])
        tr = [(rd[6:], 0, 12), ([f"v_add_u32 v{r}, {sDK}, v{r}" for r in vKr] + [f"s_sub_u32 {sDK}, 0, {sDK}"], 20, 26)]
        if dmas: tr.append((dmas[:3], 2, 32))
        p.ext(weave2(mf, tr))
        sm = []
        s = lambda qb: [SS(0, qb) + i for i in range(4)] + [SS(1, qb) + i for i in range(4)]
        for a_, b_ in ((None, 0), (3, 1), (5, 2), (7, 3)):
            for qb in range(3):
                x = s(qb)
                if b_ == 0: sm.append(f"v_max3_f32 v{vMx[qb]}, v{x[0]}, v{x[1]}, v{x[2]}")
                elif b_ < 3: sm.append(f"v_max3_f32 v{vMx[qb]}, v{vMx[qb]}, v{x[a_]}, v{x[a_+1]}")
                else: sm.append(f"v_max3_f32 v{vMx[qb]}, v{vMx[qb]}, v{x[7]}, v{vM[qb]}")
        for op in ("v_permlane32_swap_b32", "v_permlane16_swap_b32"):
            for qb in range(3): sm.append(f"v_mov_b32 v{vTm[qb]}, v{vMx[qb]}")
            for qb in range(3): sm.append(f"{op} v{vMx[qb]}, v{vTm[qb]}")
            for qb in range(3): sm.append(f"v_max_f32 v{vMx[qb]}, v{vMx[qb]}, v{vTm[qb]}")
        for qb in range(3): sm.append(f"v_sub_f32 v{vTm[qb]}, v{vM[qb]}, v{vMx[qb]}")
        for qb in range(3): sm.append(f"v_mul_f32 v{vMc[qb]}, {sC}, v{vMx[qb]}")
        for qb in range(3): sm.append(f"v_mul_f32 v{vTm[qb]}, {sC}, v{vTm[qb]}")
        for qb in range(3): sm.append(f"v_mov_b32 v{vM[qb]}, v{vMx[qb]}")
        for qb in range(3): sm.append(f"v_exp_f32 v{vAl[qb]}, v{vTm[qb]}")
        for qb in range(3):
            x = s(qb)
            for r in x: sm.append(f"v_fma_f32 v{r}, v{r}, {sC}, -v{vMc[qb]}")
            for r in x: sm.append(f"v_exp_f32 v{r}, v{r}")
            sm.append(f"v_fma_f32 v{vL[qb]}, v{vL[qb]}, v{vAl[qb]}, v{x[0]}")
            sm.append(f"v_add_f32 v{vTm[qb]}, v{x[1]}, v{x[2]}")
            sm.append(f"v_add_f32 v{vL[qb]}, v{vL[qb]}, v{x[3]}")
            sm.append(f"v_add_f32 v{vTm[qb]}, v{vTm[qb]}, v{x[4]}")
            sm.append(f"v_add_f32 v{vL[qb]}, v{vL[qb]}, v{x[5]}")
            sm.append(f"v_add_f32 v{vTm[qb]}, v{vTm[qb]}, v{x[6]}")
            sm.append(f"v_add_f32 v{vL[qb]}, v{vL[qb]}, v{x[7]}")
            for i in range(4): sm.append(f"v_cvt_pk_bf16_f32 v{PP(qb)+i}, v{x[2*i]}, v{x[2*i+1]}")
            sm.append(f"v_add_f32 v{vL[qb]}, v{vL[qb]}, v{vTm[qb]}")
        for t in range(12):
            for qb in range(3):
                for h in (0, 2):
                    r = ACC(t, qb) + h
                    sm.append(f"v_pk_mul_f32 v[{r}:{r+1}], v[{r}:{r+1}], v[{vAl[qb]}:{vAl[qb]+1}] op_sel_hi:[1,0]")
        p.ext(weave(sm, dmas[3:], 10, len(sm) - 10) if dmas else sm)
    def pv_mfmas(): return [f"{M16} {v4(ACC(t, qb))}, {a4(FA(1, t))}, {v4(PP(qb))}, {v4(ACC(t, qb))}" for t in range(12) for qb in range(3)]
    def vstep(wait, dmas):
        p(wait); p("s_barrier")
        rd = reads_t(lambda t: FA(1, t))
        p.ext(rd[:8])
        tr = [(rd[8:], 0, 20), ([f"v_add_u32 v{r}, {sDV}, v{r}" for r in vVr] + [f"s_sub_u32 {sDV}, 0, {sDV}"], 24, 32)]
        if dmas: tr.append((dmas, 2, 34))
        p.ext(weave2(pv_mfmas(), tr))
    p("L_a:")
    kstep("s_waitcnt vmcnt(12)", dma_v() + [adv_v()])
    vstep("s_waitcnt vmcnt(12)", dma_k() + [adv_k()])
    p(f"s_add_u32 {sI}, {sI}, 1\ns_cmp_lt_u32 {sI}, 14\ns_cbranch_scc1 L_a")
    stamp(p)
    vm = VM(["t28"] * 6 + ["t29"] * 6 + ["t30"] * 6)
    w = vm.wait("t28"); vm.issue("t31", 6); kstep(w, dma_v())
    w = vm.wait("t29"); vm.issue("w0", 6); vstep(w, dma_wo(0, 4))
    w = vm.wait("t30"); vm.issue("w1", 6); kstep(w, dma_wo(1, 5))
    for op in ("v_permlane32_swap_b32", "v_permlane16_swap_b32"):
        for qb in range(3): p(f"v_mov_b32 v{vTm[qb]}, v{vL[qb]}")
        for qb in range(3): p(f"{op} v{vL[qb]}, v{vTm[qb]}")
        for qb in range(3): p(f"v_add_f32 v{vL[qb]}, v{vL[qb]}, v{vTm[qb]}")
    for qb in range(3): p(f"v_rcp_f32 v{vAl[qb]}, v{vL[qb]}")
    p(vm.wait("t31")); p("s_barrier")
    stamp(p)
    rd = reads_t(lambda t: FA(1, t))
    mf = pv_mfmas()
    p.ext(rd[:8])
    vm.issue("w2", 6)
    p.ext(weave2(mf[:18], [(rd[8:], 0, 12), (dma_wo(2, 0), 0, 12)]))
    p("s_waitcnt lgkmcnt(0)"); p(vm.wait("w0")); p("s_barrier")
    AB = [144, 96]
    def reads_wo(sig, slot):
        g = []
        for kk in range(6):
            r = AB[sig & 1] + 4 * kk
            o = (slot & 1) * SLOT + (32 * (kk >> 1) + 8 * (kk & 1)) * 256
            g.append(f"ds_read_b64_tr_b16 v[{r}:{r+1}], v{vOr[slot>>1]} offset:{o}")
            g.append(f"ds_read_b64_tr_b16 v[{r+2}:{r+3}], v{vOr[slot>>1]} offset:{o+4096}")
        return g
    def o_out(tp):
        g = []
        for qb in range(3):
            a, b = ACC(2 * tp, qb), ACC(2 * tp + 1, qb)
            for r in (a, a + 2, b, b + 2):
                g.append(f"v_pk_mul_f32 v[{r}:{r+1}], v[{r}:{r+1}], v[{vAl[qb]}:{vAl[qb]+1}] op_sel_hi:[1,0]")
            g += [f"v_cvt_pk_bf16_f32 v{a}, v{a}, v{a+1}", f"v_cvt_pk_bf16_f32 v{a+1}, v{a+2}, v{a+3}",
                  f"v_cvt_pk_bf16_f32 v{a+2}, v{b}, v{b+1}", f"v_cvt_pk_bf16_f32 v{a+3}, v{b+2}, v{b+3}",
                  f"ds_write_b128 v{vOw[qb]}, {v4(a)} offset:{tp*6144}"]
        return g
    p.ext(weave2(mf[18:], [(reads_wo(0, 4), 0, 12), (o_out(0) + o_out(1), 0, 18)]))
    for tp in range(2, 6): p.ext(o_out(tp))
    def BF(kq, kk, Qb):
        f = (kq * 6 + kk) * 3 + Qb
        return a4(4 * f) if f < 64 else v4(168 + 4 * (f - 64))
    def reads_b(kq): return [f"ds_read_b128 {BF(kq, kk, Qb)}, v{vBr[kq>>1]} offset:{((kq&1)*18+kk*3+Qb)*1024}" for kk in range(6) for Qb in range(3)]
    slot_of = {0: 4, 1: 5, 2: 0}
    free = []; nxt = 3
    for sig in range(20):
        ci, kq = divmod(sig, 4)
        if sig < 19:
            p("s_waitcnt lgkmcnt(0)"); p(vm.wait(f"w{sig+1}")); p("s_barrier")
        if sig == 0:
            stamp(p)
            p.ext(reads_b(0)[:9])
        free.append(slot_of[sig])
        if sig == 3: free += [1, 2, 3]
        dm = []
        for _ in range(2):
            if free and nxt < 20:
                slot_of[nxt] = free.pop(0); dm.append((nxt, dma_wo(nxt, slot_of[nxt]))); nxt += 1
        acc = 48 * (ci & 1)
        mf = [f"{M32} v[{acc+16*Qb}:{acc+16*Qb+15}], {v4(AB[sig&1]+4*kk)}, {BF(kq, kk, Qb)}, " + ("0" if kq == 0 and kk == 0 else f"v[{acc+16*Qb}:{acc+16*Qb+15}]")
              for kk in range(6) for Qb in range(3)]
        tr = []
        rd = []
        if sig == 0: rd += reads_b(0)[9:]
        if sig < 19: rd += reads_wo(sig + 1, slot_of[sig + 1])
        if sig < 3: rd += reads_b(sig + 1)
        tr.append((rd, 0, 15))
        vops = []
        for tag, g in dm:
            vops += g; vm.issue(f"w{tag}", 6)
        def outs(ci_):
            g = []
            a0 = 48 * (ci_ & 1)
            for Qb in range(3):
                for j in range(2):
                    r = 120 + 4 * (2 * Qb + j); a = a0 + 16 * Qb + 8 * j
                    k = 2 * Qb + j
                    g.append([f"v_cvt_pk_bf16_f32 v{r+i}, v{a+2*i}, v{a+2*i+1}" for i in range(4)] +
                             [f"buffer_store_dwordx4 {v4(r)}, v{vPs[k//3]}, {srd(sP)}, {sT0} offen offset:{1024*(k%3)} {OPT['pst']}"])
            g[0] = [f"s_mul_i32 {sT0}, {sCo[ci_]}, 96"] + g[0]
            return g
        if kq == 0 and ci > 0:
            tr.append((vops, 0, 9)); tr.append((outs(ci - 1), 9, 18)); vm.issue("st", 6)
        else:
            tr.append((vops, 0, 16))
        p.ext(weave2(mf, tr))
    p.ext(flat(outs(4)))
    if OPT["stamps"]:
        stamp(p)
        p("s_waitcnt vmcnt(0)")
        stamp(p)
        p(f"s_lshl_b32 {sT0}, s2, 2\ns_add_u32 {sT0}, {sT0}, {sW}\ns_lshl_b32 {sT0}, {sT0}, 8\ns_add_u32 {sT0}, {sT0}, {STAMP_OFF}")
        p(f"v_lshlrev_b32 v0, 2, v{vLn}\nv_add_u32 v0, {sT0}, v0")
        p("global_store_dword v0, v255, s[24:25]")
    p("L_exit:\ns_endpgm")
    p.auto_lgkm(); p.auto_nop()
    return p

def reduce_kernel():
    p = Prog()
    p("reduce_kernel:")
    p("s_cmp_ge_u32 s2, 240\ns_cbranch_scc1 L_rexit")
    p("s_load_dwordx2 s[4:5], s[0:1], 80\ns_load_dwordx2 s[6:7], s[0:1], 96")
    if OPT["stamps"]: p("s_memrealtime s[30:31]")
    p("s_and_b32 s16, s2, 15\ns_lshr_b32 s17, s2, 4\ns_mul_i32 s18, s17, 86\ns_lshr_b32 s18, s18, 8")
    p("s_mul_i32 s19, s18, 3\ns_sub_u32 s19, s17, s19")
    p("v_lshrrev_b32 v1, 6, v0\nv_and_b32 v2, 63, v0")
    p("v_mul_u32_u24 v3, 6144, v1\nv_lshl_add_u32 v3, v2, 4, v3")
    p("s_mul_i32 s20, s18, 24576\ns_lshl_b32 s21, s19, 11\ns_add_u32 s20, s20, s21\nv_add_u32 v3, s20, v3")
    p(f"s_mul_i32 s21, s16, {16*PART}")
    p("s_waitcnt lgkmcnt(0)")
    p(f"s_add_u32 s8, s6, s21\ns_addc_u32 s9, s7, 0\ns_and_b32 s9, s9, 0xffff\ns_mov_b32 s10, {16*PART}\ns_mov_b32 s11, 0x20000")
    p("s_mov_b32 s22, 0")
    for h in range(16):
        for j in range(2):
            r = 32 + 8 * h + 4 * j
            p(f"buffer_load_dwordx4 v[{r}:{r+3}], v3, s[8:11], s22 offen offset:{1024*j} {OPT['pld']}")
        if h < 15: p(f"s_add_u32 s22, s22, {PART}")
    p("s_mov_b32 s12, s4\ns_and_b32 s13, s5, 0xffff\ns_mov_b32 s14, 1966080\ns_mov_b32 s15, 0x20000")
    p("s_and_b32 s23, s16, 7\ns_mul_i32 s23, s23, 96\ns_lshl_b32 s24, s19, 5\ns_add_u32 s23, s23, s24\ns_mul_i32 s23, s23, 2560")
    p("s_lshr_b32 s24, s16, 3\ns_mul_i32 s24, s24, 1280\ns_add_u32 s23, s23, s24\ns_lshl_b32 s24, s18, 8\ns_add_u32 s23, s23, s24")
    p("v_and_b32 v4, 31, v2\nv_mul_u32_u24 v4, 2560, v4\nv_lshl_add_u32 v4, v1, 6, v4\nv_lshrrev_b32 v5, 5, v2\nv_lshl_add_u32 v4, v5, 5, v4")
    for h in range(16):
        p(f"s_waitcnt vmcnt({30-2*h})")
        for i in range(8):
            r = 32 + 8 * h + i
            if h == 0:
                p(f"v_lshlrev_b32 v{8+2*i}, 16, v{r}\nv_and_b32 v{9+2*i}, 0xffff0000, v{r}")
            else:
                p(f"v_lshlrev_b32 v6, 16, v{r}\nv_and_b32 v7, 0xffff0000, v{r}\nv_pk_add_f32 v[{8+2*i}:{9+2*i}], v[{8+2*i}:{9+2*i}], v[6:7]")
    for i in range(8): p(f"v_cvt_pk_bf16_f32 v{24+i}, v{8+2*i}, v{9+2*i}")
    p("buffer_store_dwordx4 v[24:27], v4, s[12:15], s23 offen\nbuffer_store_dwordx4 v[28:31], v4, s[12:15], s23 offen offset:16")
    if OPT["stamps"]:
        p("s_waitcnt vmcnt(0)\ns_memrealtime s[32:33]\ns_waitcnt lgkmcnt(0)")
        p(f"v_mov_b32 v8, s30\nv_mov_b32 v9, s32\ns_lshl_b32 s20, s2, 5\ns_add_u32 s20, s20, {STAMP_OFF + (1<<20)}")
        p("v_lshl_add_u32 v10, v1, 3, s20\nglobal_store_dwordx2 v10, v[8:9], s[6:7]")
    p("L_rexit:\ns_endpgm")
    p.auto_lgkm(); p.auto_nop()
    return p

def kd(name, vgpr, acc):
    return f""".amdhsa_kernel {name}
  .amdhsa_next_free_vgpr {vgpr}
  .amdhsa_next_free_sgpr 102
  .amdhsa_accum_offset {acc}
  .amdhsa_group_segment_fixed_size 0
  .amdhsa_kernarg_size 104
  .amdhsa_user_sgpr_count 2
  .amdhsa_user_sgpr_kernarg_segment_ptr 1
  .amdhsa_system_sgpr_workgroup_id_x 1
  .amdhsa_float_denorm_mode_32 3
.end_amdhsa_kernel
"""

def build():
    ref = open(f"cdna_kernels/{NAME}.s.ref").read().split("\n")
    head = [l for l in ref if l.startswith(";") and "@launch" not in l and "Override launch" not in l and "grid=ceil" not in l]
    out = "\n".join(head) + "\n"
    out += f"; @launch kernel=attn_kernel grid=(256,1,1) block=(256,1,1) lds={LDS_BYTES}\n"
    out += f"; @launch kernel=reduce_kernel grid=(240,1,1) block=(256,1,1) lds=0\n"
    out += '.amdgcn_target "amdgcn-amd-amdhsa--gfx950"\n.text\n'
    for nm, k in (("attn_kernel", main_kernel()), ("reduce_kernel", reduce_kernel())):
        out += f".globl {nm}\n.p2align 8\n.type {nm},@function\n" + k.text()
    out += '.section .rodata,"a"\n.p2align 6\n' + kd("attn_kernel", 512, 256) + ".p2align 6\n" + kd("reduce_kernel", 160, 160)
    return out

if __name__ == "__main__":
    open(sys.argv[1], "w").write(build())
```

```python
import sys, struct, math
from asmlib import *

NAME = "concat_heads__gqa_block_cached__mha_block_cached__near_ridge"
OPT = dict(stamps=0, wsoff=0, tlb=0, code=0, badmap=0, drop="", kv="nt", wq="", x="", wo="", pst="sc1", pld="", kburst=3, vburst=6)
for a in sys.argv[2:]:
    k, v = a.split("=", 1)
    OPT[k] = int(v) if v.lstrip("-").isdigit() else v

SLOT = 24576
S = [i * SLOT for i in range(6)]
LDS_BYTES = 6 * SLOT
PART = 122880
STAMP_OFF = 64 << 20

sX, sWQ, sK, sV, sWO, sP = 28, 32, 36, 40, 44, 48
def srd(b): return f"s[{b}:{b+3}]"
sW, sB, sHP, sBR, sC = "s52", "s53", "s54", "s55", "s56"
sWQo, sWQlim, sXo, sWQm, sXm, sRd, sI = "s57", "s58", "s59", "s60", "s61", "s62", "s63"
sKo, sVo, sKm, sVm, sDK, sDV = "s64", "s65", "s66", "s67", "s68", "s69"
sT0, sT1, sT2, sT3 = "s70", "s71", "s72", "s73"
sW6, sXd, sCrot, sKrot = "s74", "s75", "s76", "s77"
sCo = ["s78", "s79", "s80", "s81", "s82"]
sKq = ["s83", "s84", "s85", "s86"]
sJ = "s87"
sST = 88
def ACC(t, qb): return (t * 3 + qb) * 4
def SS(kb, qb): return 144 + (kb * 3 + qb) * 4
def PP(qb): return 168 + qb * 4
vM = [180, 181, 182]; vL = [183, 184, 185]; vAl = [186, 188, 190]; vMx = [192, 193, 194]; vTm = [195, 196, 197]; vMc = [187, 189, 191]
vKs = list(range(200, 206)); vVs = [206, 207, 208]; vWs = [209, 210, 211]; vXs = [212, 213, 214]; vOs = [215, 216, 217]
vKr = [218, 219]; vVr = [220, 221, 222, 223]; vXr = [224, 225]; vOr = [226, 227, 228]; vOw = [229, 230, 231]; vBr = [232, 233]; vPs = [234, 235]
vLn = 236; T = list(range(237, 256))
def v4(r): return f"v[{r}:{r+3}]"
def a4(r): return f"a[{r}:{r+3}]"
def QF(ks, qb): return (ks * 3 + qb) * 4
def FA(p, t): return 72 + 48 * p + 4 * t
def FB(p, qb): return 168 + 12 * p + 4 * qb

M16 = "v_mfma_f32_16x16x32_bf16"
M32 = "v_mfma_f32_32x32x16_bf16"

class VM:
    def __init__(self, q): self.q = list(q)
    def issue(self, tag, n=1): self.q += [tag] * n
    def wait(self, *tags):
        idx = max((k for k, t in enumerate(self.q) if t in tags), default=-1)
        n = len(self.q) - 1 - idx
        self.q = self.q[idx + 1:]
        assert n <= 63
        return f"s_waitcnt vmcnt({n})"

nstamp = [0]
def stamp(p):
    if OPT["stamps"]:
        k = nstamp[0]; nstamp[0] += 1
        p(f"s_memrealtime s[{sST}:{sST+1}]")
        p(f"s_memtime s[{sST+2}:{sST+3}]")
        p("s_waitcnt lgkmcnt(0)")
        p(f"v_writelane_b32 v255, s{sST}, {k}")
        p(f"v_writelane_b32 v255, s{sST+2}, {32+k}")

def dma6(vs, srdb, so, mbase, flags, src_step, six=False):
    def val(dst, x, extra):
        if isinstance(x, tuple): r, imm = x
        else: r, imm = x, 0
        imm += extra
        return f"s_add_u32 {dst}, {r}, {imm}" if imm else f"s_mov_b32 {dst}, {r}"
    g = []
    for j in range(6):
        pre = []
        if j % 3 == 0:
            pre = [val("m0", mbase, 3072 * (j // 3)), val(sT3, so, src_step * (j // 3))]
        v = vs[j] if six else vs[j % 3]
        g.append(pre + [f"buffer_load_dwordx4 v{v}, {srd(srdb)}, {sT3} offen offset:{1024*(j%3)} {flags} lds"])
    return g
def dma_k(): return dma6(vKs, sK, sKo, sKm, OPT["kv"], 3072, six=True)
def dma_v(): return dma6(vVs, sV, sVo, sVm, OPT["kv"], 3072)
def dma_wq(): return dma6(vWs, sWQ, sWQo, sWQm, OPT["wq"], 16 * 12288)
def dma_x():
    g = []
    for j in range(3):
        pre = [f"s_mov_b32 m0, {sXm}"] if j == 0 else []
        g.append(pre + [f"buffer_load_dwordx4 v{vXs[j]}, {srd(sX)}, {sXo} offen offset:{1024*j} {OPT['x']} lds"])
    return g
def dma_wo(sig, slot):
    ci, kq = divmod(sig, 4)
    g = dma6(vOs, sWO, sT2, (sW6, S[slot]), OPT["wo"], 12 * 1280)
    g[0] = [f"s_add_u32 {sT2}, {sCo[ci]}, {sKq[kq]}"] + g[0]
    return g
def adv_wq():
    return [f"s_add_u32 {sWQo}, {sWQo}, {32*12288}", f"s_cmp_ge_u32 {sWQo}, {sWQlim}",
            f"s_cselect_b32 {sT0}, {640*12288}, 0", f"s_sub_u32 {sWQo}, {sWQo}, {sT0}",
            f"s_add_u32 {sWQm}, {sWQm}, {SLOT}", f"s_cmp_ge_u32 {sWQm}, {3*SLOT}",
            f"s_cselect_b32 {sT0}, {3*SLOT}, 0", f"s_sub_u32 {sWQm}, {sWQm}, {sT0}"]
def adv_x():
    return [f"s_add_u32 {sXo}, {sXo}, 128", f"s_cmp_ge_u32 {sXo}, 1280", f"s_cselect_b32 {sXo}, 0, {sXo}",
            f"s_xor_b32 {sXm}, {sXm}, {sXd}"]
def adv_k(): return [f"s_add_u32 {sKo}, {sKo}, 12288", f"s_xor_b32 {sKm}, {sKm}, {S[4]}"]
def adv_v(): return [f"s_add_u32 {sVo}, {sVo}, 12288", f"s_sub_u32 {sVm}, {sT1}, {sVm}"]
def flat(g): return [x for y in g for x in ([y] if isinstance(y, str) else y)]

def reads_t(dstf, n=12):
    g = []
    for t in range(n):
        r = dstf(t)
        o = (t >> 2) * 128
        g.append(f"ds_read_b64_tr_b16 a[{r}:{r+1}], v{vVr[t&3]} offset:{o}")
        g.append(f"ds_read_b64_tr_b16 a[{r+2}:{r+3}], v{vVr[t&3]} offset:{o+6144}")
    return g
def reads_x(p, e): return [f"ds_read_b128 {a4(FB(p, qb))}, v{vXr[e]} offset:{qb*2048}" for qb in range(3)]
def adv_rd_wq():
    return [[f"s_add_u32 {sRd}, {sRd}, 1", f"s_cmp_ge_u32 {sRd}, 3", f"s_cselect_b32 {sRd}, 0, {sRd}",
             f"s_cselect_b32 {sT0}, {-2*SLOT & 0xffffffff}, {sT2}"]] + [f"v_add_u32 v{r}, {sT0}, v{r}" for r in vVr]

def main_kernel():
    p = Prog()
    p(f"attn_kernel:")
    p("s_cmp_ge_u32 s2, 256\ns_cbranch_scc1 L_exit")
    if OPT["badmap"]:
        p("s_and_b32 s3, s2, 7\ns_lshl_b32 s3, s3, 3\ns_bfe_u32 s4, s2, 0x30003\ns_or_b32 s3, s3, s4\ns_and_b32 s2, s2, 0xc0\ns_or_b32 s2, s2, s3")
    p("s_load_dwordx16 s[4:19], s[0:1], 0\ns_load_dwordx4 s[20:23], s[0:1], 64\ns_load_dwordx2 s[24:25], s[0:1], 96")
    if OPT["stamps"]: p("v_mov_b32 v255, 0")
    p(f"v_lshrrev_b32 v{T[0]}, 6, v0\nv_and_b32 v{vLn}, 63, v0")
    p(f"v_readfirstlane_b32 {sW}, v{T[0]}")
    p(f"s_bfe_u32 {sBR}, s2, 0x10002\ns_and_b32 {sT0}, s2, 3\ns_bfe_u32 {sB}, s2, 0x30003\ns_lshr_b32 {sJ}, s2, 6")
    p(f"s_lshl_b32 {sHP}, {sT0}, 2\ns_add_u32 {sHP}, {sHP}, {sJ}")
    p(f"s_mul_i32 {sW6}, {sW}, 6144")
    p(f"s_mul_i32 {sT0}, {sJ}, 5\ns_lshr_b32 {sT0}, {sT0}, 1\ns_add_u32 {sT0}, {sT0}, {sB}")
    p(f"s_cmp_ge_u32 {sT0}, 10\ns_cselect_b32 {sT1}, 10, 0\ns_sub_u32 {sT0}, {sT0}, {sT1}")
    p(f"s_lshl_b32 {sXo}, {sT0}, 7")
    p(f"s_and_b32 {sT1}, {sW}, 1\ns_lshr_b32 {sT2}, {sW}, 1")
    p(f"s_mul_i32 {sWQlim}, {sT1}, {4*12288}\ns_mul_i32 {sT3}, {sT2}, 384\ns_add_u32 {sWQlim}, {sWQlim}, {sT3}")
    p(f"s_mul_i32 {sWQo}, {sT0}, {64*12288}\ns_add_u32 {sWQo}, {sWQo}, {sWQlim}\ns_add_u32 {sWQlim}, {sWQlim}, {640*12288}")
    p(f"s_add_u32 {sWQm}, {sW6}, {S[1]}")
    p(f"s_mul_i32 {sXm}, {sW}, 3072\ns_add_u32 {sXm}, {sXm}, {S[3]}")
    p(f"s_add_u32 {sXd}, {sXm}, 12288\ns_xor_b32 {sXd}, {sXd}, {sXm}")
    p(f"s_mul_i32 {sKo}, {sT2}, 196608\ns_mul_i32 {sT3}, {sT1}, 6144\ns_add_u32 {sKo}, {sKo}, {sT3}\ns_mov_b32 {sVo}, {sKo}")
    p(f"s_add_u32 {sKm}, {sW6}, {S[4]}\ns_add_u32 {sVm}, {sW6}, {S[5]}")
    l = f"v{vLn}"
    t0, t1, t2, t3, t4 = (f"v{r}" for r in T[:5])
    p(f"s_mul_i32 {sT0}, {sW}, 24")
    for j in range(3):
        p(f"v_lshrrev_b32 {t0}, 3, {l}\nv_add_u32 {t0}, {sT0}, {t0}\nv_add_u32 {t0}, {8*j}, {t0}")
        p(f"v_bfe_u32 {t1}, {t0}, 1, 3\nv_and_b32 {t2}, 7, {l}\nv_xor_b32 {t1}, {t1}, {t2}\nv_lshlrev_b32 {t1}, 4, {t1}")
        p(f"v_mul_u32_u24 {t0}, 1280, {t0}\nv_add_u32 {t0}, {t0}, {t1}\nv_subrev_u32 v{vXs[j]}, {1024*j}, {t0}")
    for j in range(6):
        p(f"v_add_u32 {t0}, {64*j}, {l}\nv_mul_u32_u24 {t1}, 2731, {t0}\nv_lshrrev_b32 {t1}, 16, {t1}")
        p(f"v_bfe_u32 {t2}, {t1}, 1, 3\nv_xor_b32 {t2}, {t2}, {l}\nv_lshlrev_b32 v{vKs[j]}, 4, {t2}")
        if j < 3:
            p(f"v_and_b32 {t2}, 6, {t1}\nv_xor_b32 {t3}, {t2}, {l}\nv_lshlrev_b32 v{vVs[j]}, 4, {t3}")
            p(f"v_mul_u32_u24 {t3}, 24, {t1}\nv_sub_u32 {t3}, {t0}, {t3}\nv_xor_b32 {t3}, {t3}, {t2}\nv_lshlrev_b32 {t3}, 4, {t3}")
            p(f"v_lshrrev_b32 {t2}, 2, {t1}\nv_and_b32 {t4}, 3, {t1}\nv_lshl_add_u32 {t2}, {t2}, 3, {t4}")
            p(f"v_mul_u32_u24 {t2}, 12288, {t2}\nv_add_u32 {t2}, {t2}, {t3}\nv_subrev_u32 v{vWs[j]}, {1024*j}, {t2}")
    p("s_waitcnt lgkmcnt(0)")
    stamp(p)
    p(f"s_cmp_eq_u32 {sBR}, 0")
    for k in range(5):
        p(f"s_cselect_b64 s[{4+2*k}:{5+2*k}], s[{4+2*k}:{5+2*k}], s[{14+2*k}:{15+2*k}]")
    def mk(b, ptr, off_s, size):
        p(f"s_add_u32 s{b}, s{ptr}, {off_s}\ns_addc_u32 s{b+1}, s{ptr+1}, 0\ns_and_b32 s{b+1}, s{b+1}, 0xffff")
        p(f"s_mov_b32 s{b+2}, {size}\ns_mov_b32 s{b+3}, 0x20000")
    p(f"s_mul_i32 {sT0}, {sB}, 122880"); mk(sX, 4, sT0, 122880)
    p(f"s_mul_i32 {sT0}, {sHP}, 768"); mk(sWQ, 10, sT0, 639 * 12288 + 768)
    def other_srds():
        p(f"s_lshl_b32 {sT0}, {sB}, 4\ns_add_u32 {sT0}, {sT0}, {sHP}\ns_mul_i32 {sT1}, {sT0}, 393216")
        mk(sK, 6, sT1, 393216); mk(sV, 8, sT1, 393216)
        p(f"s_lshl_b32 {sT1}, {sBR}, 7\ns_add_u32 {sT0}, {sT0}, {sT1}\ns_mul_i32 {sT1}, {sT0}, {PART}\ns_add_u32 {sT1}, {sT1}, {OPT['wsoff']<<20}"); mk(sP, 24, sT1, PART)
        p(f"s_mul_i32 {sT0}, {sHP}, 491520"); mk(sWO, 12, sT0, 491520)
    other_srds()
    ntouch = 0
    if OPT["tlb"]:
        p(f"v_lshlrev_b32 {t0}, 16, {l}\nv_mul_u32_u24 {t1}, {12288*10}, {l}")
        for k, b in enumerate((sK, sV, sWO, sP)):
            p(f"buffer_load_dword v{T[8+k]}, {t0}, {srd(b)}, 0 offen nt"); ntouch += 1
        p(f"buffer_load_dword v{T[12]}, {t1}, {srd(sWQ)}, 0 offen"); ntouch += 1
    if OPT["code"]:
        p("s_getpc_b64 s[26:27]")
        p(f"s_and_b32 s26, s26, 0xffffff00\nv_lshlrev_b32 {t2}, 7, v0")
        p(f"global_load_dword v{T[13]}, {t2}, s[26:27]"); ntouch += 1
    p.ext(flat(dma_x())); p.ext(adv_x())
    p.ext(flat(dma_wq())); p.ext(adv_wq())
    p.ext(flat(dma_wq())); p.ext(adv_wq())
    p.ext(flat(dma_x())); p.ext(adv_x())
    p.ext(flat(dma_wq())); p.ext(adv_wq())
    c = (192 ** -0.5) * math.log2(math.e)
    p(f"s_mov_b32 {sC}, {struct.unpack('<I', struct.pack('<f', c))[0]:#x}")
    p(f"s_lshr_b32 {sCrot}, {sB}, 1\ns_and_b32 {sKrot}, {sB}, 1\ns_lshl_b32 {sKrot}, {sKrot}, 1")
    for ci in range(5):
        p(f"s_add_u32 {sT0}, {sCrot}, {ci}\ns_cmp_ge_u32 {sT0}, 5\ns_cselect_b32 {sT1}, 5, 0\ns_sub_u32 {sT0}, {sT0}, {sT1}\ns_lshl_b32 {sCo[ci]}, {sT0}, 8")
    for kq in range(4):
        p(f"s_xor_b32 {sT0}, {sKrot}, {kq}\ns_mul_i32 {sKq[kq]}, {sT0}, {96*1280}")
    p(f"s_and_b32 {sT1}, {sW}, 1\ns_lshr_b32 {sT2}, {sW}, 1\ns_mul_i32 {sT0}, {sT2}, 12288")
    p(f"v_and_b32 {t0}, 15, {l}\nv_lshrrev_b32 {t1}, 4, {l}\nv_lshrrev_b32 {t2}, 1, {t0}\nv_xor_b32 {t2}, {t2}, {t1}")
    p(f"v_mul_u32_u24 {t3}, 384, {t0}\nv_add_u32 {t3}, {sT0}, {t3}\nv_add_u32 {t3}, {S[4]}, {t3}")
    p(f"v_lshl_add_u32 v{vKr[0]}, {t2}, 4, {t3}\nv_xor_b32 {t4}, 4, {t2}\nv_lshl_add_u32 v{vKr[1]}, {t4}, 4, {t3}")
    p(f"s_mul_i32 {sT3}, {sT1}, {48*128}\ns_add_u32 {sT3}, {sT3}, {S[3]}")
    p(f"v_lshlrev_b32 {t3}, 7, {t0}\nv_add_u32 {t3}, {sT3}, {t3}")
    p(f"v_lshl_add_u32 v{vXr[0]}, {t2}, 4, {t3}\nv_lshl_add_u32 v{vXr[1]}, {t4}, 4, {t3}")
    p(f"v_lshrrev_b32 {t2}, 1, {t1}\nv_mul_u32_u24 {t2}, 3072, {t2}\nv_and_b32 {t3}, 1, {t1}\nv_lshl_add_u32 {t2}, {t3}, 9, {t2}\nv_lshl_add_u32 {t2}, {t0}, 4, {t2}")
    for qb in range(3):
        p(f"s_mul_i32 {sI}, {sT1}, 3\ns_add_u32 {sI}, {sI}, {qb}\ns_lshr_b32 {sT3}, {sI}, 1\ns_lshl_b32 {sT3}, {sT3}, 10")
        p(f"s_and_b32 {sI}, {sI}, 1\ns_lshl_b32 {sI}, {sI}, 8\ns_add_u32 {sT3}, {sT3}, {sI}")
        p(f"s_mul_i32 {sI}, {sT2}, 36864\ns_add_u32 {sT3}, {sT3}, {sI}\ns_add_u32 {sT3}, {sT3}, {S[1]}")
        p(f"v_add_u32 v{vOw[qb]}, {sT3}, {t2}")
    p(f"s_mul_i32 {sT3}, {sW}, 24\nv_lshlrev_b32 {t2}, 2, {t1}\nv_xor_b32 {t2}, {t2}, {t0}\nv_add_u32 {t3}, {sT3}, {t1}")
    p(f"v_mul_u32_u24 {t3}, 1280, {t3}\nv_lshl_add_u32 v{vOs[0]}, {t2}, 4, {t3}")
    p(f"v_add_u32 v{vOs[1]}, 4096, v{vOs[0]}\nv_add_u32 v{vOs[2]}, 8192, v{vOs[0]}")
    p(f"v_lshrrev_b32 {t0}, 2, {l}\nv_and_b32 {t1}, 3, {l}\nv_bfe_u32 {t2}, {l}, 3, 2")
    p(f"v_mul_u32_u24 {t3}, 384, {t0}\nv_lshl_add_u32 {t3}, {t1}, 3, {t3}\nv_add_u32 {t3}, {sT0}, {t3}\nv_add_u32 {t3}, {S[1]}, {t3}")
    for dl in range(4):
        p(f"v_xor_b32 {t4}, {dl}, {t2}\nv_lshl_add_u32 v{vVr[dl]}, {t4}, 5, {t3}")
    p(f"v_and_b32 {t0}, 3, {t0}\nv_lshrrev_b32 {t2}, 5, {l}\nv_lshl_add_u32 {t2}, {t2}, 2, {t0}\nv_lshlrev_b32 {t2}, 8, {t2}")
    p(f"v_xor_b32 {t0}, {sW}, {t0}\nv_lshl_add_u32 {t2}, {t0}, 6, {t2}")
    p(f"v_and_b32 {t0}, 1, {l}\nv_lshl_add_u32 {t2}, {t0}, 5, {t2}\nv_bfe_u32 {t0}, {l}, 4, 1\nv_lshl_add_u32 {t2}, {t0}, 4, {t2}")
    p(f"v_bfe_u32 {t0}, {l}, 1, 1\nv_lshl_add_u32 v{vOr[0]}, {t0}, 3, {t2}")
    p(f"v_add_u32 v{vOr[1]}, {S[2]}, v{vOr[0]}\nv_add_u32 v{vOr[2]}, {S[4]}, v{vOr[0]}")
    p(f"v_lshlrev_b32 {t0}, 4, {l}\ns_mul_i32 {sT3}, {sKrot}, 18432\ns_add_u32 {sT3}, {sT3}, {S[1]}\nv_add_u32 v{vBr[0]}, {sT3}, {t0}")
    p(f"s_xor_b32 {sT3}, {sKrot}, 2\ns_mul_i32 {sT3}, {sT3}, 18432\ns_add_u32 {sT3}, {sT3}, {S[1]}\nv_add_u32 v{vBr[1]}, {sT3}, {t0}")
    p(f"v_add_u32 v{vPs[0]}, {sW6}, {t0}\nv_add_u32 v{vPs[1]}, 3072, v{vPs[0]}")
    for r in range(144): p(f"v_mov_b32 v{r}, 0")
    for qb in range(3): p(f"v_mov_b32 v{vM[qb]}, 0xff7fffff\nv_mov_b32 v{vL[qb]}, 0")
    p(f"s_mov_b32 {sRd}, 1\ns_mov_b32 {sT2}, {SLOT}\ns_mov_b32 {sI}, 0\ns_mov_b32 {sDK}, 12288")
    p(f"s_lshl_b32 {sT1}, {sW6}, 1\ns_add_u32 {sT1}, {sT1}, {S[5]+S[3]}")
    p("s_waitcnt vmcnt(15)\ns_barrier")
    stamp(p)
    p.ext(reads_x(0, 0) + reads_t(lambda t: FA(0, t)))
    p.ext(flat(adv_rd_wq()))
    p(f"v_add_u32 v{vXr[0]}, {sDK}, v{vXr[0]}")
    def qstep(par, wait, dmas, do_reads=True, extra=None):
        p(wait); p("s_waitcnt lgkmcnt(0)\ns_barrier")
        mf = [f"{M16} {v4(ACC(t, qb))}, {a4(FA(par, t))}, {a4(FB(par, qb))}, {v4(ACC(t, qb))}" for t in range(12) for qb in range(3)]
        tr = []
        if do_reads:
            rd = reads_x(1 - par, 1 - par) + reads_t(lambda t: FA(1 - par, t))
            tr.append((rd, 0, 27))
            post = adv_rd_wq()
            if par == 0: post.append(f"v_add_u32 v{vXr[1]}, {sDK}, v{vXr[1]}")
            else: post.append([f"s_sub_u32 {sDK}, 0, {sDK}", f"v_add_u32 v{vXr[0]}, {sDK}, v{vXr[0]}"])
            tr.append((post, 28, 34))
        if dmas: tr.append((dmas, 0, 27))
        p.ext(weave2(mf, tr))
    p("s_waitcnt lgkmcnt(0)")
    p("L_q:")
    qstep(0, "s_waitcnt vmcnt(9)", dma_wq() + [adv_wq()])
    qstep(1, "s_waitcnt vmcnt(6)", dma_x() + [adv_x()] + dma_wq() + [adv_wq()])
    p("s_waitcnt lgkmcnt(0)")
    p(f"s_cmp_lg_u32 {sI}, {OPT['kburst']}\ns_cbranch_scc1 L_q1")
    p.ext(flat(dma_k())); p.ext(adv_k())
    p("L_q1:")
    p(f"s_cmp_lg_u32 {sI}, {OPT['vburst']}\ns_cbranch_scc1 L_q2")
    p.ext(flat(dma_v())); p.ext(adv_v())
    p("L_q2:")
    p(f"s_add_u32 {sI}, {sI}, 1\ns_cmp_lt_u32 {sI}, 8\ns_cbranch_scc1 L_q")
    vm = VM(["wq17"] * 6 + ["x9"] * 3 + ["wq18"] * 6)
    w = vm.wait("wq17"); vm.issue("wq19", 6); qstep(0, w, dma_wq())
    w = vm.wait("wq18"); vm.issue("t2", 6); qstep(1, w, dma_k() + [adv_k()])
    w = vm.wait("wq19"); qstep(0, w, None)
    qstep(1, "s_nop 0", None, do_reads=False)
    stamp(p)
    for ks in range(6):
        for qb in range(3):
            a, b = ACC(2 * ks, qb), ACC(2 * ks + 1, qb)
            r = 144 + 4 * qb + 12 * (ks & 1)
            p(f"v_cvt_pk_bf16_f32 v{r}, v{a}, v{a+1}\nv_cvt_pk_bf16_f32 v{r+1}, v{a+2}, v{a+3}")
            p(f"v_cvt_pk_bf16_f32 v{r+2}, v{b}, v{b+1}\nv_cvt_pk_bf16_f32 v{r+3}, v{b+2}, v{b+3}")
        for op in ("v_permlane32_swap_b32", "v_permlane16_swap_b32"):
            for qb in range(3):
                r = 144 + 4 * qb + 12 * (ks & 1)
                p(f"{op} v{r}, v{r+2}\n{op} v{r+1}, v{r+3}")
        for qb in range(3):
            r = 144 + 4 * qb + 12 * (ks & 1)
            for i in range(4): p(f"v_accvgpr_write_b32 a{QF(ks, qb)+i}, v{r+i}")
    for r in vVr: p(f"v_add_u32 v{r}, {S[5]}, v{r}")
    p(f"s_mov_b32 {sDK}, {-4*SLOT & 0xffffffff}\ns_mov_b32 {sDV}, {-2*SLOT & 0xffffffff}\ns_mov_b32 {sI}, 0")
    stamp(p)

    def kstep(wait, dmas):
        p(wait); p("s_barrier")
        rd = [f"ds_read_b128 {a4(FA(0, ks*2+kb))}, v{vKr[ks&1]} offset:{kb*6144+(ks>>1)*128}" for ks in range(6) for kb in range(2)]
        mf = [f"{M16} {v4(SS(kb, qb))}, {a4(FA(0, ks*2+kb))}, {a4(QF(ks, qb))}, {'0' if ks == 0 else v4(SS(kb, qb))}"
              for ks in range(6) for kb in range(2) for qb in range(3)]
        p.ext(rd[:6])
        tr = [(rd[6:], 0, 12), ([f"v_add_u32 v{r}, {sDK}, v{r}" for r in vKr] + [f"s_sub_u32 {sDK}, 0, {sDK}"], 20, 26)]
        if dmas: tr.append((dmas[:3], 2, 32))
        p.ext(weave2(mf, tr))
        sm = []
        s = lambda qb: [SS(0, qb) + i for i in range(4)] + [SS(1, qb) + i for i in range(4)]
        for a_, b_ in ((None, 0), (3, 1), (5, 2), (7, 3)):
            for qb in range(3):
                x = s(qb)
                if b_ == 0: sm.append(f"v_max3_f32 v{vMx[qb]}, v{x[0]}, v{x[1]}, v{x[2]}")
                elif b_ < 3: sm.append(f"v_max3_f32 v{vMx[qb]}, v{vMx[qb]}, v{x[a_]}, v{x[a_+1]}")
                else: sm.append(f"v_max3_f32 v{vMx[qb]}, v{vMx[qb]}, v{x[7]}, v{vM[qb]}")
        for op in ("v_permlane32_swap_b32", "v_permlane16_swap_b32"):
            for qb in range(3): sm.append(f"v_mov_b32 v{vTm[qb]}, v{vMx[qb]}")
            for qb in range(3): sm.append(f"{op} v{vMx[qb]}, v{vTm[qb]}")
            for qb in range(3): sm.append(f"v_max_f32 v{vMx[qb]}, v{vMx[qb]}, v{vTm[qb]}")
        for qb in range(3): sm.append(f"v_sub_f32 v{vTm[qb]}, v{vM[qb]}, v{vMx[qb]}")
        for qb in range(3): sm.append(f"v_mul_f32 v{vMc[qb]}, {sC}, v{vMx[qb]}")
        for qb in range(3): sm.append(f"v_mul_f32 v{vTm[qb]}, {sC}, v{vTm[qb]}")
        for qb in range(3): sm.append(f"v_mov_b32 v{vM[qb]}, v{vMx[qb]}")
        for qb in range(3): sm.append(f"v_exp_f32 v{vAl[qb]}, v{vTm[qb]}")
        for qb in range(3):
            x = s(qb)
            for r in x: sm.append(f"v_fma_f32 v{r}, v{r}, {sC}, -v{vMc[qb]}")
            for r in x: sm.append(f"v_exp_f32 v{r}, v{r}")
            sm.append(f"v_fma_f32 v{vL[qb]}, v{vL[qb]}, v{vAl[qb]}, v{x[0]}")
            sm.append(f"v_add_f32 v{vTm[qb]}, v{x[1]}, v{x[2]}")
            sm.append(f"v_add_f32 v{vL[qb]}, v{vL[qb]}, v{x[3]}")
            sm.append(f"v_add_f32 v{vTm[qb]}, v{vTm[qb]}, v{x[4]}")
            sm.append(f"v_add_f32 v{vL[qb]}, v{vL[qb]}, v{x[5]}")
            sm.append(f"v_add_f32 v{vTm[qb]}, v{vTm[qb]}, v{x[6]}")
            sm.append(f"v_add_f32 v{vL[qb]}, v{vL[qb]}, v{x[7]}")
            for i in range(4): sm.append(f"v_cvt_pk_bf16_f32 v{PP(qb)+i}, v{x[2*i]}, v{x[2*i+1]}")
            sm.append(f"v_add_f32 v{vL[qb]}, v{vL[qb]}, v{vTm[qb]}")
        for t in range(12):
            for qb in range(3):
                for h in (0, 2):
                    r = ACC(t, qb) + h
                    sm.append(f"v_pk_mul_f32 v[{r}:{r+1}], v[{r}:{r+1}], v[{vAl[qb]}:{vAl[qb]+1}] op_sel_hi:[1,0]")
        p.ext(weave(sm, dmas[3:], 10, len(sm) - 10) if dmas else sm)
    def pv_mfmas(): return [f"{M16} {v4(ACC(t, qb))}, {a4(FA(1, t))}, {v4(PP(qb))}, {v4(ACC(t, qb))}" for t in range(12) for qb in range(3)]
    def vstep(wait, dmas):
        p(wait); p("s_barrier")
        rd = reads_t(lambda t: FA(1, t))
        p.ext(rd[:8])
        tr = [(rd[8:], 0, 20), ([f"v_add_u32 v{r}, {sDV}, v{r}" for r in vVr] + [f"s_sub_u32 {sDV}, 0, {sDV}"], 24, 32)]
        if dmas: tr.append((dmas, 2, 34))
        p.ext(weave2(pv_mfmas(), tr))
    p("L_a:")
    kstep("s_waitcnt vmcnt(12)", dma_v() + [adv_v()])
    vstep("s_waitcnt vmcnt(12)", dma_k() + [adv_k()])
    p(f"s_add_u32 {sI}, {sI}, 1\ns_cmp_lt_u32 {sI}, 14\ns_cbranch_scc1 L_a")
    stamp(p)
    vm = VM(["t28"] * 6 + ["t29"] * 6 + ["t30"] * 6)
    w = vm.wait("t28"); vm.issue("t31", 6); kstep(w, dma_v())
    w = vm.wait("t29"); vm.issue("w0", 6); vstep(w, dma_wo(0, 4))
    w = vm.wait("t30"); vm.issue("w1", 6); kstep(w, dma_wo(1, 5))
    for op in ("v_permlane32_swap_b32", "v_permlane16_swap_b32"):
        for qb in range(3): p(f"v_mov_b32 v{vTm[qb]}, v{vL[qb]}")
        for qb in range(3): p(f"{op} v{vL[qb]}, v{vTm[qb]}")
        for qb in range(3): p(f"v_add_f32 v{vL[qb]}, v{vL[qb]}, v{vTm[qb]}")
    for qb in range(3): p(f"v_rcp_f32 v{vAl[qb]}, v{vL[qb]}")
    p(vm.wait("t31")); p("s_barrier")
    stamp(p)
    rd = reads_t(lambda t: FA(1, t))
    mf = pv_mfmas()
    p.ext(rd[:8])
    vm.issue("w2", 6)
    p.ext(weave2(mf[:18], [(rd[8:], 0, 12), (dma_wo(2, 0), 0, 12)]))
    p("s_waitcnt lgkmcnt(0)"); p(vm.wait("w0")); p("s_barrier")
    AB = [144, 96]
    def reads_wo(sig, slot):
        g = []
        for kk in range(6):
            r = AB[sig & 1] + 4 * kk
            o = (slot & 1) * SLOT + (32 * (kk >> 1) + 8 * (kk & 1)) * 256
            g.append(f"ds_read_b64_tr_b16 v[{r}:{r+1}], v{vOr[slot>>1]} offset:{o}")
            g.append(f"ds_read_b64_tr_b16 v[{r+2}:{r+3}], v{vOr[slot>>1]} offset:{o+4096}")
        return g
    def o_out(tp):
        g = []
        for qb in range(3):
            a, b = ACC(2 * tp, qb), ACC(2 * tp + 1, qb)
            for r in (a, a + 2, b, b + 2):
                g.append(f"v_pk_mul_f32 v[{r}:{r+1}], v[{r}:{r+1}], v[{vAl[qb]}:{vAl[qb]+1}] op_sel_hi:[1,0]")
            g += [f"v_cvt_pk_bf16_f32 v{a}, v{a}, v{a+1}", f"v_cvt_pk_bf16_f32 v{a+1}, v{a+2}, v{a+3}",
                  f"v_cvt_pk_bf16_f32 v{a+2}, v{b}, v{b+1}", f"v_cvt_pk_bf16_f32 v{a+3}, v{b+2}, v{b+3}",
                  f"ds_write_b128 v{vOw[qb]}, {v4(a)} offset:{tp*6144}"]
        return g
    p.ext(weave2(mf[18:], [(reads_wo(0, 4), 0, 12), (o_out(0) + o_out(1), 0, 18)]))
    for tp in range(2, 6): p.ext(o_out(tp))
    def BF(kq, kk, Qb):
        f = (kq * 6 + kk) * 3 + Qb
        return a4(4 * f) if f < 64 else v4(168 + 4 * (f - 64))
    def reads_b(kq): return [f"ds_read_b128 {BF(kq, kk, Qb)}, v{vBr[kq>>1]} offset:{((kq&1)*18+kk*3+Qb)*1024}" for kk in range(6) for Qb in range(3)]
    slot_of = {0: 4, 1: 5, 2: 0}
    free = []; nxt = 3
    for sig in range(20):
        ci, kq = divmod(sig, 4)
        if sig < 19:
            p("s_waitcnt lgkmcnt(0)"); p(vm.wait(f"w{sig+1}")); p("s_barrier")
        if sig == 0:
            stamp(p)
            p.ext(reads_b(0)[:9])
        free.append(slot_of[sig])
        if sig == 3: free += [1, 2, 3]
        dm = []
        for _ in range(2):
            if free and nxt < 20:
                slot_of[nxt] = free.pop(0); dm.append((nxt, dma_wo(nxt, slot_of[nxt]))); nxt += 1
        acc = 48 * (ci & 1)
        mf = [f"{M32} v[{acc+16*Qb}:{acc+16*Qb+15}], {v4(AB[sig&1]+4*kk)}, {BF(kq, kk, Qb)}, " + ("0" if kq == 0 and kk == 0 else f"v[{acc+16*Qb}:{acc+16*Qb+15}]")
              for kk in range(6) for Qb in range(3)]
        tr = []
        rd = []
        if sig == 0: rd += reads_b(0)[9:]
        if sig < 19: rd += reads_wo(sig + 1, slot_of[sig + 1])
        if sig < 3: rd += reads_b(sig + 1)
        tr.append((rd, 0, 15))
        vops = []
        for tag, g in dm:
            vops += g; vm.issue(f"w{tag}", 6)
        def outs(ci_):
            g = []
            a0 = 48 * (ci_ & 1)
            for Qb in range(3):
                for j in range(2):
                    r = 120 + 4 * (2 * Qb + j); a = a0 + 16 * Qb + 8 * j
                    k = 2 * Qb + j
                    g.append([f"v_cvt_pk_bf16_f32 v{r+i}, v{a+2*i}, v{a+2*i+1}" for i in range(4)] +
                             [f"buffer_store_dwordx4 {v4(r)}, v{vPs[k//3]}, {srd(sP)}, {sT0} offen offset:{1024*(k%3)} {OPT['pst']}"])
            g[0] = [f"s_mul_i32 {sT0}, {sCo[ci_]}, 96"] + g[0]
            return g
        if kq == 0 and ci > 0:
            tr.append((vops, 0, 9)); tr.append((outs(ci - 1), 9, 18)); vm.issue("st", 6)
        else:
            tr.append((vops, 0, 16))
        p.ext(weave2(mf, tr))
    p.ext(flat(outs(4)))
    if OPT["stamps"]:
        stamp(p)
        p("s_waitcnt vmcnt(0)")
        stamp(p)
        p(f"s_lshl_b32 {sT0}, s2, 2\ns_add_u32 {sT0}, {sT0}, {sW}\ns_lshl_b32 {sT0}, {sT0}, 8\ns_add_u32 {sT0}, {sT0}, {STAMP_OFF}")
        p(f"v_lshlrev_b32 v0, 2, v{vLn}\nv_add_u32 v0, {sT0}, v0")
        p("global_store_dword v0, v255, s[24:25]")
    p("L_exit:\ns_endpgm")
    d = OPT["drop"]
    def keep(i):
        if "m" in d and i.kind == "mfma": return False
        if "w" in d and i.lds_dma and i.src & {("s", sWQ), ("s", sX), ("s", sWO)}: return False
        if "r" in d and i.kind == "ds": return False
        if "s" in d and i.wide_store: return False
        if "b" in d and i.kind == "s_barrier": return False
        return True
    p.auto_lgkm(); p.auto_nop()
    p.ins = [i if keep(i) else Ins("s_nop 0") for i in p.ins]
    return p

def reduce_kernel():
    p = Prog()
    p("reduce_kernel:")
    p("s_cmp_ge_u32 s2, 240\ns_cbranch_scc1 L_rexit")
    p("s_load_dwordx2 s[4:5], s[0:1], 80\ns_load_dwordx2 s[6:7], s[0:1], 96")
    if OPT["stamps"]: p("s_memrealtime s[30:31]")
    p("s_and_b32 s16, s2, 15\ns_lshr_b32 s17, s2, 4\ns_mul_i32 s18, s17, 86\ns_lshr_b32 s18, s18, 8")
    p("s_mul_i32 s19, s18, 3\ns_sub_u32 s19, s17, s19")
    p("v_lshrrev_b32 v1, 6, v0\nv_and_b32 v2, 63, v0")
    p("v_mul_u32_u24 v3, 6144, v1\nv_lshl_add_u32 v3, v2, 4, v3")
    p("s_mul_i32 s20, s18, 24576\ns_lshl_b32 s21, s19, 11\ns_add_u32 s20, s20, s21\nv_add_u32 v3, s20, v3")
    p(f"s_mul_i32 s21, s16, {16*PART}\ns_add_u32 s21, s21, {OPT['wsoff']<<20}")
    p("s_waitcnt lgkmcnt(0)")
    p(f"s_add_u32 s8, s6, s21\ns_addc_u32 s9, s7, 0\ns_and_b32 s9, s9, 0xffff\ns_mov_b32 s10, {16*PART}\ns_mov_b32 s11, 0x20000")
    p("s_mov_b32 s22, 0")
    for h in range(16):
        for j in range(2):
            r = 32 + 8 * h + 4 * j
            p(f"buffer_load_dwordx4 v[{r}:{r+3}], v3, s[8:11], s22 offen offset:{1024*j} {OPT['pld']}")
        if h < 15: p(f"s_add_u32 s22, s22, {PART}")
    p("s_mov_b32 s12, s4\ns_and_b32 s13, s5, 0xffff\ns_mov_b32 s14, 1966080\ns_mov_b32 s15, 0x20000")
    p("s_and_b32 s23, s16, 7\ns_mul_i32 s23, s23, 96\ns_lshl_b32 s24, s19, 5\ns_add_u32 s23, s23, s24\ns_mul_i32 s23, s23, 2560")
    p("s_lshr_b32 s24, s16, 3\ns_mul_i32 s24, s24, 1280\ns_add_u32 s23, s23, s24\ns_lshl_b32 s24, s18, 8\ns_add_u32 s23, s23, s24")
    p("v_and_b32 v4, 31, v2\nv_mul_u32_u24 v4, 2560, v4\nv_lshl_add_u32 v4, v1, 6, v4\nv_lshrrev_b32 v5, 5, v2\nv_lshl_add_u32 v4, v5, 5, v4")
    for h in range(16):
        p(f"s_waitcnt vmcnt({30-2*h})")
        for i in range(8):
            r = 32 + 8 * h + i
            if h == 0:
                p(f"v_lshlrev_b32 v{8+2*i}, 16, v{r}\nv_and_b32 v{9+2*i}, 0xffff0000, v{r}")
            else:
                p(f"v_lshlrev_b32 v6, 16, v{r}\nv_and_b32 v7, 0xffff0000, v{r}\nv_pk_add_f32 v[{8+2*i}:{9+2*i}], v[{8+2*i}:{9+2*i}], v[6:7]")
    for i in range(8): p(f"v_cvt_pk_bf16_f32 v{24+i}, v{8+2*i}, v{9+2*i}")
    p("buffer_store_dwordx4 v[24:27], v4, s[12:15], s23 offen\nbuffer_store_dwordx4 v[28:31], v4, s[12:15], s23 offen offset:16")
    if OPT["stamps"]:
        p("s_waitcnt vmcnt(0)\ns_memrealtime s[32:33]\ns_waitcnt lgkmcnt(0)")
        p(f"v_mov_b32 v8, s30\nv_mov_b32 v9, s32\ns_lshl_b32 s20, s2, 5\ns_add_u32 s20, s20, {STAMP_OFF + (1<<20)}")
        p("v_lshl_add_u32 v10, v1, 3, s20\nglobal_store_dwordx2 v10, v[8:9], s[6:7]")
    p("L_rexit:\ns_endpgm")
    p.auto_lgkm(); p.auto_nop()
    return p

def kd(name, vgpr, acc):
    return f""".amdhsa_kernel {name}
  .amdhsa_next_free_vgpr {vgpr}
  .amdhsa_next_free_sgpr 102
  .amdhsa_accum_offset {acc}
  .amdhsa_group_segment_fixed_size 0
  .amdhsa_kernarg_size 104
  .amdhsa_user_sgpr_count 2
  .amdhsa_user_sgpr_kernarg_segment_ptr 1
  .amdhsa_system_sgpr_workgroup_id_x 1
  .amdhsa_float_denorm_mode_32 3
.end_amdhsa_kernel
"""

def build():
    ref = open(f"cdna_kernels/{NAME}.s.ref").read().split("\n")
    head = [l for l in ref if l.startswith(";") and "@launch" not in l and "Override launch" not in l and "grid=ceil" not in l]
    out = "\n".join(head) + "\n"
    out += f"; @launch kernel=attn_kernel grid=(256,1,1) block=(256,1,1) lds={LDS_BYTES}\n"
    out += f"; @launch kernel=reduce_kernel grid=(240,1,1) block=(256,1,1) lds=0\n"
    out += '.amdgcn_target "amdgcn-amd-amdhsa--gfx950"\n.text\n'
    for nm, k in (("attn_kernel", main_kernel()), ("reduce_kernel", reduce_kernel())):
        out += f".globl {nm}\n.p2align 8\n.type {nm},@function\n" + k.text()
    if OPT["code"]: out += ".fill 1024, 4, 0xbf800000\n"
    out += '.section .rodata,"a"\n.p2align 6\n' + kd("attn_kernel", 512, 256) + ".p2align 6\n" + kd("reduce_kernel", 160, 160)
    return out

if __name__ == "__main__":
    open(sys.argv[1], "w").write(build())
```

```python
import sys, struct, math
from asmlib import *

NAME = "concat_heads__gqa_block_cached__mha_block_cached__near_ridge"
OPT = dict(stamps=0, probe=-1, pmul=4, wsoff=0, tlb=0, code=0, badmap=0, drop="", kv="nt", wq="", x="", wo="", pst="sc1", pld="", kburst=3, vburst=6)
for a in sys.argv[2:]:
    k, v = a.split("=", 1)
    OPT[k] = int(v) if v.lstrip("-").isdigit() else v

SLOT = 24576
S = [i * SLOT for i in range(6)]
LDS_BYTES = 6 * SLOT
PART = 122880
STAMP_OFF = 64 << 20

sX, sWQ, sK, sV, sWO, sP = 28, 32, 36, 40, 44, 48
def srd(b): return f"s[{b}:{b+3}]"
sW, sB, sHP, sBR, sC = "s52", "s53", "s54", "s55", "s56"
sWQo, sWQlim, sXo, sWQm, sXm, sRd, sI = "s57", "s58", "s59", "s60", "s61", "s62", "s63"
sKo, sVo, sKm, sVm, sDK, sDV = "s64", "s65", "s66", "s67", "s68", "s69"
sT0, sT1, sT2, sT3 = "s70", "s71", "s72", "s73"
sW6, sXd, sCrot, sKrot = "s74", "s75", "s76", "s77"
sCo = ["s78", "s79", "s80", "s81", "s82"]
sKq = ["s83", "s84", "s85", "s86"]
sJ = "s87"
sST = 88
def ACC(t, qb): return (t * 3 + qb) * 4
def SS(kb, qb): return 144 + (kb * 3 + qb) * 4
def PP(qb): return 168 + qb * 4
vM = [180, 181, 182]; vL = [183, 184, 185]; vAl = [186, 188, 190]; vMx = [192, 193, 194]; vTm = [195, 196, 197]; vMc = [187, 189, 191]
vKs = list(range(200, 206)); vVs = [206, 207, 208]; vWs = [209, 210, 211]; vXs = [212, 213, 214]; vOs = [215, 216, 217]
vKr = [218, 219]; vVr = [220, 221, 222, 223]; vXr = [224, 225]; vOr = [226, 227, 228]; vOw = [229, 230, 231]; vBr = [232, 233]; vPs = [234, 235]
vLn = 236; T = list(range(237, 256))
def v4(r): return f"v[{r}:{r+3}]"
def a4(r): return f"a[{r}:{r+3}]"
def QF(ks, qb): return (ks * 3 + qb) * 4
def FA(p, t): return 72 + 48 * p + 4 * t
def FB(p, qb): return 168 + 12 * p + 4 * qb

M16 = "v_mfma_f32_16x16x32_bf16"
M32 = "v_mfma_f32_32x32x16_bf16"

class VM:
    def __init__(self, q): self.q = list(q)
    def issue(self, tag, n=1): self.q += [tag] * n
    def wait(self, *tags):
        idx = max((k for k, t in enumerate(self.q) if t in tags), default=-1)
        n = len(self.q) - 1 - idx
        self.q = self.q[idx + 1:]
        assert n <= 63
        return f"s_waitcnt vmcnt({n})"

nstamp = [0]
def stamp(p):
    if OPT["stamps"]:
        k = nstamp[0]; nstamp[0] += 1
        p(f"s_memrealtime s[{sST}:{sST+1}]")
        p(f"s_memtime s[{sST+2}:{sST+3}]")
        p("s_waitcnt lgkmcnt(0)")
        p(f"v_writelane_b32 v255, s{sST}, {k}")
        p(f"v_writelane_b32 v255, s{sST+2}, {32+k}")

def dma6(vs, srdb, so, mbase, flags, src_step, six=False):
    def val(dst, x, extra):
        if isinstance(x, tuple): r, imm = x
        else: r, imm = x, 0
        imm += extra
        return f"s_add_u32 {dst}, {r}, {imm}" if imm else f"s_mov_b32 {dst}, {r}"
    g = []
    for j in range(6):
        pre = []
        if j % 3 == 0:
            pre = [val("m0", mbase, 3072 * (j // 3)), val(sT3, so, src_step * (j // 3))]
        v = vs[j] if six else vs[j % 3]
        g.append(pre + [f"buffer_load_dwordx4 v{v}, {srd(srdb)}, {sT3} offen offset:{1024*(j%3)} {flags} lds"])
    return g
def dma_k(): return dma6(vKs, sK, sKo, sKm, OPT["kv"], 3072, six=True)
def dma_v(): return dma6(vVs, sV, sVo, sVm, OPT["kv"], 3072)
def dma_wq(): return dma6(vWs, sWQ, sWQo, sWQm, OPT["wq"], 16 * 12288)
def dma_x():
    g = []
    for j in range(3):
        pre = [f"s_mov_b32 m0, {sXm}"] if j == 0 else []
        g.append(pre + [f"buffer_load_dwordx4 v{vXs[j]}, {srd(sX)}, {sXo} offen offset:{1024*j} {OPT['x']} lds"])
    return g
def dma_wo(sig, slot):
    ci, kq = divmod(sig, 4)
    g = dma6(vOs, sWO, sT2, (sW6, S[slot]), OPT["wo"], 12 * 1280)
    g[0] = [f"s_add_u32 {sT2}, {sCo[ci]}, {sKq[kq]}"] + g[0]
    return g
def adv_wq():
    return [f"s_add_u32 {sWQo}, {sWQo}, {32*12288}", f"s_cmp_ge_u32 {sWQo}, {sWQlim}",
            f"s_cselect_b32 {sT0}, {640*12288}, 0", f"s_sub_u32 {sWQo}, {sWQo}, {sT0}",
            f"s_add_u32 {sWQm}, {sWQm}, {SLOT}", f"s_cmp_ge_u32 {sWQm}, {3*SLOT}",
            f"s_cselect_b32 {sT0}, {3*SLOT}, 0", f"s_sub_u32 {sWQm}, {sWQm}, {sT0}"]
def adv_x():
    return [f"s_add_u32 {sXo}, {sXo}, 128", f"s_cmp_ge_u32 {sXo}, 1280", f"s_cselect_b32 {sXo}, 0, {sXo}",
            f"s_xor_b32 {sXm}, {sXm}, {sXd}"]
def adv_k(): return [f"s_add_u32 {sKo}, {sKo}, 12288", f"s_xor_b32 {sKm}, {sKm}, {S[4]}"]
def adv_v(): return [f"s_add_u32 {sVo}, {sVo}, 12288", f"s_sub_u32 {sVm}, {sT1}, {sVm}"]
def flat(g): return [x for y in g for x in ([y] if isinstance(y, str) else y)]

def reads_t(dstf, n=12):
    g = []
    for t in range(n):
        r = dstf(t)
        o = (t >> 2) * 128
        g.append(f"ds_read_b64_tr_b16 a[{r}:{r+1}], v{vVr[t&3]} offset:{o}")
        g.append(f"ds_read_b64_tr_b16 a[{r+2}:{r+3}], v{vVr[t&3]} offset:{o+6144}")
    return g
def reads_x(p, e): return [f"ds_read_b128 {a4(FB(p, qb))}, v{vXr[e]} offset:{qb*2048}" for qb in range(3)]
def adv_rd_wq():
    return [[f"s_add_u32 {sRd}, {sRd}, 1", f"s_cmp_ge_u32 {sRd}, 3", f"s_cselect_b32 {sRd}, 0, {sRd}",
             f"s_cselect_b32 {sT0}, {-2*SLOT & 0xffffffff}, {sT2}"]] + [f"v_add_u32 v{r}, {sT0}, v{r}" for r in vVr]

def main_kernel():
    p = Prog()
    p(f"attn_kernel:")
    p("s_cmp_ge_u32 s2, 256\ns_cbranch_scc1 L_exit")
    if OPT["badmap"]:
        p("s_and_b32 s3, s2, 7\ns_lshl_b32 s3, s3, 3\ns_bfe_u32 s4, s2, 0x30003\ns_or_b32 s3, s3, s4\ns_and_b32 s2, s2, 0xc0\ns_or_b32 s2, s2, s3")
    p("s_load_dwordx16 s[4:19], s[0:1], 0\ns_load_dwordx4 s[20:23], s[0:1], 64\ns_load_dwordx2 s[24:25], s[0:1], 96")
    if OPT["stamps"]: p("v_mov_b32 v255, 0")
    p(f"v_lshrrev_b32 v{T[0]}, 6, v0\nv_and_b32 v{vLn}, 63, v0")
    p(f"v_readfirstlane_b32 {sW}, v{T[0]}")
    p(f"s_bfe_u32 {sBR}, s2, 0x10002\ns_and_b32 {sT0}, s2, 3\ns_bfe_u32 {sB}, s2, 0x30003\ns_lshr_b32 {sJ}, s2, 6")
    p(f"s_lshl_b32 {sHP}, {sT0}, 2\ns_add_u32 {sHP}, {sHP}, {sJ}")
    p(f"s_mul_i32 {sW6}, {sW}, 6144")
    p(f"s_mul_i32 {sT0}, {sJ}, 5\ns_lshr_b32 {sT0}, {sT0}, 1\ns_add_u32 {sT0}, {sT0}, {sB}")
    p(f"s_cmp_ge_u32 {sT0}, 10\ns_cselect_b32 {sT1}, 10, 0\ns_sub_u32 {sT0}, {sT0}, {sT1}")
    p(f"s_lshl_b32 {sXo}, {sT0}, 7")
    p(f"s_and_b32 {sT1}, {sW}, 1\ns_lshr_b32 {sT2}, {sW}, 1")
    p(f"s_mul_i32 {sWQlim}, {sT1}, {4*12288}\ns_mul_i32 {sT3}, {sT2}, 384\ns_add_u32 {sWQlim}, {sWQlim}, {sT3}")
    p(f"s_mul_i32 {sWQo}, {sT0}, {64*12288}\ns_add_u32 {sWQo}, {sWQo}, {sWQlim}\ns_add_u32 {sWQlim}, {sWQlim}, {640*12288}")
    p(f"s_add_u32 {sWQm}, {sW6}, {S[1]}")
    p(f"s_mul_i32 {sXm}, {sW}, 3072\ns_add_u32 {sXm}, {sXm}, {S[3]}")
    p(f"s_add_u32 {sXd}, {sXm}, 12288\ns_xor_b32 {sXd}, {sXd}, {sXm}")
    p(f"s_mul_i32 {sKo}, {sT2}, 196608\ns_mul_i32 {sT3}, {sT1}, 6144\ns_add_u32 {sKo}, {sKo}, {sT3}\ns_mov_b32 {sVo}, {sKo}")
    p(f"s_add_u32 {sKm}, {sW6}, {S[4]}\ns_add_u32 {sVm}, {sW6}, {S[5]}")
    l = f"v{vLn}"
    t0, t1, t2, t3, t4 = (f"v{r}" for r in T[:5])
    p(f"s_mul_i32 {sT0}, {sW}, 24")
    for j in range(3):
        p(f"v_lshrrev_b32 {t0}, 3, {l}\nv_add_u32 {t0}, {sT0}, {t0}\nv_add_u32 {t0}, {8*j}, {t0}")
        p(f"v_bfe_u32 {t1}, {t0}, 1, 3\nv_and_b32 {t2}, 7, {l}\nv_xor_b32 {t1}, {t1}, {t2}\nv_lshlrev_b32 {t1}, 4, {t1}")
        p(f"v_mul_u32_u24 {t0}, 1280, {t0}\nv_add_u32 {t0}, {t0}, {t1}\nv_subrev_u32 v{vXs[j]}, {1024*j}, {t0}")
    for j in range(6):
        p(f"v_add_u32 {t0}, {64*j}, {l}\nv_mul_u32_u24 {t1}, 2731, {t0}\nv_lshrrev_b32 {t1}, 16, {t1}")
        p(f"v_bfe_u32 {t2}, {t1}, 1, 3\nv_xor_b32 {t2}, {t2}, {l}\nv_lshlrev_b32 v{vKs[j]}, 4, {t2}")
        if j < 3:
            p(f"v_and_b32 {t2}, 6, {t1}\nv_xor_b32 {t3}, {t2}, {l}\nv_lshlrev_b32 v{vVs[j]}, 4, {t3}")
            p(f"v_mul_u32_u24 {t3}, 24, {t1}\nv_sub_u32 {t3}, {t0}, {t3}\nv_xor_b32 {t3}, {t3}, {t2}\nv_lshlrev_b32 {t3}, 4, {t3}")
            p(f"v_lshrrev_b32 {t2}, 2, {t1}\nv_and_b32 {t4}, 3, {t1}\nv_lshl_add_u32 {t2}, {t2}, 3, {t4}")
            p(f"v_mul_u32_u24 {t2}, 12288, {t2}\nv_add_u32 {t2}, {t2}, {t3}\nv_subrev_u32 v{vWs[j]}, {1024*j}, {t2}")
    p("s_waitcnt lgkmcnt(0)")
    stamp(p)
    p(f"s_cmp_eq_u32 {sBR}, 0")
    for k in range(5):
        p(f"s_cselect_b64 s[{4+2*k}:{5+2*k}], s[{4+2*k}:{5+2*k}], s[{14+2*k}:{15+2*k}]")
    def mk(b, ptr, off_s, size):
        p(f"s_add_u32 s{b}, s{ptr}, {off_s}\ns_addc_u32 s{b+1}, s{ptr+1}, 0\ns_and_b32 s{b+1}, s{b+1}, 0xffff")
        p(f"s_mov_b32 s{b+2}, {size}\ns_mov_b32 s{b+3}, 0x20000")
    p(f"s_mul_i32 {sT0}, {sB}, 122880"); mk(sX, 4, sT0, 122880)
    p(f"s_mul_i32 {sT0}, {sHP}, 768"); mk(sWQ, 10, sT0, 639 * 12288 + 768)
    def other_srds():
        p(f"s_lshl_b32 {sT0}, {sB}, 4\ns_add_u32 {sT0}, {sT0}, {sHP}\ns_mul_i32 {sT1}, {sT0}, 393216")
        mk(sK, 6, sT1, 393216); mk(sV, 8, sT1, 393216)
        p(f"s_lshl_b32 {sT1}, {sBR}, 7\ns_add_u32 {sT0}, {sT0}, {sT1}\ns_mul_i32 {sT1}, {sT0}, {PART}\ns_add_u32 {sT1}, {sT1}, {OPT['wsoff']<<20}"); mk(sP, 24, sT1, PART)
        p(f"s_mul_i32 {sT0}, {sHP}, 491520"); mk(sWO, 12, sT0, 491520)
    other_srds()
    ntouch = 0
    if OPT["tlb"]:
        p(f"v_lshlrev_b32 {t0}, 16, {l}\nv_mul_u32_u24 {t1}, {12288*10}, {l}")
        for k, b in enumerate((sK, sV, sWO, sP)):
            p(f"buffer_load_dword v{T[8+k]}, {t0}, {srd(b)}, 0 offen nt"); ntouch += 1
        p(f"buffer_load_dword v{T[12]}, {t1}, {srd(sWQ)}, 0 offen"); ntouch += 1
    if OPT["code"]:
        p("s_getpc_b64 s[26:27]")
        p(f"s_and_b32 s26, s26, 0xffffff00\nv_lshlrev_b32 {t2}, 7, v0")
        p(f"global_load_dword v{T[13]}, {t2}, s[26:27]"); ntouch += 1
    p.ext(flat(dma_x())); p.ext(adv_x())
    p.ext(flat(dma_wq())); p.ext(adv_wq())
    p.ext(flat(dma_wq())); p.ext(adv_wq())
    p.ext(flat(dma_x())); p.ext(adv_x())
    p.ext(flat(dma_wq())); p.ext(adv_wq())
    c = (192 ** -0.5) * math.log2(math.e)
    p(f"s_mov_b32 {sC}, {struct.unpack('<I', struct.pack('<f', c))[0]:#x}")
    p(f"s_lshr_b32 {sCrot}, {sB}, 1\ns_and_b32 {sKrot}, {sB}, 1\ns_lshl_b32 {sKrot}, {sKrot}, 1")
    for ci in range(5):
        p(f"s_add_u32 {sT0}, {sCrot}, {ci}\ns_cmp_ge_u32 {sT0}, 5\ns_cselect_b32 {sT1}, 5, 0\ns_sub_u32 {sT0}, {sT0}, {sT1}\ns_lshl_b32 {sCo[ci]}, {sT0}, 8")
    for kq in range(4):
        p(f"s_xor_b32 {sT0}, {sKrot}, {kq}\ns_mul_i32 {sKq[kq]}, {sT0}, {96*1280}")
    p(f"s_and_b32 {sT1}, {sW}, 1\ns_lshr_b32 {sT2}, {sW}, 1\ns_mul_i32 {sT0}, {sT2}, 12288")
    p(f"v_and_b32 {t0}, 15, {l}\nv_lshrrev_b32 {t1}, 4, {l}\nv_lshrrev_b32 {t2}, 1, {t0}\nv_xor_b32 {t2}, {t2}, {t1}")
    p(f"v_mul_u32_u24 {t3}, 384, {t0}\nv_add_u32 {t3}, {sT0}, {t3}\nv_add_u32 {t3}, {S[4]}, {t3}")
    p(f"v_lshl_add_u32 v{vKr[0]}, {t2}, 4, {t3}\nv_xor_b32 {t4}, 4, {t2}\nv_lshl_add_u32 v{vKr[1]}, {t4}, 4, {t3}")
    p(f"s_mul_i32 {sT3}, {sT1}, {48*128}\ns_add_u32 {sT3}, {sT3}, {S[3]}")
    p(f"v_lshlrev_b32 {t3}, 7, {t0}\nv_add_u32 {t3}, {sT3}, {t3}")
    p(f"v_lshl_add_u32 v{vXr[0]}, {t2}, 4, {t3}\nv_lshl_add_u32 v{vXr[1]}, {t4}, 4, {t3}")
    p(f"v_lshrrev_b32 {t2}, 1, {t1}\nv_mul_u32_u24 {t2}, 3072, {t2}\nv_and_b32 {t3}, 1, {t1}\nv_lshl_add_u32 {t2}, {t3}, 9, {t2}\nv_lshl_add_u32 {t2}, {t0}, 4, {t2}")
    for qb in range(3):
        p(f"s_mul_i32 {sI}, {sT1}, 3\ns_add_u32 {sI}, {sI}, {qb}\ns_lshr_b32 {sT3}, {sI}, 1\ns_lshl_b32 {sT3}, {sT3}, 10")
        p(f"s_and_b32 {sI}, {sI}, 1\ns_lshl_b32 {sI}, {sI}, 8\ns_add_u32 {sT3}, {sT3}, {sI}")
        p(f"s_mul_i32 {sI}, {sT2}, 36864\ns_add_u32 {sT3}, {sT3}, {sI}\ns_add_u32 {sT3}, {sT3}, {S[1]}")
        p(f"v_add_u32 v{vOw[qb]}, {sT3}, {t2}")
    p(f"s_mul_i32 {sT3}, {sW}, 24\nv_lshlrev_b32 {t2}, 2, {t1}\nv_xor_b32 {t2}, {t2}, {t0}\nv_add_u32 {t3}, {sT3}, {t1}")
    p(f"v_mul_u32_u24 {t3}, 1280, {t3}\nv_lshl_add_u32 v{vOs[0]}, {t2}, 4, {t3}")
    p(f"v_add_u32 v{vOs[1]}, 4096, v{vOs[0]}\nv_add_u32 v{vOs[2]}, 8192, v{vOs[0]}")
    p(f"v_lshrrev_b32 {t0}, 2, {l}\nv_and_b32 {t1}, 3, {l}\nv_bfe_u32 {t2}, {l}, 3, 2")
    p(f"v_mul_u32_u24 {t3}, 384, {t0}\nv_lshl_add_u32 {t3}, {t1}, 3, {t3}\nv_add_u32 {t3}, {sT0}, {t3}\nv_add_u32 {t3}, {S[1]}, {t3}")
    for dl in range(4):
        p(f"v_xor_b32 {t4}, {dl}, {t2}\nv_lshl_add_u32 v{vVr[dl]}, {t4}, 5, {t3}")
    p(f"v_and_b32 {t0}, 3, {t0}\nv_lshrrev_b32 {t2}, 5, {l}\nv_lshl_add_u32 {t2}, {t2}, 2, {t0}\nv_lshlrev_b32 {t2}, 8, {t2}")
    p(f"v_xor_b32 {t0}, {sW}, {t0}\nv_lshl_add_u32 {t2}, {t0}, 6, {t2}")
    p(f"v_and_b32 {t0}, 1, {l}\nv_lshl_add_u32 {t2}, {t0}, 5, {t2}\nv_bfe_u32 {t0}, {l}, 4, 1\nv_lshl_add_u32 {t2}, {t0}, 4, {t2}")
    p(f"v_bfe_u32 {t0}, {l}, 1, 1\nv_lshl_add_u32 v{vOr[0]}, {t0}, 3, {t2}")
    p(f"v_add_u32 v{vOr[1]}, {S[2]}, v{vOr[0]}\nv_add_u32 v{vOr[2]}, {S[4]}, v{vOr[0]}")
    p(f"v_lshlrev_b32 {t0}, 4, {l}\ns_mul_i32 {sT3}, {sKrot}, 18432\ns_add_u32 {sT3}, {sT3}, {S[1]}\nv_add_u32 v{vBr[0]}, {sT3}, {t0}")
    p(f"s_xor_b32 {sT3}, {sKrot}, 2\ns_mul_i32 {sT3}, {sT3}, 18432\ns_add_u32 {sT3}, {sT3}, {S[1]}\nv_add_u32 v{vBr[1]}, {sT3}, {t0}")
    p(f"v_add_u32 v{vPs[0]}, {sW6}, {t0}\nv_add_u32 v{vPs[1]}, 3072, v{vPs[0]}")
    for r in range(144): p(f"v_mov_b32 v{r}, 0")
    for qb in range(3): p(f"v_mov_b32 v{vM[qb]}, 0xff7fffff\nv_mov_b32 v{vL[qb]}, 0")
    p(f"s_mov_b32 {sRd}, 1\ns_mov_b32 {sT2}, {SLOT}\ns_mov_b32 {sI}, 0\ns_mov_b32 {sDK}, 12288")
    p(f"s_lshl_b32 {sT1}, {sW6}, 1\ns_add_u32 {sT1}, {sT1}, {S[5]+S[3]}")
    p("s_waitcnt vmcnt(15)\ns_barrier")
    stamp(p)
    p.ext(reads_x(0, 0) + reads_t(lambda t: FA(0, t)))
    p.ext(flat(adv_rd_wq()))
    p(f"v_add_u32 v{vXr[0]}, {sDK}, v{vXr[0]}")
    def qstep(par, wait, dmas, do_reads=True, extra=None):
        p(wait); p("s_waitcnt lgkmcnt(0)\ns_barrier")
        mf = [f"{M16} {v4(ACC(t, qb))}, {a4(FA(par, t))}, {a4(FB(par, qb))}, {v4(ACC(t, qb))}" for t in range(12) for qb in range(3)]
        tr = []
        if do_reads:
            rd = reads_x(1 - par, 1 - par) + reads_t(lambda t: FA(1 - par, t))
            tr.append((rd, 0, 27))
            post = adv_rd_wq()
            if par == 0: post.append(f"v_add_u32 v{vXr[1]}, {sDK}, v{vXr[1]}")
            else: post.append([f"s_sub_u32 {sDK}, 0, {sDK}", f"v_add_u32 v{vXr[0]}, {sDK}, v{vXr[0]}"])
            tr.append((post, 28, 34))
        if dmas: tr.append((dmas, 0, 27))
        p.ext(weave2(mf, tr))
    p("s_waitcnt lgkmcnt(0)")
    p("L_q:")
    qstep(0, "s_waitcnt vmcnt(9)", dma_wq() + [adv_wq()])
    qstep(1, "s_waitcnt vmcnt(6)", dma_x() + [adv_x()] + dma_wq() + [adv_wq()])
    p("s_waitcnt lgkmcnt(0)")
    p(f"s_cmp_lg_u32 {sI}, {OPT['kburst']}\ns_cbranch_scc1 L_q1")
    p.ext(flat(dma_k())); p.ext(adv_k())
    p("L_q1:")
    p(f"s_cmp_lg_u32 {sI}, {OPT['vburst']}\ns_cbranch_scc1 L_q2")
    p.ext(flat(dma_v())); p.ext(adv_v())
    p("L_q2:")
    p(f"s_add_u32 {sI}, {sI}, 1\ns_cmp_lt_u32 {sI}, 8\ns_cbranch_scc1 L_q")
    vm = VM(["wq17"] * 6 + ["x9"] * 3 + ["wq18"] * 6)
    w = vm.wait("wq17"); vm.issue("wq19", 6); qstep(0, w, dma_wq())
    w = vm.wait("wq18"); vm.issue("t2", 6); qstep(1, w, dma_k() + [adv_k()])
    w = vm.wait("wq19"); qstep(0, w, None)
    qstep(1, "s_nop 0", None, do_reads=False)
    stamp(p)
    for ks in range(6):
        for qb in range(3):
            a, b = ACC(2 * ks, qb), ACC(2 * ks + 1, qb)
            r = 144 + 4 * qb + 12 * (ks & 1)
            p(f"v_cvt_pk_bf16_f32 v{r}, v{a}, v{a+1}\nv_cvt_pk_bf16_f32 v{r+1}, v{a+2}, v{a+3}")
            p(f"v_cvt_pk_bf16_f32 v{r+2}, v{b}, v{b+1}\nv_cvt_pk_bf16_f32 v{r+3}, v{b+2}, v{b+3}")
        for op in ("v_permlane32_swap_b32", "v_permlane16_swap_b32"):
            for qb in range(3):
                r = 144 + 4 * qb + 12 * (ks & 1)
                p(f"{op} v{r}, v{r+2}\n{op} v{r+1}, v{r+3}")
        for qb in range(3):
            r = 144 + 4 * qb + 12 * (ks & 1)
            for i in range(4): p(f"v_accvgpr_write_b32 a{QF(ks, qb)+i}, v{r+i}")
    for r in vVr: p(f"v_add_u32 v{r}, {S[5]}, v{r}")
    p(f"s_mov_b32 {sDK}, {-4*SLOT & 0xffffffff}\ns_mov_b32 {sDV}, {-2*SLOT & 0xffffffff}\ns_mov_b32 {sI}, 0")
    stamp(p)

    def kstep(wait, dmas):
        p(wait); p("s_barrier")
        rd = [f"ds_read_b128 {a4(FA(0, ks*2+kb))}, v{vKr[ks&1]} offset:{kb*6144+(ks>>1)*128}" for ks in range(6) for kb in range(2)]
        mf = [f"{M16} {v4(SS(kb, qb))}, {a4(FA(0, ks*2+kb))}, {a4(QF(ks, qb))}, {'0' if ks == 0 else v4(SS(kb, qb))}"
              for ks in range(6) for kb in range(2) for qb in range(3)]
        p.ext(rd[:6])
        tr = [(rd[6:], 0, 12), ([f"v_add_u32 v{r}, {sDK}, v{r}" for r in vKr] + [f"s_sub_u32 {sDK}, 0, {sDK}"], 20, 26)]
        if dmas: tr.append((dmas[:3], 2, 32))
        p.ext(weave2(mf, tr))
        sm = []
        s = lambda qb: [SS(0, qb) + i for i in range(4)] + [SS(1, qb) + i for i in range(4)]
        for a_, b_ in ((None, 0), (3, 1), (5, 2), (7, 3)):
            for qb in range(3):
                x = s(qb)
                if b_ == 0: sm.append(f"v_max3_f32 v{vMx[qb]}, v{x[0]}, v{x[1]}, v{x[2]}")
                elif b_ < 3: sm.append(f"v_max3_f32 v{vMx[qb]}, v{vMx[qb]}, v{x[a_]}, v{x[a_+1]}")
                else: sm.append(f"v_max3_f32 v{vMx[qb]}, v{vMx[qb]}, v{x[7]}, v{vM[qb]}")
        for op in ("v_permlane32_swap_b32", "v_permlane16_swap_b32"):
            for qb in range(3): sm.append(f"v_mov_b32 v{vTm[qb]}, v{vMx[qb]}")
            for qb in range(3): sm.append(f"{op} v{vMx[qb]}, v{vTm[qb]}")
            for qb in range(3): sm.append(f"v_max_f32 v{vMx[qb]}, v{vMx[qb]}, v{vTm[qb]}")
        for qb in range(3): sm.append(f"v_sub_f32 v{vTm[qb]}, v{vM[qb]}, v{vMx[qb]}")
        for qb in range(3): sm.append(f"v_mul_f32 v{vMc[qb]}, {sC}, v{vMx[qb]}")
        for qb in range(3): sm.append(f"v_mul_f32 v{vTm[qb]}, {sC}, v{vTm[qb]}")
        for qb in range(3): sm.append(f"v_mov_b32 v{vM[qb]}, v{vMx[qb]}")
        for qb in range(3): sm.append(f"v_exp_f32 v{vAl[qb]}, v{vTm[qb]}")
        for qb in range(3):
            x = s(qb)
            for r in x: sm.append(f"v_fma_f32 v{r}, v{r}, {sC}, -v{vMc[qb]}")
            for r in x: sm.append(f"v_exp_f32 v{r}, v{r}")
            sm.append(f"v_fma_f32 v{vL[qb]}, v{vL[qb]}, v{vAl[qb]}, v{x[0]}")
            sm.append(f"v_add_f32 v{vTm[qb]}, v{x[1]}, v{x[2]}")
            sm.append(f"v_add_f32 v{vL[qb]}, v{vL[qb]}, v{x[3]}")
            sm.append(f"v_add_f32 v{vTm[qb]}, v{vTm[qb]}, v{x[4]}")
            sm.append(f"v_add_f32 v{vL[qb]}, v{vL[qb]}, v{x[5]}")
            sm.append(f"v_add_f32 v{vTm[qb]}, v{vTm[qb]}, v{x[6]}")
            sm.append(f"v_add_f32 v{vL[qb]}, v{vL[qb]}, v{x[7]}")
            for i in range(4): sm.append(f"v_cvt_pk_bf16_f32 v{PP(qb)+i}, v{x[2*i]}, v{x[2*i+1]}")
            sm.append(f"v_add_f32 v{vL[qb]}, v{vL[qb]}, v{vTm[qb]}")
        for t in range(12):
            for qb in range(3):
                for h in (0, 2):
                    r = ACC(t, qb) + h
                    sm.append(f"v_pk_mul_f32 v[{r}:{r+1}], v[{r}:{r+1}], v[{vAl[qb]}:{vAl[qb]+1}] op_sel_hi:[1,0]")
        p.ext(weave(sm, dmas[3:], 10, len(sm) - 10) if dmas else sm)
    def pv_mfmas(): return [f"{M16} {v4(ACC(t, qb))}, {a4(FA(1, t))}, {v4(PP(qb))}, {v4(ACC(t, qb))}" for t in range(12) for qb in range(3)]
    def vstep(wait, dmas):
        p(wait); p("s_barrier")
        rd = reads_t(lambda t: FA(1, t))
        p.ext(rd[:8])
        tr = [(rd[8:], 0, 20), ([f"v_add_u32 v{r}, {sDV}, v{r}" for r in vVr] + [f"s_sub_u32 {sDV}, 0, {sDV}"], 24, 32)]
        if dmas: tr.append((dmas, 2, 34))
        p.ext(weave2(pv_mfmas(), tr))
    p("L_a:")
    kstep("s_waitcnt vmcnt(12)", dma_v() + [adv_v()])
    vstep("s_waitcnt vmcnt(12)", dma_k() + [adv_k()])
    p(f"s_add_u32 {sI}, {sI}, 1\ns_cmp_lt_u32 {sI}, 14\ns_cbranch_scc1 L_a")
    stamp(p)
    vm = VM(["t28"] * 6 + ["t29"] * 6 + ["t30"] * 6)
    w = vm.wait("t28"); vm.issue("t31", 6); kstep(w, dma_v())
    w = vm.wait("t29"); vm.issue("w0", 6); vstep(w, dma_wo(0, 4))
    w = vm.wait("t30"); vm.issue("w1", 6); kstep(w, dma_wo(1, 5))
    for op in ("v_permlane32_swap_b32", "v_permlane16_swap_b32"):
        for qb in range(3): p(f"v_mov_b32 v{vTm[qb]}, v{vL[qb]}")
        for qb in range(3): p(f"{op} v{vL[qb]}, v{vTm[qb]}")
        for qb in range(3): p(f"v_add_f32 v{vL[qb]}, v{vL[qb]}, v{vTm[qb]}")
    for qb in range(3): p(f"v_rcp_f32 v{vAl[qb]}, v{vL[qb]}")
    p(vm.wait("t31")); p("s_barrier")
    stamp(p)
    rd = reads_t(lambda t: FA(1, t))
    mf = pv_mfmas()
    p.ext(rd[:8])
    vm.issue("w2", 6)
    p.ext(weave2(mf[:18], [(rd[8:], 0, 12), (dma_wo(2, 0), 0, 12)]))
    p("s_waitcnt lgkmcnt(0)"); p(vm.wait("w0")); p("s_barrier")
    AB = [144, 96]
    def reads_wo(sig, slot):
        g = []
        for kk in range(6):
            r = AB[sig & 1] + 4 * kk
            o = (slot & 1) * SLOT + (32 * (kk >> 1) + 8 * (kk & 1)) * 256
            g.append(f"ds_read_b64_tr_b16 v[{r}:{r+1}], v{vOr[slot>>1]} offset:{o}")
            g.append(f"ds_read_b64_tr_b16 v[{r+2}:{r+3}], v{vOr[slot>>1]} offset:{o+4096}")
        return g
    def o_out(tp):
        g = []
        for qb in range(3):
            a, b = ACC(2 * tp, qb), ACC(2 * tp + 1, qb)
            for r in (a, a + 2, b, b + 2):
                g.append(f"v_pk_mul_f32 v[{r}:{r+1}], v[{r}:{r+1}], v[{vAl[qb]}:{vAl[qb]+1}] op_sel_hi:[1,0]")
            g += [f"v_cvt_pk_bf16_f32 v{a}, v{a}, v{a+1}", f"v_cvt_pk_bf16_f32 v{a+1}, v{a+2}, v{a+3}",
                  f"v_cvt_pk_bf16_f32 v{a+2}, v{b}, v{b+1}", f"v_cvt_pk_bf16_f32 v{a+3}, v{b+2}, v{b+3}",
                  f"ds_write_b128 v{vOw[qb]}, {v4(a)} offset:{tp*6144}"]
        return g
    p.ext(weave2(mf[18:], [(reads_wo(0, 4), 0, 12), (o_out(0) + o_out(1), 0, 18)]))
    for tp in range(2, 6): p.ext(o_out(tp))
    def BF(kq, kk, Qb):
        f = (kq * 6 + kk) * 3 + Qb
        return a4(4 * f) if f < 64 else v4(168 + 4 * (f - 64))
    def reads_b(kq): return [f"ds_read_b128 {BF(kq, kk, Qb)}, v{vBr[kq>>1]} offset:{((kq&1)*18+kk*3+Qb)*1024}" for kk in range(6) for Qb in range(3)]
    slot_of = {0: 4, 1: 5, 2: 0}
    free = []; nxt = 3
    for sig in range(20):
        ci, kq = divmod(sig, 4)
        if sig < 19:
            p("s_waitcnt lgkmcnt(0)"); p(vm.wait(f"w{sig+1}")); p("s_barrier")
        if sig == 0:
            stamp(p)
            p.ext(reads_b(0)[:9])
        free.append(slot_of[sig])
        if sig == 3: free += [1, 2, 3]
        dm = []
        for _ in range(2):
            if free and nxt < 20:
                slot_of[nxt] = free.pop(0); dm.append((nxt, dma_wo(nxt, slot_of[nxt]))); nxt += 1
        acc = 48 * (ci & 1)
        mf = [f"{M32} v[{acc+16*Qb}:{acc+16*Qb+15}], {v4(AB[sig&1]+4*kk)}, {BF(kq, kk, Qb)}, " + ("0" if kq == 0 and kk == 0 else f"v[{acc+16*Qb}:{acc+16*Qb+15}]")
              for kk in range(6) for Qb in range(3)]
        tr = []
        rd = []
        if sig == 0: rd += reads_b(0)[9:]
        if sig < 19: rd += reads_wo(sig + 1, slot_of[sig + 1])
        if sig < 3: rd += reads_b(sig + 1)
        tr.append((rd, 0, 15))
        vops = []
        for tag, g in dm:
            vops += g; vm.issue(f"w{tag}", 6)
        def outs(ci_):
            g = []
            a0 = 48 * (ci_ & 1)
            for Qb in range(3):
                for j in range(2):
                    r = 120 + 4 * (2 * Qb + j); a = a0 + 16 * Qb + 8 * j
                    k = 2 * Qb + j
                    g.append([f"v_cvt_pk_bf16_f32 v{r+i}, v{a+2*i}, v{a+2*i+1}" for i in range(4)] +
                             [f"buffer_store_dwordx4 {v4(r)}, v{vPs[k//3]}, {srd(sP)}, {sT0} offen offset:{1024*(k%3)} {OPT['pst']}"])
            g[0] = [f"s_mul_i32 {sT0}, {sCo[ci_]}, 96"] + g[0]
            return g
        if kq == 0 and ci > 0:
            tr.append((vops, 0, 9)); tr.append((outs(ci - 1), 9, 18)); vm.issue("st", 6)
        else:
            tr.append((vops, 0, 16))
        p.ext(weave2(mf, tr))
    p.ext(flat(outs(4)))
    if OPT["stamps"]:
        stamp(p)
        p("s_waitcnt vmcnt(0)")
        stamp(p)
        p(f"s_lshl_b32 {sT0}, s2, 2\ns_add_u32 {sT0}, {sT0}, {sW}\ns_lshl_b32 {sT0}, {sT0}, 8\ns_add_u32 {sT0}, {sT0}, {STAMP_OFF}")
        p(f"v_lshlrev_b32 v0, 2, v{vLn}\nv_add_u32 v0, {sT0}, v0")
        p("global_store_dword v0, v255, s[24:25]")
    p("L_exit:\ns_endpgm")
    d = OPT["drop"]
    def keep(i):
        if "m" in d and i.kind == "mfma": return False
        if "w" in d and i.lds_dma and i.src & {("s", sWQ), ("s", sX), ("s", sWO)}: return False
        if "r" in d and i.kind == "ds": return False
        if "s" in d and i.wide_store: return False
        if "b" in d and i.kind == "s_barrier": return False
        return True
    p.auto_lgkm(); p.auto_nop()
    p.ins = [i if keep(i) else Ins("s_nop 0") for i in p.ins]
    return p

def reduce_kernel():
    p = Prog()
    p("reduce_kernel:")
    p("s_cmp_ge_u32 s2, 240\ns_cbranch_scc1 L_rexit")
    p("s_load_dwordx2 s[4:5], s[0:1], 80\ns_load_dwordx2 s[6:7], s[0:1], 96")
    if OPT["stamps"]: p("s_memrealtime s[30:31]")
    p("s_and_b32 s16, s2, 15\ns_lshr_b32 s17, s2, 4\ns_mul_i32 s18, s17, 86\ns_lshr_b32 s18, s18, 8")
    p("s_mul_i32 s19, s18, 3\ns_sub_u32 s19, s17, s19")
    p("v_lshrrev_b32 v1, 6, v0\nv_and_b32 v2, 63, v0")
    p("v_mul_u32_u24 v3, 6144, v1\nv_lshl_add_u32 v3, v2, 4, v3")
    p("s_mul_i32 s20, s18, 24576\ns_lshl_b32 s21, s19, 11\ns_add_u32 s20, s20, s21\nv_add_u32 v3, s20, v3")
    p(f"s_mul_i32 s21, s16, {16*PART}\ns_add_u32 s21, s21, {OPT['wsoff']<<20}")
    p("s_waitcnt lgkmcnt(0)")
    p(f"s_add_u32 s8, s6, s21\ns_addc_u32 s9, s7, 0\ns_and_b32 s9, s9, 0xffff\ns_mov_b32 s10, {16*PART}\ns_mov_b32 s11, 0x20000")
    p("s_mov_b32 s22, 0")
    for h in range(16):
        for j in range(2):
            r = 32 + 8 * h + 4 * j
            p(f"buffer_load_dwordx4 v[{r}:{r+3}], v3, s[8:11], s22 offen offset:{1024*j} {OPT['pld']}")
        if h < 15: p(f"s_add_u32 s22, s22, {PART}")
    p("s_mov_b32 s12, s4\ns_and_b32 s13, s5, 0xffff\ns_mov_b32 s14, 1966080\ns_mov_b32 s15, 0x20000")
    p("s_and_b32 s23, s16, 7\ns_mul_i32 s23, s23, 96\ns_lshl_b32 s24, s19, 5\ns_add_u32 s23, s23, s24\ns_mul_i32 s23, s23, 2560")
    p("s_lshr_b32 s24, s16, 3\ns_mul_i32 s24, s24, 1280\ns_add_u32 s23, s23, s24\ns_lshl_b32 s24, s18, 8\ns_add_u32 s23, s23, s24")
    p("v_and_b32 v4, 31, v2\nv_mul_u32_u24 v4, 2560, v4\nv_lshl_add_u32 v4, v1, 6, v4\nv_lshrrev_b32 v5, 5, v2\nv_lshl_add_u32 v4, v5, 5, v4")
    for h in range(16):
        p(f"s_waitcnt vmcnt({30-2*h})")
        for i in range(8):
            r = 32 + 8 * h + i
            if h == 0:
                p(f"v_lshlrev_b32 v{8+2*i}, 16, v{r}\nv_and_b32 v{9+2*i}, 0xffff0000, v{r}")
            else:
                p(f"v_lshlrev_b32 v6, 16, v{r}\nv_and_b32 v7, 0xffff0000, v{r}\nv_pk_add_f32 v[{8+2*i}:{9+2*i}], v[{8+2*i}:{9+2*i}], v[6:7]")
    for i in range(8): p(f"v_cvt_pk_bf16_f32 v{24+i}, v{8+2*i}, v{9+2*i}")
    p("buffer_store_dwordx4 v[24:27], v4, s[12:15], s23 offen\nbuffer_store_dwordx4 v[28:31], v4, s[12:15], s23 offen offset:16")
    if OPT["stamps"]:
        p("s_waitcnt vmcnt(0)\ns_memrealtime s[32:33]\ns_waitcnt lgkmcnt(0)")
        p(f"v_mov_b32 v8, s30\nv_mov_b32 v9, s32\ns_lshl_b32 s20, s2, 5\ns_add_u32 s20, s20, {STAMP_OFF + (1<<20)}")
        p("v_lshl_add_u32 v10, v1, 3, s20\nglobal_store_dwordx2 v10, v[8:9], s[6:7]")
    p("L_rexit:\ns_endpgm")
    p.auto_lgkm(); p.auto_nop()
    return p

def probe_kernel():
    p = Prog(); k = OPT["probe"]
    p("probe_kernel:")
    p("s_cmp_ge_u32 s2, 1\ns_cbranch_scc1 L_pexit")
    p("s_memrealtime s[30:31]\ns_load_dwordx2 s[6:7], s[0:1], 96")
    p(f"v_lshlrev_b32 v1, 10, v0\nv_add_u32 v1, {STAMP_OFF}, v1\ns_waitcnt lgkmcnt(0)")
    for j in range(4):
        p(f"global_load_dword v{4+j}, v1, s[6:7]\nglobal_load_dword v{8+j}, v1, s[6:7] offset:{4*(k if k < 32 else 0)}\nv_add_u32 v1, 65536, v1")
    p("s_waitcnt vmcnt(0)")
    p("v_min_u32 v4, v4, v5\nv_min_u32 v6, v6, v7\nv_min_u32 v4, v4, v6\nv_max_u32 v8, v8, v9\nv_max_u32 v10, v10, v11\nv_max_u32 v8, v8, v10")
    p("s_mov_b32 s10, -1\ns_mov_b32 s11, 0")
    for l in range(64):
        p(f"v_readlane_b32 s12, v4, {l}\nv_readlane_b32 s13, v8, {l}\ns_nop 1\ns_min_u32 s10, s10, s12\ns_max_u32 s11, s11, s13")
    if k == 99: p("s_mov_b32 s11, s30")
    p(f"s_sub_u32 s11, s11, s10\ns_min_u32 s11, s11, 20000\ns_mul_i32 s11, s11, {OPT['pmul']}\ns_add_u32 s11, s11, 500")
    p("L_spin:\ns_memrealtime s[32:33]\ns_waitcnt lgkmcnt(0)\ns_sub_u32 s12, s32, s30\ns_cmp_lt_u32 s12, s11\ns_cbranch_scc1 L_spin")
    p("L_pexit:\ns_endpgm")
    p.auto_nop()
    return p

def kd(name, vgpr, acc):
    return f""".amdhsa_kernel {name}
  .amdhsa_next_free_vgpr {vgpr}
  .amdhsa_next_free_sgpr 102
  .amdhsa_accum_offset {acc}
  .amdhsa_group_segment_fixed_size 0
  .amdhsa_kernarg_size 104
  .amdhsa_user_sgpr_count 2
  .amdhsa_user_sgpr_kernarg_segment_ptr 1
  .amdhsa_system_sgpr_workgroup_id_x 1
  .amdhsa_float_denorm_mode_32 3
.end_amdhsa_kernel
"""

def build():
    ref = open(f"cdna_kernels/{NAME}.s.ref").read().split("\n")
    head = [l for l in ref if l.startswith(";") and "@launch" not in l and "Override launch" not in l and "grid=ceil" not in l]
    out = "\n".join(head) + "\n"
    out += f"; @launch kernel=attn_kernel grid=(256,1,1) block=(256,1,1) lds={LDS_BYTES}\n"
    out += f"; @launch kernel=reduce_kernel grid=(240,1,1) block=(256,1,1) lds=0\n"
    ks = [("attn_kernel", main_kernel()), ("reduce_kernel", reduce_kernel())]
    if OPT["probe"] >= 0:
        out += f"; @launch kernel=probe_kernel grid=(1,1,1) block=(64,1,1) lds=0\n"
        ks.append(("probe_kernel", probe_kernel()))
    out += '.amdgcn_target "amdgcn-amd-amdhsa--gfx950"\n.text\n'
    for nm, k in ks:
        out += f".globl {nm}\n.p2align 8\n.type {nm},@function\n" + k.text()
    if OPT["code"]: out += ".fill 1024, 4, 0xbf800000\n"
    out += '.section .rodata,"a"\n.p2align 6\n' + kd("attn_kernel", 512, 256) + ".p2align 6\n" + kd("reduce_kernel", 160, 160)
    if OPT["probe"] >= 0: out += ".p2align 6\n" + kd("probe_kernel", 32, 32)
    return out

if __name__ == "__main__":
    open(sys.argv[1], "w").write(build())
```

```python
import sys, struct, math
from asmlib import *

NAME = "concat_heads__gqa_block_cached__mha_block_cached__near_ridge"
OPT = dict(stamps=0, pre=0, early=0, probe=-1, pmul=4, wsoff=0, tlb=0, code=0, badmap=0, drop="", kv="nt", wq="", x="", wo="", pst="sc1", pld="", kburst=3, vburst=6)
for a in sys.argv[2:]:
    k, v = a.split("=", 1)
    OPT[k] = int(v) if v.lstrip("-").isdigit() else v

SLOT = 24576
S = [i * SLOT for i in range(6)]
LDS_BYTES = 6 * SLOT
PART = 122880
STAMP_OFF = 64 << 20

sX, sWQ, sK, sV, sWO, sP = 28, 32, 36, 40, 44, 48
def srd(b): return f"s[{b}:{b+3}]"
sW, sB, sHP, sBR, sC = "s52", "s53", "s54", "s55", "s56"
sWQo, sWQlim, sXo, sWQm, sXm, sRd, sI = "s57", "s58", "s59", "s60", "s61", "s62", "s63"
sKo, sVo, sKm, sVm, sDK, sDV = "s64", "s65", "s66", "s67", "s68", "s69"
sT0, sT1, sT2, sT3 = "s70", "s71", "s72", "s73"
sW6, sXd, sCrot, sKrot = "s74", "s75", "s76", "s77"
sCo = ["s78", "s79", "s80", "s81", "s82"]
sKq = ["s83", "s84", "s85", "s86"]
sJ = "s87"
sST = 88
def ACC(t, qb): return (t * 3 + qb) * 4
def SS(kb, qb): return 144 + (kb * 3 + qb) * 4
def PP(qb): return 168 + qb * 4
vM = [180, 181, 182]; vL = [183, 184, 185]; vAl = [186, 188, 190]; vMx = [192, 193, 194]; vTm = [195, 196, 197]; vMc = [187, 189, 191]
vKs = list(range(200, 206)); vVs = [206, 207, 208]; vWs = [209, 210, 211]; vXs = [212, 213, 214]; vOs = [215, 216, 217]
vKr = [218, 219]; vVr = [220, 221, 222, 223]; vXr = [224, 225]; vOr = [226, 227, 228]; vOw = [229, 230, 231]; vBr = [232, 233]; vPs = [234, 235]
vLn = 236; T = list(range(237, 256))
def v4(r): return f"v[{r}:{r+3}]"
def a4(r): return f"a[{r}:{r+3}]"
def QF(ks, qb): return (ks * 3 + qb) * 4
def FA(p, t): return 72 + 48 * p + 4 * t
def FB(p, qb): return 168 + 12 * p + 4 * qb

M16 = "v_mfma_f32_16x16x32_bf16"
M32 = "v_mfma_f32_32x32x16_bf16"

class VM:
    def __init__(self, q): self.q = list(q)
    def issue(self, tag, n=1): self.q += [tag] * n
    def wait(self, *tags):
        idx = max((k for k, t in enumerate(self.q) if t in tags), default=-1)
        n = len(self.q) - 1 - idx
        self.q = self.q[idx + 1:]
        assert n <= 63
        return f"s_waitcnt vmcnt({n})"

nstamp = [0]
def stamp(p):
    if OPT["stamps"]:
        k = nstamp[0]; nstamp[0] += 1
        p(f"s_memrealtime s[{sST}:{sST+1}]")
        p(f"s_memtime s[{sST+2}:{sST+3}]")
        p("s_waitcnt lgkmcnt(0)")
        p(f"v_writelane_b32 v255, s{sST}, {k}")
        p(f"v_writelane_b32 v255, s{sST+2}, {32+k}")

def dma6(vs, srdb, so, mbase, flags, src_step, six=False):
    def val(dst, x, extra):
        if isinstance(x, tuple): r, imm = x
        else: r, imm = x, 0
        imm += extra
        return f"s_add_u32 {dst}, {r}, {imm}" if imm else f"s_mov_b32 {dst}, {r}"
    g = []
    for j in range(6):
        pre = []
        if j % 3 == 0:
            pre = [val("m0", mbase, 3072 * (j // 3)), val(sT3, so, src_step * (j // 3))]
        v = vs[j] if six else vs[j % 3]
        g.append(pre + [f"buffer_load_dwordx4 v{v}, {srd(srdb)}, {sT3} offen offset:{1024*(j%3)} {flags} lds"])
    return g
def dma_k(): return dma6(vKs, sK, sKo, sKm, OPT["kv"], 3072, six=True)
def dma_v(): return dma6(vVs, sV, sVo, sVm, OPT["kv"], 3072)
def dma_wq(): return dma6(vWs, sWQ, sWQo, sWQm, OPT["wq"], 16 * 12288)
def dma_x():
    g = []
    for j in range(3):
        pre = [f"s_mov_b32 m0, {sXm}"] if j == 0 else []
        g.append(pre + [f"buffer_load_dwordx4 v{vXs[j]}, {srd(sX)}, {sXo} offen offset:{1024*j} {OPT['x']} lds"])
    return g
def dma_wo(sig, slot):
    ci, kq = divmod(sig, 4)
    g = dma6(vOs, sWO, sT2, (sW6, S[slot]), OPT["wo"], 12 * 1280)
    g[0] = [f"s_add_u32 {sT2}, {sCo[ci]}, {sKq[kq]}"] + g[0]
    return g
def adv_wq():
    return [f"s_add_u32 {sWQo}, {sWQo}, {32*12288}", f"s_cmp_ge_u32 {sWQo}, {sWQlim}",
            f"s_cselect_b32 {sT0}, {640*12288}, 0", f"s_sub_u32 {sWQo}, {sWQo}, {sT0}",
            f"s_add_u32 {sWQm}, {sWQm}, {SLOT}", f"s_cmp_ge_u32 {sWQm}, {3*SLOT}",
            f"s_cselect_b32 {sT0}, {3*SLOT}, 0", f"s_sub_u32 {sWQm}, {sWQm}, {sT0}"]
def adv_x():
    return [f"s_add_u32 {sXo}, {sXo}, 128", f"s_cmp_ge_u32 {sXo}, 1280", f"s_cselect_b32 {sXo}, 0, {sXo}",
            f"s_xor_b32 {sXm}, {sXm}, {sXd}"]
def adv_k(): return [f"s_add_u32 {sKo}, {sKo}, 12288", f"s_xor_b32 {sKm}, {sKm}, {S[4]}"]
def adv_v(): return [f"s_add_u32 {sVo}, {sVo}, 12288", f"s_sub_u32 {sVm}, {sT1}, {sVm}"]
def flat(g): return [x for y in g for x in ([y] if isinstance(y, str) else y)]

def reads_t(dstf, n=12):
    g = []
    for t in range(n):
        r = dstf(t)
        o = (t >> 2) * 128
        g.append(f"ds_read_b64_tr_b16 a[{r}:{r+1}], v{vVr[t&3]} offset:{o}")
        g.append(f"ds_read_b64_tr_b16 a[{r+2}:{r+3}], v{vVr[t&3]} offset:{o+6144}")
    return g
def reads_x(p, e): return [f"ds_read_b128 {a4(FB(p, qb))}, v{vXr[e]} offset:{qb*2048}" for qb in range(3)]
def adv_rd_wq():
    return [[f"s_add_u32 {sRd}, {sRd}, 1", f"s_cmp_ge_u32 {sRd}, 3", f"s_cselect_b32 {sRd}, 0, {sRd}",
             f"s_cselect_b32 {sT0}, {-2*SLOT & 0xffffffff}, {sT2}"]] + [f"v_add_u32 v{r}, {sT0}, v{r}" for r in vVr]

def main_kernel():
    p = Prog()
    p(f"attn_kernel:")
    if OPT["early"]:
        p("v_mov_b32 v255, 0"); stamp(p)
    p("s_cmp_ge_u32 s2, 256\ns_cbranch_scc1 L_exit")
    if OPT["badmap"]:
        p("s_and_b32 s3, s2, 7\ns_lshl_b32 s3, s3, 3\ns_bfe_u32 s4, s2, 0x30003\ns_or_b32 s3, s3, s4\ns_and_b32 s2, s2, 0xc0\ns_or_b32 s2, s2, s3")
    p("s_load_dwordx16 s[4:19], s[0:1], 0\ns_load_dwordx4 s[20:23], s[0:1], 64\ns_load_dwordx2 s[24:25], s[0:1], 96")
    if OPT["stamps"] and not OPT["early"]: p("v_mov_b32 v255, 0")
    p(f"v_lshrrev_b32 v{T[0]}, 6, v0\nv_and_b32 v{vLn}, 63, v0")
    p(f"v_readfirstlane_b32 {sW}, v{T[0]}")
    p(f"s_bfe_u32 {sBR}, s2, 0x10002\ns_and_b32 {sT0}, s2, 3\ns_bfe_u32 {sB}, s2, 0x30003\ns_lshr_b32 {sJ}, s2, 6")
    p(f"s_lshl_b32 {sHP}, {sT0}, 2\ns_add_u32 {sHP}, {sHP}, {sJ}")
    p(f"s_mul_i32 {sW6}, {sW}, 6144")
    p(f"s_mul_i32 {sT0}, {sJ}, 5\ns_lshr_b32 {sT0}, {sT0}, 1\ns_add_u32 {sT0}, {sT0}, {sB}")
    p(f"s_cmp_ge_u32 {sT0}, 10\ns_cselect_b32 {sT1}, 10, 0\ns_sub_u32 {sT0}, {sT0}, {sT1}")
    p(f"s_lshl_b32 {sXo}, {sT0}, 7")
    p(f"s_and_b32 {sT1}, {sW}, 1\ns_lshr_b32 {sT2}, {sW}, 1")
    p(f"s_mul_i32 {sWQlim}, {sT1}, {4*12288}\ns_mul_i32 {sT3}, {sT2}, 384\ns_add_u32 {sWQlim}, {sWQlim}, {sT3}")
    p(f"s_mul_i32 {sWQo}, {sT0}, {64*12288}\ns_add_u32 {sWQo}, {sWQo}, {sWQlim}\ns_add_u32 {sWQlim}, {sWQlim}, {640*12288}")
    p(f"s_add_u32 {sWQm}, {sW6}, {S[1]}")
    p(f"s_mul_i32 {sXm}, {sW}, 3072\ns_add_u32 {sXm}, {sXm}, {S[3]}")
    p(f"s_add_u32 {sXd}, {sXm}, 12288\ns_xor_b32 {sXd}, {sXd}, {sXm}")
    p(f"s_mul_i32 {sKo}, {sT2}, 196608\ns_mul_i32 {sT3}, {sT1}, 6144\ns_add_u32 {sKo}, {sKo}, {sT3}\ns_mov_b32 {sVo}, {sKo}")
    p(f"s_add_u32 {sKm}, {sW6}, {S[4]}\ns_add_u32 {sVm}, {sW6}, {S[5]}")
    l = f"v{vLn}"
    t0, t1, t2, t3, t4 = (f"v{r}" for r in T[:5])
    p(f"s_mul_i32 {sT0}, {sW}, 24")
    for j in range(3):
        p(f"v_lshrrev_b32 {t0}, 3, {l}\nv_add_u32 {t0}, {sT0}, {t0}\nv_add_u32 {t0}, {8*j}, {t0}")
        p(f"v_bfe_u32 {t1}, {t0}, 1, 3\nv_and_b32 {t2}, 7, {l}\nv_xor_b32 {t1}, {t1}, {t2}\nv_lshlrev_b32 {t1}, 4, {t1}")
        p(f"v_mul_u32_u24 {t0}, 1280, {t0}\nv_add_u32 {t0}, {t0}, {t1}\nv_subrev_u32 v{vXs[j]}, {1024*j}, {t0}")
    for j in range(6):
        p(f"v_add_u32 {t0}, {64*j}, {l}\nv_mul_u32_u24 {t1}, 2731, {t0}\nv_lshrrev_b32 {t1}, 16, {t1}")
        p(f"v_bfe_u32 {t2}, {t1}, 1, 3\nv_xor_b32 {t2}, {t2}, {l}\nv_lshlrev_b32 v{vKs[j]}, 4, {t2}")
        if j < 3:
            p(f"v_and_b32 {t2}, 6, {t1}\nv_xor_b32 {t3}, {t2}, {l}\nv_lshlrev_b32 v{vVs[j]}, 4, {t3}")
            p(f"v_mul_u32_u24 {t3}, 24, {t1}\nv_sub_u32 {t3}, {t0}, {t3}\nv_xor_b32 {t3}, {t3}, {t2}\nv_lshlrev_b32 {t3}, 4, {t3}")
            p(f"v_lshrrev_b32 {t2}, 2, {t1}\nv_and_b32 {t4}, 3, {t1}\nv_lshl_add_u32 {t2}, {t2}, 3, {t4}")
            p(f"v_mul_u32_u24 {t2}, 12288, {t2}\nv_add_u32 {t2}, {t2}, {t3}\nv_subrev_u32 v{vWs[j]}, {1024*j}, {t2}")
    p("s_waitcnt lgkmcnt(0)")
    stamp(p)
    p(f"s_cmp_eq_u32 {sBR}, 0")
    for k in range(5):
        p(f"s_cselect_b64 s[{4+2*k}:{5+2*k}], s[{4+2*k}:{5+2*k}], s[{14+2*k}:{15+2*k}]")
    def mk(b, ptr, off_s, size):
        p(f"s_add_u32 s{b}, s{ptr}, {off_s}\ns_addc_u32 s{b+1}, s{ptr+1}, 0\ns_and_b32 s{b+1}, s{b+1}, 0xffff")
        p(f"s_mov_b32 s{b+2}, {size}\ns_mov_b32 s{b+3}, 0x20000")
    p(f"s_mul_i32 {sT0}, {sB}, 122880"); mk(sX, 4, sT0, 122880)
    p(f"s_mul_i32 {sT0}, {sHP}, 768"); mk(sWQ, 10, sT0, 639 * 12288 + 768)
    def other_srds():
        p(f"s_lshl_b32 {sT0}, {sB}, 4\ns_add_u32 {sT0}, {sT0}, {sHP}\ns_mul_i32 {sT1}, {sT0}, 393216")
        mk(sK, 6, sT1, 393216); mk(sV, 8, sT1, 393216)
        p(f"s_lshl_b32 {sT1}, {sBR}, 7\ns_add_u32 {sT0}, {sT0}, {sT1}\ns_mul_i32 {sT1}, {sT0}, {PART}\ns_add_u32 {sT1}, {sT1}, {OPT['wsoff']<<20}"); mk(sP, 24, sT1, PART)
        p(f"s_mul_i32 {sT0}, {sHP}, 491520"); mk(sWO, 12, sT0, 491520)
    other_srds()
    ntouch = 0
    if OPT["tlb"]:
        p(f"v_lshlrev_b32 {t0}, 16, {l}\nv_mul_u32_u24 {t1}, {12288*10}, {l}")
        for k, b in enumerate((sK, sV, sWO, sP)):
            p(f"buffer_load_dword v{T[8+k]}, {t0}, {srd(b)}, 0 offen nt"); ntouch += 1
        p(f"buffer_load_dword v{T[12]}, {t1}, {srd(sWQ)}, 0 offen"); ntouch += 1
    if OPT["code"]:
        p("s_getpc_b64 s[26:27]")
        p(f"s_and_b32 s26, s26, 0xffffff00\nv_lshlrev_b32 {t2}, 7, v0")
        p(f"global_load_dword v{T[13]}, {t2}, s[26:27]"); ntouch += 1
    p.ext(flat(dma_x())); p.ext(adv_x())
    p.ext(flat(dma_wq())); p.ext(adv_wq())
    p.ext(flat(dma_wq())); p.ext(adv_wq())
    p.ext(flat(dma_x())); p.ext(adv_x())
    p.ext(flat(dma_wq())); p.ext(adv_wq())
    c = (192 ** -0.5) * math.log2(math.e)
    p(f"s_mov_b32 {sC}, {struct.unpack('<I', struct.pack('<f', c))[0]:#x}")
    p(f"s_lshr_b32 {sCrot}, {sB}, 1\ns_and_b32 {sKrot}, {sB}, 1\ns_lshl_b32 {sKrot}, {sKrot}, 1")
    for ci in range(5):
        p(f"s_add_u32 {sT0}, {sCrot}, {ci}\ns_cmp_ge_u32 {sT0}, 5\ns_cselect_b32 {sT1}, 5, 0\ns_sub_u32 {sT0}, {sT0}, {sT1}\ns_lshl_b32 {sCo[ci]}, {sT0}, 8")
    for kq in range(4):
        p(f"s_xor_b32 {sT0}, {sKrot}, {kq}\ns_mul_i32 {sKq[kq]}, {sT0}, {96*1280}")
    p(f"s_and_b32 {sT1}, {sW}, 1\ns_lshr_b32 {sT2}, {sW}, 1\ns_mul_i32 {sT0}, {sT2}, 12288")
    p(f"v_and_b32 {t0}, 15, {l}\nv_lshrrev_b32 {t1}, 4, {l}\nv_lshrrev_b32 {t2}, 1, {t0}\nv_xor_b32 {t2}, {t2}, {t1}")
    p(f"v_mul_u32_u24 {t3}, 384, {t0}\nv_add_u32 {t3}, {sT0}, {t3}\nv_add_u32 {t3}, {S[4]}, {t3}")
    p(f"v_lshl_add_u32 v{vKr[0]}, {t2}, 4, {t3}\nv_xor_b32 {t4}, 4, {t2}\nv_lshl_add_u32 v{vKr[1]}, {t4}, 4, {t3}")
    p(f"s_mul_i32 {sT3}, {sT1}, {48*128}\ns_add_u32 {sT3}, {sT3}, {S[3]}")
    p(f"v_lshlrev_b32 {t3}, 7, {t0}\nv_add_u32 {t3}, {sT3}, {t3}")
    p(f"v_lshl_add_u32 v{vXr[0]}, {t2}, 4, {t3}\nv_lshl_add_u32 v{vXr[1]}, {t4}, 4, {t3}")
    p(f"v_lshrrev_b32 {t2}, 1, {t1}\nv_mul_u32_u24 {t2}, 3072, {t2}\nv_and_b32 {t3}, 1, {t1}\nv_lshl_add_u32 {t2}, {t3}, 9, {t2}\nv_lshl_add_u32 {t2}, {t0}, 4, {t2}")
    for qb in range(3):
        p(f"s_mul_i32 {sI}, {sT1}, 3\ns_add_u32 {sI}, {sI}, {qb}\ns_lshr_b32 {sT3}, {sI}, 1\ns_lshl_b32 {sT3}, {sT3}, 10")
        p(f"s_and_b32 {sI}, {sI}, 1\ns_lshl_b32 {sI}, {sI}, 8\ns_add_u32 {sT3}, {sT3}, {sI}")
        p(f"s_mul_i32 {sI}, {sT2}, 36864\ns_add_u32 {sT3}, {sT3}, {sI}\ns_add_u32 {sT3}, {sT3}, {S[1]}")
        p(f"v_add_u32 v{vOw[qb]}, {sT3}, {t2}")
    p(f"s_mul_i32 {sT3}, {sW}, 24\nv_lshlrev_b32 {t2}, 2, {t1}\nv_xor_b32 {t2}, {t2}, {t0}\nv_add_u32 {t3}, {sT3}, {t1}")
    p(f"v_mul_u32_u24 {t3}, 1280, {t3}\nv_lshl_add_u32 v{vOs[0]}, {t2}, 4, {t3}")
    p(f"v_add_u32 v{vOs[1]}, 4096, v{vOs[0]}\nv_add_u32 v{vOs[2]}, 8192, v{vOs[0]}")
    p(f"v_lshrrev_b32 {t0}, 2, {l}\nv_and_b32 {t1}, 3, {l}\nv_bfe_u32 {t2}, {l}, 3, 2")
    p(f"v_mul_u32_u24 {t3}, 384, {t0}\nv_lshl_add_u32 {t3}, {t1}, 3, {t3}\nv_add_u32 {t3}, {sT0}, {t3}\nv_add_u32 {t3}, {S[1]}, {t3}")
    for dl in range(4):
        p(f"v_xor_b32 {t4}, {dl}, {t2}\nv_lshl_add_u32 v{vVr[dl]}, {t4}, 5, {t3}")
    p(f"v_and_b32 {t0}, 3, {t0}\nv_lshrrev_b32 {t2}, 5, {l}\nv_lshl_add_u32 {t2}, {t2}, 2, {t0}\nv_lshlrev_b32 {t2}, 8, {t2}")
    p(f"v_xor_b32 {t0}, {sW}, {t0}\nv_lshl_add_u32 {t2}, {t0}, 6, {t2}")
    p(f"v_and_b32 {t0}, 1, {l}\nv_lshl_add_u32 {t2}, {t0}, 5, {t2}\nv_bfe_u32 {t0}, {l}, 4, 1\nv_lshl_add_u32 {t2}, {t0}, 4, {t2}")
    p(f"v_bfe_u32 {t0}, {l}, 1, 1\nv_lshl_add_u32 v{vOr[0]}, {t0}, 3, {t2}")
    p(f"v_add_u32 v{vOr[1]}, {S[2]}, v{vOr[0]}\nv_add_u32 v{vOr[2]}, {S[4]}, v{vOr[0]}")
    p(f"v_lshlrev_b32 {t0}, 4, {l}\ns_mul_i32 {sT3}, {sKrot}, 18432\ns_add_u32 {sT3}, {sT3}, {S[1]}\nv_add_u32 v{vBr[0]}, {sT3}, {t0}")
    p(f"s_xor_b32 {sT3}, {sKrot}, 2\ns_mul_i32 {sT3}, {sT3}, 18432\ns_add_u32 {sT3}, {sT3}, {S[1]}\nv_add_u32 v{vBr[1]}, {sT3}, {t0}")
    p(f"v_add_u32 v{vPs[0]}, {sW6}, {t0}\nv_add_u32 v{vPs[1]}, 3072, v{vPs[0]}")
    for r in range(144): p(f"v_mov_b32 v{r}, 0")
    for qb in range(3): p(f"v_mov_b32 v{vM[qb]}, 0xff7fffff\nv_mov_b32 v{vL[qb]}, 0")
    p(f"s_mov_b32 {sRd}, 1\ns_mov_b32 {sT2}, {SLOT}\ns_mov_b32 {sI}, 0\ns_mov_b32 {sDK}, 12288")
    p(f"s_lshl_b32 {sT1}, {sW6}, 1\ns_add_u32 {sT1}, {sT1}, {S[5]+S[3]}")
    p("s_waitcnt vmcnt(15)\ns_barrier")
    stamp(p)
    p.ext(reads_x(0, 0) + reads_t(lambda t: FA(0, t)))
    p.ext(flat(adv_rd_wq()))
    p(f"v_add_u32 v{vXr[0]}, {sDK}, v{vXr[0]}")
    def qstep(par, wait, dmas, do_reads=True, extra=None):
        p(wait); p("s_waitcnt lgkmcnt(0)\ns_barrier")
        mf = [f"{M16} {v4(ACC(t, qb))}, {a4(FA(par, t))}, {a4(FB(par, qb))}, {v4(ACC(t, qb))}" for t in range(12) for qb in range(3)]
        tr = []
        if do_reads:
            rd = reads_x(1 - par, 1 - par) + reads_t(lambda t: FA(1 - par, t))
            tr.append((rd, 0, 27))
            post = adv_rd_wq()
            if par == 0: post.append(f"v_add_u32 v{vXr[1]}, {sDK}, v{vXr[1]}")
            else: post.append([f"s_sub_u32 {sDK}, 0, {sDK}", f"v_add_u32 v{vXr[0]}, {sDK}, v{vXr[0]}"])
            tr.append((post, 28, 34))
        if dmas: tr.append((dmas, 0, 27))
        p.ext(weave2(mf, tr))
    p("s_waitcnt lgkmcnt(0)")
    p("L_q:")
    qstep(0, "s_waitcnt vmcnt(9)", dma_wq() + [adv_wq()])
    qstep(1, "s_waitcnt vmcnt(6)", dma_x() + [adv_x()] + dma_wq() + [adv_wq()])
    p("s_waitcnt lgkmcnt(0)")
    p(f"s_cmp_lg_u32 {sI}, {OPT['kburst']}\ns_cbranch_scc1 L_q1")
    p.ext(flat(dma_k())); p.ext(adv_k())
    p("L_q1:")
    p(f"s_cmp_lg_u32 {sI}, {OPT['vburst']}\ns_cbranch_scc1 L_q2")
    p.ext(flat(dma_v())); p.ext(adv_v())
    p("L_q2:")
    p(f"s_add_u32 {sI}, {sI}, 1\ns_cmp_lt_u32 {sI}, 8\ns_cbranch_scc1 L_q")
    vm = VM(["wq17"] * 6 + ["x9"] * 3 + ["wq18"] * 6)
    w = vm.wait("wq17"); vm.issue("wq19", 6); qstep(0, w, dma_wq())
    w = vm.wait("wq18"); vm.issue("t2", 6); qstep(1, w, dma_k() + [adv_k()])
    w = vm.wait("wq19"); qstep(0, w, None)
    qstep(1, "s_nop 0", None, do_reads=False)
    stamp(p)
    for ks in range(6):
        for qb in range(3):
            a, b = ACC(2 * ks, qb), ACC(2 * ks + 1, qb)
            r = 144 + 4 * qb + 12 * (ks & 1)
            p(f"v_cvt_pk_bf16_f32 v{r}, v{a}, v{a+1}\nv_cvt_pk_bf16_f32 v{r+1}, v{a+2}, v{a+3}")
            p(f"v_cvt_pk_bf16_f32 v{r+2}, v{b}, v{b+1}\nv_cvt_pk_bf16_f32 v{r+3}, v{b+2}, v{b+3}")
        for op in ("v_permlane32_swap_b32", "v_permlane16_swap_b32"):
            for qb in range(3):
                r = 144 + 4 * qb + 12 * (ks & 1)
                p(f"{op} v{r}, v{r+2}\n{op} v{r+1}, v{r+3}")
        for qb in range(3):
            r = 144 + 4 * qb + 12 * (ks & 1)
            for i in range(4): p(f"v_accvgpr_write_b32 a{QF(ks, qb)+i}, v{r+i}")
    for r in vVr: p(f"v_add_u32 v{r}, {S[5]}, v{r}")
    p(f"s_mov_b32 {sDK}, {-4*SLOT & 0xffffffff}\ns_mov_b32 {sDV}, {-2*SLOT & 0xffffffff}\ns_mov_b32 {sI}, 0")
    stamp(p)

    def kstep(wait, dmas):
        p(wait); p("s_barrier")
        rd = [f"ds_read_b128 {a4(FA(0, ks*2+kb))}, v{vKr[ks&1]} offset:{kb*6144+(ks>>1)*128}" for ks in range(6) for kb in range(2)]
        mf = [f"{M16} {v4(SS(kb, qb))}, {a4(FA(0, ks*2+kb))}, {a4(QF(ks, qb))}, {'0' if ks == 0 else v4(SS(kb, qb))}"
              for ks in range(6) for kb in range(2) for qb in range(3)]
        p.ext(rd[:6])
        tr = [(rd[6:], 0, 12), ([f"v_add_u32 v{r}, {sDK}, v{r}" for r in vKr] + [f"s_sub_u32 {sDK}, 0, {sDK}"], 20, 26)]
        if dmas: tr.append((dmas[:3], 2, 32))
        p.ext(weave2(mf, tr))
        sm = []
        s = lambda qb: [SS(0, qb) + i for i in range(4)] + [SS(1, qb) + i for i in range(4)]
        for a_, b_ in ((None, 0), (3, 1), (5, 2), (7, 3)):
            for qb in range(3):
                x = s(qb)
                if b_ == 0: sm.append(f"v_max3_f32 v{vMx[qb]}, v{x[0]}, v{x[1]}, v{x[2]}")
                elif b_ < 3: sm.append(f"v_max3_f32 v{vMx[qb]}, v{vMx[qb]}, v{x[a_]}, v{x[a_+1]}")
                else: sm.append(f"v_max3_f32 v{vMx[qb]}, v{vMx[qb]}, v{x[7]}, v{vM[qb]}")
        for op in ("v_permlane32_swap_b32", "v_permlane16_swap_b32"):
            for qb in range(3): sm.append(f"v_mov_b32 v{vTm[qb]}, v{vMx[qb]}")
            for qb in range(3): sm.append(f"{op} v{vMx[qb]}, v{vTm[qb]}")
            for qb in range(3): sm.append(f"v_max_f32 v{vMx[qb]}, v{vMx[qb]}, v{vTm[qb]}")
        for qb in range(3): sm.append(f"v_sub_f32 v{vTm[qb]}, v{vM[qb]}, v{vMx[qb]}")
        for qb in range(3): sm.append(f"v_mul_f32 v{vMc[qb]}, {sC}, v{vMx[qb]}")
        for qb in range(3): sm.append(f"v_mul_f32 v{vTm[qb]}, {sC}, v{vTm[qb]}")
        for qb in range(3): sm.append(f"v_mov_b32 v{vM[qb]}, v{vMx[qb]}")
        for qb in range(3): sm.append(f"v_exp_f32 v{vAl[qb]}, v{vTm[qb]}")
        for qb in range(3):
            x = s(qb)
            for r in x: sm.append(f"v_fma_f32 v{r}, v{r}, {sC}, -v{vMc[qb]}")
            for r in x: sm.append(f"v_exp_f32 v{r}, v{r}")
            sm.append(f"v_fma_f32 v{vL[qb]}, v{vL[qb]}, v{vAl[qb]}, v{x[0]}")
            sm.append(f"v_add_f32 v{vTm[qb]}, v{x[1]}, v{x[2]}")
            sm.append(f"v_add_f32 v{vL[qb]}, v{vL[qb]}, v{x[3]}")
            sm.append(f"v_add_f32 v{vTm[qb]}, v{vTm[qb]}, v{x[4]}")
            sm.append(f"v_add_f32 v{vL[qb]}, v{vL[qb]}, v{x[5]}")
            sm.append(f"v_add_f32 v{vTm[qb]}, v{vTm[qb]}, v{x[6]}")
            sm.append(f"v_add_f32 v{vL[qb]}, v{vL[qb]}, v{x[7]}")
            for i in range(4): sm.append(f"v_cvt_pk_bf16_f32 v{PP(qb)+i}, v{x[2*i]}, v{x[2*i+1]}")
            sm.append(f"v_add_f32 v{vL[qb]}, v{vL[qb]}, v{vTm[qb]}")
        for t in range(12):
            for qb in range(3):
                for h in (0, 2):
                    r = ACC(t, qb) + h
                    sm.append(f"v_pk_mul_f32 v[{r}:{r+1}], v[{r}:{r+1}], v[{vAl[qb]}:{vAl[qb]+1}] op_sel_hi:[1,0]")
        p.ext(weave(sm, dmas[3:], 10, len(sm) - 10) if dmas else sm)
    def pv_mfmas(): return [f"{M16} {v4(ACC(t, qb))}, {a4(FA(1, t))}, {v4(PP(qb))}, {v4(ACC(t, qb))}" for t in range(12) for qb in range(3)]
    def vstep(wait, dmas):
        p(wait); p("s_barrier")
        rd = reads_t(lambda t: FA(1, t))
        p.ext(rd[:8])
        tr = [(rd[8:], 0, 20), ([f"v_add_u32 v{r}, {sDV}, v{r}" for r in vVr] + [f"s_sub_u32 {sDV}, 0, {sDV}"], 24, 32)]
        if dmas: tr.append((dmas, 2, 34))
        p.ext(weave2(pv_mfmas(), tr))
    p("L_a:")
    kstep("s_waitcnt vmcnt(12)", dma_v() + [adv_v()])
    vstep("s_waitcnt vmcnt(12)", dma_k() + [adv_k()])
    p(f"s_add_u32 {sI}, {sI}, 1\ns_cmp_lt_u32 {sI}, 14\ns_cbranch_scc1 L_a")
    stamp(p)
    vm = VM(["t28"] * 6 + ["t29"] * 6 + ["t30"] * 6)
    w = vm.wait("t28"); vm.issue("t31", 6); kstep(w, dma_v())
    w = vm.wait("t29"); vm.issue("w0", 6); vstep(w, dma_wo(0, 4))
    w = vm.wait("t30"); vm.issue("w1", 6); kstep(w, dma_wo(1, 5))
    for op in ("v_permlane32_swap_b32", "v_permlane16_swap_b32"):
        for qb in range(3): p(f"v_mov_b32 v{vTm[qb]}, v{vL[qb]}")
        for qb in range(3): p(f"{op} v{vL[qb]}, v{vTm[qb]}")
        for qb in range(3): p(f"v_add_f32 v{vL[qb]}, v{vL[qb]}, v{vTm[qb]}")
    for qb in range(3): p(f"v_rcp_f32 v{vAl[qb]}, v{vL[qb]}")
    p(vm.wait("t31")); p("s_barrier")
    stamp(p)
    rd = reads_t(lambda t: FA(1, t))
    mf = pv_mfmas()
    p.ext(rd[:8])
    vm.issue("w2", 6)
    p.ext(weave2(mf[:18], [(rd[8:], 0, 12), (dma_wo(2, 0), 0, 12)]))
    p("s_waitcnt lgkmcnt(0)"); p(vm.wait("w0")); p("s_barrier")
    AB = [144, 96]
    def reads_wo(sig, slot):
        g = []
        for kk in range(6):
            r = AB[sig & 1] + 4 * kk
            o = (slot & 1) * SLOT + (32 * (kk >> 1) + 8 * (kk & 1)) * 256
            g.append(f"ds_read_b64_tr_b16 v[{r}:{r+1}], v{vOr[slot>>1]} offset:{o}")
            g.append(f"ds_read_b64_tr_b16 v[{r+2}:{r+3}], v{vOr[slot>>1]} offset:{o+4096}")
        return g
    def o_out(tp):
        g = []
        for qb in range(3):
            a, b = ACC(2 * tp, qb), ACC(2 * tp + 1, qb)
            for r in (a, a + 2, b, b + 2):
                g.append(f"v_pk_mul_f32 v[{r}:{r+1}], v[{r}:{r+1}], v[{vAl[qb]}:{vAl[qb]+1}] op_sel_hi:[1,0]")
            g += [f"v_cvt_pk_bf16_f32 v{a}, v{a}, v{a+1}", f"v_cvt_pk_bf16_f32 v{a+1}, v{a+2}, v{a+3}",
                  f"v_cvt_pk_bf16_f32 v{a+2}, v{b}, v{b+1}", f"v_cvt_pk_bf16_f32 v{a+3}, v{b+2}, v{b+3}",
                  f"ds_write_b128 v{vOw[qb]}, {v4(a)} offset:{tp*6144}"]
        return g
    p.ext(weave2(mf[18:], [(reads_wo(0, 4), 0, 12), (o_out(0) + o_out(1), 0, 18)]))
    for tp in range(2, 6): p.ext(o_out(tp))
    def BF(kq, kk, Qb):
        f = (kq * 6 + kk) * 3 + Qb
        return a4(4 * f) if f < 64 else v4(168 + 4 * (f - 64))
    def reads_b(kq): return [f"ds_read_b128 {BF(kq, kk, Qb)}, v{vBr[kq>>1]} offset:{((kq&1)*18+kk*3+Qb)*1024}" for kk in range(6) for Qb in range(3)]
    slot_of = {0: 4, 1: 5, 2: 0}
    free = []; nxt = 3
    for sig in range(20):
        ci, kq = divmod(sig, 4)
        if sig < 19:
            p("s_waitcnt lgkmcnt(0)"); p(vm.wait(f"w{sig+1}")); p("s_barrier")
        if sig == 0:
            stamp(p)
            p.ext(reads_b(0)[:9])
        free.append(slot_of[sig])
        if sig == 3: free += [1, 2, 3]
        dm = []
        for _ in range(2):
            if free and nxt < 20:
                slot_of[nxt] = free.pop(0); dm.append((nxt, dma_wo(nxt, slot_of[nxt]))); nxt += 1
        acc = 48 * (ci & 1)
        mf = [f"{M32} v[{acc+16*Qb}:{acc+16*Qb+15}], {v4(AB[sig&1]+4*kk)}, {BF(kq, kk, Qb)}, " + ("0" if kq == 0 and kk == 0 else f"v[{acc+16*Qb}:{acc+16*Qb+15}]")
              for kk in range(6) for Qb in range(3)]
        tr = []
        rd = []
        if sig == 0: rd += reads_b(0)[9:]
        if sig < 19: rd += reads_wo(sig + 1, slot_of[sig + 1])
        if sig < 3: rd += reads_b(sig + 1)
        tr.append((rd, 0, 15))
        vops = []
        for tag, g in dm:
            vops += g; vm.issue(f"w{tag}", 6)
        def outs(ci_):
            g = []
            a0 = 48 * (ci_ & 1)
            for Qb in range(3):
                for j in range(2):
                    r = 120 + 4 * (2 * Qb + j); a = a0 + 16 * Qb + 8 * j
                    k = 2 * Qb + j
                    g.append([f"v_cvt_pk_bf16_f32 v{r+i}, v{a+2*i}, v{a+2*i+1}" for i in range(4)] +
                             [f"buffer_store_dwordx4 {v4(r)}, v{vPs[k//3]}, {srd(sP)}, {sT0} offen offset:{1024*(k%3)} {OPT['pst']}"])
            g[0] = [f"s_mul_i32 {sT0}, {sCo[ci_]}, 96"] + g[0]
            return g
        if kq == 0 and ci > 0:
            tr.append((vops, 0, 9)); tr.append((outs(ci - 1), 9, 18)); vm.issue("st", 6)
        else:
            tr.append((vops, 0, 16))
        p.ext(weave2(mf, tr))
    p.ext(flat(outs(4)))
    if OPT["stamps"]:
        stamp(p)
        p("s_waitcnt vmcnt(0)")
        stamp(p)
        p(f"s_lshl_b32 {sT0}, s2, 2\ns_add_u32 {sT0}, {sT0}, {sW}\ns_lshl_b32 {sT0}, {sT0}, 8\ns_add_u32 {sT0}, {sT0}, {STAMP_OFF}")
        p(f"v_lshlrev_b32 v0, 2, v{vLn}\nv_add_u32 v0, {sT0}, v0")
        p("global_store_dword v0, v255, s[24:25]")
    p("L_exit:\ns_endpgm")
    d = OPT["drop"]
    def keep(i):
        if "m" in d and i.kind == "mfma": return False
        if "w" in d and i.lds_dma and i.src & {("s", sWQ), ("s", sX), ("s", sWO)}: return False
        if "r" in d and i.kind == "ds": return False
        if "s" in d and i.wide_store: return False
        if "b" in d and i.kind == "s_barrier": return False
        return True
    p.auto_lgkm(); p.auto_nop()
    p.ins = [i if keep(i) else Ins("s_nop 0") for i in p.ins]
    return p

def reduce_kernel():
    p = Prog()
    p("reduce_kernel:")
    p("s_cmp_ge_u32 s2, 240\ns_cbranch_scc1 L_rexit")
    p("s_load_dwordx2 s[4:5], s[0:1], 80\ns_load_dwordx2 s[6:7], s[0:1], 96")
    if OPT["stamps"]: p("s_memrealtime s[30:31]")
    p("s_and_b32 s16, s2, 15\ns_lshr_b32 s17, s2, 4\ns_mul_i32 s18, s17, 86\ns_lshr_b32 s18, s18, 8")
    p("s_mul_i32 s19, s18, 3\ns_sub_u32 s19, s17, s19")
    p("v_lshrrev_b32 v1, 6, v0\nv_and_b32 v2, 63, v0")
    p("v_mul_u32_u24 v3, 6144, v1\nv_lshl_add_u32 v3, v2, 4, v3")
    p("s_mul_i32 s20, s18, 24576\ns_lshl_b32 s21, s19, 11\ns_add_u32 s20, s20, s21\nv_add_u32 v3, s20, v3")
    p(f"s_mul_i32 s21, s16, {16*PART}\ns_add_u32 s21, s21, {OPT['wsoff']<<20}")
    p("s_waitcnt lgkmcnt(0)")
    p(f"s_add_u32 s8, s6, s21\ns_addc_u32 s9, s7, 0\ns_and_b32 s9, s9, 0xffff\ns_mov_b32 s10, {16*PART}\ns_mov_b32 s11, 0x20000")
    p("s_mov_b32 s22, 0")
    for h in range(16):
        for j in range(2):
            r = 32 + 8 * h + 4 * j
            p(f"buffer_load_dwordx4 v[{r}:{r+3}], v3, s[8:11], s22 offen offset:{1024*j} {OPT['pld']}")
        if h < 15: p(f"s_add_u32 s22, s22, {PART}")
    p("s_mov_b32 s12, s4\ns_and_b32 s13, s5, 0xffff\ns_mov_b32 s14, 1966080\ns_mov_b32 s15, 0x20000")
    p("s_and_b32 s23, s16, 7\ns_mul_i32 s23, s23, 96\ns_lshl_b32 s24, s19, 5\ns_add_u32 s23, s23, s24\ns_mul_i32 s23, s23, 2560")
    p("s_lshr_b32 s24, s16, 3\ns_mul_i32 s24, s24, 1280\ns_add_u32 s23, s23, s24\ns_lshl_b32 s24, s18, 8\ns_add_u32 s23, s23, s24")
    p("v_and_b32 v4, 31, v2\nv_mul_u32_u24 v4, 2560, v4\nv_lshl_add_u32 v4, v1, 6, v4\nv_lshrrev_b32 v5, 5, v2\nv_lshl_add_u32 v4, v5, 5, v4")
    for h in range(16):
        p(f"s_waitcnt vmcnt({30-2*h})")
        for i in range(8):
            r = 32 + 8 * h + i
            if h == 0:
                p(f"v_lshlrev_b32 v{8+2*i}, 16, v{r}\nv_and_b32 v{9+2*i}, 0xffff0000, v{r}")
            else:
                p(f"v_lshlrev_b32 v6, 16, v{r}\nv_and_b32 v7, 0xffff0000, v{r}\nv_pk_add_f32 v[{8+2*i}:{9+2*i}], v[{8+2*i}:{9+2*i}], v[6:7]")
    for i in range(8): p(f"v_cvt_pk_bf16_f32 v{24+i}, v{8+2*i}, v{9+2*i}")
    p("buffer_store_dwordx4 v[24:27], v4, s[12:15], s23 offen\nbuffer_store_dwordx4 v[28:31], v4, s[12:15], s23 offen offset:16")
    if OPT["stamps"]:
        p("s_waitcnt vmcnt(0)\ns_memrealtime s[32:33]\ns_waitcnt lgkmcnt(0)")
        p(f"v_mov_b32 v8, s30\nv_mov_b32 v9, s32\ns_lshl_b32 s20, s2, 5\ns_add_u32 s20, s20, {STAMP_OFF + (1<<20)}")
        p("v_lshl_add_u32 v10, v1, 3, s20\nglobal_store_dwordx2 v10, v[8:9], s[6:7]")
    p("L_rexit:\ns_endpgm")
    p.auto_lgkm(); p.auto_nop()
    return p

def probe_kernel():
    p = Prog(); k = OPT["probe"]
    p("probe_kernel:")
    p("s_cmp_ge_u32 s2, 1\ns_cbranch_scc1 L_pexit")
    p("s_memrealtime s[30:31]\ns_load_dwordx2 s[6:7], s[0:1], 96")
    p(f"v_lshlrev_b32 v1, 10, v0\nv_add_u32 v1, {STAMP_OFF}, v1\ns_waitcnt lgkmcnt(0)")
    for j in range(4):
        p(f"global_load_dword v{4+j}, v1, s[6:7]\nglobal_load_dword v{8+j}, v1, s[6:7] offset:{4*(k if k < 32 else 0)}\nv_add_u32 v1, 65536, v1")
    p("s_waitcnt vmcnt(0)")
    p("v_min_u32 v4, v4, v5\nv_min_u32 v6, v6, v7\nv_min_u32 v4, v4, v6\nv_max_u32 v8, v8, v9\nv_max_u32 v10, v10, v11\nv_max_u32 v8, v8, v10")
    p("s_mov_b32 s10, -1\ns_mov_b32 s11, 0")
    for l in range(64):
        p(f"v_readlane_b32 s12, v4, {l}\nv_readlane_b32 s13, v8, {l}\ns_nop 1\ns_min_u32 s10, s10, s12\ns_max_u32 s11, s11, s13")
    if k == 99: p("s_mov_b32 s11, s30")
    if OPT["pre"]:
        p(f"s_load_dword s10, s[6:7], 0x0\ns_waitcnt lgkmcnt(0)")
    p(f"s_sub_u32 s11, s11, s10\ns_min_u32 s11, s11, 20000\ns_mul_i32 s11, s11, {OPT['pmul']}\ns_add_u32 s11, s11, 500")
    p("L_spin:\ns_memrealtime s[32:33]\ns_waitcnt lgkmcnt(0)\ns_sub_u32 s12, s32, s30\ns_cmp_lt_u32 s12, s11\ns_cbranch_scc1 L_spin")
    p("L_pexit:\ns_endpgm")
    p.auto_nop()
    return p

def pre_kernel():
    p = Prog()
    p("pre_kernel:")
    p("s_memrealtime s[30:31]\ns_cmp_ge_u32 s2, 1\ns_cbranch_scc1 L_qexit")
    p("s_load_dwordx2 s[6:7], s[0:1], 96\ns_waitcnt lgkmcnt(0)\nv_mov_b32 v1, 0\nv_mov_b32 v2, s30\nglobal_store_dword v1, v2, s[6:7]")
    p("L_qexit:\ns_endpgm")
    p.auto_nop()
    return p

def kd(name, vgpr, acc):
    return f""".amdhsa_kernel {name}
  .amdhsa_next_free_vgpr {vgpr}
  .amdhsa_next_free_sgpr 102
  .amdhsa_accum_offset {acc}
  .amdhsa_group_segment_fixed_size 0
  .amdhsa_kernarg_size 104
  .amdhsa_user_sgpr_count 2
  .amdhsa_user_sgpr_kernarg_segment_ptr 1
  .amdhsa_system_sgpr_workgroup_id_x 1
  .amdhsa_float_denorm_mode_32 3
.end_amdhsa_kernel
"""

def build():
    ref = open(f"cdna_kernels/{NAME}.s.ref").read().split("\n")
    head = [l for l in ref if l.startswith(";") and "@launch" not in l and "Override launch" not in l and "grid=ceil" not in l]
    out = "\n".join(head) + "\n"
    if OPT["pre"]: out += f"; @launch kernel=pre_kernel grid=(1,1,1) block=(64,1,1) lds=0\n"
    out += f"; @launch kernel=attn_kernel grid=(256,1,1) block=(256,1,1) lds={LDS_BYTES}\n"
    out += f"; @launch kernel=reduce_kernel grid=(240,1,1) block=(256,1,1) lds=0\n"
    ks = [("attn_kernel", main_kernel()), ("reduce_kernel", reduce_kernel())]
    if OPT["probe"] >= 0:
        out += f"; @launch kernel=probe_kernel grid=(1,1,1) block=(64,1,1) lds=0\n"
        ks.append(("probe_kernel", probe_kernel()))
    if OPT["pre"]: ks.append(("pre_kernel", pre_kernel()))
    out += '.amdgcn_target "amdgcn-amd-amdhsa--gfx950"\n.text\n'
    for nm, k in ks:
        out += f".globl {nm}\n.p2align 8\n.type {nm},@function\n" + k.text()
    if OPT["code"]: out += ".fill 1024, 4, 0xbf800000\n"
    out += '.section .rodata,"a"\n.p2align 6\n' + kd("attn_kernel", 512, 256) + ".p2align 6\n" + kd("reduce_kernel", 160, 160)
    if OPT["probe"] >= 0: out += ".p2align 6\n" + kd("probe_kernel", 32, 32)
    if OPT["pre"]: out += ".p2align 6\n" + kd("pre_kernel", 32, 32)
    return out

if __name__ == "__main__":
    open(sys.argv[1], "w").write(build())
```

```python
import sys, struct, math
from asmlib import *

NAME = "concat_heads__gqa_block_cached__mha_block_cached__near_ridge"
OPT = dict(stamps=0, fine="", drop="", kv="nt", wq="", x="", wo="", pst="sc1", pld="sc1", kburst=3, vburst=6, spread=1, dmax=5, pubfrom=17)
for a in sys.argv[2:]:
    k, v = a.split("=", 1)
    assert k in OPT, k
    OPT[k] = int(v) if v.lstrip("-").isdigit() else v

SLOT = 24576
S = [i * SLOT for i in range(6)]
LDS_BYTES = 6 * SLOT
PART = 122880
FLAG_OFF = 32 << 20
STAMP_OFF = 64 << 20

sX, sWQ, sK, sV, sWO, sP = 28, 32, 36, 40, 44, 48
sFL, sFG, sFA, sDG = 4, 8, 12, 16
sPG, sOUT = 28, 32
pOUT, pDBG, pWS = 20, 22, 24
def srd(b): return f"s[{b}:{b+3}]"
sW, sB, sHP, sBR, sC = "s52", "s53", "s54", "s55", "s56"
sWQo, sWQlim, sXo, sWQm, sXm, sRd, sI = "s57", "s58", "s59", "s60", "s61", "s62", "s63"
sKo, sVo, sKm, sVm, sDK, sDV = "s64", "s65", "s66", "s67", "s68", "s69"
sT0, sT1, sT2, sT3 = "s70", "s71", "s72", "s73"
sW6, sXd, sCrot, sKrot = "s74", "s75", "s76", "s77"
sCo = ["s78", "s79", "s80", "s81", "s82"]
sKq = ["s83", "s84", "s85", "s86"]
sJ, sVs, sG, sSlot = "s87", "s88", "s89", "s90"
sNeed, sTodo, sReady, sPrev, sCur, sFirst, sCnt, sOo = "s57", "s58", "s59", "s60", "s61", "s62", "s63", "s64"
sST, sSI = 92, "s96"
def ACC(t, qb): return (t * 3 + qb) * 4
def SS(kb, qb): return 144 + (kb * 3 + qb) * 4
def PP(qb): return 168 + qb * 4
vM = [180, 181, 182]; vL = [183, 184, 185]; vAl = [186, 188, 190]; vMx = [192, 193, 194]; vTm = [195, 196, 197]; vMc = [187, 189, 191]
vKs = list(range(200, 206)); vVs = [206, 207, 208]; vWs = [209, 210, 211]; vXs = [212, 213, 214]; vOs = [215, 216, 217, 218, 219, 220]
vKr = [221, 222]; vVr = [223, 224, 225, 226]; vXr = [227, 228]; vOr = [[229, 230, 231], [232, 233, 234]]; vOw = 235; vBr = [236, 237]; vPs = [238, 239]
vLn = 240; vFo = 241; vFv = 242; vF4 = 243; vIn = 244; T = list(range(248, 254))
def v4(r): return f"v[{r}:{r+3}]"
def a4(r): return f"a[{r}:{r+3}]"
def QF(ks, qb): return (ks * 3 + qb) * 4
def FA(p, t): return 72 + 48 * p + 4 * t
def FB(p, qb): return 168 + 12 * p + 4 * qb

M16 = "v_mfma_f32_16x16x32_bf16"

class VM:
    def __init__(self, q): self.q = list(q)
    def issue(self, tag, n=1): self.q += [tag] * n
    def wait(self, *tags):
        idx = max((k for k, t in enumerate(self.q) if t in tags), default=-1)
        n = len(self.q) - 1 - idx
        self.q = self.q[idx + 1:]
        assert n <= 63
        return f"s_waitcnt vmcnt({n})"
    def done(self, tag): return tag not in self.q

def stamp(p, cls=""):
    if OPT["stamps"] and (not cls or cls in OPT["fine"]):
        p(f"s_memrealtime s[{sST}:{sST+1}]\ns_memtime s[{sST+2}:{sST+3}]\ns_mov_b32 m0, {sSI}\ns_add_u32 {sSI}, {sSI}, 1\ns_waitcnt lgkmcnt(0)")
        p(f"v_writelane_b32 v255, s{sST}, m0\nv_writelane_b32 v254, s{sST+2}, m0")

def dma6(vs, srdb, so, mbase, flags, src_step, six=False):
    def val(dst, x, extra):
        if isinstance(x, tuple): r, imm = x
        else: r, imm = x, 0
        imm += extra
        return f"s_add_u32 {dst}, {r}, {imm}" if imm else f"s_mov_b32 {dst}, {r}"
    g = []
    for j in range(6):
        pre = []
        sreg = so if (j < 3 or src_step == 0) else sT3
        if j % 3 == 0:
            pre = [val("m0", mbase, 3072 * (j // 3))]
            if j == 3 and src_step: pre.append(val(sT3, so, src_step))
        v = vs[j] if six else vs[j % 3]
        g.append(pre + [f"buffer_load_dwordx4 v{v}, {srd(srdb)}, {sreg} offen offset:{1024*(j%3)} {flags} lds"])
    return g
def dma_k(): return dma6(vKs, sK, sKo, sKm, OPT["kv"], 0, six=True)
def dma_v(): return dma6(vVs, sV, sVo, sVm, OPT["kv"], 3072)
def dma_wq(): return dma6(vWs, sWQ, sWQo, sWQm, OPT["wq"], 16 * 12288)
def dma_x():
    g = []
    for j in range(3):
        pre = [f"s_mov_b32 m0, {sXm}"] if j == 0 else []
        g.append(pre + [f"buffer_load_dwordx4 v{vXs[j]}, {srd(sX)}, {sXo} offen offset:{1024*j} {OPT['x']} lds"])
    return g
def dma_wo(sig, slot):
    ci, kq = divmod(sig, 4)
    g = dma6(vOs, sWO, sT2, (sW6, S[slot]), OPT["wo"], 0, six=True)
    g[0] = [g[0][0], f"s_add_u32 {sT2}, {sCo[ci]}, {sKq[kq]}"] + g[0][1:]
    return g
def adv_wq():
    return [[f"s_add_u32 {sWQo}, {sWQo}, {32*12288}", f"s_cmp_ge_u32 {sWQo}, {sWQlim}",
             f"s_cselect_b32 {sT0}, {640*12288}, 0", f"s_sub_u32 {sWQo}, {sWQo}, {sT0}"],
            [f"s_add_u32 {sWQm}, {sWQm}, {SLOT}", f"s_cmp_ge_u32 {sWQm}, {3*SLOT}", f"s_cselect_b32 {sWQm}, {sW6}, {sWQm}"]]
def adv_x():
    return [[f"s_add_u32 {sXo}, {sXo}, 128", f"s_cmp_ge_u32 {sXo}, 1280", f"s_cselect_b32 {sXo}, 0, {sXo}", f"s_xor_b32 {sXm}, {sXm}, {sXd}"]]
def adv_k(): return [[f"s_add_u32 {sKo}, {sKo}, 12288", f"s_xor_b32 {sKm}, {sKm}, {S[4]}"]]
def adv_v(): return [[f"s_add_u32 {sVo}, {sVo}, 12288", f"s_sub_u32 {sVm}, {sVs}, {sVm}"]]
def flat(g): return [x for y in g for x in ([y] if isinstance(y, str) else y)]

def reads_t(dstf, n=12):
    g = []
    for t in range(n):
        r = dstf(t); o = (t >> 2) * 128
        g.append(f"ds_read_b64_tr_b16 a[{r}:{r+1}], v{vVr[t&3]} offset:{o}")
        g.append(f"ds_read_b64_tr_b16 a[{r+2}:{r+3}], v{vVr[t&3]} offset:{o+6144}")
    return g
def reads_x(p, e): return [f"ds_read_b128 {a4(FB(p, qb))}, v{vXr[e]} offset:{qb*2048}" for qb in range(3)]
def adv_rd_wq():
    return [[f"s_add_u32 {sRd}, {sRd}, 1", f"s_cmp_ge_u32 {sRd}, 3", f"s_cselect_b32 {sRd}, 0, {sRd}",
             f"s_cselect_b32 {sT1}, {-2*SLOT & 0xffffffff}, {sT2}"]] + [f"v_add_u32 v{r}, {sT1}, v{r}" for r in vVr]

def kernel():
    p = Prog()
    p(f"{NAME}_kernel:")
    p("s_cmp_ge_u32 s2, 256\ns_cbranch_scc1 L_exit")
    p("s_bfe_u32 s55, s2, 0x10002\ns_mul_i32 s3, s55, 40")
    p("s_load_dwordx8 s[4:11], s[0:1], s3\ns_add_u32 s3, s3, 32\ns_load_dwordx2 s[12:13], s[0:1], s3")
    p(f"s_load_dwordx4 s[{pOUT}:{pOUT+3}], s[0:1], 80\ns_load_dwordx2 s[{pWS}:{pWS+1}], s[0:1], 96")
    if OPT["stamps"]: p(f"v_mov_b32 v255, 0\nv_mov_b32 v254, 0\ns_mov_b32 {sSI}, 0")
    l = f"v{vLn}"
    t0, t1, t2, t3, t4 = (f"v{r}" for r in T[:5])
    p(f"v_lshrrev_b32 {t0}, 6, v0\nv_and_b32 {l}, 63, v0")
    p(f"s_and_b32 {sT0}, s2, 3\ns_bfe_u32 {sB}, s2, 0x30003\ns_lshr_b32 {sJ}, s2, 6")
    p(f"v_readfirstlane_b32 {sW}, {t0}")
    p(f"s_lshl_b32 {sHP}, {sT0}, 2\ns_add_u32 {sHP}, {sHP}, {sJ}")
    p(f"s_mul_i32 {sT0}, {sJ}, 5\ns_lshr_b32 {sT0}, {sT0}, 1\ns_mul_i32 {sT1}, {sB}, 5\ns_add_u32 {sT1}, {sT1}, 1\ns_lshr_b32 {sT1}, {sT1}, 2\ns_add_u32 {sT0}, {sT0}, {sT1}")
    p(f"s_cmp_ge_u32 {sT0}, 10\ns_cselect_b32 {sT1}, 10, 0\ns_sub_u32 {sT0}, {sT0}, {sT1}")
    p(f"s_lshl_b32 {sXo}, {sT0}, 7\ns_mul_i32 {sW6}, {sW}, 6144")
    p(f"s_and_b32 {sT1}, {sW}, 1\ns_lshr_b32 {sT2}, {sW}, 1")
    p(f"s_mul_i32 {sWQlim}, {sT1}, {4*12288}\ns_mul_i32 {sT3}, {sT2}, 384\ns_add_u32 {sWQlim}, {sWQlim}, {sT3}")
    p(f"s_mul_i32 {sWQo}, {sT0}, {64*12288}\ns_add_u32 {sWQo}, {sWQo}, {sWQlim}\ns_add_u32 {sWQlim}, {sWQlim}, {640*12288}")
    p(f"s_add_u32 {sWQm}, {sW6}, {S[1]}")
    p(f"s_mul_i32 {sXm}, {sW}, 3072\ns_add_u32 {sXm}, {sXm}, {S[3]}")
    p(f"s_add_u32 {sXd}, {sXm}, 12288\ns_xor_b32 {sXd}, {sXd}, {sXm}")
    p(f"s_mul_i32 {sT0}, {sW}, 24\nv_lshrrev_b32 {t0}, 3, {l}\nv_add_u32 {t0}, {sT0}, {t0}")
    p(f"v_lshrrev_b32 {t1}, 1, {t0}\nv_xor_b32 {t1}, {t1}, {l}\nv_and_b32 {t1}, 7, {t1}\nv_mul_u32_u24 {t0}, 1280, {t0}")
    p(f"v_lshl_add_u32 v{vXs[0]}, {t1}, 4, {t0}\nv_xor_b32 {t1}, 64, v{vXs[0]}")
    p(f"v_add_u32 v{vXs[1]}, {10240-1024}, {t1}\nv_add_u32 v{vXs[2]}, {2*(10240-1024)}, v{vXs[0]}")
    def rowof(j): p(f"v_add_u32 {t0}, {64*j}, {l}\nv_mul_u32_u24 {t1}, 2731, {t0}\nv_lshrrev_b32 {t1}, 16, {t1}")
    for j in range(3):
        rowof(j)
        p(f"v_and_b32 {t2}, 6, {t1}\nv_xor_b32 {t3}, {t2}, {l}\nv_lshlrev_b32 v{vVs[j]}, 4, {t3}")
        p(f"v_and_b32 {t2}, 12, {t1}\nv_add_u32 {t2}, {t2}, {t1}\nv_mul_u32_u24 {t2}, 12288, {t2}")
        p(f"v_mul_u32_u24 {t3}, 384, {t1}\nv_sub_u32 {t2}, {t2}, {t3}\nv_add_u32 v{vWs[j]}, {t2}, v{vVs[j]}")
    p("s_waitcnt lgkmcnt(0)")
    stamp(p)
    def mk(b, ptr, off_s, size):
        p(f"s_add_u32 s{b}, s{ptr}, {off_s}\ns_addc_u32 s{b+1}, s{ptr+1}, 0\ns_and_b32 s{b+1}, s{b+1}, 0xffff")
        p(f"s_mov_b32 s{b+2}, {size}\ns_mov_b32 s{b+3}, 0x20000")
    p(f"s_mul_i32 {sT0}, {sB}, 122880"); mk(sX, 4, sT0, 122880)
    p.ext(flat(dma_x()))
    p(f"s_mul_i32 {sT0}, {sHP}, 768"); mk(sWQ, 10, sT0, 639 * 12288 + 768)
    p.ext(flat(dma_wq() + adv_wq() + adv_x()))
    wq1 = dma_wq()
    p.ext(flat(wq1[:3]))
    p(f"s_and_b32 {sT1}, {sW}, 1\ns_lshr_b32 {sT2}, {sW}, 1")
    p(f"s_mul_i32 {sKo}, {sT2}, 196608\ns_mul_i32 {sT3}, {sT1}, 6144\ns_add_u32 {sKo}, {sKo}, {sT3}\ns_mov_b32 {sVo}, {sKo}")
    p(f"s_add_u32 {sKm}, {sW6}, {S[4]}\ns_add_u32 {sVm}, {sW6}, {S[5]}")
    p(f"s_lshl_b32 {sVs}, {sW6}, 1\ns_add_u32 {sVs}, {sVs}, {S[5]+S[3]}")
    p(f"s_lshl_b32 {sT0}, {sB}, 4\ns_add_u32 {sT0}, {sT0}, {sHP}\ns_mul_i32 {sT3}, {sT0}, 393216")
    mk(sK, 6, sT3, 393216); mk(sV, 8, sT3, 393216)
    p(f"s_mul_i32 {sT3}, {sHP}, 491520"); mk(sWO, 12, sT3, 491520)
    p(f"s_lshl_b32 {sG}, {sBR}, 3\ns_add_u32 {sG}, {sG}, {sB}\ns_lshl_b32 {sT0}, {sG}, 4\ns_add_u32 {sT0}, {sT0}, {sHP}")
    p(f"s_mul_i32 {sT3}, {sT0}, {PART}"); mk(sP, pWS, sT3, PART)
    p(f"s_lshl_b32 {sT3}, {sT0}, 7\ns_add_u32 {sT3}, {sT3}, {FLAG_OFF}"); mk(sFL, pWS, sT3, 64)
    p(f"s_lshl_b32 {sT3}, {sG}, 11\ns_add_u32 {sT3}, {sT3}, {FLAG_OFF}"); mk(sFG, pWS, sT3, 2048)
    mk(sFA, pWS, FLAG_OFF, 32768)
    mk(sDG, pDBG, 0, 64)
    p(f"s_cmp_eq_u32 {sW}, 0\ns_cselect_b32 s{sFL+2}, 64, 0")
    p(f"v_lshlrev_b32 v{vFo}, 7, {l}\nv_lshlrev_b32 v{vF4}, 2, {l}")
    c = (192 ** -0.5) * math.log2(math.e)
    p(f"s_mov_b32 {sC}, {struct.unpack('<I', struct.pack('<f', c))[0]:#x}")
    p(f"s_lshr_b32 {sCrot}, {sB}, 1\ns_and_b32 {sKrot}, {sB}, 1\ns_lshl_b32 {sKrot}, {sKrot}, 1")
    p(f"s_cmp_eq_u32 {sB}, 7\ns_cselect_b32 {sCrot}, 4, {sCrot}\ns_cselect_b32 {sKrot}, 0, {sKrot}")
    for ci in range(5):
        p(f"s_add_u32 {sT0}, {sCrot}, {ci}\ns_cmp_ge_u32 {sT0}, 5\ns_cselect_b32 {sT3}, 5, 0\ns_sub_u32 {sT0}, {sT0}, {sT3}\ns_lshl_b32 {sCo[ci]}, {sT0}, 8")
    for kq in range(4):
        p(f"s_xor_b32 {sT0}, {sKrot}, {kq}\ns_mul_i32 {sKq[kq]}, {sT0}, {96*1280}")
    p(f"s_mul_i32 {sT0}, {sT2}, 12288")
    for j in range(6):
        rowof(j)
        p(f"v_bfe_u32 {t2}, {t1}, 1, 3\nv_xor_b32 {t2}, {t2}, {l}\nv_lshlrev_b32 v{vKs[j]}, 4, {t2}")
        if j >= 3: p(f"v_add_u32 v{vKs[j]}, 3072, v{vKs[j]}")
    p(f"v_and_b32 {t0}, 15, {l}\nv_lshrrev_b32 {t1}, 4, {l}\nv_lshrrev_b32 {t2}, 1, {t0}\nv_xor_b32 {t2}, {t2}, {t1}")
    p(f"v_mul_u32_u24 {t3}, 384, {t0}\nv_add_u32 {t3}, {sT0}, {t3}\nv_add_u32 {t3}, {S[4]}, {t3}")
    p(f"v_lshl_add_u32 v{vKr[0]}, {t2}, 4, {t3}\nv_xor_b32 {t4}, 4, {t2}\nv_lshl_add_u32 v{vKr[1]}, {t4}, 4, {t3}")
    p(f"s_mul_i32 {sT3}, {sT1}, {48*128}\ns_add_u32 {sT3}, {sT3}, {S[3]}")
    p(f"v_lshlrev_b32 {t3}, 7, {t0}\nv_add_u32 {t3}, {sT3}, {t3}")
    p(f"v_lshl_add_u32 v{vXr[0]}, {t2}, 4, {t3}\nv_lshl_add_u32 v{vXr[1]}, {t4}, 4, {t3}")
    p(f"s_mul_i32 {sT3}, {sW}, 24\nv_lshlrev_b32 {t2}, 1, {t1}\nv_xor_b32 {t2}, {t2}, {t0}\nv_add_u32 {t3}, {sT3}, {t1}")
    p(f"v_mul_u32_u24 {t3}, 1280, {t3}\nv_lshl_add_u32 v{vOs[0]}, {t2}, 4, {t3}\nv_xor_b32 {t2}, 128, v{vOs[0]}")
    for j in range(1, 6):
        p(f"v_add_u32 v{vOs[j]}, {5120*j-1024*(j%3)}, " + (t2 if j & 1 else f"v{vOs[0]}"))
    p(f"v_lshrrev_b32 {t0}, 2, {l}\nv_and_b32 {t1}, 3, {l}\nv_bfe_u32 {t2}, {l}, 3, 2")
    p(f"v_mul_u32_u24 {t3}, 384, {t0}\nv_lshl_add_u32 {t3}, {t1}, 3, {t3}\nv_add_u32 {t3}, {sT0}, {t3}\nv_add_u32 {t3}, {S[1]}, {t3}")
    for dl in range(4):
        p(f"v_xor_b32 {t4}, {dl}, {t2}\nv_lshl_add_u32 v{vVr[dl]}, {t4}, 5, {t3}")
    p(f"v_lshlrev_b32 {t3}, 8, {t0}\nv_lshl_add_u32 {t3}, {t1}, 3, {t3}\nv_and_b32 {t2}, 7, {t0}\ns_lshl_b32 {sT3}, {sW}, 1\nv_xor_b32 {t2}, {sT3}, {t2}")
    p(f"v_lshl_add_u32 v{vOr[0][0]}, {t2}, 5, {t3}\nv_xor_b32 v{vOr[1][0]}, 32, v{vOr[0][0]}")
    for nu in range(2): p(f"v_add_u32 v{vOr[nu][1]}, {S[2]}, v{vOr[nu][0]}\nv_add_u32 v{vOr[nu][2]}, {S[4]}, v{vOr[nu][0]}")
    p(f"v_lshlrev_b32 {t0}, 4, {l}")
    p(f"s_mul_i32 {sT3}, {sT2}, 36864\ns_mul_i32 {sT0}, {sT1}, 3072\ns_add_u32 {sT3}, {sT3}, {sT0}\ns_add_u32 {sT3}, {sT3}, {S[1]}\nv_add_u32 v{vOw}, {sT3}, {t0}")
    p(f"s_mul_i32 {sT3}, {sKrot}, 18432\ns_add_u32 {sT3}, {sT3}, {S[1]}\nv_add_u32 v{vBr[0]}, {sT3}, {t0}")
    p(f"s_xor_b32 {sT3}, {sKrot}, 2\ns_mul_i32 {sT3}, {sT3}, 18432\ns_add_u32 {sT3}, {sT3}, {S[1]}\nv_add_u32 v{vBr[1]}, {sT3}, {t0}")
    p(f"v_add_u32 v{vPs[0]}, {sW6}, {t0}\nv_add_u32 v{vPs[1]}, 3072, v{vPs[0]}")
    for r in range(144): p(f"v_mov_b32 v{r}, 0")
    for qb in range(3): p(f"v_mov_b32 v{vM[qb]}, 0xff7fffff\nv_mov_b32 v{vL[qb]}, 0")
    p(f"s_mov_b32 {sRd}, 1\ns_mov_b32 {sT2}, {SLOT}\ns_mov_b32 {sI}, 0\ns_mov_b32 {sDK}, 12288")
    p("s_cmp_lg_u32 s2, 0\ns_cbranch_scc1 L_nc")
    p(f"v_lshrrev_b32 {t0}, 2, {l}\nv_lshlrev_b32 {t0}, 7, {t0}\nv_and_b32 {t1}, 3, {l}\nv_lshl_add_u32 {t0}, {t1}, 4, {t0}\ns_lshl_b32 {sT0}, {sW}, 13")
    for k in range(4): p(f"buffer_store_dwordx4 v[0:3], {t0}, {srd(sFA)}, {sT0} offen sc1\ns_add_u32 {sT0}, {sT0}, 2048")
    p("L_nc:")
    p("s_waitcnt vmcnt(3)\ns_barrier")
    stamp(p)
    p.ext(weave(reads_x(0, 0) + reads_t(lambda t: FA(0, t)), wq1[3:] + adv_wq() + dma_x() + adv_x() + dma_wq() + adv_wq()))
    p.ext(flat(adv_rd_wq()))
    p(f"v_add_u32 v{vXr[0]}, {sDK}, v{vXr[0]}")
    def qstep(par, wait, dmas, do_reads=True):
        p(wait); p("s_waitcnt lgkmcnt(0)\ns_barrier")
        stamp(p, "q")
        mf = [f"{M16} {v4(ACC(t, qb))}, {a4(FA(par, t))}, {a4(FB(par, qb))}, {v4(ACC(t, qb))}" for t in range(12) for qb in range(3)]
        tr = []
        if do_reads:
            rd = reads_x(1 - par, 1 - par) + reads_t(lambda t: FA(1 - par, t))
            tr.append((rd, 0, 27))
            post = adv_rd_wq()
            if par == 0: post.append(f"v_add_u32 v{vXr[1]}, {sDK}, v{vXr[1]}")
            else: post.append([f"s_sub_u32 {sDK}, 0, {sDK}", f"v_add_u32 v{vXr[0]}, {sDK}, v{vXr[0]}"])
            tr.append((post, 28, 34))
        if dmas: tr.append((dmas, 0, 30))
        p.ext(weave2(mf, tr))
    p("s_waitcnt lgkmcnt(0)")
    p("L_q:")
    qstep(0, "s_waitcnt vmcnt(9)", dma_wq() + adv_wq())
    qstep(1, "s_waitcnt vmcnt(6)", dma_x() + adv_x() + dma_wq() + adv_wq())
    p("s_waitcnt lgkmcnt(0)")
    p(f"s_cmp_lg_u32 {sI}, {OPT['kburst']}\ns_cbranch_scc1 L_q1")
    p.ext(flat(dma_k() + adv_k()))
    p("L_q1:")
    p(f"s_cmp_lg_u32 {sI}, {OPT['vburst']}\ns_cbranch_scc1 L_q2")
    p.ext(flat(dma_v() + adv_v()))
    p("L_q2:")
    p(f"s_add_u32 {sI}, {sI}, 1\ns_cmp_lt_u32 {sI}, 8\ns_cbranch_scc1 L_q")
    vm = VM(["wq17"] * 6 + ["x9"] * 3 + ["wq18"] * 6)
    w = vm.wait("wq17"); vm.issue("wq19", 6); qstep(0, w, dma_wq())
    w = vm.wait("wq18"); vm.issue("t2", 6); qstep(1, w, dma_k() + adv_k())
    w = vm.wait("wq19"); qstep(0, w, None)
    qstep(1, "s_nop 0", None, do_reads=False)
    stamp(p)
    for ks in range(6):
        for qb in range(3):
            a, b = ACC(2 * ks, qb), ACC(2 * ks + 1, qb)
            r = 144 + 4 * qb + 12 * (ks & 1)
            p(f"v_cvt_pk_bf16_f32 v{r}, v{a}, v{a+1}\nv_cvt_pk_bf16_f32 v{r+1}, v{a+2}, v{a+3}")
            p(f"v_cvt_pk_bf16_f32 v{r+2}, v{b}, v{b+1}\nv_cvt_pk_bf16_f32 v{r+3}, v{b+2}, v{b+3}")
        for op in ("v_permlane32_swap_b32", "v_permlane16_swap_b32"):
            for qb in range(3):
                r = 144 + 4 * qb + 12 * (ks & 1)
                p(f"{op} v{r}, v{r+2}\n{op} v{r+1}, v{r+3}")
        for qb in range(3):
            r = 144 + 4 * qb + 12 * (ks & 1)
            for i in range(4): p(f"v_accvgpr_write_b32 a{QF(ks, qb)+i}, v{r+i}")
    for r in vVr: p(f"v_add_u32 v{r}, {S[5]}, v{r}")
    p(f"s_mov_b32 {sDK}, {-4*SLOT & 0xffffffff}\ns_mov_b32 {sDV}, {-2*SLOT & 0xffffffff}\ns_mov_b32 {sI}, 0")
    p(f"s_or_b32 {sT0}, s2, {sW}\ns_cbranch_scc1 L_na\nv_mov_b32 v{vFv}, 1\nbuffer_store_dword v{vFv}, v{vF4}, {srd(sDG)}, 0 offen sc1\nL_na:")
    stamp(p)

    def kstep(wait, dmas):
        p(wait); p("s_barrier")
        stamp(p, "a")
        rd = [f"ds_read_b128 {a4(FA(0, ks*2+kb))}, v{vKr[ks&1]} offset:{kb*6144+(ks>>1)*128}" for ks in range(6) for kb in range(2)]
        mf = [f"{M16} {v4(SS(kb, qb))}, {a4(FA(0, ks*2+kb))}, {a4(QF(ks, qb))}, {'0' if ks == 0 else v4(SS(kb, qb))}"
              for ks in range(6) for kb in range(2) for qb in range(3)]
        p.ext(rd[:6])
        tr = [(rd[6:], 0, 12), ([f"v_add_u32 v{r}, {sDK}, v{r}" for r in vKr] + [f"s_sub_u32 {sDK}, 0, {sDK}"], 20, 26)]
        if dmas: tr.append((dmas[:3], 2, 32))
        p.ext(weave2(mf, tr))
        sm = []
        s = lambda qb: [SS(0, qb) + i for i in range(4)] + [SS(1, qb) + i for i in range(4)]
        for a_, b_ in ((None, 0), (3, 1), (5, 2), (7, 3)):
            for qb in range(3):
                x = s(qb)
                if b_ == 0: sm.append(f"v_max3_f32 v{vMx[qb]}, v{x[0]}, v{x[1]}, v{x[2]}")
                elif b_ < 3: sm.append(f"v_max3_f32 v{vMx[qb]}, v{vMx[qb]}, v{x[a_]}, v{x[a_+1]}")
                else: sm.append(f"v_max3_f32 v{vMx[qb]}, v{vMx[qb]}, v{x[7]}, v{vM[qb]}")
        for op in ("v_permlane32_swap_b32", "v_permlane16_swap_b32"):
            for qb in range(3): sm.append(f"v_mov_b32 v{vTm[qb]}, v{vMx[qb]}")
            for qb in range(3): sm.append(f"{op} v{vMx[qb]}, v{vTm[qb]}")
            for qb in range(3): sm.append(f"v_max_f32 v{vMx[qb]}, v{vMx[qb]}, v{vTm[qb]}")
        for qb in range(3): sm.append(f"v_sub_f32 v{vTm[qb]}, v{vM[qb]}, v{vMx[qb]}")
        for qb in range(3): sm.append(f"v_mul_f32 v{vMc[qb]}, {sC}, v{vMx[qb]}")
        for qb in range(3): sm.append(f"v_mul_f32 v{vTm[qb]}, {sC}, v{vTm[qb]}")
        for qb in range(3): sm.append(f"v_mov_b32 v{vM[qb]}, v{vMx[qb]}")
        for qb in range(3): sm.append(f"v_exp_f32 v{vAl[qb]}, v{vTm[qb]}")
        for qb in range(3):
            x = s(qb)
            for r in x: sm.append(f"v_fma_f32 v{r}, v{r}, {sC}, -v{vMc[qb]}")
            for r in x: sm.append(f"v_exp_f32 v{r}, v{r}")
            sm.append(f"v_fma_f32 v{vL[qb]}, v{vL[qb]}, v{vAl[qb]}, v{x[0]}")
            sm.append(f"v_add_f32 v{vTm[qb]}, v{x[1]}, v{x[2]}")
            sm.append(f"v_add_f32 v{vL[qb]}, v{vL[qb]}, v{x[3]}")
            sm.append(f"v_add_f32 v{vTm[qb]}, v{vTm[qb]}, v{x[4]}")
            sm.append(f"v_add_f32 v{vL[qb]}, v{vL[qb]}, v{x[5]}")
            sm.append(f"v_add_f32 v{vTm[qb]}, v{vTm[qb]}, v{x[6]}")
            sm.append(f"v_add_f32 v{vL[qb]}, v{vL[qb]}, v{x[7]}")
            for i in range(4): sm.append(f"v_cvt_pk_bf16_f32 v{PP(qb)+i}, v{x[2*i]}, v{x[2*i+1]}")
            sm.append(f"v_add_f32 v{vL[qb]}, v{vL[qb]}, v{vTm[qb]}")
        for t in range(12):
            for qb in range(3):
                for h in (0, 2):
                    r = ACC(t, qb) + h
                    sm.append(f"v_pk_mul_f32 v[{r}:{r+1}], v[{r}:{r+1}], v[{vAl[qb]}:{vAl[qb]+1}] op_sel_hi:[1,0]")
        p.ext(weave(sm, dmas[3:], 10, len(sm) - 10) if dmas else sm)
    def pv_mfmas(): return [f"{M16} {v4(ACC(t, qb))}, {a4(FA(1, t))}, {v4(PP(qb))}, {v4(ACC(t, qb))}" for t in range(12) for qb in range(3)]
    def vstep(wait, dmas):
        p(wait); p("s_barrier")
        stamp(p, "a")
        rd = reads_t(lambda t: FA(1, t))
        p.ext(rd[:8])
        tr = [(rd[8:], 0, 20), ([f"v_add_u32 v{r}, {sDV}, v{r}" for r in vVr] + [f"s_sub_u32 {sDV}, 0, {sDV}"], 24, 32)]
        if dmas: tr.append((dmas, 2, 34))
        p.ext(weave2(pv_mfmas(), tr))
    p("L_a:")
    kstep("s_waitcnt vmcnt(12)", dma_v() + adv_v())
    vstep("s_waitcnt vmcnt(12)", dma_k() + adv_k())
    p(f"s_add_u32 {sI}, {sI}, 1\ns_cmp_lt_u32 {sI}, 14\ns_cbranch_scc1 L_a")
    stamp(p)
    vm = VM(["t28"] * 6 + ["t29"] * 6 + ["t30"] * 6)
    w = vm.wait("t28"); vm.issue("t31", 6); kstep(w, dma_v())
    w = vm.wait("t29"); vm.issue("w0", 6); vstep(w, dma_wo(0, 4))
    w = vm.wait("t30"); vm.issue("w1", 6); kstep(w, dma_wo(1, 5))
    for op in ("v_permlane32_swap_b32", "v_permlane16_swap_b32"):
        for qb in range(3): p(f"v_mov_b32 v{vTm[qb]}, v{vL[qb]}")
        for qb in range(3): p(f"{op} v{vL[qb]}, v{vTm[qb]}")
        for qb in range(3): p(f"v_add_f32 v{vL[qb]}, v{vL[qb]}, v{vTm[qb]}")
    for qb in range(3): p(f"v_rcp_f32 v{vAl[qb]}, v{vL[qb]}")
    p(f"s_mul_i32 {sT0}, {sG}, {16*PART}"); mk(sPG, pWS, sT0, 16 * PART)
    mk(sOUT, pOUT, 0, 1966080)
    p(vm.wait("t31")); p("s_barrier")
    stamp(p)
    rd = reads_t(lambda t: FA(1, t))
    mf = pv_mfmas()
    p.ext(rd[:8])
    vm.issue("w2", 6)
    p.ext(weave2(mf[:18], [(rd[8:], 0, 12), (dma_wo(2, 0), 0, 12)]))
    p("s_waitcnt lgkmcnt(0)"); p(vm.wait("w0")); p("s_barrier")
    AB = [144, 96]
    def AF(sig, tp, nu): return AB[sig & 1] + 8 * tp + 4 * nu
    def reads_wo(sig, slot):
        g = []
        for tp in range(3):
            for nu in range(2):
                r = AF(sig, tp, nu); o = (slot & 1) * SLOT + 32 * tp * 256
                g.append(f"ds_read_b64_tr_b16 v[{r}:{r+1}], v{vOr[nu][slot>>1]} offset:{o}")
                g.append(f"ds_read_b64_tr_b16 v[{r+2}:{r+3}], v{vOr[nu][slot>>1]} offset:{o+4096}")
        return g
    def o_out(tp):
        g = []
        for qb in range(3):
            a, b = ACC(2 * tp, qb), ACC(2 * tp + 1, qb)
            for r in (a, a + 2, b, b + 2):
                g.append(f"v_pk_mul_f32 v[{r}:{r+1}], v[{r}:{r+1}], v[{vAl[qb]}:{vAl[qb]+1}] op_sel_hi:[1,0]")
            g += [f"v_cvt_pk_bf16_f32 v{a}, v{a}, v{a+1}", f"v_cvt_pk_bf16_f32 v{a+1}, v{a+2}, v{a+3}",
                  f"v_cvt_pk_bf16_f32 v{a+2}, v{b}, v{b+1}", f"v_cvt_pk_bf16_f32 v{a+3}, v{b+2}, v{b+3}",
                  f"ds_write_b128 v{vOw}, {v4(a)} offset:{tp*6144+qb*1024}"]
        return g
    p.ext(weave2(mf[18:], [(reads_wo(0, 4), 0, 12), (o_out(0) + o_out(1), 0, 18)]))
    for tp in range(2, 6): p.ext(o_out(tp))
    def BF(kq, tp, q):
        f = (kq * 3 + tp) * 6 + q
        return a4(4 * f) if f < 64 else v4(168 + 4 * (f - 64))
    def reads_b(kq): return [f"ds_read_b128 {BF(kq, tp, q)}, v{vBr[kq>>1]} offset:{((kq&1)*18+tp*6+q)*1024}" for tp in range(3) for q in range(6)]
    def OA(ci, q, nu): return 48 * (ci & 1) + 8 * q + 4 * nu
    def out1(ci, q):
        r = 120 + 4 * q; a = OA(ci, q, 0)
        g = [f"v_cvt_pk_bf16_f32 v{r+i}, v{a+2*i}, v{a+2*i+1}" for i in range(4)]
        if q == 0: g = [f"s_mul_i32 {sT0}, {sCo[ci]}, 96"] + g
        return g + [f"buffer_store_dwordx4 {v4(r)}, v{vPs[q//3]}, {srd(sP)}, {sT0} offen offset:{1024*(q%3)} {OPT['pst']}"]
    slot_of = {0: 4, 1: 5, 2: 0}
    free = []; nxt = 3; published = 0
    def sched(ci, kq):
        if ci == 4: return [[0, 1, 2], [3, 4, 5], [], []][kq]
        return ([[0, 1], [2], [3, 4], [5]] if OPT["spread"] else [[0, 1, 2, 3, 4, 5], [], [], []])[kq]
    for sig in range(20):
        ci, kq = divmod(sig, 4)
        force = {9: 1, 13: 2, 17: 3, 19: 4}.get(sig, 0) if sig >= OPT["pubfrom"] else 0
        p("s_waitcnt lgkmcnt(0)"); p(vm.wait(f"w{sig+1}", f"st{force-1}")); p("s_barrier")
        if sig == 0: stamp(p)
        else: stamp(p, "o")
        pre = []
        if force:
            pre = [f"v_mov_b32 v{vFv}, {force}", f"buffer_store_dword v{vFv}, v{vF4}, {srd(sFL)}, 0 offen sc1"]
            vm.issue("fl")
        if sig == 0:
            pre.append(f"buffer_load_dword v{vIn}, off, {srd(sDG)}, 0 sc1"); vm.issue("init")
        if sig == 0: p.ext(reads_b(0)[:9])
        free.append(slot_of[sig])
        if sig == 3: free += [1, 2, 3]
        dm = []
        for _ in range(2):
            if free and nxt < 20 and nxt - sig <= OPT["dmax"] + 1:
                slot_of[nxt] = free.pop(0); dm.append((nxt, dma_wo(nxt, slot_of[nxt]))); nxt += 1
        mf = [f"{M16} {v4(OA(ci, q, nu))}, {v4(AF(sig, tp, nu))}, {BF(kq, tp, q)}, " + ("0" if kq == 0 and tp == 0 else v4(OA(ci, q, nu)))
              for tp in range(3) for q in range(6) for nu in range(2)]
        rd = []
        if sig == 0: rd += reads_b(0)[9:]
        if sig < 19: rd += reads_wo(sig + 1, slot_of[sig + 1])
        if sig < 3: rd += reads_b(sig + 1)
        vops = [pre] if pre else []
        for tag, g in dm:
            vops += g; vm.issue(f"w{tag}", 6)
        st = []
        if ci > 0:
            for q in sched(ci, kq):
                st += out1(ci - 1, q); vm.issue(f"st{ci-1}")
        if sig == 19:
            assert vm.done("init")
        if st and vops: tr = [(rd, 0, 28), (vops, 0, 22), (st, 22, 36)]
        else: tr = [(rd, 0, 28), (vops, 0, 30), (st, 6, 34)]
        p.ext(weave2(mf, tr))
        if sig == 8:
            assert vm.done("init")
            p("s_waitcnt lgkmcnt(0)")
            p(f"s_mov_b32 {sCnt}, 0")
            p("L_i0:")
            p(f"v_readfirstlane_b32 {sT1}, v{vIn}\ns_cmp_eq_u32 {sT1}, 1\ns_cbranch_scc1 L_i1")
            p(f"buffer_load_dword v{vIn}, off, {srd(sDG)}, 0 sc1\ns_add_u32 {sCnt}, {sCnt}, 1\ns_cmp_lt_u32 {sCnt}, 100000\ns_waitcnt vmcnt(0)\ns_cbranch_scc1 L_i0")
            p("L_i1:")
        if sig == 18:
            p(f"buffer_load_dword v{vIn}, v{vFo}, {srd(sFG)}, 0 offen sc1"); vm.issue("poll")
            p(f"s_mul_i32 {sNeed}, {sHP}, 86\ns_lshr_b32 {sNeed}, {sNeed}, 8\ns_mul_i32 {sT1}, {sNeed}, 3\ns_sub_u32 {sT1}, {sHP}, {sT1}")
            p(f"s_add_u32 {sCur}, {sNeed}, {sCrot}\ns_cmp_ge_u32 {sCur}, 5\ns_cselect_b32 {sT3}, 5, 0\ns_sub_u32 {sCur}, {sCur}, {sT3}")
            p(f"s_mul_i32 {sT3}, {sCur}, 24576\ns_lshl_b32 {sPrev}, {sT1}, 11\ns_add_u32 {sT3}, {sT3}, {sPrev}\nv_add_u32 v{vBr[0]}, {sT3}, v{vPs[0]}")
            p(f"s_mul_i32 {sOo}, {sB}, 96\ns_lshl_b32 {sT1}, {sT1}, 5\ns_add_u32 {sOo}, {sOo}, {sT1}\ns_mul_i32 {sOo}, {sOo}, 2560")
            p(f"s_mul_i32 {sT1}, {sBR}, 1280\ns_add_u32 {sOo}, {sOo}, {sT1}\ns_lshl_b32 {sT1}, {sCur}, 8\ns_add_u32 {sOo}, {sOo}, {sT1}\ns_lshl_b32 {sT1}, {sW}, 6\ns_add_u32 {sOo}, {sOo}, {sT1}")
            p(f"v_and_b32 {t0}, 15, {l}\nv_mul_u32_u24 {t0}, 2560, {t0}\nv_and_b32 {t1}, 48, {l}\nv_add_u32 v{vBr[1]}, {t0}, {t1}")
            p(f"s_add_u32 {sNeed}, {sNeed}, 1\ns_cmp_eq_u32 {sHP}, 15\ns_cselect_b32 {sTodo}, 0, 15\ns_mov_b32 {sPrev}, -1\ns_mov_b32 {sFirst}, 1\ns_mov_b32 {sCnt}, 0")
    for q in range(6):
        p.ext(out1(4, q)); vm.issue("st4")
    stamp(p)
    p(vm.wait("poll"))
    DR = lambda G: 32 * G
    p(f"v_mov_b32 v{vFv}, 5")
    p("L_r0:")
    p(f"v_cmp_le_u32 vcc, {sNeed}, v{vIn}")
    p(f"s_lshr_b32 {sT0}, vcc_lo, 1\ns_and_b32 {sT0}, {sT0}, vcc_lo\ns_lshr_b32 {sT1}, {sT0}, 2\ns_and_b32 {sT0}, {sT0}, {sT1}\ns_and_b32 {sT0}, {sT0}, 0x1111")
    p(f"s_mul_i32 {sT0}, {sT0}, 0x249\ns_bfe_u32 {sReady}, {sT0}, 0x40009")
    p("L_r:")
    p(f"s_and_b32 {sT0}, {sReady}, {sTodo}\ns_ff1_i32_b32 {sCur}, {sT0}\ns_cbranch_scc0 L_rp")
    p(f"s_bitset0_b32 {sTodo}, {sCur}")
    for G in range(4):
        if G < 3: p(f"s_cmp_lg_u32 {sCur}, {G}\ns_cbranch_scc1 L_ri{G+1}")
        for h in range(4):
            p(f"s_mov_b32 {sT0}, {(4*G+h)*PART}")
            for j in range(2):
                p(f"buffer_load_dwordx4 {v4(DR(G)+8*h+4*j)}, v{vBr[0]}, {srd(sPG)}, {sT0} offen offset:{1024*j} {OPT['pld']}")
        if G < 3: p(f"s_branch L_rw\nL_ri{G+1}:")
    p("L_rw:\ns_waitcnt vmcnt(8)\ns_branch L_rs")
    p("L_rp:")
    p(f"buffer_load_dword v{vIn}, v{vFo}, {srd(sFG)}, 0 offen sc1\ns_waitcnt vmcnt(1)")
    p("L_rs:")
    p(f"s_cmp_eq_u32 {sFirst}, 0\ns_cbranch_scc1 L_rs0")
    p(f"s_barrier\nbuffer_store_dword v{vFv}, v{vF4}, {srd(sFL)}, 0 offen sc1\ns_mov_b32 {sFirst}, 0")
    for G in range(4):
        p(f"L_rs{G}:\ns_cmp_lg_u32 {sPrev}, {G}\ns_cbranch_scc1 L_rs{G+1}")
        for h in range(4):
            for i in range(8):
                r = DR(G) + 8 * h + i; d = 128 + 16 * G + 2 * i; u = 192 + 2 * (i & 1)
                if h == 0: p(f"v_lshlrev_b32 v{d}, 16, v{r}\nv_and_b32 v{d+1}, 0xffff0000, v{r}")
                else: p(f"v_lshlrev_b32 v{u}, 16, v{r}\nv_and_b32 v{u+1}, 0xffff0000, v{r}\nv_pk_add_f32 v[{d}:{d+1}], v[{d}:{d+1}], v[{u}:{u+1}]")
    p("L_rs4:")
    p(f"s_mov_b32 {sPrev}, {sCur}\ns_cmp_ge_i32 {sCur}, 0\ns_cbranch_scc1 L_r")
    p(f"s_cmp_eq_u32 {sTodo}, 0\ns_cbranch_scc1 L_rd")
    p(f"s_add_u32 {sCnt}, {sCnt}, 1\ns_cmp_lt_u32 {sCnt}, 100000\ns_waitcnt vmcnt(0)\ns_cbranch_scc1 L_r0")
    p("L_rd:")
    stamp(p)
    p(f"s_cmp_eq_u32 {sHP}, 15\ns_cbranch_scc1 L_fin")
    for a, b in ((128, 144), (160, 176), (128, 160)):
        for i in range(8): p(f"v_pk_add_f32 v[{a+2*i}:{a+2*i+1}], v[{a+2*i}:{a+2*i+1}], v[{b+2*i}:{b+2*i+1}]")
    for i in range(8): p(f"v_cvt_pk_bf16_f32 v{i}, v{128+2*i}, v{129+2*i}")
    for op in ("v_permlane32_swap_b32", "v_permlane16_swap_b32"):
        for r in (0, 4): p(f"{op} v{r}, v{r+2}\n{op} v{r+1}, v{r+3}")
    p(f"s_add_u32 {sT0}, {sOo}, 40960")
    p(f"buffer_store_dwordx4 v[0:3], v{vBr[1]}, {srd(sOUT)}, {sOo} offen\nbuffer_store_dwordx4 v[4:7], v{vBr[1]}, {srd(sOUT)}, {sT0} offen")
    p("L_fin:")
    if OPT["stamps"]:
        p("s_waitcnt vmcnt(0)")
        stamp(p)
        p(f"s_lshl_b32 {sT0}, s2, 2\ns_add_u32 {sT0}, {sT0}, {sW}\ns_lshl_b32 {sT0}, {sT0}, 9\ns_add_u32 {sT0}, {sT0}, {STAMP_OFF}")
        p(f"v_lshlrev_b32 v0, 2, v{vLn}\nv_add_u32 v0, {sT0}, v0")
        p(f"global_store_dword v0, v255, s[{pWS}:{pWS+1}]\nglobal_store_dword v0, v254, s[{pWS}:{pWS+1}] offset:256")
    p("L_exit:\ns_endpgm")
    d = OPT["drop"]
    def keep(i):
        if "m" in d and i.kind == "mfma": return False
        if "w" in d and i.lds_dma and i.src & {("s", sWQ), ("s", sX), ("s", sWO)}: return False
        if "r" in d and i.kind == "ds": return False
        if "s" in d and i.wide_store: return False
        return True
    p.auto_lgkm(); p.auto_nop()
    p.ins = [i if keep(i) else Ins("s_nop 0") for i in p.ins]
    return p

def build():
    ref = open(f"cdna_kernels/{NAME}.s.ref").read().split("\n")
    head = [l for l in ref if l.startswith(";") and "@launch" not in l]
    out = "\n".join(head) + "\n"
    out += f"; @launch grid=(256,1,1) block=(256,1,1) lds={LDS_BYTES}\n"
    out += '.amdgcn_target "amdgcn-amd-amdhsa--gfx950"\n.text\n'
    nm = NAME + "_kernel"
    out += f".globl {nm}\n.p2align 8\n.type {nm},@function\n" + kernel().text()
    out += f""".section .rodata,"a"
.p2align 6
.amdhsa_kernel {nm}
  .amdhsa_next_free_vgpr 512
  .amdhsa_next_free_sgpr 102
  .amdhsa_accum_offset 256
  .amdhsa_group_segment_fixed_size 0
  .amdhsa_kernarg_size 104
  .amdhsa_user_sgpr_count 2
  .amdhsa_user_sgpr_kernarg_segment_ptr 1
  .amdhsa_system_sgpr_workgroup_id_x 1
  .amdhsa_float_denorm_mode_32 3
.end_amdhsa_kernel
"""
    return out

if __name__ == "__main__":
    txt = build()
    open(sys.argv[1], "w").write(txt)
```

```python
import re

REG_RE = re.compile(r'^(-|\|)?(abs\()?([vas])(\d+|\[(\d+):(\d+)\])\)?\|?$')

def regs_of(op):
    op = op.strip()
    if op in ("vcc", "vcc_lo", "vcc_hi"): return {("s", "vcc")}
    if op in ("exec",): return {("s", "exec")}
    if op in ("m0",): return {("s", "m0")}
    m = REG_RE.match(op)
    if not m: return set()
    k = m.group(3)
    if m.group(5) is not None:
        return {(k, i) for i in range(int(m.group(5)), int(m.group(6)) + 1)}
    return {(k, int(m.group(4)))}

TRANS = ("v_exp_f32", "v_log_f32", "v_rcp_f32", "v_rsq_f32", "v_sqrt_f32")

class Ins:
    __slots__ = ("text", "op", "kind", "dst", "src", "srcA", "srcB", "srcC", "passes", "lds_dma", "label", "target", "wide_store", "data")
    def __init__(self, text):
        self.text = text
        self.label = None; self.target = None
        self.dst = set(); self.src = set(); self.srcA = self.srcB = self.srcC = set()
        self.passes = 0; self.lds_dma = False; self.wide_store = False; self.data = set()
        t = text.split(";")[0].strip()
        if not t or t.startswith("."):
            self.kind = "none"; self.op = ""; return
        if t.endswith(":"):
            self.kind = "label"; self.op = ""; self.label = t[:-1]; return
        parts = t.split(None, 1)
        self.op = op = parts[0]
        rest = parts[1] if len(parts) > 1 else ""
        ops = [o.strip() for o in re.split(r",(?![^\[]*\])", rest)] if rest else []
        mods = ""
        if ops:
            last = ops[-1].split(None, 1)
            ops[-1] = last[0]
            mods = last[1] if len(last) > 1 else ""
        R = [regs_of(o) for o in ops]
        if op.startswith("v_mfma"):
            self.kind = "mfma"; self.passes = 8 if "32x32" in op else 4
            self.dst = R[0]; self.srcA = R[1]; self.srcB = R[2]; self.srcC = R[3]
            self.src = R[1] | R[2] | R[3]
        elif op.startswith("v_"):
            self.kind = "valu"
            if op.startswith("v_permlane"):
                self.dst = R[0] | R[1]; self.src = R[0] | R[1]
            elif op.startswith("v_cmp"):
                self.dst = R[0]; self.src = set().union(*R[1:])
            elif op in ("v_nop",):
                pass
            else:
                self.dst = R[0]; self.src = set().union(*R[1:]) if len(R) > 1 else set()
                if op.startswith("v_fmac") or op.startswith("v_writelane"): self.src |= R[0]
                if "_co_" in op: self.dst |= R[1]
        elif op.startswith("ds_"):
            self.kind = "ds"
            if op.startswith("ds_read"):
                self.dst = R[0]; self.src = R[1]
            else:
                self.src = set().union(*R)
        elif op.startswith("buffer_") or op.startswith("global_"):
            self.kind = "vmem"
            if "load" in op:
                if "lds" in mods.split():
                    self.lds_dma = True; self.src = set().union(*R) | {("s", "m0")}
                else:
                    self.dst = R[0]; self.src = set().union(*R[1:])
            elif "store" in op:
                self.src = set().union(*R)
                self.data = R[0] if op.startswith("buffer_") else R[1]
                self.wide_store = op.endswith("x4") or op.endswith("x3")
            elif "atomic" in op:
                self.src = set().union(*R)
                if "sc0" in mods.split(): self.dst = R[0]
            else:
                pass
        elif op.startswith("s_"):
            self.kind = "salu"
            if op.startswith("s_cbranch") or op == "s_branch":
                self.kind = "branch"; self.target = ops[0]
            elif op in ("s_nop", "s_waitcnt", "s_barrier", "s_endpgm", "s_setprio", "s_sleep"):
                self.kind = op
            elif op.startswith("s_cmp") or op.startswith("s_bitcmp"):
                self.src = set().union(*R)
            elif op.startswith("s_load") or op.startswith("s_memtime") or op.startswith("s_memrealtime"):
                self.kind = "smem"; self.dst = R[0]; self.src = set().union(*R[1:]) if len(R) > 1 else set()
            else:
                self.dst = R[0]; self.src = set().union(*R[1:]) if len(R) > 1 else set()
                if "saveexec" in op: self.dst = self.dst | {("s", "exec")}
        else:
            raise ValueError("unknown instruction: " + text)

    def states(self):
        if self.kind in ("none", "label"): return 0
        if self.kind == "s_nop": return int(self.text.split(";")[0].split()[1]) + 1
        return 1

def vec(s): return {r for r in s if r[0] in "va"}
def sca(s): return {r for r in s if r[0] == "s"}

def need(p, c):
    n = 0
    if p.kind == "valu":
        w = vec(p.dst)
        if c.kind == "mfma" and w & c.src: n = max(n, 2)
        if c.kind == "valu":
            if c.op.startswith("v_permlane") and w & c.src: n = max(n, 2)
            if (c.op.startswith("v_readfirstlane") or c.op.startswith("v_readlane")) and w & c.src: n = max(n, 1)
            if p.op.replace("_e32", "").replace("_e64", "") in TRANS and w & c.src: n = max(n, 1)
            if "dpp" in c.text and w & c.src: n = max(n, 2)
        sw = sca(p.dst)
        if sw:
            if c.kind == "vmem" and sw & c.src: n = max(n, 5)
            if c.kind == "valu" and sw & c.src: n = max(n, 4 if "lane" in c.op else 2)
            if c.kind in ("salu",) and sw & c.src: n = max(n, 1)
    if p.kind == "mfma":
        big = p.passes + 4
        if c.kind == "mfma":
            if p.dst & (c.srcA | c.srcB): n = max(n, big)
            if p.dst & c.srcC and not (p.dst == c.srcC and p.passes == c.passes): n = max(n, p.passes + 2)
            if p.dst & c.dst and p.passes != c.passes: n = max(n, big)
        elif c.kind in ("valu", "ds", "vmem"):
            if p.dst & (c.src | c.dst): n = max(n, big)
            if c.kind == "valu" and p.srcC & c.dst: n = max(n, p.passes - 1)
    if p.kind == "salu" and ("s", "m0") in p.dst and c.kind == "vmem" and c.lds_dma: n = max(n, 1)
    if p.kind == "vmem" and p.wide_store and p.data & c.dst: n = max(n, 2)
    return n

class Prog:
    def __init__(self):
        self.ins = []
    def __call__(self, text):
        for line in text.split("\n"):
            line = line.strip()
            if line: self.ins.append(Ins(line))
    def ext(self, seq):
        for t in seq: self(t)

    def auto_lgkm(self):
        out = []; q = []
        smem = False
        targets = {i.target for i in self.ins if i.kind == "branch"}
        for i in self.ins:
            if i.kind == "branch" or (i.kind == "label" and i.label in targets):
                pend = [d for d in q if d]
                assert not pend, f"pending ds reads across control flow at {i.text}"
                q = []
            if i.kind == "s_waitcnt":
                m = re.search(r"lgkmcnt\((\d+)\)", i.text)
                if m:
                    n = int(m.group(1))
                    q = q[len(q) - n:] if n < len(q) else q
                    if n == 0: smem = False; q = []
            touched = i.src | i.dst
            idx = -1
            for k, d in enumerate(q):
                if d & touched: idx = k
            if idx >= 0:
                n = len(q) - 1 - idx
                if smem: n = 0
                n = min(n, 15)
                out.append(Ins(f"s_waitcnt lgkmcnt({n})"))
                q = q[len(q) - n:] if n else []
                if n == 0: smem = False
            if i.kind == "ds": q.append(set(i.dst))
            if i.kind == "smem": q.append(set(i.dst)); smem = True
            out.append(i)
        self.ins = out

    def auto_nop(self):
        W = 24
        def preds_need(hist, c):
            worst = 0; dist = 0
            for p in reversed(hist):
                n = need(p, c)
                if n > dist: worst = max(worst, n - dist)
                dist += p.states()
                if dist >= 20: break
            return worst
        out = []
        for c in self.ins:
            if c.states():
                k = preds_need(out[-W*2:], c)
                while k > 0:
                    n = min(k, 16); out.append(Ins(f"s_nop {n-1}")); k -= n
            out.append(c)
        changed = True
        while changed:
            changed = False
            labels = {i.label: k for k, i in enumerate(out) if i.kind == "label"}
            for k, b in enumerate(out):
                if b.kind != "branch" or b.target not in labels: continue
                hist = out[max(0, k - W*2):k + 1]
                t = labels[b.target]
                worst = 0
                seq = list(hist)
                cnt = 0
                for c in out[t:t + W*2]:
                    if c.states():
                        worst = max(worst, preds_need(seq, c)); cnt += c.states()
                    seq.append(c)
                    if cnt >= 20 or c.op in ("s_branch", "s_endpgm"): break
                if worst > 0:
                    out.insert(k, Ins(f"s_nop {min(worst,16)-1}")); changed = True; break
        self.ins = out

    def resolve_vm(self):
        q = None
        for k, i in enumerate(self.ins):
            m = re.search(r"; vmq (.*)", i.text)
            if m:
                q = []
                for x in m.group(1).split():
                    t, n = x.split("*"); q += [t] * int(n)
            if q is None or "; side" in i.text: continue
            if i.kind == "vmem":
                m = re.search(r"; vm=(\S+)", i.text)
                q.append(m.group(1) if m else "?")
            m = re.search(r"vmcnt\(@([^)]*)\)", i.text)
            if m:
                tags = m.group(1).split(",")
                idx = max((j for j, t in enumerate(q) if t in tags), default=-1)
                n = len(q) - 1 - idx
                assert n <= 63 or idx < 0, i.text
                q = q[idx + 1:]
                self.ins[k] = Ins(i.text.replace(m.group(0), f"vmcnt({min(n, 63)})") + f" ; {m.group(1)}")

    def lint_scc(self):
        wr = ("s_add", "s_sub", "s_and", "s_or", "s_xor", "s_lsh", "s_bfe", "s_cmp", "s_bitcmp", "s_min", "s_max", "s_ashr", "s_not", "s_abs", "s_bcnt")
        last = None
        for i in self.ins:
            if i.op.startswith(("s_cselect", "s_cbranch_scc")):
                ok = last is not None and (last.op.startswith(("s_cmp", "s_bitcmp")) or "scc-ok" in last.text)
                assert ok, f"SCC for '{i.text}' comes from '{last.text if last else None}'"
            if i.op.startswith(("s_addc", "s_subb")):
                assert last.op in ("s_add_u32", "s_sub_u32") or "carry-ok" in i.text, i.text
            if i.op.startswith(wr): last = i

    def text(self):
        return "\n".join(("" if i.kind == "label" else "    ") + i.text for i in self.ins) + "\n"

def weave(main, fill, lo=0, hi=None, first=False):
    if hi is None: hi = len(main)
    n = hi - lo
    slots = [[] for _ in main]
    for k, f in enumerate(fill):
        pos = lo + (k * n) // max(len(fill), 1)
        slots[pos].extend([f] if isinstance(f, str) else f)
    out = []
    for m, s in zip(main, slots):
        out.extend([m] if isinstance(m, str) else m)
        out.extend(s)
    return out

def weave2(main, tracks):
    slots = [[] for _ in main]
    for fill, lo, hi in tracks:
        n = hi - lo
        for k, f in enumerate(fill):
            pos = lo + (k * n) // max(len(fill), 1)
            slots[pos].extend([f] if isinstance(f, str) else f)
    out = []
    for m, s in zip(main, slots):
        out.extend([m] if isinstance(m, str) else m)
        out.extend(s)
    return out

class Gaps:
    def __init__(self, main):
        self.main = main
        n = len(main)
        self.g = [[] for _ in range(n)]
        self.mem = [0] * n; self.cnt = [0] * n
    def put(self, k, items):
        items = [items] if isinstance(items, str) else items
        for t in items:
            self.g[k].append(t); self.cnt[k] += 1
            if t.startswith(("ds_", "buffer_", "global_")): self.mem[k] += 1
    def vm(self, groups, slots):
        assert len(groups) <= len(slots), (len(groups), slots)
        for grp, k in zip(groups, slots):
            grp = [grp] if isinstance(grp, str) else grp
            if len(grp) > 1 and k > 0:
                self.put(k - 1, grp[:-1]); self.put(k, grp[-1])
            else: self.put(k, grp)
    def mems(self, ops, lo, hi):
        free = [k for k in range(lo, hi) if self.mem[k] == 0]
        n = len(ops)
        if n <= len(free):
            pos = [free[(i * len(free)) // n] for i in range(n)]
        else:
            pos = [free[(i * len(free)) // n] for i in range(n)]
        for o, k in zip(ops, pos): self.put(k, o)
        return pos
    def spread(self, groups, lo, hi):
        n = len(groups)
        for i, grp in enumerate(groups): self.put(lo + (i * (hi - lo)) // max(n, 1), grp)
    def out(self):
        r = []
        for m, g in zip(self.main, self.g): r.append(m); r += g
        return r
```

```python
import sys, struct, math
from asmlib import *

NAME = "concat_heads__gqa_block_cached__mha_block_cached__near_ridge"
OPT = dict(stamps=0, fine="", drop="", kv="nt", wq="", x="", wo="", pst="sc1", pld="sc1", kburst=1, vburst=5, spread=2, dmax=5, pubfrom=99, code=3, codeit=10, ost="", thr=0x41000000, skip0=2, skipn=8, lazy=1, wotouch=99, wotn=3, epoch=1, w3=1, touch="", tfl="", win=0)
for a in sys.argv[2:]:
    k, v = a.split("=", 1)
    assert k in OPT, k
    OPT[k] = int(v) if v.lstrip("-").isdigit() else v

SLOT = 24576
S = [i * SLOT for i in range(6)]
LDS_BYTES = 6 * SLOT
PART = 122880
FLAG_OFF = 32 << 20
STAMP_OFF = 64 << 20

sX, sWQ, sK, sV, sWO, sP = 28, 32, 36, 40, 44, 48
sFL, sFG, sFA, sDG = 4, 8, 12, 16
sPG, sOUT = 28, 32
pOUT, pDBG, pWS = 20, 22, 24
def srd(b): return f"s[{b}:{b+3}]"
sW, sB, sHP, sBR, sC = "s52", "s53", "s54", "s55", "s56"
sWQo, sWQlim, sXo, sWQm, sXm, sRd, sI = "s57", "s58", "s59", "s60", "s61", "s62", "s63"
sKo, sVo, sKm, sVm, sDK, sDV = "s64", "s65", "s66", "s67", "s68", "s69"
sT0, sT1, sT2, sT3 = "s70", "s71", "s72", "s73"
sW6, sXd, sCrot, sKrot = "s74", "s75", "s76", "s77"
sCo = ["s78", "s79", "s80", "s81", "s82"]
sKq = ["s83", "s84", "s85", "s86"]
sJ, sSk, sG, sRet = "s87", "s88", "s89", "s90"
sThr = "s91"; sKV0 = "s101"
sE = ["s97", "s98"]; sPn = "s99"
sNeed, sTodo, sReady, sPrev, sCur, sFirst, sCnt, sOo = "s57", "s58", "s59", "s60", "s61", "s62", "s63", "s64"
sST, sSI = 92, "s96"
def ACC(t, qb): return (t * 3 + qb) * 4
def SS(kb, qb): return 144 + (kb * 3 + qb) * 4
def PP(qb): return 168 + qb * 4
vM = [180, 181, 182]; vL = [183, 184, 185]; vAl = [186, 188, 190]; vMx = [192, 193, 194]; vTm = [195, 196, 197]; vMc = [187, 189, 191]
vKs = list(range(200, 206)); vVs = [206, 207, 208]; vWs = [209, 210, 211]; vXs = [212, 213, 214]; vOs = [215, 216, 217, 218, 219, 220]
vKr = [221, 222]; vVr = [223, 224, 225, 226]; vXr = [227, 228]; vOr = [[229, 230, 231], [232, 233, 234]]; vOw = 235; vBr = [236, 237, 198, 199]; vPs = [238, 239]
vPt = vWs + vXs + vXr
vLn = 240; vFo = 241; vFv = 242; vF4 = 243; vIn = 244; vCo = 245; vCd = 246; T = list(range(248, 254))
def v4(r): return f"v[{r}:{r+3}]"
def a4(r): return f"a[{r}:{r+3}]"
def QF(ks, qb): return (ks * 3 + qb) * 4
def FA(p, t): return 72 + 48 * p + 4 * t
def FB(p, qb): return 168 + 12 * p + 4 * qb

M16 = "v_mfma_f32_16x16x32_bf16"

class VM:
    def __init__(self, q): self.q = list(q)
    def issue(self, tag, n=1): self.q += [tag] * n
    def wait(self, *tags):
        idx = max((k for k, t in enumerate(self.q) if t in tags), default=-1)
        n = len(self.q) - 1 - idx
        self.q = self.q[idx + 1:]
        assert n <= 63
        return f"s_waitcnt vmcnt({n})"
    def done(self, tag): return tag not in self.q

def stamp(p, cls=""):
    if OPT["stamps"] and (not cls or cls in OPT["fine"]):
        p(f"s_memrealtime s[{sST}:{sST+1}]\ns_memtime s[{sST+2}:{sST+3}]\ns_mov_b32 s100, m0\ns_mov_b32 m0, {sSI}\ns_add_u32 {sSI}, {sSI}, 1\ns_waitcnt lgkmcnt(0)")
        p(f"v_writelane_b32 v255, s{sST}, m0\nv_writelane_b32 v254, s{sST+2}, m0\ns_mov_b32 m0, s100")

def dma6(vs, srdb, so, mbase, flags, src_step, six=False):
    def val(dst, x, extra):
        if isinstance(x, tuple): r, imm = x
        else: r, imm = x, 0
        imm += extra
        return f"s_add_u32 {dst}, {r}, {imm}" if imm else f"s_mov_b32 {dst}, {r}"
    g = []
    for j in range(6):
        pre = []
        sreg = so if (j < 3 or src_step == 0) else sT3
        if j % 3 == 0:
            pre = [val("m0", mbase, 3072 * (j // 3))]
            if j == 3 and src_step: pre.append(val(sT3, so, src_step))
        v = vs[j] if six else vs[j % 3]
        g.append(pre + [f"buffer_load_dwordx4 v{v}, {srd(srdb)}, {sreg} offen offset:{1024*(j%3)} {flags} lds"])
    return g
def dma_k(): return dma6(vKs, sK, sKo, sKm, OPT["kv"], 0, six=True)
def dma_v(): return dma6(vVs, sV, sVo, sVm, OPT["kv"], 3072)
def dma_wq(): return dma6(vWs, sWQ, sWQo, sWQm, OPT["wq"], 16 * 12288)
def dma_x():
    g = []
    for j in range(3):
        pre = [f"s_mov_b32 m0, {sXm}"] if j == 0 else []
        g.append(pre + [f"buffer_load_dwordx4 v{vXs[j]}, {srd(sX)}, {sXo} offen offset:{1024*j} {OPT['x']} lds"])
    return g
def dma_wo(sig, slot):
    ci, kq = divmod(sig, 4)
    g = dma6(vOs, sWO, sT2, (sW6, S[slot]), OPT["wo"], 0, six=True)
    g[0] = [g[0][0], f"s_add_u32 {sT2}, {sCo[ci]}, {sKq[kq]}"] + g[0][1:]
    return g
def set_wq(e): return [f"s_mul_i32 {sWQo}, {sXo}, 6144", f"s_add_u32 {sWQo}, {sWQo}, {sE[e]}"]
def adv_wqm(): return [f"s_add_u32 {sWQm}, {sWQm}, {SLOT}", f"s_cmp_ge_u32 {sWQm}, {3*SLOT}", f"s_cselect_b32 {sWQm}, {sW6}, {sWQm}"]
def next_pair():
    span = 640 if OPT["epoch"] else 1280
    g = [[f"s_add_u32 {sXo}, {sXo}, 128", f"s_cmp_ge_u32 {sXo}, {sWQlim}"], [f"s_cselect_b32 {sT0}, {span}, 0", f"s_sub_u32 {sXo}, {sXo}, {sT0}"]]
    if OPT["epoch"]:
        g += [[f"s_add_u32 {sPn}, {sPn}, 1", f"s_cmp_eq_u32 {sPn}, 5"], [f"s_cselect_b32 {sT0}, 640, 0", f"s_add_u32 {sXo}, {sXo}, {sT0}", f"s_add_u32 {sWQlim}, {sWQlim}, {sT0}"]]
    return g
def flip_x(): return [f"s_xor_b32 {sXm}, {sXm}, {sXd}"]
def adv_kv(so, sm, step="12288"):
    if step == "12288": a = [f"s_add_u32 {so}, {so}, 12288", f"s_add_u32 {sm}, {sm}, {2*SLOT}"]
    else: a = [f"s_add_u32 {so}, {so}, {step}", f"s_lshl2_add_u32 {sm}, {step}, {sm}"]
    return [a, [f"s_cmp_ge_u32 {sm}, {6*SLOT}", f"s_cselect_b32 {sT0}, {6*SLOT}, 0", f"s_sub_u32 {sm}, {sm}, {sT0}"]]
def adv_k(step="12288"): return adv_kv(sKo, sKm, step)
def adv_v(step="12288"): return adv_kv(sVo, sVm, step)
def flat(g): return [x for y in g for x in ([y] if isinstance(y, str) else y)]

def reads_t(dstf, n=12):
    g = []
    for t in range(n):
        r = dstf(t); o = (t >> 2) * 128
        g.append(f"ds_read_b64_tr_b16 a[{r}:{r+1}], v{vVr[t&3]} offset:{o}")
        g.append(f"ds_read_b64_tr_b16 a[{r+2}:{r+3}], v{vVr[t&3]} offset:{o+6144}")
    return g
def reads_x(p, e): return [f"ds_read_b128 {a4(FB(p, qb))}, v{vXr[e]} offset:{qb*2048}" for qb in range(3)]
def adv_rd_wq():
    return [[f"s_add_u32 {sRd}, {sRd}, 1", f"s_cmp_ge_u32 {sRd}, 3", f"s_cselect_b32 {sRd}, 0, {sRd}",
             f"s_cselect_b32 {sT1}, {-2*SLOT & 0xffffffff}, {sT2}"]] + [f"v_add_u32 v{r}, {sT1}, v{r}" for r in vVr]

def kernel():
    p = Prog()
    p(f"{NAME}_kernel:")
    p("s_cmp_ge_u32 s2, 256\ns_cbranch_scc1 L_exit")
    p("s_bfe_u32 s55, s2, 0x10002\ns_mul_i32 s3, s55, 40")
    p("s_load_dwordx8 s[4:11], s[0:1], s3\ns_add_u32 s3, s3, 32\ns_load_dwordx2 s[12:13], s[0:1], s3")
    p(f"s_load_dwordx4 s[{pOUT}:{pOUT+3}], s[0:1], 80\ns_load_dwordx2 s[{pWS}:{pWS+1}], s[0:1], 96")
    if OPT["stamps"]: p(f"v_mov_b32 v255, 0\nv_mov_b32 v254, 0\ns_mov_b32 {sSI}, 0")
    l = f"v{vLn}"
    t0, t1, t2, t3, t4 = (f"v{r}" for r in T[:5])
    p(f"v_lshrrev_b32 {t0}, 6, v0\nv_and_b32 {l}, 63, v0")
    p(f"s_and_b32 {sT0}, s2, 3\ns_bfe_u32 {sB}, s2, 0x30003\ns_lshr_b32 {sJ}, s2, 6")
    p(f"v_readfirstlane_b32 {sW}, {t0}")
    p(f"s_lshl_b32 {sHP}, {sT0}, 2\ns_add_u32 {sHP}, {sHP}, {sJ}")
    if OPT["code"]:
        p("s_getpc_b64 s[26:27]\nL_pc:")
        p(f"s_sub_u32 s26, s26, L_pc-{NAME}_kernel\ns_subb_u32 s27, s27, 0")
        p(f"s_lshr_b32 {sT1}, s2, 3\ns_lshl_b32 {sT1}, {sT1}, 2\ns_add_u32 {sT1}, {sT1}, {sW}\ns_mul_i32 {sT1}, {sT1}, 384")
        p(f"v_and_b32 v{vCo}, 3, {l}\nv_lshlrev_b32 v{vCo}, 7, v{vCo}\nv_add_u32 v{vCo}, {sT1}, v{vCo}\nv_min_u32 v{vCo}, L_exit-{NAME}_kernel, v{vCo}")
        if OPT["code"] & 1: p(f"global_load_dword v{vCd}, v{vCo}, s[26:27]")
    if OPT["epoch"]:
        p(f"s_lshr_b32 {sCrot}, {sB}, 1\ns_and_b32 {sKrot}, {sB}, 1\ns_cmp_eq_u32 {sB}, 7\ns_cselect_b32 {sCrot}, 4, {sCrot}\ns_cselect_b32 {sKrot}, 0, {sKrot}")
        p(f"s_add_u32 {sT0}, {sCrot}, {sJ}\ns_cmp_ge_u32 {sT0}, 5\ns_cselect_b32 {sT1}, 5, 0\ns_sub_u32 {sT0}, {sT0}, {sT1}")
        p(f"s_mov_b32 {sWQlim}, 640")
    else:
        p(f"s_mul_i32 {sT0}, {sJ}, 5\ns_lshr_b32 {sT0}, {sT0}, 1\ns_mul_i32 {sT1}, {sB}, 5\ns_add_u32 {sT1}, {sT1}, 1\ns_lshr_b32 {sT1}, {sT1}, 2\ns_add_u32 {sT0}, {sT0}, {sT1}")
        p(f"s_cmp_ge_u32 {sT0}, 10\ns_cselect_b32 {sT1}, 10, 0\ns_sub_u32 {sT0}, {sT0}, {sT1}\ns_mov_b32 {sKrot}, 0\ns_mov_b32 {sWQlim}, 1280")
    p(f"s_lshl_b32 {sXo}, {sT0}, 7\ns_mul_i32 {sW6}, {sW}, 6144\ns_mov_b32 {sPn}, 0")
    p(f"s_and_b32 {sT1}, {sW}, 1\ns_lshr_b32 {sT2}, {sW}, 1")
    p(f"s_mul_i32 {sT0}, {sT1}, {4*12288}\ns_mul_i32 {sT3}, {sT2}, 384\ns_add_u32 {sT0}, {sT0}, {sT3}")
    p(f"s_mul_i32 {sE[0]}, {sKrot}, {32*12288}\ns_sub_u32 {sE[1]}, {32*12288}, {sE[0]}\ns_add_u32 {sE[0]}, {sE[0]}, {sT0}\ns_add_u32 {sE[1]}, {sE[1]}, {sT0}")
    p.ext(set_wq(0))
    p(f"s_add_u32 {sWQm}, {sW6}, {S[1]}")
    p(f"s_mul_i32 {sXm}, {sW}, 3072\ns_add_u32 {sXm}, {sXm}, {S[3]}")
    p(f"s_add_u32 {sXd}, {sXm}, 12288\ns_xor_b32 {sXd}, {sXd}, {sXm}")
    p(f"s_mul_i32 {sT0}, {sW}, 24\nv_lshrrev_b32 {t0}, 3, {l}\nv_add_u32 {t0}, {sT0}, {t0}")
    p(f"v_lshrrev_b32 {t1}, 1, {t0}\nv_xor_b32 {t1}, {t1}, {l}\nv_and_b32 {t1}, 7, {t1}\nv_mul_u32_u24 {t0}, 1280, {t0}")
    p(f"v_lshl_add_u32 v{vXs[0]}, {t1}, 4, {t0}\nv_xor_b32 {t1}, 64, v{vXs[0]}")
    p(f"v_add_u32 v{vXs[1]}, {10240-1024}, {t1}\nv_add_u32 v{vXs[2]}, {2*(10240-1024)}, v{vXs[0]}")
    def rowof(j): p(f"v_add_u32 {t0}, {64*j}, {l}\nv_mul_u32_u24 {t1}, 2731, {t0}\nv_lshrrev_b32 {t1}, 16, {t1}")
    for j in range(3):
        rowof(j)
        p(f"v_and_b32 {t2}, 6, {t1}\nv_xor_b32 {t3}, {t2}, {l}\nv_lshlrev_b32 v{vVs[j]}, 4, {t3}")
        p(f"v_and_b32 {t2}, 12, {t1}\nv_add_u32 {t2}, {t2}, {t1}\nv_mul_u32_u24 {t2}, 12288, {t2}")
        p(f"v_mul_u32_u24 {t3}, 384, {t1}\nv_sub_u32 {t2}, {t2}, {t3}\nv_add_u32 v{vWs[j]}, {t2}, v{vVs[j]}")
    p("s_waitcnt lgkmcnt(0)")
    stamp(p)
    def mk(b, ptr, off_s, size):
        p(f"s_add_u32 s{b}, s{ptr}, {off_s}\ns_addc_u32 s{b+1}, s{ptr+1}, 0\ns_and_b32 s{b+1}, s{b+1}, 0xffff")
        p(f"s_mov_b32 s{b+2}, {size}\ns_mov_b32 s{b+3}, 0x20000")
    p(f"s_mul_i32 {sT0}, {sB}, 122880"); mk(sX, 4, sT0, 122880)
    p.ext(flat(dma_x()))
    p(f"s_mul_i32 {sT0}, {sHP}, 768"); mk(sWQ, 10, sT0, 639 * 12288 + 768)
    p.ext(flat(dma_wq() + [adv_wqm(), set_wq(1), flip_x()]))
    wq1 = dma_wq()
    p.ext(flat(wq1[:3]))
    p(f"s_and_b32 {sT1}, {sW}, 1\ns_lshr_b32 {sT2}, {sW}, 1")
    p(f"s_mul_i32 {sKo}, {sT2}, 196608\ns_mul_i32 {sT3}, {sT1}, 6144\ns_add_u32 {sKo}, {sKo}, {sT3}\ns_mov_b32 {sVo}, {sKo}\ns_mov_b32 {sKV0}, {sKo}")
    p(f"s_add_u32 {sKm}, {sW6}, {S[4]}\ns_add_u32 {sVm}, {sW6}, {S[5]}")
    p(f"s_lshr_b32 {sSk}, s2, 3\ns_and_b32 {sSk}, {sSk}, {OPT['skipn']-1}\ns_add_u32 {sSk}, {sSk}, {OPT['skip0']}\ns_mov_b32 {sThr}, {OPT['thr']}")
    p(f"s_lshl_b32 {sT0}, {sB}, 4\ns_add_u32 {sT0}, {sT0}, {sHP}\ns_mul_i32 {sT3}, {sT0}, 393216")
    mk(sK, 6, sT3, 393216); mk(sV, 8, sT3, 393216)
    p(f"s_mul_i32 {sT3}, {sHP}, 491520"); mk(sWO, 12, sT3, 491520)
    p(f"s_lshl_b32 {sG}, {sBR}, 3\ns_add_u32 {sG}, {sG}, {sB}\ns_lshl_b32 {sT0}, {sG}, 4\ns_add_u32 {sT0}, {sT0}, {sHP}")
    p(f"s_mul_i32 {sT3}, {sT0}, {PART}"); mk(sP, pWS, sT3, PART)
    p(f"s_lshl_b32 {sT3}, {sT0}, 7\ns_add_u32 {sT3}, {sT3}, {FLAG_OFF}"); mk(sFL, pWS, sT3, 64)
    p(f"s_lshl_b32 {sT3}, {sG}, 11\ns_add_u32 {sT3}, {sT3}, {FLAG_OFF}"); mk(sFG, pWS, sT3, 2048)
    mk(sFA, pWS, FLAG_OFF, 32768)
    mk(sDG, pDBG, 0, 64)
    p(f"s_cmp_eq_u32 {sW}, 0\ns_cselect_b32 s{sFL+2}, 64, 0")
    p(f"v_lshlrev_b32 v{vFo}, 7, {l}\nv_lshlrev_b32 v{vF4}, 2, {l}")
    c = (192 ** -0.5) * math.log2(math.e)
    p(f"s_mov_b32 {sC}, {struct.unpack('<I', struct.pack('<f', c))[0]:#x}")
    p(f"s_lshr_b32 {sCrot}, {sB}, 1\ns_and_b32 {sKrot}, {sB}, 1\ns_lshl_b32 {sKrot}, {sKrot}, 1")
    p(f"s_cmp_eq_u32 {sB}, 7\ns_cselect_b32 {sCrot}, 4, {sCrot}\ns_cselect_b32 {sKrot}, 0, {sKrot}")
    for ci in range(5):
        p(f"s_add_u32 {sT0}, {sCrot}, {ci}\ns_cmp_ge_u32 {sT0}, 5\ns_cselect_b32 {sT3}, 5, 0\ns_sub_u32 {sT0}, {sT0}, {sT3}\ns_lshl_b32 {sCo[ci]}, {sT0}, 8")
    for kq in range(4):
        p(f"s_xor_b32 {sT0}, {sKrot}, {kq}\ns_mul_i32 {sKq[kq]}, {sT0}, {96*1280}")
    p(f"s_mul_i32 {sT0}, {sT2}, 12288")
    for j in range(6):
        rowof(j)
        p(f"v_bfe_u32 {t2}, {t1}, 1, 3\nv_xor_b32 {t2}, {t2}, {l}\nv_lshlrev_b32 v{vKs[j]}, 4, {t2}")
        if j >= 3: p(f"v_add_u32 v{vKs[j]}, 3072, v{vKs[j]}")
    p(f"v_and_b32 {t0}, 15, {l}\nv_lshrrev_b32 {t1}, 4, {l}\nv_lshrrev_b32 {t2}, 1, {t0}\nv_xor_b32 {t2}, {t2}, {t1}")
    p(f"v_mul_u32_u24 {t3}, 384, {t0}\nv_add_u32 {t3}, {sT0}, {t3}\nv_add_u32 {t3}, {S[4]}, {t3}")
    p(f"v_lshl_add_u32 v{vKr[0]}, {t2}, 4, {t3}\nv_xor_b32 {t4}, 4, {t2}\nv_lshl_add_u32 v{vKr[1]}, {t4}, 4, {t3}")
    p(f"s_mul_i32 {sT3}, {sT1}, {48*128}\ns_add_u32 {sT3}, {sT3}, {S[3]}")
    p(f"v_lshlrev_b32 {t3}, 7, {t0}\nv_add_u32 {t3}, {sT3}, {t3}")
    p(f"v_lshl_add_u32 v{vXr[0]}, {t2}, 4, {t3}")
    if OPT["epoch"]: p(f"s_lshl_b32 {sT3}, {sKrot}, 5\nv_xor_b32 v{vXr[0]}, {sT3}, v{vXr[0]}")
    p(f"v_xor_b32 v{vXr[1]}, 64, v{vXr[0]}")
    p(f"s_mul_i32 {sT3}, {sW}, 24\nv_lshlrev_b32 {t2}, 1, {t1}\nv_xor_b32 {t2}, {t2}, {t0}\nv_add_u32 {t3}, {sT3}, {t1}")
    p(f"v_mul_u32_u24 {t3}, 1280, {t3}\nv_lshl_add_u32 v{vOs[0]}, {t2}, 4, {t3}\nv_xor_b32 {t2}, 128, v{vOs[0]}")
    for j in range(1, 6):
        p(f"v_add_u32 v{vOs[j]}, {5120*j-1024*(j%3)}, " + (t2 if j & 1 else f"v{vOs[0]}"))
    p(f"v_lshrrev_b32 {t0}, 2, {l}\nv_and_b32 {t1}, 3, {l}\nv_bfe_u32 {t2}, {l}, 3, 2")
    p(f"v_mul_u32_u24 {t3}, 384, {t0}\nv_lshl_add_u32 {t3}, {t1}, 3, {t3}\nv_add_u32 {t3}, {sT0}, {t3}\nv_add_u32 {t3}, {S[1]}, {t3}")
    for dl in range(4):
        p(f"v_xor_b32 {t4}, {dl}, {t2}\nv_lshl_add_u32 v{vVr[dl]}, {t4}, 5, {t3}")
    p(f"v_lshlrev_b32 {t3}, 8, {t0}\nv_lshl_add_u32 {t3}, {t1}, 3, {t3}\nv_and_b32 {t2}, 7, {t0}\ns_lshl_b32 {sT3}, {sW}, 1\nv_xor_b32 {t2}, {sT3}, {t2}")
    p(f"v_lshl_add_u32 v{vOr[0][0]}, {t2}, 5, {t3}\nv_xor_b32 v{vOr[1][0]}, 32, v{vOr[0][0]}")
    for nu in range(2): p(f"v_add_u32 v{vOr[nu][1]}, {S[2]}, v{vOr[nu][0]}\nv_add_u32 v{vOr[nu][2]}, {S[4]}, v{vOr[nu][0]}")
    p(f"v_lshlrev_b32 {t0}, 4, {l}")
    p(f"s_mul_i32 {sT3}, {sW}, 3072\ns_add_u32 {sT3}, {sT3}, {S[3]}\nv_add_u32 v{vOw}, {sT3}, {t0}")
    p(f"s_mul_i32 {sT3}, {sKrot}, 3072\ns_add_u32 {sT3}, {sT3}, {S[3]}\nv_add_u32 v{vBr[0]}, {sT3}, {t0}\nv_add_u32 v{vBr[1]}, 36864, v{vBr[0]}")
    p(f"s_xor_b32 {sT3}, {sKrot}, 2\ns_mul_i32 {sT3}, {sT3}, 3072\ns_add_u32 {sT3}, {sT3}, {S[3]}\nv_add_u32 v{vBr[2]}, {sT3}, {t0}\nv_add_u32 v{vBr[3]}, 36864, v{vBr[2]}")
    p(f"v_add_u32 v{vPs[0]}, {sW6}, {t0}\nv_add_u32 v{vPs[1]}, 3072, v{vPs[0]}")
    for r in range(144): p(f"v_mov_b32 v{r}, 0")
    for qb in range(3): p(f"v_mov_b32 v{vM[qb]}, 0xff7fffff\nv_mov_b32 v{vMc[qb]}, 0xff7fffff\nv_mov_b32 v{vL[qb]}, 0")
    p(f"s_mov_b32 {sRd}, 1\ns_mov_b32 {sT2}, {SLOT}\ns_mov_b32 {sI}, 0\ns_mov_b32 {sDK}, 12288")
    p("s_cmp_lg_u32 s2, 0\ns_cbranch_scc1 L_nc")
    p(f"v_lshrrev_b32 {t0}, 2, {l}\nv_lshlrev_b32 {t0}, 7, {t0}\nv_and_b32 {t1}, 3, {l}\nv_lshl_add_u32 {t0}, {t1}, 4, {t0}\ns_lshl_b32 {sT0}, {sW}, 13")
    for k in range(4): p(f"buffer_store_dwordx4 v[0:3], {t0}, {srd(sFA)}, {sT0} offen sc1\ns_add_u32 {sT0}, {sT0}, 2048")
    p("L_nc:")
    p("s_waitcnt vmcnt(3)\ns_barrier")
    stamp(p)
    p.ext(weave(reads_x(0, 0) + reads_t(lambda t: FA(0, t)), wq1[3:] + [adv_wqm(), flat(next_pair()), set_wq(0)] + dma_x() + dma_wq() + [adv_wqm(), set_wq(1), flip_x()]))
    p.ext(flat(adv_rd_wq()))
    p(f"v_add_u32 v{vXr[0]}, {sDK}, v{vXr[0]}")
    DS9 = list(range(0, 36, 4))
    def conv(ks):
        g = []
        R = lambda qb: 144 + 4 * qb + 12 * (ks & 1)
        for qb in range(3):
            a, b, r = ACC(2 * ks, qb), ACC(2 * ks + 1, qb), R(qb)
            g += [f"v_cvt_pk_bf16_f32 v{r}, v{a}, v{a+1}", f"v_cvt_pk_bf16_f32 v{r+1}, v{a+2}, v{a+3}",
                  f"v_cvt_pk_bf16_f32 v{r+2}, v{b}, v{b+1}", f"v_cvt_pk_bf16_f32 v{r+3}, v{b+2}, v{b+3}"]
        for op in ("v_permlane32_swap_b32", "v_permlane16_swap_b32"):
            for qb in range(3): g += [f"{op} v{R(qb)}, v{R(qb)+2}", f"{op} v{R(qb)+1}, v{R(qb)+3}"]
        for qb in range(3): g += [f"v_accvgpr_write_b32 a{QF(ks, qb)+i}, v{R(qb)+i}" for i in range(4)]
        return g
    def qstep(par, wait, dmas, advs, do_reads=True, tail=[], valu=[]):
        p(wait + " lgkmcnt(0)\ns_barrier")
        stamp(p, "q")
        G = Gaps([f"{M16} {v4(ACC(t, qb))}, {a4(FA(par, t))}, {a4(FB(par, qb))}, {v4(ACC(t, qb))}" for t in range(12) for qb in range(3)])
        slots = DS9 if len(dmas) > 6 else [0, 5, 10, 15, 20, 25]
        G.vm(dmas, slots)
        for k, a in advs: G.put(k, a)
        if do_reads:
            pos = G.mems(reads_x(1 - par, 1 - par) + reads_t(lambda t: FA(1 - par, t)), 0, 32)
            ad = adv_rd_wq()
            G.put(17, ad[0][:2]); G.put(18, ad[0][2:])
            for k in range(4): G.put(pos[3 + 17 + 2 * k] + 1, ad[1 + k])
            if par == 0: G.put(9, f"v_add_u32 v{vXr[1]}, {sDK}, v{vXr[1]}")
            else: G.put(9, [f"s_sub_u32 {sDK}, 0, {sDK}", f"v_add_u32 v{vXr[0]}, {sDK}, v{vXr[0]}"])
        G.spread(valu, 10, 36)
        G.put(34, tail)
        p.ext(G.out())
    npr = next_pair()
    TOUCH = [tuple(int(y) for y in x.split(":")) for x in str(OPT["touch"]).split(",") if x]
    p("s_waitcnt lgkmcnt(0)")
    p("L_q:")
    qstep(0, "s_waitcnt vmcnt(9)", dma_wq(), [(26, adv_wqm())] + [(27 + k, g) for k, g in enumerate(npr)] + [(33, set_wq(0))])
    qstep(1, "s_waitcnt vmcnt(6)", dma_x() + dma_wq(), [(13, flip_x()), (29, adv_wqm()), (33, set_wq(1))],
          tail=[f"s_add_u32 {sI}, {sI}, 1", f"s_bitcmp0_b32 {(1 << min(OPT['kburst']+1, 30)) | (1 << min(OPT['vburst']+1, 30)) | (1 << min(OPT['wotouch']+1, 30)) | sum(1 << (m + 1) for m in {m for m, _ in TOUCH} - {OPT['kburst'], OPT['vburst'], 7}) | (1 << 8)}, {sI}"])
    p("s_waitcnt lgkmcnt(0)")
    p("s_cbranch_scc1 L_q")
    p(f"s_cmp_lg_u32 {sI}, {OPT['kburst']+1}\ns_cbranch_scc1 L_q1")
    p.ext(flat(dma_k() + adv_k()))
    p("L_q1:")
    p(f"s_cmp_lg_u32 {sI}, {OPT['vburst']+1}\ns_cbranch_scc1 L_q2")
    p.ext(flat(dma_v() + adv_v()))
    p("L_q2:")
    for k, (m, t) in enumerate(TOUCH):
        p(f"s_cmp_lg_u32 {sI}, {m+1}\ns_cbranch_scc1 L_qt{k}")
        p(f"v_min_u32 {t0}, 47, {l}\nv_lshlrev_b32 {t0}, 7, {t0}\ns_add_u32 {sT0}, {sKV0}, {12288*(t>>1)}")
        p(f"buffer_load_dword v{vCd}, {t0}, {srd(sV if t & 1 else sK)}, {sT0} offen {OPT['tfl']}\nL_qt{k}:")
    if OPT["wotouch"] < 8:
        p(f"s_cmp_lg_u32 {sI}, {OPT['wotouch']+1}\ns_cbranch_scc1 L_q3")
        p(f"v_min_u32 {t0}, 47, {l}\nv_lshrrev_b32 {t1}, 1, {t0}\nv_and_b32 {t0}, 1, {t0}\ns_mul_i32 {sT0}, {sW}, 24\nv_add_u32 {t1}, {sT0}, {t1}")
        p(f"v_mul_u32_u24 {t1}, 1280, {t1}\nv_lshl_add_u32 {t0}, {t0}, 7, {t1}")
        for k in range(OPT["wotn"]):
            p(f"s_add_u32 {sT0}, {sCo[0]}, {sKq[k]}\nbuffer_load_dword v{vCd}, {t0}, {srd(sWO)}, {sT0} offen")
        p("L_q3:")
    p(f"s_cmp_lt_u32 {sI}, 8\ns_cbranch_scc1 L_q")
    vm = VM(["wq17"] * 6 + ["x9"] * 3 + ["wq18"] * 6)
    kv = lambda a: [(27, a[0]), (29, a[1])]
    w = vm.wait("wq17"); vm.issue("wq19", 6); qstep(0, w, dma_wq(), [])
    w = vm.wait("wq18"); vm.issue("t2", 6); qstep(1, w, dma_k(), kv(adv_k()))
    w = vm.wait("wq19"); vm.issue("t3", 6); qstep(0, w, dma_v(), kv(adv_v()))
    c01 = conv(0) + conv(1)[:12]
    qstep(1, "s_waitcnt", dma_k(), kv(adv_k()), do_reads=False, valu=c01)
    stamp(p)
    p.ext(conv(1)[12:])
    for ks in range(2, 6): p.ext(conv(ks))
    for r in vVr: p(f"v_add_u32 v{r}, {S[5]}, v{r}")
    p(f"s_mov_b32 {sRd}, {S[4]}\ns_mov_b32 {sI}, 0\ns_mov_b32 {sRet}, 0")
    p(f"s_or_b32 {sT0}, s2, {sW} ; scc-ok\ns_cbranch_scc1 L_na\nv_mov_b32 v{vFv}, 1\nbuffer_store_dword v{vFv}, v{vF4}, {srd(sDG)}, 0 offen sc1\nL_na:")
    stamp(p)

    sv = lambda qb: [SS(0, qb) + i for i in range(4)] + [SS(1, qb) + i for i in range(4)]
    def probs(qb, check, dst=None):
        x = sv(qb); y = dst or vPt; g = []
        g += [f"v_fma_f32 v{y[i]}, v{x[i]}, {sC}, -v{vMc[qb]}" for i in range(8)]
        if check:
            m = vMx[0]
            if qb == 0: g += [f"v_max3_f32 v{m}, v{y[0]}, v{y[1]}, v{y[2]}", f"v_max3_f32 v{m}, v{m}, v{y[3]}, v{y[4]}", f"v_max3_f32 v{m}, v{m}, v{y[5]}, v{y[6]}", f"v_max_f32 v{m}, v{m}, v{y[7]}"]
            else: g += [f"v_max3_f32 v{m}, v{m}, v{y[2*i]}, v{y[2*i+1]}" for i in range(4)]
        g += [f"v_exp_f32 v{y[i]}, v{y[i]}" for i in range(8)]
        t = vTm[qb]; u = vMx[1]
        g += [f"v_add_f32 v{t}, v{y[0]}, v{y[1]}", f"v_add_f32 v{u}, v{y[2]}, v{y[3]}", f"v_add_f32 v{t}, v{t}, v{y[4]}", f"v_add_f32 v{u}, v{u}, v{y[5]}",
              f"v_add_f32 v{t}, v{t}, v{y[6]}", f"v_add_f32 v{u}, v{u}, v{y[7]}"]
        g += [f"v_cvt_pk_bf16_f32 v{PP(qb)+i}, v{y[2*i]}, v{y[2*i+1]}" for i in range(4)]
        g += [f"v_add_f32 v{t}, v{t}, v{u}"]
        return g
    def rescale():
        return [f"v_pk_mul_f32 v[{ACC(t, qb)+h}:{ACC(t, qb)+h+1}], v[{ACC(t, qb)+h}:{ACC(t, qb)+h+1}], v[{vAl[qb]}:{vAl[qb]+1}] op_sel_hi:[1,0]"
                for t in range(12) for qb in range(3) for h in (0, 2)]
    def xlane(regs, op):
        g = []
        for sw in ("v_permlane32_swap_b32", "v_permlane16_swap_b32"):
            g += [f"v_mov_b32 v{vPt[qb]}, v{regs[qb]}" for qb in range(3)]
            g += [f"{sw} v{regs[qb]}, v{vPt[qb]}" for qb in range(3)]
            g += [f"{op} v{regs[qb]}, v{regs[qb]}, v{vPt[qb]}" for qb in range(3)]
        return g
    def slow_path():
        g = []
        for k in range(4):
            for qb in range(3):
                x = sv(qb)
                g.append(f"v_max3_f32 v{vMx[qb]}, v{vM[qb] if k == 0 else vMx[qb]}, v{x[2*k]}, v{x[2*k+1]}")
        g += xlane(vMx, "v_max_f32")
        g += [f"v_sub_f32 v{vTm[qb]}, v{vM[qb]}, v{vMx[qb]}" for qb in range(3)]
        g += [f"v_mul_f32 v{vMc[qb]}, {sC}, v{vMx[qb]}" for qb in range(3)]
        g += [f"v_mul_f32 v{vTm[qb]}, {sC}, v{vTm[qb]}" for qb in range(3)]
        g += [f"v_mov_b32 v{vM[qb]}, v{vMx[qb]}" for qb in range(3)]
        g += [f"v_exp_f32 v{vAl[qb]}, v{vTm[qb]}" for qb in range(3)]
        for qb in range(3): g += probs(qb, False)
        g += [f"v_mul_f32 v{vL[qb]}, v{vL[qb]}, v{vAl[qb]}" for qb in range(3)]
        return g + rescale()
    def kstep(dmas, advs, ret):
        p("s_barrier")
        stamp(p, "a")
        rd = [f"ds_read_b128 {a4(FA(0, ks*2+kb))}, v{vKr[ks&1]} offset:{kb*6144+(ks>>1)*128}" for ks in range(6) for kb in range(2)]
        G = Gaps([f"{M16} {v4(SS(kb, qb))}, {a4(FA(0, ks*2+kb))}, {a4(QF(ks, qb))}, {'0' if ks == 0 else v4(SS(kb, qb))}"
                  for qb in range(3) for ks in range(6) for kb in range(2)])
        p.ext(rd[:7])
        G.mems(rd[7:], 0, 5)
        G.put(5, [f"s_add_u32 {sRd}, {sRd}, {2*SLOT}", f"s_cmp_ge_u32 {sRd}, {6*SLOT}"])
        G.put(6, [f"s_cselect_b32 {sRd}, 0, {sRd}", f"s_cselect_b32 {sDK}, {-4*SLOT & 0xffffffff}, {sT2}"])
        G.put(8, f"v_add_u32 v{vKr[0]}, {sDK}, v{vKr[0]}"); G.put(9, f"v_add_u32 v{vKr[1]}, {sDK}, v{vKr[1]}")
        G.vm(dmas[:4], [8, 14, 22, 30])
        G.spread(probs(0, True), 14, 25); G.spread(probs(1, True), 26, 36)
        p.ext(G.out())
        p.ext(weave(probs(2, True), dmas[4:] + advs, 2, 30))
        if OPT["lazy"]: p(f"v_cmp_lt_f32 vcc, {sThr}, v{vMx[0]}\ns_cbranch_vccnz L_slow")
        else: p("s_branch L_slow")
        p(f"L_ret{ret}:")
        for qb in range(3): p(f"v_add_f32 v{vL[qb]}, v{vL[qb]}, v{vTm[qb]}")
    def pv_mfmas(): return [f"{M16} {v4(ACC(t, qb))}, {a4(FA(1, t))}, {v4(PP(qb))}, {v4(ACC(t, qb))}" for t in range(12) for qb in range(3)]
    def vstep(dmas, advs, tail=[]):
        p("s_barrier")
        stamp(p, "a")
        rd = reads_t(lambda t: FA(1, t))
        p.ext(rd[:6])
        G = Gaps(pv_mfmas())
        G.vm(dmas, [3, 8, 13, 18, 23, 28])
        G.mems(rd[6:], 0, 23)
        for k in range(4): G.put(24 + k, f"v_add_u32 v{vVr[k]}, {sDK}, v{vVr[k]}")
        for k, a in enumerate(advs): G.put(30 + k, a)
        G.put(33, tail)
        p.ext(G.out())
    def dynwait(n, tag):
        p(f"s_add_u32 {sT0}, {sSk}, {n}\ns_cmp_le_u32 {sI}, {sT0}\ns_waitcnt vmcnt(24)\ns_cbranch_scc1 L_dw{tag}\ns_waitcnt vmcnt(12)\nL_dw{tag}:")
    p(f"s_mov_b32 {sT2}, {2*SLOT}")
    p("L_a:")
    p(f"s_cmp_eq_u32 {sI}, {sSk}\ns_cselect_b32 {sDV}, 0, 12288\ns_cselect_b32 s{sK+2}, 0, 393216\ns_cselect_b32 s{sV+2}, 0, 393216")
    dynwait(2, "k")
    def windowed(g): return [x[:-1] + [f"s_waitcnt vmcnt({OPT['win']})", x[-1]] for x in g] if OPT["win"] else g
    kstep(windowed(dma_v()), adv_v(sDV), 0)
    p(f"s_cmp_eq_u32 {sI}, 14\ns_cbranch_scc1 L_ae")
    dynwait(1, "v")
    vstep(windowed(dma_k()), adv_k(sDV), [f"s_add_u32 {sI}, {sI}, 1", f"s_cmp_lg_u32 {sI}, {OPT['codeit']}"])
    p("s_cbranch_scc1 L_a")
    if OPT["code"] & 2: p(f"global_load_dword v{vCd}, v{vCo}, s[26:27]")
    p("s_branch L_a")
    p("L_slow:")
    p.ext(slow_path())
    p(f"s_cmp_eq_u32 {sRet}, 0\ns_cbranch_scc1 L_ret0\ns_branch L_ret1")
    p("L_ae:")
    stamp(p)
    vm = VM(["t29"] * 6 + ["t30"] * 6 + ["t31"] * 6)
    if OPT["w3"]:
        p(f"s_lshr_b32 {sT0}, {sB}, 1\ns_lshl_b32 {sT0}, {sT0}, 2\ns_add_u32 {sT0}, {sT0}, {sW}\ns_mul_i32 {sT0}, {sT0}, {6*1280}")
        p(f"s_and_b32 {sT1}, {sB}, 1\ns_lshl_b32 {sT1}, {sT1}, 8\ns_add_u32 {sT0}, {sT0}, {sT1}\ns_add_u32 {sT0}, {sT0}, {3*96*1280+3*256}")
        p(f"v_min_u32 {t0}, 11, {l}\nv_lshrrev_b32 {t1}, 1, {t0}\nv_and_b32 {t0}, 1, {t0}\nv_mul_u32_u24 {t1}, 1280, {t1}\nv_lshl_add_u32 {t0}, {t0}, 7, {t1}")
        p(f"buffer_load_dword v{vCd}, {t0}, {srd(sWO)}, {sT0} offen"); vm.issue("touch")
    p(vm.wait("t29")); vm.issue("w0", 6); vstep(dma_wo(0, 0), [], [f"s_mov_b32 {sRet}, 1"])
    p(vm.wait("t30")); vm.issue("w1", 6); kstep(dma_wo(1, 1), [], 1)
    p.ext(xlane(vL, "v_add_f32"))
    for qb in range(3): p(f"v_rcp_f32 v{vAl[qb]}, v{vL[qb]}\nv_log_f32 v{vTm[qb]}, v{vL[qb]}")
    for qb in range(3): p(f"v_add_f32 v{vMc[qb]}, v{vMc[qb]}, v{vTm[qb]}")
    for qb in range(3): p.ext([x for x in probs(qb, False) if not x.startswith("v_add")])
    p.ext(rescale())
    p(f"s_mul_i32 {sT0}, {sG}, {16*PART}"); mk(sPG, pWS, sT0, 16 * PART)
    mk(sOUT, pOUT, 0, 1966080)
    p(vm.wait("t31")); p("s_barrier")
    stamp(p)
    AB = [144, 96]
    def AF(sig, tp, nu): return AB[sig & 1] + 8 * tp + 4 * nu
    def reads_wo(sig, slot):
        g = []
        for tp in range(3):
            for nu in range(2):
                r = AF(sig, tp, nu); o = (slot & 1) * SLOT + 32 * tp * 256
                g.append(f"ds_read_b64_tr_b16 v[{r}:{r+1}], v{vOr[nu][slot>>1]} offset:{o}")
                g.append(f"ds_read_b64_tr_b16 v[{r+2}:{r+3}], v{vOr[nu][slot>>1]} offset:{o+4096}")
        return g
    def o_out(tp):
        g = []
        for qb in range(3):
            a, b = ACC(2 * tp, qb), ACC(2 * tp + 1, qb)
            g += [f"v_cvt_pk_bf16_f32 v{a}, v{a}, v{a+1}", f"v_cvt_pk_bf16_f32 v{a+1}, v{a+2}, v{a+3}",
                  f"v_cvt_pk_bf16_f32 v{a+2}, v{b}, v{b+1}", f"v_cvt_pk_bf16_f32 v{a+3}, v{b+2}, v{b+3}",
                  f"ds_write_b128 v{vOw}, {v4(a)} offset:{tp*12288+qb*1024}"]
        return g
    rd = reads_t(lambda t: FA(1, t))
    p.ext(rd[:10])
    G = Gaps(pv_mfmas())
    G.mems(rd[10:], 0, 10)
    vm.issue("w2", 6)
    G.vm(dma_wo(2, 2), [3, 9, 15, 21, 27, 33])
    for tp in range(4): G.spread(o_out(tp), 10 + 6 * tp, 16 + 6 * tp + (2 if tp == 3 else 0))
    p.ext(G.out())
    p(vm.wait("w0")); p("s_barrier")
    p.ext(weave(o_out(4) + o_out(5), reads_wo(0, 0)))
    def BF(kq, tp, q):
        f = (kq * 3 + tp) * 6 + q
        return a4(4 * f) if f < 64 else v4(168 + 4 * (f - 64))
    def reads_b(k): return [f"ds_read_b128 {BF(k//3, k%3, q)}, v{vBr[k//3]} offset:{(k%3)*12288+q*1024}" for q in range(6)] if k < 12 else []
    def OA(ci, q, nu): return 48 * (ci & 1) + 8 * q + 4 * nu
    def out1(ci, q):
        r = 120 + 4 * q; a = OA(ci, q, 0)
        g = [f"v_cvt_pk_bf16_f32 v{r+i}, v{a+2*i}, v{a+2*i+1}" for i in range(4)]
        if q == 0: g = [f"s_mul_i32 {sT0}, {sCo[ci]}, 96"] + g
        return g + [f"buffer_store_dwordx4 {v4(r)}, v{vPs[q//3]}, {srd(sP)}, {sT0} offen offset:{1024*(q%3)} {OPT['pst']}"]
    slot_of = {0: 0, 1: 1, 2: 2}
    free = []; nxt = 3; pend = []
    def sched(ci, kq):
        if OPT["spread"] == 2: return [[0, 1, 2, 3, 4, 5], [], [], []][kq]
        if OPT["spread"] == 3: return [[], [0, 1, 2, 3, 4, 5], [], []][kq] if ci < 4 else [[0, 1, 2, 3, 4, 5], [], [], []][kq]
        if ci == 4 or OPT["spread"] == 0: return [[0, 1, 2], [3, 4, 5], [], []][kq]
        return [[0, 1], [2], [3, 4], [5]][kq]
    for sig in range(20):
        ci, kq = divmod(sig, 4)
        force = {9: 1, 13: 2, 17: 3, 19: 4}.get(sig, 0) if sig >= OPT["pubfrom"] else 0
        assert not any(t == sig + 1 for t, _ in pend)
        if sig < 19 or force:
            p(vm.wait(f"w{sig+1}", f"st{force-1}") + " lgkmcnt(0)"); p("s_barrier")
        if sig == 0: stamp(p)
        elif kq == 0 and "c" in OPT["fine"]: stamp(p)
        else: stamp(p, "o")
        G = Gaps([f"{M16} {v4(OA(ci, q, nu))}, {v4(AF(sig, tp, nu))}, {BF(kq, tp, q)}, " + ("0" if kq == 0 and tp == 0 else v4(OA(ci, q, nu)))
                  for tp in range(3) for q in range(6) for nu in range(2)])
        if sig == 0: p.ext(reads_b(0))
        free.append(slot_of[sig])
        if sig == 4: free += [3, 4, 5]
        while free and nxt < 20 and nxt - sig <= OPT["dmax"] + 1:
            slot_of[nxt] = free.pop(0); pend += [(nxt, g) for g in dma_wo(nxt, slot_of[nxt])]; nxt += 1
        ops = []
        if force: ops.append(("fl", [f"v_mov_b32 v{vFv}, {force}", f"buffer_store_dword v{vFv}, v{vF4}, {srd(sFL)}, 0 offen sc1"]))
        if sig == 0: ops.append(("init", [f"buffer_load_dword v{vIn}, off, {srd(sDG)}, 0 sc1"]))
        sts = [out1(ci - 1, q) for q in sched(ci, kq)] if ci > 0 else []
        nd = min(len(pend), 9 - len(ops) - len(sts))
        ops += [(f"w{t}", g) for t, g in pend[:nd]]; pend = pend[nd:]
        n = len(ops) + len(sts)
        slots = DS9 if n > 7 else [1 + 5 * k for k in range(7)]
        if not ops: slots = slots[1:]
        G.vm([g for _, g in ops], slots)
        for t, _ in ops: vm.issue(t)
        for k, g in enumerate(sts):
            at = slots[len(ops) + k]
            G.spread(g[:-1], at - 4, at); G.put(at, g[-1]); vm.issue(f"st{ci-1}")
        ra = reads_wo(sig + 1, slot_of[sig + 1]) if sig < 19 else []
        if sig < 4:
            for tp in range(3): G.mems(reads_b(3 * sig + tp + 1) + ra[4*tp:4*tp+4], 12 * tp, 12 * tp + (12 if tp < 2 else 8))
        else: G.mems(ra, 0, 30)
        p.ext(G.out())
        if sig == 8:
            assert vm.done("init")
            p("s_waitcnt lgkmcnt(0)")
            p(f"s_mov_b32 {sCnt}, 0")
            p("L_i0:")
            p(f"v_readfirstlane_b32 {sT1}, v{vIn}\ns_cmp_eq_u32 {sT1}, 1\ns_cbranch_scc1 L_i1")
            p(f"buffer_load_dword v{vIn}, off, {srd(sDG)}, 0 sc1\ns_add_u32 {sCnt}, {sCnt}, 1\ns_cmp_lt_u32 {sCnt}, 100000\ns_waitcnt vmcnt(0)\ns_cbranch_scc1 L_i0")
            p("L_i1:")
        if sig == 18:
            p(f"buffer_load_dword v{vIn}, v{vFo}, {srd(sFG)}, 0 offen sc1"); vm.issue("poll")
            p(f"s_mul_i32 {sNeed}, {sHP}, 86\ns_lshr_b32 {sNeed}, {sNeed}, 8\ns_mul_i32 {sT1}, {sNeed}, 3\ns_sub_u32 {sT1}, {sHP}, {sT1}")
            p(f"s_add_u32 {sCur}, {sNeed}, {sCrot}\ns_cmp_ge_u32 {sCur}, 5\ns_cselect_b32 {sT3}, 5, 0\ns_sub_u32 {sCur}, {sCur}, {sT3}")
            p(f"s_mul_i32 {sT3}, {sCur}, 24576\ns_lshl_b32 {sPrev}, {sT1}, 11\ns_add_u32 {sT3}, {sT3}, {sPrev}\nv_add_u32 v{vBr[0]}, {sT3}, v{vPs[0]}")
            p(f"s_mul_i32 {sOo}, {sB}, 96\ns_lshl_b32 {sT1}, {sT1}, 5\ns_add_u32 {sOo}, {sOo}, {sT1}\ns_mul_i32 {sOo}, {sOo}, 2560")
            p(f"s_mul_i32 {sT1}, {sBR}, 1280\ns_add_u32 {sOo}, {sOo}, {sT1}\ns_lshl_b32 {sT1}, {sCur}, 8\ns_add_u32 {sOo}, {sOo}, {sT1}\ns_lshl_b32 {sT1}, {sW}, 6\ns_add_u32 {sOo}, {sOo}, {sT1}")
            p(f"v_and_b32 {t0}, 15, {l}\nv_mul_u32_u24 {t0}, 2560, {t0}\nv_and_b32 {t1}, 48, {l}\nv_add_u32 v{vBr[1]}, {t0}, {t1}")
            p(f"s_add_u32 {sNeed}, {sNeed}, 1\ns_cmp_eq_u32 {sHP}, 15\ns_cselect_b32 {sTodo}, 0, 15\ns_mov_b32 {sPrev}, -1\ns_mov_b32 {sFirst}, 1\ns_mov_b32 {sCnt}, 0")
    for q in range(6):
        p.ext(out1(4, q)); vm.issue("st4")
    stamp(p)
    p(vm.wait("poll"))
    DR = lambda G: 32 * G
    p(f"v_mov_b32 v{vFv}, 5")
    p("L_r0:")
    p(f"v_cmp_le_u32 vcc, {sNeed}, v{vIn}")
    p(f"s_lshr_b32 {sT0}, vcc_lo, 1\ns_and_b32 {sT0}, {sT0}, vcc_lo\ns_lshr_b32 {sT1}, {sT0}, 2\ns_and_b32 {sT0}, {sT0}, {sT1}\ns_and_b32 {sT0}, {sT0}, 0x1111")
    p(f"s_mul_i32 {sT0}, {sT0}, 0x249\ns_bfe_u32 {sReady}, {sT0}, 0x40009")
    p("L_r:")
    p(f"s_and_b32 {sT0}, {sReady}, {sTodo} ; scc-ok\ns_ff1_i32_b32 {sCur}, {sT0}\ns_cbranch_scc0 L_rp")
    p(f"s_bitset0_b32 {sTodo}, {sCur}")
    for G in range(4):
        if G < 3: p(f"s_cmp_lg_u32 {sCur}, {G}\ns_cbranch_scc1 L_ri{G+1}")
        for h in range(4):
            p(f"s_mov_b32 {sT0}, {(4*G+h)*PART}")
            for j in range(2):
                p(f"buffer_load_dwordx4 {v4(DR(G)+8*h+4*j)}, v{vBr[0]}, {srd(sPG)}, {sT0} offen offset:{1024*j} {OPT['pld']}")
        if G < 3: p(f"s_branch L_rw\nL_ri{G+1}:")
    p("L_rw:\ns_waitcnt vmcnt(8)\ns_branch L_rs")
    p("L_rp:")
    p(f"buffer_load_dword v{vIn}, v{vFo}, {srd(sFG)}, 0 offen sc1\ns_waitcnt vmcnt(1)")
    p("L_rs:")
    p(f"s_cmp_eq_u32 {sFirst}, 0\ns_cbranch_scc1 L_rs0")
    p(f"s_barrier\nbuffer_store_dword v{vFv}, v{vF4}, {srd(sFL)}, 0 offen sc1\ns_mov_b32 {sFirst}, 0")
    for G in range(4):
        p(f"L_rs{G}:\ns_cmp_lg_u32 {sPrev}, {G}\ns_cbranch_scc1 L_rs{G+1}")
        for h in range(4):
            for i in range(8):
                r = DR(G) + 8 * h + i; d = 128 + 16 * G + 2 * i; u = 192 + 2 * (i & 1)
                if h == 0: p(f"v_lshlrev_b32 v{d}, 16, v{r}\nv_and_b32 v{d+1}, 0xffff0000, v{r}")
                else: p(f"v_lshlrev_b32 v{u}, 16, v{r}\nv_and_b32 v{u+1}, 0xffff0000, v{r}\nv_pk_add_f32 v[{d}:{d+1}], v[{d}:{d+1}], v[{u}:{u+1}]")
    p("L_rs4:")
    p(f"s_mov_b32 {sPrev}, {sCur}\ns_cmp_ge_i32 {sCur}, 0\ns_cbranch_scc1 L_r")
    p(f"s_cmp_eq_u32 {sTodo}, 0\ns_cbranch_scc1 L_rd")
    p(f"s_add_u32 {sCnt}, {sCnt}, 1\ns_cmp_lt_u32 {sCnt}, 100000\ns_waitcnt vmcnt(0)\ns_cbranch_scc1 L_r0")
    p("L_rd:")
    stamp(p)
    p(f"s_cmp_eq_u32 {sHP}, 15\ns_cbranch_scc1 L_fin")
    for a, b in ((128, 144), (160, 176), (128, 160)):
        for i in range(8): p(f"v_pk_add_f32 v[{a+2*i}:{a+2*i+1}], v[{a+2*i}:{a+2*i+1}], v[{b+2*i}:{b+2*i+1}]")
    for i in range(8): p(f"v_cvt_pk_bf16_f32 v{i}, v{128+2*i}, v{129+2*i}")
    for op in ("v_permlane32_swap_b32", "v_permlane16_swap_b32"):
        for r in (0, 4): p(f"{op} v{r}, v{r+2}\n{op} v{r+1}, v{r+3}")
    p(f"s_add_u32 {sT0}, {sOo}, 40960")
    p(f"buffer_store_dwordx4 v[0:3], v{vBr[1]}, {srd(sOUT)}, {sOo} offen {OPT['ost']}\nbuffer_store_dwordx4 v[4:7], v{vBr[1]}, {srd(sOUT)}, {sT0} offen {OPT['ost']}")
    p("L_fin:")
    if OPT["stamps"]:
        p("s_waitcnt vmcnt(0)")
        stamp(p)
        p(f"s_lshl_b32 {sT0}, s2, 2\ns_add_u32 {sT0}, {sT0}, {sW}\ns_lshl_b32 {sT0}, {sT0}, 9\ns_add_u32 {sT0}, {sT0}, {STAMP_OFF}")
        p(f"v_lshlrev_b32 v0, 2, v{vLn}\nv_add_u32 v0, {sT0}, v0")
        p(f"global_store_dword v0, v255, s[{pWS}:{pWS+1}]\nglobal_store_dword v0, v254, s[{pWS}:{pWS+1}] offset:256")
    p("L_exit:\ns_endpgm")
    d = OPT["drop"]
    def keep(i):
        if "m" in d and i.kind == "mfma": return False
        if "w" in d and i.lds_dma and i.src & {("s", sWQ), ("s", sX), ("s", sWO)}: return False
        if "r" in d and i.kind == "ds": return False
        if "s" in d and i.wide_store: return False
        return True
    p.auto_lgkm(); p.auto_nop(); p.lint_scc()
    p.ins = [i if keep(i) else Ins("s_nop 0") for i in p.ins]
    return p

def build():
    ref = open(f"cdna_kernels/{NAME}.s.ref").read().split("\n")
    head = [l for l in ref if l.startswith(";") and "@launch" not in l]
    out = "\n".join(head) + "\n"
    out += f"; @launch grid=(256,1,1) block=(256,1,1) lds={LDS_BYTES}\n"
    out += '.amdgcn_target "amdgcn-amd-amdhsa--gfx950"\n.text\n'
    nm = NAME + "_kernel"
    out += f".globl {nm}\n.p2align 8\n.type {nm},@function\n" + kernel().text()
    out += f""".section .rodata,"a"
.p2align 6
.amdhsa_kernel {nm}
  .amdhsa_next_free_vgpr 512
  .amdhsa_next_free_sgpr 102
  .amdhsa_accum_offset 256
  .amdhsa_group_segment_fixed_size 0
  .amdhsa_kernarg_size 104
  .amdhsa_user_sgpr_count 2
  .amdhsa_user_sgpr_kernarg_segment_ptr 1
  .amdhsa_system_sgpr_workgroup_id_x 1
  .amdhsa_float_denorm_mode_32 3
.end_amdhsa_kernel
"""
    return out

if __name__ == "__main__":
    txt = build()
    open(sys.argv[1], "w").write(txt)
```

```python
import sys, struct, math
from asmlib import *

NAME = "concat_heads__gqa_block_cached__mha_block_cached__near_ridge"
OPT = dict(stamps=0, fine="", drop="", kv="nt", wq="", x="", wo="", pst="sc1", pld="sc1", kburst=1, vburst=5, spread=2, dmax=5, pubfrom=99, code=3, codeit=10, ost="", thr=0x41000000, skip0=2, skipn=8, lazy=1, wotouch=99, wotn=3, epoch=1, w3=1, touch="", tfl="", win=5, pub4=18, r0=20, mode=3, slp=0, bal=1)
for a in sys.argv[2:]:
    k, v = a.split("=", 1)
    assert k in OPT, k
    OPT[k] = int(v) if v.lstrip("-").isdigit() else v

SLOT = 24576
S = [i * SLOT for i in range(6)]
LDS_BYTES = 6 * SLOT
PART = 122880
FLAG_OFF = 32 << 20
STAMP_OFF = 64 << 20

sX, sWQ, sK, sV, sWO, sP = 28, 32, 36, 40, 44, 48
sFL, sFG, sFA, sDG = 4, 8, 12, 16
sPG, sOUT = 28, 32
pOUT, pDBG, pWS = 20, 22, 24
def srd(b): return f"s[{b}:{b+3}]"
sW, sB, sHP, sBR, sC = "s52", "s53", "s54", "s55", "s56"
sWQo, sWQlim, sXo, sWQm, sXm, sRd, sI = "s57", "s58", "s59", "s60", "s61", "s62", "s63"
sKo, sVo, sKm, sVm, sDK, sDV = "s64", "s65", "s66", "s67", "s68", "s69"
sT0, sT1, sT2, sT3 = "s70", "s71", "s72", "s73"
sW6, sXd, sCrot, sKrot = "s74", "s75", "s76", "s77"
sCo = ["s78", "s79", "s80", "s81", "s82"]
sKq = ["s83", "s84", "s85", "s86"]
sJ, sSk, sG, sRet = "s87", "s88", "s89", "s90"
sThr = "s91"; sKV0 = "s101"
sE = ["s97", "s98"]; sPn = "s99"
sNeed, sTodo, sReady, sPrev, sCur, sFirst, sCnt, sOo = "s57", "s58", "s59", "s60", "s61", "s62", "s63", "s64"
sST, sSI = 92, "s96"
def ACC(t, qb): return (t * 3 + qb) * 4
def SS(kb, qb): return 144 + (kb * 3 + qb) * 4
def PP(qb): return 168 + qb * 4
vM = [180, 181, 182]; vL = [183, 184, 185]; vAl = [186, 188, 190]; vMx = [192, 193, 194]; vTm = [195, 196, 197]; vMc = [187, 189, 191]
vKs = list(range(200, 206)); vVs = [206, 207, 208]; vWs = [209, 210, 211]; vXs = [212, 213, 214]; vOs = [215, 216, 217, 218, 219, 220]
vKr = [221, 222]; vVr = [223, 224, 225, 226]; vXr = [227, 228]; vOr = [[229, 230, 231], [232, 233, 234]]; vOw = 235; vBr = [236, 237, 198, 199]; vPs = [238, 239]
vPt = vWs + vXs + vXr
vLn = 240; vFo = 241; vFv = 242; vF4 = 243; vIn = 244; vCo = 245; vCd = 246; vTq = 247; vTx = 244; T = list(range(248, 254))
def v4(r): return f"v[{r}:{r+3}]"
def a4(r): return f"a[{r}:{r+3}]"
def QF(ks, qb): return (ks * 3 + qb) * 4
def FA(p, t): return 72 + 48 * p + 4 * t
def FB(p, qb): return 168 + 12 * p + 4 * qb

M16 = "v_mfma_f32_16x16x32_bf16"

class VM:
    def __init__(self, q): self.q = list(q)
    def issue(self, tag, n=1): self.q += [tag] * n
    def wait(self, *tags):
        idx = max((k for k, t in enumerate(self.q) if t in tags), default=-1)
        n = len(self.q) - 1 - idx
        self.q = self.q[idx + 1:]
        assert n <= 63
        return f"s_waitcnt vmcnt({n})"
    def done(self, tag): return tag not in self.q

def stamp(p, cls=""):
    if OPT["stamps"] and (not cls or cls in OPT["fine"]):
        p(f"s_memrealtime s[{sST}:{sST+1}]\ns_memtime s[{sST+2}:{sST+3}]\ns_mov_b32 s100, m0\ns_mov_b32 m0, {sSI}\ns_add_u32 {sSI}, {sSI}, 1\ns_waitcnt lgkmcnt(0)")
        p(f"v_writelane_b32 v255, s{sST}, m0\nv_writelane_b32 v254, s{sST+2}, m0\ns_mov_b32 m0, s100")

def dma6(vs, srdb, so, mbase, flags, src_step, six=False):
    def val(dst, x, extra):
        if isinstance(x, tuple): r, imm = x
        else: r, imm = x, 0
        imm += extra
        return f"s_add_u32 {dst}, {r}, {imm}" if imm else f"s_mov_b32 {dst}, {r}"
    g = []
    for j in range(6):
        pre = []
        sreg = so if (j < 3 or src_step == 0) else sT3
        if j % 3 == 0:
            pre = [val("m0", mbase, 3072 * (j // 3))]
            if j == 3 and src_step: pre.append(val(sT3, so, src_step))
        v = vs[j] if six else vs[j % 3]
        g.append(pre + [f"buffer_load_dwordx4 v{v}, {srd(srdb)}, {sreg} offen offset:{1024*(j%3)} {flags} lds"])
    return g
def dma_k(): return dma6(vKs, sK, sKo, sKm, OPT["kv"], 0, six=True)
def dma_v(): return dma6(vVs, sV, sVo, sVm, OPT["kv"], 3072)
def dma_wq(): return dma6(vWs, sWQ, sWQo, sWQm, OPT["wq"], 16 * 12288)
def dma_x():
    g = []
    for j in range(3):
        pre = [f"s_mov_b32 m0, {sXm}"] if j == 0 else []
        g.append(pre + [f"buffer_load_dwordx4 v{vXs[j]}, {srd(sX)}, {sXo} offen offset:{1024*j} {OPT['x']} lds"])
    return g
def dma_wo(sig, slot):
    ci, kq = divmod(sig, 4)
    g = dma6(vOs, sWO, sT2, (sW6, S[slot]), OPT["wo"], 0, six=True)
    g[0] = [g[0][0], f"s_add_u32 {sT2}, {sCo[ci]}, {sKq[kq]}"] + g[0][1:]
    return g
def set_wq(e): return [f"s_mul_i32 {sWQo}, {sXo}, 6144", f"s_add_u32 {sWQo}, {sWQo}, {sE[e]}"]
def adv_wqm(): return [f"s_add_u32 {sWQm}, {sWQm}, {SLOT}", f"s_cmp_ge_u32 {sWQm}, {3*SLOT}", f"s_cselect_b32 {sWQm}, {sW6}, {sWQm}"]
def next_pair():
    span = 640 if OPT["epoch"] else 1280
    g = [[f"s_add_u32 {sXo}, {sXo}, 128", f"s_cmp_ge_u32 {sXo}, {sWQlim}"], [f"s_cselect_b32 {sT0}, {span}, 0", f"s_sub_u32 {sXo}, {sXo}, {sT0}"]]
    if OPT["epoch"]:
        g += [[f"s_add_u32 {sPn}, {sPn}, 1", f"s_cmp_eq_u32 {sPn}, 5"], [f"s_cselect_b32 {sT0}, 640, 0", f"s_add_u32 {sXo}, {sXo}, {sT0}", f"s_add_u32 {sWQlim}, {sWQlim}, {sT0}"]]
    return g
def flip_x(): return [f"s_xor_b32 {sXm}, {sXm}, {sXd}"]
def adv_kv(so, sm, step="12288"):
    if step == "12288": a = [f"s_add_u32 {so}, {so}, 12288", f"s_add_u32 {sm}, {sm}, {2*SLOT}"]
    else: a = [f"s_add_u32 {so}, {so}, {step}", f"s_lshl2_add_u32 {sm}, {step}, {sm}"]
    return [a, [f"s_cmp_ge_u32 {sm}, {6*SLOT}", f"s_cselect_b32 {sT0}, {6*SLOT}, 0", f"s_sub_u32 {sm}, {sm}, {sT0}"]]
def adv_k(step="12288"): return adv_kv(sKo, sKm, step)
def adv_v(step="12288"): return adv_kv(sVo, sVm, step)
def flat(g): return [x for y in g for x in ([y] if isinstance(y, str) else y)]

def reads_t(dstf, n=12):
    g = []
    for t in range(n):
        r = dstf(t); o = (t >> 2) * 128
        g.append(f"ds_read_b64_tr_b16 a[{r}:{r+1}], v{vVr[t&3]} offset:{o}")
        g.append(f"ds_read_b64_tr_b16 a[{r+2}:{r+3}], v{vVr[t&3]} offset:{o+6144}")
    return g
def reads_x(p, e): return [f"ds_read_b128 {a4(FB(p, qb))}, v{vXr[e]} offset:{qb*2048}" for qb in range(3)]
def adv_rd_wq():
    return [[f"s_add_u32 {sRd}, {sRd}, 1", f"s_cmp_ge_u32 {sRd}, 3", f"s_cselect_b32 {sRd}, 0, {sRd}",
             f"s_cselect_b32 {sT1}, {-2*SLOT & 0xffffffff}, {sT2}"]] + [f"v_add_u32 v{r}, {sT1}, v{r}" for r in vVr]

def kernel():
    p = Prog()
    p(f"{NAME}_kernel:")
    p("s_cmp_ge_u32 s2, 256\ns_cbranch_scc1 L_exit")
    p("s_bfe_u32 s55, s2, 0x10002\ns_mul_i32 s3, s55, 40")
    p("s_load_dwordx8 s[4:11], s[0:1], s3\ns_add_u32 s3, s3, 32\ns_load_dwordx2 s[12:13], s[0:1], s3")
    p(f"s_load_dwordx4 s[{pOUT}:{pOUT+3}], s[0:1], 80\ns_load_dwordx2 s[{pWS}:{pWS+1}], s[0:1], 96")
    if OPT["stamps"]: p(f"v_mov_b32 v255, 0\nv_mov_b32 v254, 0\ns_mov_b32 {sSI}, 0")
    l = f"v{vLn}"
    t0, t1, t2, t3, t4 = (f"v{r}" for r in T[:5])
    p(f"v_lshrrev_b32 {t0}, 6, v0\nv_and_b32 {l}, 63, v0")
    p(f"s_and_b32 {sT0}, s2, 3\ns_bfe_u32 {sB}, s2, 0x30003\ns_lshr_b32 {sJ}, s2, 6")
    p(f"v_readfirstlane_b32 {sW}, {t0}")
    p(f"s_lshl_b32 {sHP}, {sT0}, 2\ns_add_u32 {sHP}, {sHP}, {sJ}")
    if OPT["code"]:
        p("s_getpc_b64 s[26:27]\nL_pc:")
        p(f"s_sub_u32 s26, s26, L_pc-{NAME}_kernel\ns_subb_u32 s27, s27, 0")
        p(f"s_lshr_b32 {sT1}, s2, 3\ns_lshl_b32 {sT1}, {sT1}, 2\ns_add_u32 {sT1}, {sT1}, {sW}\ns_mul_i32 {sT1}, {sT1}, 384")
        p(f"v_and_b32 v{vCo}, 3, {l}\nv_lshlrev_b32 v{vCo}, 7, v{vCo}\nv_add_u32 v{vCo}, {sT1}, v{vCo}\nv_min_u32 v{vCo}, L_exit-{NAME}_kernel, v{vCo}")
        if OPT["code"] & 1: p(f"global_load_dword v{vCd}, v{vCo}, s[26:27]")
    if OPT["epoch"]:
        p(f"s_lshr_b32 {sCrot}, {sB}, 1\ns_and_b32 {sKrot}, {sB}, 1\ns_cmp_eq_u32 {sB}, 7\ns_cselect_b32 {sCrot}, 4, {sCrot}\ns_cselect_b32 {sKrot}, 0, {sKrot}")
        p(f"s_add_u32 {sT0}, {sCrot}, {sJ}\ns_cmp_ge_u32 {sT0}, 5\ns_cselect_b32 {sT1}, 5, 0\ns_sub_u32 {sT0}, {sT0}, {sT1}")
        p(f"s_mov_b32 {sWQlim}, 640")
    else:
        p(f"s_mul_i32 {sT0}, {sJ}, 5\ns_lshr_b32 {sT0}, {sT0}, 1\ns_mul_i32 {sT1}, {sB}, 5\ns_add_u32 {sT1}, {sT1}, 1\ns_lshr_b32 {sT1}, {sT1}, 2\ns_add_u32 {sT0}, {sT0}, {sT1}")
        p(f"s_cmp_ge_u32 {sT0}, 10\ns_cselect_b32 {sT1}, 10, 0\ns_sub_u32 {sT0}, {sT0}, {sT1}\ns_mov_b32 {sKrot}, 0\ns_mov_b32 {sWQlim}, 1280")
    p(f"s_lshl_b32 {sXo}, {sT0}, 7\ns_mul_i32 {sW6}, {sW}, 6144\ns_mov_b32 {sPn}, 0")
    p(f"s_and_b32 {sT1}, {sW}, 1\ns_lshr_b32 {sT2}, {sW}, 1")
    p(f"s_mul_i32 {sT0}, {sT1}, {4*12288}\ns_mul_i32 {sT3}, {sT2}, 384\ns_add_u32 {sT0}, {sT0}, {sT3}")
    p(f"s_mul_i32 {sE[0]}, {sKrot}, {32*12288}\ns_sub_u32 {sE[1]}, {32*12288}, {sE[0]}\ns_add_u32 {sE[0]}, {sE[0]}, {sT0}\ns_add_u32 {sE[1]}, {sE[1]}, {sT0}")
    p.ext(set_wq(0))
    p(f"s_add_u32 {sWQm}, {sW6}, {S[1]}")
    p(f"s_mul_i32 {sXm}, {sW}, 3072\ns_add_u32 {sXm}, {sXm}, {S[3]}")
    p(f"s_add_u32 {sXd}, {sXm}, 12288\ns_xor_b32 {sXd}, {sXd}, {sXm}")
    p(f"s_mul_i32 {sT0}, {sW}, 24\nv_lshrrev_b32 {t0}, 3, {l}\nv_add_u32 {t0}, {sT0}, {t0}")
    p(f"v_lshrrev_b32 {t1}, 1, {t0}\nv_xor_b32 {t1}, {t1}, {l}\nv_and_b32 {t1}, 7, {t1}\nv_mul_u32_u24 {t0}, 1280, {t0}")
    p(f"v_lshl_add_u32 v{vXs[0]}, {t1}, 4, {t0}\nv_xor_b32 {t1}, 64, v{vXs[0]}")
    p(f"v_add_u32 v{vXs[1]}, {10240-1024}, {t1}\nv_add_u32 v{vXs[2]}, {2*(10240-1024)}, v{vXs[0]}")
    def rowof(j): p(f"v_add_u32 {t0}, {64*j}, {l}\nv_mul_u32_u24 {t1}, 2731, {t0}\nv_lshrrev_b32 {t1}, 16, {t1}")
    for j in range(3):
        rowof(j)
        p(f"v_and_b32 {t2}, 6, {t1}\nv_xor_b32 {t3}, {t2}, {l}\nv_lshlrev_b32 v{vVs[j]}, 4, {t3}")
        p(f"v_and_b32 {t2}, 12, {t1}\nv_add_u32 {t2}, {t2}, {t1}\nv_mul_u32_u24 {t2}, 12288, {t2}")
        p(f"v_mul_u32_u24 {t3}, 384, {t1}\nv_sub_u32 {t2}, {t2}, {t3}\nv_add_u32 v{vWs[j]}, {t2}, v{vVs[j]}")
    p("s_waitcnt lgkmcnt(0)")
    stamp(p)
    def mk(b, ptr, off_s, size):
        p(f"s_add_u32 s{b}, s{ptr}, {off_s}\ns_addc_u32 s{b+1}, s{ptr+1}, 0\ns_and_b32 s{b+1}, s{b+1}, 0xffff")
        p(f"s_mov_b32 s{b+2}, {size}\ns_mov_b32 s{b+3}, 0x20000")
    p(f"s_mul_i32 {sT0}, {sB}, 122880"); mk(sX, 4, sT0, 122880)
    p.ext(flat(dma_x()))
    p(f"s_mul_i32 {sT0}, {sHP}, 768"); mk(sWQ, 10, sT0, 639 * 12288 + 768)
    p.ext(flat(dma_wq() + [adv_wqm(), set_wq(1), flip_x()]))
    def qtouch(ep):
        return [f"s_mov_b32 {sT0}, {ep*320*12288}", f"buffer_load_dword v{vCd}, v{vTq}, {srd(sWQ)}, {sT0} offen", f"buffer_load_dword v{vCd}, v{vTx}, {srd(sX)}, 0 offen offset:{640*ep}"]
    if OPT["bal"]:
        p(f"s_and_b32 {sT0}, {sB}, 1\ns_add_u32 {sT0}, {sT0}, {sJ}\ns_add_u32 {sT0}, {sT0}, 3\ns_cmp_ge_u32 {sT0}, 5\ns_cselect_b32 {sT1}, 5, 0\ns_sub_u32 {sT0}, {sT0}, {sT1}")
        p(f"s_lshl_b32 {sT0}, {sT0}, 6\ns_lshr_b32 {sT1}, {sB}, 1\ns_lshl_b32 {sT1}, {sT1}, 2\ns_add_u32 {sT1}, {sT1}, {sW}\ns_lshl_b32 {sT1}, {sT1}, 1\ns_add_u32 {sT0}, {sT0}, {sT1}")
        p(f"s_add_u32 {sT0}, {sT0}, 32\ns_mul_i32 {sT0}, {sT0}, 12288")
        p(f"v_min_u32 {t0}, 11, {l}\nv_and_b32 {t1}, 1, {t0}\nv_lshrrev_b32 {t0}, 1, {t0}\nv_mul_u32_u24 {t1}, 12288, {t1}\nv_lshl_add_u32 {t0}, {t0}, 7, {t1}\nv_add_u32 v{vTq}, {sT0}, {t0}")
        p(f"s_add_u32 {sT0}, {sCrot}, 4\ns_cmp_ge_u32 {sT0}, 5\ns_cselect_b32 {sT1}, 5, 0\ns_sub_u32 {sT0}, {sT0}, {sT1}\ns_lshl_b32 {sT0}, {sT0}, 7")
        p(f"s_lshl_b32 {sT1}, {sJ}, 2\ns_add_u32 {sT1}, {sT1}, {sW}\ns_mul_i32 {sT1}, {sT1}, {6*1280}\ns_add_u32 {sT0}, {sT0}, {sT1}")
        p(f"v_min_u32 {t0}, 5, {l}\nv_mul_u32_u24 {t0}, 1280, {t0}\nv_add_u32 v{vTx}, {sT0}, {t0}")
        p.ext(qtouch(0))
    wq1 = dma_wq()
    p.ext(flat(wq1[:3]))
    p(f"s_and_b32 {sT1}, {sW}, 1\ns_lshr_b32 {sT2}, {sW}, 1")
    p(f"s_mul_i32 {sKo}, {sT2}, 196608\ns_mul_i32 {sT3}, {sT1}, 6144\ns_add_u32 {sKo}, {sKo}, {sT3}\ns_mov_b32 {sVo}, {sKo}\ns_mov_b32 {sKV0}, {sKo}")
    p(f"s_add_u32 {sKm}, {sW6}, {S[4]}\ns_add_u32 {sVm}, {sW6}, {S[5]}")
    p(f"s_lshr_b32 {sSk}, s2, 3\ns_and_b32 {sSk}, {sSk}, {OPT['skipn']-1}\ns_add_u32 {sSk}, {sSk}, {OPT['skip0']}\ns_mov_b32 {sThr}, {OPT['thr']}")
    p(f"s_lshl_b32 {sT0}, {sB}, 4\ns_add_u32 {sT0}, {sT0}, {sHP}\ns_mul_i32 {sT3}, {sT0}, 393216")
    mk(sK, 6, sT3, 393216); mk(sV, 8, sT3, 393216)
    p(f"s_mul_i32 {sT3}, {sHP}, 491520"); mk(sWO, 12, sT3, 491520)
    p(f"s_lshl_b32 {sG}, {sBR}, 3\ns_add_u32 {sG}, {sG}, {sB}\ns_lshl_b32 {sT0}, {sG}, 4\ns_add_u32 {sT0}, {sT0}, {sHP}")
    p(f"s_mul_i32 {sT3}, {sT0}, {PART}"); mk(sP, pWS, sT3, PART)
    p(f"s_lshl_b32 {sT3}, {sT0}, 7\ns_add_u32 {sT3}, {sT3}, {FLAG_OFF}"); mk(sFL, pWS, sT3, 64)
    p(f"s_lshl_b32 {sT3}, {sG}, 11\ns_add_u32 {sT3}, {sT3}, {FLAG_OFF}"); mk(sFG, pWS, sT3, 2048)
    mk(sFA, pWS, FLAG_OFF, 32768)
    mk(sDG, pDBG, 0, 64)
    p(f"s_cmp_eq_u32 {sW}, 0\ns_cselect_b32 s{sFL+2}, 64, 0")
    p(f"v_lshlrev_b32 v{vFo}, 7, {l}\nv_lshlrev_b32 v{vF4}, 2, {l}")
    c = (192 ** -0.5) * math.log2(math.e)
    p(f"s_mov_b32 {sC}, {struct.unpack('<I', struct.pack('<f', c))[0]:#x}")
    p(f"s_lshr_b32 {sCrot}, {sB}, 1\ns_and_b32 {sKrot}, {sB}, 1\ns_lshl_b32 {sKrot}, {sKrot}, 1")
    p(f"s_cmp_eq_u32 {sB}, 7\ns_cselect_b32 {sCrot}, 4, {sCrot}\ns_cselect_b32 {sKrot}, 0, {sKrot}")
    for ci in range(5):
        p(f"s_add_u32 {sT0}, {sCrot}, {ci}\ns_cmp_ge_u32 {sT0}, 5\ns_cselect_b32 {sT3}, 5, 0\ns_sub_u32 {sT0}, {sT0}, {sT3}\ns_lshl_b32 {sCo[ci]}, {sT0}, 8")
    for kq in range(4):
        p(f"s_xor_b32 {sT0}, {sKrot}, {kq}\ns_mul_i32 {sKq[kq]}, {sT0}, {96*1280}")
    p(f"s_mul_i32 {sT0}, {sT2}, 12288")
    for j in range(6):
        rowof(j)
        p(f"v_bfe_u32 {t2}, {t1}, 1, 3\nv_xor_b32 {t2}, {t2}, {l}\nv_lshlrev_b32 v{vKs[j]}, 4, {t2}")
        if j >= 3: p(f"v_add_u32 v{vKs[j]}, 3072, v{vKs[j]}")
    p(f"v_and_b32 {t0}, 15, {l}\nv_lshrrev_b32 {t1}, 4, {l}\nv_lshrrev_b32 {t2}, 1, {t0}\nv_xor_b32 {t2}, {t2}, {t1}")
    p(f"v_mul_u32_u24 {t3}, 384, {t0}\nv_add_u32 {t3}, {sT0}, {t3}\nv_add_u32 {t3}, {S[4]}, {t3}")
    p(f"v_lshl_add_u32 v{vKr[0]}, {t2}, 4, {t3}\nv_xor_b32 {t4}, 4, {t2}\nv_lshl_add_u32 v{vKr[1]}, {t4}, 4, {t3}")
    p(f"s_mul_i32 {sT3}, {sT1}, {48*128}\ns_add_u32 {sT3}, {sT3}, {S[3]}")
    p(f"v_lshlrev_b32 {t3}, 7, {t0}\nv_add_u32 {t3}, {sT3}, {t3}")
    p(f"v_lshl_add_u32 v{vXr[0]}, {t2}, 4, {t3}")
    if OPT["epoch"]: p(f"s_lshl_b32 {sT3}, {sKrot}, 5\nv_xor_b32 v{vXr[0]}, {sT3}, v{vXr[0]}")
    p(f"v_xor_b32 v{vXr[1]}, 64, v{vXr[0]}")
    p(f"s_mul_i32 {sT3}, {sW}, 24\nv_lshlrev_b32 {t2}, 1, {t1}\nv_xor_b32 {t2}, {t2}, {t0}\nv_add_u32 {t3}, {sT3}, {t1}")
    p(f"v_mul_u32_u24 {t3}, 1280, {t3}\nv_lshl_add_u32 v{vOs[0]}, {t2}, 4, {t3}\nv_xor_b32 {t2}, 128, v{vOs[0]}")
    for j in range(1, 6):
        p(f"v_add_u32 v{vOs[j]}, {5120*j-1024*(j%3)}, " + (t2 if j & 1 else f"v{vOs[0]}"))
    p(f"v_lshrrev_b32 {t0}, 2, {l}\nv_and_b32 {t1}, 3, {l}\nv_bfe_u32 {t2}, {l}, 3, 2")
    p(f"v_mul_u32_u24 {t3}, 384, {t0}\nv_lshl_add_u32 {t3}, {t1}, 3, {t3}\nv_add_u32 {t3}, {sT0}, {t3}\nv_add_u32 {t3}, {S[1]}, {t3}")
    for dl in range(4):
        p(f"v_xor_b32 {t4}, {dl}, {t2}\nv_lshl_add_u32 v{vVr[dl]}, {t4}, 5, {t3}")
    p(f"v_lshlrev_b32 {t3}, 8, {t0}\nv_lshl_add_u32 {t3}, {t1}, 3, {t3}\nv_and_b32 {t2}, 7, {t0}\ns_lshl_b32 {sT3}, {sW}, 1\nv_xor_b32 {t2}, {sT3}, {t2}")
    p(f"v_lshl_add_u32 v{vOr[0][0]}, {t2}, 5, {t3}\nv_xor_b32 v{vOr[1][0]}, 32, v{vOr[0][0]}")
    for nu in range(2): p(f"v_add_u32 v{vOr[nu][1]}, {S[2]}, v{vOr[nu][0]}\nv_add_u32 v{vOr[nu][2]}, {S[4]}, v{vOr[nu][0]}")
    p(f"v_lshlrev_b32 {t0}, 4, {l}")
    p(f"s_mul_i32 {sT3}, {sW}, 3072\ns_add_u32 {sT3}, {sT3}, {S[3]}\nv_add_u32 v{vOw}, {sT3}, {t0}")
    p(f"s_mul_i32 {sT3}, {sKrot}, 3072\ns_add_u32 {sT3}, {sT3}, {S[3]}\nv_add_u32 v{vBr[0]}, {sT3}, {t0}\nv_add_u32 v{vBr[1]}, 36864, v{vBr[0]}")
    p(f"s_xor_b32 {sT3}, {sKrot}, 2\ns_mul_i32 {sT3}, {sT3}, 3072\ns_add_u32 {sT3}, {sT3}, {S[3]}\nv_add_u32 v{vBr[2]}, {sT3}, {t0}\nv_add_u32 v{vBr[3]}, 36864, v{vBr[2]}")
    p(f"v_add_u32 v{vPs[0]}, {sW6}, {t0}\nv_add_u32 v{vPs[1]}, 3072, v{vPs[0]}")
    for r in range(144): p(f"v_mov_b32 v{r}, 0")
    for qb in range(3): p(f"v_mov_b32 v{vM[qb]}, 0xff7fffff\nv_mov_b32 v{vMc[qb]}, 0xff7fffff\nv_mov_b32 v{vL[qb]}, 0")
    p(f"s_mov_b32 {sRd}, 1\ns_mov_b32 {sT2}, {SLOT}\ns_mov_b32 {sI}, 0\ns_mov_b32 {sDK}, 12288")
    p("s_cmp_lg_u32 s2, 0\ns_cbranch_scc1 L_nc")
    p(f"v_lshrrev_b32 {t0}, 2, {l}\nv_lshlrev_b32 {t0}, 7, {t0}\nv_and_b32 {t1}, 3, {l}\nv_lshl_add_u32 {t0}, {t1}, 4, {t0}\ns_lshl_b32 {sT0}, {sW}, 13")
    for k in range(4): p(f"buffer_store_dwordx4 v[0:3], {t0}, {srd(sFA)}, {sT0} offen sc1\ns_add_u32 {sT0}, {sT0}, 2048")
    p("L_nc:")
    p(f"s_waitcnt vmcnt({5 if OPT['bal'] else 3})\ns_barrier")
    stamp(p)
    p.ext(weave(reads_x(0, 0) + reads_t(lambda t: FA(0, t)), wq1[3:] + [adv_wqm(), flat(next_pair()), set_wq(0)] + dma_x() + dma_wq() + [adv_wqm(), set_wq(1), flip_x()]))
    p.ext(flat(adv_rd_wq()))
    p(f"v_add_u32 v{vXr[0]}, {sDK}, v{vXr[0]}")
    DS9 = list(range(0, 36, 4))
    def conv(ks):
        g = []
        R = lambda qb: 144 + 4 * qb + 12 * (ks & 1)
        for qb in range(3):
            a, b, r = ACC(2 * ks, qb), ACC(2 * ks + 1, qb), R(qb)
            g += [f"v_cvt_pk_bf16_f32 v{r}, v{a}, v{a+1}", f"v_cvt_pk_bf16_f32 v{r+1}, v{a+2}, v{a+3}",
                  f"v_cvt_pk_bf16_f32 v{r+2}, v{b}, v{b+1}", f"v_cvt_pk_bf16_f32 v{r+3}, v{b+2}, v{b+3}"]
        for op in ("v_permlane32_swap_b32", "v_permlane16_swap_b32"):
            for qb in range(3): g += [f"{op} v{R(qb)}, v{R(qb)+2}", f"{op} v{R(qb)+1}, v{R(qb)+3}"]
        for qb in range(3): g += [f"v_accvgpr_write_b32 a{QF(ks, qb)+i}, v{R(qb)+i}" for i in range(4)]
        return g
    def qstep(par, wait, dmas, advs, do_reads=True, tail=[], valu=[]):
        p(wait + " lgkmcnt(0)\ns_barrier")
        stamp(p, "q")
        G = Gaps([f"{M16} {v4(ACC(t, qb))}, {a4(FA(par, t))}, {a4(FB(par, qb))}, {v4(ACC(t, qb))}" for t in range(12) for qb in range(3)])
        slots = DS9 if len(dmas) > 6 else [0, 5, 10, 15, 20, 25]
        G.vm(dmas, slots)
        for k, a in advs: G.put(k, a)
        if do_reads:
            pos = G.mems(reads_x(1 - par, 1 - par) + reads_t(lambda t: FA(1 - par, t)), 0, 32)
            ad = adv_rd_wq()
            G.put(17, ad[0][:2]); G.put(18, ad[0][2:])
            for k in range(4): G.put(pos[3 + 17 + 2 * k] + 1, ad[1 + k])
            if par == 0: G.put(9, f"v_add_u32 v{vXr[1]}, {sDK}, v{vXr[1]}")
            else: G.put(9, [f"s_sub_u32 {sDK}, 0, {sDK}", f"v_add_u32 v{vXr[0]}, {sDK}, v{vXr[0]}"])
        G.spread(valu, 10, 36)
        G.put(34, tail)
        p.ext(G.out())
    npr = next_pair()
    TOUCH = [tuple(int(y) for y in x.split(":")) for x in str(OPT["touch"]).split(",") if x]
    p("s_waitcnt lgkmcnt(0)")
    p("L_q:")
    qstep(0, "s_waitcnt vmcnt(9)", dma_wq(), [(26, adv_wqm())] + [(27 + k, g) for k, g in enumerate(npr)] + [(33, set_wq(0))])
    qstep(1, "s_waitcnt vmcnt(6)", dma_x() + dma_wq(), [(13, flip_x()), (29, adv_wqm()), (33, set_wq(1))],
          tail=[f"s_add_u32 {sI}, {sI}, 1", f"s_bitcmp0_b32 {(1 << min(OPT['kburst']+1, 30)) | (1 << min(OPT['vburst']+1, 30)) | (1 << min(OPT['wotouch']+1, 30)) | sum(1 << (m + 1) for m in {m for m, _ in TOUCH} - {OPT['kburst'], OPT['vburst'], 7}) | (1 << 8) | (OPT['bal'] << 3)}, {sI}"])
    p("s_waitcnt lgkmcnt(0)")
    p("s_cbranch_scc1 L_q")
    p(f"s_cmp_lg_u32 {sI}, {OPT['kburst']+1}\ns_cbranch_scc1 L_q1")
    p.ext(flat(dma_k() + adv_k()))
    p("L_q1:")
    p(f"s_cmp_lg_u32 {sI}, {OPT['vburst']+1}\ns_cbranch_scc1 L_q2")
    p.ext(flat(dma_v() + adv_v()))
    p("L_q2:")
    if OPT["bal"]:
        p(f"s_cmp_lg_u32 {sI}, 4\ns_cbranch_scc1 L_qb"); p.ext(qtouch(1)); p("L_qb:")
    for k, (m, t) in enumerate(TOUCH):
        p(f"s_cmp_lg_u32 {sI}, {m+1}\ns_cbranch_scc1 L_qt{k}")
        p(f"v_min_u32 {t0}, 47, {l}\nv_lshlrev_b32 {t0}, 7, {t0}\ns_add_u32 {sT0}, {sKV0}, {12288*(t>>1)}")
        p(f"buffer_load_dword v{vCd}, {t0}, {srd(sV if t & 1 else sK)}, {sT0} offen {OPT['tfl']}\nL_qt{k}:")
    if OPT["wotouch"] < 8:
        p(f"s_cmp_lg_u32 {sI}, {OPT['wotouch']+1}\ns_cbranch_scc1 L_q3")
        p(f"v_min_u32 {t0}, 47, {l}\nv_lshrrev_b32 {t1}, 1, {t0}\nv_and_b32 {t0}, 1, {t0}\ns_mul_i32 {sT0}, {sW}, 24\nv_add_u32 {t1}, {sT0}, {t1}")
        p(f"v_mul_u32_u24 {t1}, 1280, {t1}\nv_lshl_add_u32 {t0}, {t0}, 7, {t1}")
        for k in range(OPT["wotn"]):
            p(f"s_add_u32 {sT0}, {sCo[0]}, {sKq[k]}\nbuffer_load_dword v{vCd}, {t0}, {srd(sWO)}, {sT0} offen")
        p("L_q3:")
    p(f"s_cmp_lt_u32 {sI}, 8\ns_cbranch_scc1 L_q")
    vm = VM(["wq17"] * 6 + ["x9"] * 3 + ["wq18"] * 6)
    kv = lambda a: [(27, a[0]), (29, a[1])]
    w = vm.wait("wq17"); vm.issue("wq19", 6); qstep(0, w, dma_wq(), [])
    w = vm.wait("wq18"); vm.issue("t2", 6); qstep(1, w, dma_k(), kv(adv_k()))
    w = vm.wait("wq19"); vm.issue("t3", 6); qstep(0, w, dma_v(), kv(adv_v()))
    c01 = conv(0) + conv(1)[:12]
    qstep(1, "s_waitcnt", dma_k(), kv(adv_k()), do_reads=False, valu=c01)
    stamp(p)
    p.ext(conv(1)[12:])
    for ks in range(2, 6): p.ext(conv(ks))
    for r in vVr: p(f"v_add_u32 v{r}, {S[5]}, v{r}")
    p(f"s_mov_b32 {sRd}, {S[4]}\ns_mov_b32 {sI}, 0\ns_mov_b32 {sRet}, 0")
    p(f"s_or_b32 {sT0}, s2, {sW} ; scc-ok\ns_cbranch_scc1 L_na\nv_mov_b32 v{vFv}, 1\nbuffer_store_dword v{vFv}, v{vF4}, {srd(sDG)}, 0 offen sc1\nL_na:")
    stamp(p)

    sv = lambda qb: [SS(0, qb) + i for i in range(4)] + [SS(1, qb) + i for i in range(4)]
    def probs(qb, check, dst=None):
        x = sv(qb); y = dst or vPt; g = []
        g += [f"v_fma_f32 v{y[i]}, v{x[i]}, {sC}, -v{vMc[qb]}" for i in range(8)]
        if check:
            m = vMx[0]
            if qb == 0: g += [f"v_max3_f32 v{m}, v{y[0]}, v{y[1]}, v{y[2]}", f"v_max3_f32 v{m}, v{m}, v{y[3]}, v{y[4]}", f"v_max3_f32 v{m}, v{m}, v{y[5]}, v{y[6]}", f"v_max_f32 v{m}, v{m}, v{y[7]}"]
            else: g += [f"v_max3_f32 v{m}, v{m}, v{y[2*i]}, v{y[2*i+1]}" for i in range(4)]
        g += [f"v_exp_f32 v{y[i]}, v{y[i]}" for i in range(8)]
        t = vTm[qb]; u = vMx[1]
        g += [f"v_add_f32 v{t}, v{y[0]}, v{y[1]}", f"v_add_f32 v{u}, v{y[2]}, v{y[3]}", f"v_add_f32 v{t}, v{t}, v{y[4]}", f"v_add_f32 v{u}, v{u}, v{y[5]}",
              f"v_add_f32 v{t}, v{t}, v{y[6]}", f"v_add_f32 v{u}, v{u}, v{y[7]}"]
        g += [f"v_cvt_pk_bf16_f32 v{PP(qb)+i}, v{y[2*i]}, v{y[2*i+1]}" for i in range(4)]
        g += [f"v_add_f32 v{t}, v{t}, v{u}"]
        return g
    def rescale():
        return [f"v_pk_mul_f32 v[{ACC(t, qb)+h}:{ACC(t, qb)+h+1}], v[{ACC(t, qb)+h}:{ACC(t, qb)+h+1}], v[{vAl[qb]}:{vAl[qb]+1}] op_sel_hi:[1,0]"
                for t in range(12) for qb in range(3) for h in (0, 2)]
    def xlane(regs, op):
        g = []
        for sw in ("v_permlane32_swap_b32", "v_permlane16_swap_b32"):
            g += [f"v_mov_b32 v{vPt[qb]}, v{regs[qb]}" for qb in range(3)]
            g += [f"{sw} v{regs[qb]}, v{vPt[qb]}" for qb in range(3)]
            g += [f"{op} v{regs[qb]}, v{regs[qb]}, v{vPt[qb]}" for qb in range(3)]
        return g
    def slow_path():
        g = []
        for k in range(4):
            for qb in range(3):
                x = sv(qb)
                g.append(f"v_max3_f32 v{vMx[qb]}, v{vM[qb] if k == 0 else vMx[qb]}, v{x[2*k]}, v{x[2*k+1]}")
        g += xlane(vMx, "v_max_f32")
        g += [f"v_sub_f32 v{vTm[qb]}, v{vM[qb]}, v{vMx[qb]}" for qb in range(3)]
        g += [f"v_mul_f32 v{vMc[qb]}, {sC}, v{vMx[qb]}" for qb in range(3)]
        g += [f"v_mul_f32 v{vTm[qb]}, {sC}, v{vTm[qb]}" for qb in range(3)]
        g += [f"v_mov_b32 v{vM[qb]}, v{vMx[qb]}" for qb in range(3)]
        g += [f"v_exp_f32 v{vAl[qb]}, v{vTm[qb]}" for qb in range(3)]
        for qb in range(3): g += probs(qb, False)
        g += [f"v_mul_f32 v{vL[qb]}, v{vL[qb]}, v{vAl[qb]}" for qb in range(3)]
        return g + rescale()
    def kstep(dmas, advs, ret):
        p("s_barrier")
        stamp(p, "a")
        rd = [f"ds_read_b128 {a4(FA(0, ks*2+kb))}, v{vKr[ks&1]} offset:{kb*6144+(ks>>1)*128}" for ks in range(6) for kb in range(2)]
        G = Gaps([f"{M16} {v4(SS(kb, qb))}, {a4(FA(0, ks*2+kb))}, {a4(QF(ks, qb))}, {'0' if ks == 0 else v4(SS(kb, qb))}"
                  for qb in range(3) for ks in range(6) for kb in range(2)])
        p.ext(rd[:7])
        G.mems(rd[7:], 0, 5)
        G.put(5, [f"s_add_u32 {sRd}, {sRd}, {2*SLOT}", f"s_cmp_ge_u32 {sRd}, {6*SLOT}"])
        G.put(6, [f"s_cselect_b32 {sRd}, 0, {sRd}", f"s_cselect_b32 {sDK}, {-4*SLOT & 0xffffffff}, {sT2}"])
        G.put(8, f"v_add_u32 v{vKr[0]}, {sDK}, v{vKr[0]}"); G.put(9, f"v_add_u32 v{vKr[1]}, {sDK}, v{vKr[1]}")
        G.vm(dmas[:4], [8, 14, 22, 30])
        G.spread(probs(0, True), 14, 25); G.spread(probs(1, True), 26, 36)
        p.ext(G.out())
        p.ext(weave(probs(2, True), dmas[4:] + advs, 2, 30))
        if OPT["lazy"]: p(f"v_cmp_lt_f32 vcc, {sThr}, v{vMx[0]}\ns_cbranch_vccnz L_slow")
        else: p("s_branch L_slow")
        p(f"L_ret{ret}:")
        for qb in range(3): p(f"v_add_f32 v{vL[qb]}, v{vL[qb]}, v{vTm[qb]}")
    def pv_mfmas(): return [f"{M16} {v4(ACC(t, qb))}, {a4(FA(1, t))}, {v4(PP(qb))}, {v4(ACC(t, qb))}" for t in range(12) for qb in range(3)]
    def vstep(dmas, advs, tail=[]):
        p("s_barrier")
        stamp(p, "a")
        rd = reads_t(lambda t: FA(1, t))
        p.ext(rd[:6])
        G = Gaps(pv_mfmas())
        G.vm(dmas, [3, 8, 13, 18, 23, 28])
        G.mems(rd[6:], 0, 23)
        for k in range(4): G.put(24 + k, f"v_add_u32 v{vVr[k]}, {sDK}, v{vVr[k]}")
        for k, a in enumerate(advs): G.put(30 + k, a)
        G.put(33, tail)
        p.ext(G.out())
    def dynwait(n, tag):
        p(f"s_add_u32 {sT0}, {sSk}, {n}\ns_cmp_le_u32 {sI}, {sT0}\ns_waitcnt vmcnt(24)\ns_cbranch_scc1 L_dw{tag}\ns_waitcnt vmcnt(12)\nL_dw{tag}:")
    p(f"s_mov_b32 {sT2}, {2*SLOT}")
    p("L_a:")
    p(f"s_cmp_eq_u32 {sI}, {sSk}\ns_cselect_b32 {sDV}, 0, 12288\ns_cselect_b32 s{sK+2}, 0, 393216\ns_cselect_b32 s{sV+2}, 0, 393216")
    dynwait(2, "k")
    def windowed(g): return [x[:-1] + [f"s_waitcnt vmcnt({OPT['win']})", x[-1]] for x in g] if OPT["win"] else g
    kstep(windowed(dma_v()), adv_v(sDV), 0)
    p(f"s_cmp_eq_u32 {sI}, 14\ns_cbranch_scc1 L_ae")
    dynwait(1, "v")
    vstep(windowed(dma_k()), adv_k(sDV), [f"s_add_u32 {sI}, {sI}, 1", f"s_cmp_lg_u32 {sI}, {OPT['codeit']}"])
    p("s_cbranch_scc1 L_a")
    if OPT["code"] & 2: p(f"global_load_dword v{vCd}, v{vCo}, s[26:27]")
    p("s_branch L_a")
    p("L_slow:")
    p.ext(slow_path())
    p(f"s_cmp_eq_u32 {sRet}, 0\ns_cbranch_scc1 L_ret0\ns_branch L_ret1")
    p("L_ae:")
    stamp(p)
    vm = VM(["t29"] * 6 + ["t30"] * 6 + ["t31"] * 6)
    if OPT["w3"]:
        nr = 12 if OPT["bal"] else 6
        p(f"s_lshr_b32 {sT0}, {sB}, 1\ns_lshl_b32 {sT0}, {sT0}, 2\ns_add_u32 {sT0}, {sT0}, {sW}\ns_mul_i32 {sT0}, {sT0}, {nr*1280}")
        p(f"s_and_b32 {sT1}, {sB}, 1\ns_lshl_b32 {sT1}, {sT1}, 8\ns_add_u32 {sT0}, {sT0}, {sT1}\ns_add_u32 {sT0}, {sT0}, {(384-16*nr)*1280+3*256}")
        p(f"v_min_u32 {t0}, {2*nr-1}, {l}\nv_lshrrev_b32 {t1}, 1, {t0}\nv_and_b32 {t0}, 1, {t0}\nv_mul_u32_u24 {t1}, 1280, {t1}\nv_lshl_add_u32 {t0}, {t0}, 7, {t1}")
        p(f"buffer_load_dword v{vCd}, {t0}, {srd(sWO)}, {sT0} offen"); vm.issue("touch")
    p(vm.wait("t29")); vm.issue("w0", 6); vstep(dma_wo(0, 0), [], [f"s_mov_b32 {sRet}, 1"])
    p(vm.wait("t30")); vm.issue("w1", 6); kstep(dma_wo(1, 1), [], 1)
    p.ext(xlane(vL, "v_add_f32"))
    for qb in range(3): p(f"v_rcp_f32 v{vAl[qb]}, v{vL[qb]}\nv_log_f32 v{vTm[qb]}, v{vL[qb]}")
    for qb in range(3): p(f"v_add_f32 v{vMc[qb]}, v{vMc[qb]}, v{vTm[qb]}")
    for qb in range(3): p.ext([x for x in probs(qb, False) if not x.startswith("v_add")])
    p.ext(rescale())
    p(f"s_mul_i32 {sT0}, {sG}, {16*PART}"); mk(sPG, pWS, sT0, 16 * PART)
    mk(sOUT, pOUT, 0, 1966080)
    p(vm.wait("t31")); p("s_barrier")
    stamp(p)
    AB = [144, 96]
    def AF(sig, tp, nu): return AB[sig & 1] + 8 * tp + 4 * nu
    def reads_wo(sig, slot):
        g = []
        for tp in range(3):
            for nu in range(2):
                r = AF(sig, tp, nu); o = (slot & 1) * SLOT + 32 * tp * 256
                g.append(f"ds_read_b64_tr_b16 v[{r}:{r+1}], v{vOr[nu][slot>>1]} offset:{o}")
                g.append(f"ds_read_b64_tr_b16 v[{r+2}:{r+3}], v{vOr[nu][slot>>1]} offset:{o+4096}")
        return g
    def o_out(tp):
        g = []
        for qb in range(3):
            a, b = ACC(2 * tp, qb), ACC(2 * tp + 1, qb)
            g += [f"v_cvt_pk_bf16_f32 v{a}, v{a}, v{a+1}", f"v_cvt_pk_bf16_f32 v{a+1}, v{a+2}, v{a+3}",
                  f"v_cvt_pk_bf16_f32 v{a+2}, v{b}, v{b+1}", f"v_cvt_pk_bf16_f32 v{a+3}, v{b+2}, v{b+3}",
                  f"ds_write_b128 v{vOw}, {v4(a)} offset:{tp*12288+qb*1024}"]
        return g
    rd = reads_t(lambda t: FA(1, t))
    p.ext(rd[:10])
    G = Gaps(pv_mfmas())
    G.mems(rd[10:], 0, 10)
    vm.issue("w2", 6)
    G.vm(dma_wo(2, 2), [3, 9, 15, 21, 27, 33])
    for tp in range(4): G.spread(o_out(tp), 10 + 6 * tp, 16 + 6 * tp + (2 if tp == 3 else 0))
    p.ext(G.out())
    p(vm.wait("w0")); p("s_barrier")
    p.ext(weave(o_out(4) + o_out(5), reads_wo(0, 0)))
    p("; vmq w1*6 w2*6")
    tag = lambda g, t: g[:-1] + [g[-1] + f" ; vm={t}"]
    def BF(kq, tp, q):
        f = (kq * 3 + tp) * 6 + q
        return a4(4 * f) if f < 64 else v4(168 + 4 * (f - 64))
    def reads_b(k): return [f"ds_read_b128 {BF(k//3, k%3, q)}, v{vBr[k//3]} offset:{(k%3)*12288+q*1024}" for q in range(6)] if k < 12 else []
    def OA(ci, q, nu): return 48 * (ci & 1) + 8 * q + 4 * nu
    def out1(ci, q):
        a = OA(ci, q, 0)
        g = [f"v_cvt_pk_bf16_f32 v{a+i}, v{a+2*i}, v{a+2*i+1}" for i in range(4)]
        if q == 0: g = [f"s_mul_i32 {sT0}, {sCo[ci]}, 96"] + g
        return g + [f"buffer_store_dwordx4 {v4(a)}, v{vPs[q//3]}, {srd(sP)}, {sT0} offen offset:{1024*(q%3)} {OPT['pst']} ; vm=st{ci}"]
    RD = [120, 124, 128, 132, 136, 140, 200, 204]; vRs, vRp, vSel, vRb, vOb, vRo, vOo = 208, 212, 224, 221, 222, 223, 214
    sRo = ["s57", "s58", "s59", "s60", "s61"]; sRq = ["s64", "s65", "s66", "s67", "s68"]
    def rsetup():
        g = []
        g.append([f"s_mul_i32 {sDV}, {sB}, {96*2560}", f"s_mul_i32 {sT1}, {sBR}, 1280", f"s_add_u32 {sDV}, {sDV}, {sT1}"])
        g.append([f"s_lshl_b32 {sT1}, {sW}, 6", f"s_add_u32 {sDV}, {sDV}, {sT1}"])
        for r in range(5):
            g.append([f"s_add_u32 {sT1}, {sHP}, {4*r}", f"s_and_b32 {sT1}, {sT1}, 15", f"s_mul_i32 {sRq[r]}, {sT1}, {8*2560}"])
            g.append([f"s_add_u32 {sRq[r]}, {sRq[r]}, {sCo[r]}", f"s_lshr_b32 {sT3}, {sT1}, 1", f"s_mul_i32 {sT3}, {sT3}, 768"])
            g.append([f"s_lshl_b32 {sRo[r]}, {sT1}, 7", f"s_add_u32 {sT3}, {sT3}, {sRo[r]}", f"s_mul_i32 {sRo[r]}, {sCo[r]}, 96"])
            g.append([f"s_add_u32 {sRo[r]}, {sRo[r]}, {sT3}"])
            g.append([f"s_cmp_lt_u32 {sT1}, 12", f"s_cselect_b32 {sRo[r]}, {sRo[r]}, 0x40000000", f"s_cselect_b32 {sRq[r]}, {sRq[r]}, 0x40000000"])
        v = [f"v_lshrrev_b32 {t0}, 4, {l}", f"v_and_b32 {t1}, 15, {l}", f"v_lshlrev_b32 {t2}, 8, {t0}", f"v_lshl_add_u32 {t2}, {t1}, 3, {t2}", f"v_add_u32 v{vRb}, {sW6}, {t2}",
             f"v_lshrrev_b32 {t2}, 1, {t1}", f"v_mul_u32_u24 {t2}, 2560, {t2}", f"v_lshl_add_u32 {t2}, {t0}, 3, {t2}", f"v_and_b32 {t3}, 1, {l}", f"v_lshl_add_u32 {t2}, {t3}, 5, {t2}",
             f"v_add_u32 v{vOb}, {sDV}, {t2}",
             f"v_lshlrev_b32 {t3}, 4, {t3}", f"v_mov_b32 {t2}, 0x3f80", f"v_lshlrev_b32 {t2}, {t3}, {t2}", f"v_lshrrev_b32 {t1}, 1, {t1}", f"v_lshlrev_b32 {t0}, 1, {t0}",
             [f"v_cmp_eq_u32 vcc, {t0}, {t1}", f"v_cndmask_b32 v{vSel}, 0, {t2}, vcc"], f"v_add_u32 {t0}, 1, {t0}",
             [f"v_cmp_eq_u32 vcc, {t0}, {t1}", f"v_cndmask_b32 v{vSel+1}, 0, {t2}, vcc"], f"v_mov_b32 v{vSel+2}, v{vSel}", f"v_mov_b32 v{vSel+3}, v{vSel+1}"]
        return g, v
    def rload(r, h): return [f"s_mov_b32 {sT1}, {h*PART}", f"buffer_load_dwordx2 v[{RD[h>>1]+2*(h&1)}:{RD[h>>1]+2*(h&1)+1}], v{vRo}, {srd(sPG)}, {sT1} offen {OPT['pld']} ; vm=r{r}_{h>>1}"]
    def radd(r, k): return [f"s_waitcnt vmcnt(@r{r}_{k})", f"{M16} {v4(vRs)}, {v4(vSel)}, {v4(RD[k])}, " + ("0" if k == 0 else v4(vRs))]
    def rout(r): return [f"v_add_u32 v{vOo}, {sRq[r]}, v{vOb}", f"v_cvt_pk_bf16_f32 v{vRp}, v{vRs}, v{vRs+1}", f"v_cvt_pk_bf16_f32 v{vRp+1}, v{vRs+2}, v{vRs+3}",
                         f"buffer_store_dwordx2 v[{vRp}:{vRp+1}], v{vOo}, {srd(sOUT)}, 0 offen {OPT['ost']}"]
    def roff(r): return f"v_add_u32 v{vRo}, {sRo[r]}, v{vRb}"
    def publish(n): return [f"v_mov_b32 v{vFv}, {n}", f"buffer_store_dword v{vFv}, v{vF4}, {srd(sFL)}, 0 offen sc1"]
    poll = lambda t: [f"buffer_load_dword v{vIn}, v{vFo}, {srd(sFG)}, 0 offen sc1 ; vm={t}"]
    side = []
    def check(n):
        p(f"L_c{n}:\nv_cmp_le_u32 vcc, {n}, v{vIn}\ns_cmp_eq_u32 vcc_lo, 0xffff\ns_cbranch_scc0 L_s{n}\nL_k{n}:")
        side.append(f"L_s{n}:\n" + (f"s_sleep {OPT['slp']}\n" if OPT["slp"] else "") + f"buffer_load_dword v{vIn}, v{vFo}, {srd(sFG)}, 0 offen sc1 ; side\ns_add_u32 {sCnt}, {sCnt}, 1\ns_cmp_lt_u32 {sCnt}, 200000\ns_waitcnt vmcnt(0)\ns_cbranch_scc1 L_c{n}\ns_branch L_k{n}")
    slot_of = {0: 0, 1: 1, 2: 2}
    free = []; nxt = 3; pend = []
    R0 = OPT["r0"]
    NR = (20 - R0) // 2
    for sig in range(20):
        ci, kq = divmod(sig, 4)
        assert not any(t == sig + 1 for t, _ in pend)
        pub = {11: 2, 14: 3, OPT["pub4"]: 4}.get(sig, 0)
        if OPT["mode"] == 1: pub = {16: 3}.get(sig, 0)
        if OPT["mode"] == 2: pub = {12: 2, 16: 3}.get(sig, 0)
        if OPT["mode"] == 3: pub = {8: 1, 12: 2, 16: 3}.get(sig, 0)
        if OPT["mode"] == 4: pub = {8: 1, 12: 2, 16: 3, 19: 4}.get(sig, 0)
        if OPT["mode"] == 5: pub = {12: 2, 16: 3}.get(sig, 0)
        need = [f"w{sig+1}"]
        if pub: need.append(f"st{pub-1}")
        if sig == 6: need.append("init")
        if sig == 14: need.append("poll2")
        if sig == 18: need.append("poll3")
        if sig < 19 or pub:
            p(f"s_waitcnt vmcnt(@{','.join(need)}) lgkmcnt(0)"); p("s_barrier")
        if sig == 0: stamp(p)
        elif kq == 0 and "c" in OPT["fine"]: stamp(p)
        else: stamp(p, "o")
        ops = []
        if sig == 6:
            p(f"s_mov_b32 {sCnt}, 0\nL_c0:\nv_readfirstlane_b32 {sT1}, v{vIn}\ns_cmp_eq_u32 {sT1}, 1\ns_cbranch_scc0 L_s0\nL_k0:")
            side.append(f"L_s0:\nbuffer_load_dword v{vIn}, off, {srd(sDG)}, 0 sc1 ; side\ns_add_u32 {sCnt}, {sCnt}, 1\ns_cmp_lt_u32 {sCnt}, 200000\ns_waitcnt vmcnt(0)\ns_cbranch_scc1 L_c0\ns_branch L_k0")
        if sig in (14, 18) and OPT["mode"] == 0:
            if pub: p.ext(publish(pub))
            check(2 if sig == 14 else 3)
        elif sig == 18 and OPT["mode"] == 2: check(2)
        elif pub: ops.append(publish(pub))
        G = Gaps([f"{M16} {v4(OA(ci, q, nu))}, {v4(AF(sig, tp, nu))}, {BF(kq, tp, q)}, " + ("0" if kq == 0 and tp == 0 else v4(OA(ci, q, nu)))
                  for tp in range(3) for q in range(6) for nu in range(2)])
        if sig == 0: p.ext(reads_b(0))
        free.append(slot_of[sig])
        if sig == 4: free += [3, 4, 5]
        while free and nxt < 20 and nxt - sig <= OPT["dmax"] + 1:
            slot_of[nxt] = free.pop(0); pend += [(nxt, tag(g, f"w{nxt}")) for g in dma_wo(nxt, slot_of[nxt])]; nxt += 1
        if sig == 0: ops.append([f"buffer_load_dword v{vIn}, off, {srd(sDG)}, 0 sc1 ; vm=init"])
        if sig == 13 and OPT["mode"] == 0: ops.append(poll("poll2"))
        if sig == 16 and OPT["mode"] in (0, 2): ops.append(poll("poll3"))
        sts = [out1(ci - 1, q) for q in range(6)] if ci > 0 and kq == 0 else []
        nd = min(len(pend), 9 - len(ops) - len(sts))
        ops += [g for _, g in pend[:nd]]; pend = pend[nd:]
        n = len(ops) + len(sts)
        slots = DS9 if n > 7 or sig >= R0 else [1 + 5 * k for k in range(7)]
        if not ops: slots = slots[1:]
        G.vm(ops, slots)
        for k, g in enumerate(sts):
            at = slots[len(ops) + k]
            G.spread(g[:-1], at - 4, at); G.put(at, g[-1])
        if sig >= R0:
            r, hf = divmod(sig - R0, 2)
            if hf == 0: G.put(0, roff(r))
            for k in range(4):
                if r > 0: G.put(8 * k + 1, radd(r - 1, 4 * hf + k))
                G.vm([rload(r, 8 * hf + 2 * k), rload(r, 8 * hf + 2 * k + 1)], [8 * k + 2, 8 * k + 6])
            if r > 0 and hf == 1: G.spread(rout(r - 1), 30, 35)
        if sig == 19: G.put(20, poll("poll4"))
        if sig in (9, 10):
            sg, vg = rsetup()
            if sig == 9: G.spread(sg, 0, 34)
            else: G.spread(vg, 2, 34)
        ra = reads_wo(sig + 1, slot_of[sig + 1]) if sig < 19 else []
        if sig < 4:
            for tp in range(3): G.mems(reads_b(3 * sig + tp + 1) + ra[4*tp:4*tp+4], 12 * tp, 12 * tp + (12 if tp < 2 else 8))
        else: G.mems(ra, 0, 30)
        p.ext(G.out())
    for q in range(6): p.ext(out1(4, q))
    stamp(p)
    p("s_waitcnt vmcnt(@poll4)")
    LV = 4 if OPT["mode"] in (0, 4) else 3
    if OPT["mode"] < 3: check(LV)
    def round_(r, prev):
        p(roff(r))
        for k in range(8):
            if prev: p.ext(radd(r - 1, k))
            p.ext(rload(r, 2 * k) + rload(r, 2 * k + 1))
    for r in range(NR, LV):
        if OPT["mode"] >= 3: check(r + 1)
        round_(r, r > 0)
        if r == NR: p("s_waitcnt vmcnt(@st4)\ns_barrier"); p.ext(publish(5))
        if r > 0: p.ext(rout(r - 1))
    p.ext(poll("poll5"))
    for k in range(8): p.ext(radd(LV - 1, k))
    p.ext(rout(LV - 1))
    stamp(p)
    p("s_waitcnt vmcnt(@poll5)")
    check(5)
    stamp(p)
    for r in range(LV, 5):
        round_(r, r > LV)
        if r > LV: p.ext(rout(r - 1))
    for k in range(8): p.ext(radd(4, k))
    p.ext(rout(4))
    if OPT["stamps"]:
        p("s_waitcnt vmcnt(0)")
        stamp(p)
        p(f"s_lshl_b32 {sT0}, s2, 2\ns_add_u32 {sT0}, {sT0}, {sW}\ns_lshl_b32 {sT0}, {sT0}, 9\ns_add_u32 {sT0}, {sT0}, {STAMP_OFF}")
        p(f"v_lshlrev_b32 v0, 2, v{vLn}\nv_add_u32 v0, {sT0}, v0")
        p(f"global_store_dword v0, v255, s[{pWS}:{pWS+1}]\nglobal_store_dword v0, v254, s[{pWS}:{pWS+1}] offset:256")
    p("L_exit:\ns_endpgm")
    for x in side: p(x)
    p("L_end:")
    p.resolve_vm()
    d = OPT["drop"]
    def keep(i):
        if "m" in d and i.kind == "mfma": return False
        if "w" in d and i.lds_dma and i.src & {("s", sWQ), ("s", sX), ("s", sWO)}: return False
        if "r" in d and i.kind == "ds": return False
        if "s" in d and i.wide_store: return False
        return True
    p.auto_lgkm(); p.auto_nop(); p.lint_scc()
    p.ins = [i if keep(i) else Ins("s_nop 0") for i in p.ins]
    return p

def build():
    ref = open(f"cdna_kernels/{NAME}.s.ref").read().split("\n")
    head = [l for l in ref if l.startswith(";") and "@launch" not in l]
    out = "\n".join(head) + "\n"
    out += f"; @launch grid=(256,1,1) block=(256,1,1) lds={LDS_BYTES}\n"
    out += '.amdgcn_target "amdgcn-amd-amdhsa--gfx950"\n.text\n'
    nm = NAME + "_kernel"
    out += f".globl {nm}\n.p2align 8\n.type {nm},@function\n" + kernel().text()
    out += f""".section .rodata,"a"
.p2align 6
.amdhsa_kernel {nm}
  .amdhsa_next_free_vgpr 512
  .amdhsa_next_free_sgpr 102
  .amdhsa_accum_offset 256
  .amdhsa_group_segment_fixed_size 0
  .amdhsa_kernarg_size 104
  .amdhsa_user_sgpr_count 2
  .amdhsa_user_sgpr_kernarg_segment_ptr 1
  .amdhsa_system_sgpr_workgroup_id_x 1
  .amdhsa_float_denorm_mode_32 3
.end_amdhsa_kernel
"""
    return out

if __name__ == "__main__":
    txt = build()
    open(sys.argv[1], "w").write(txt)
```

```python
import sys, struct, math
from asmlib import *

NAME = "concat_heads__gqa_block_cached__mha_block_cached__near_ridge"
OPT = dict(stamps=0, fine="", drop="", kv="nt", wq="", x="", wo="", pst="sc1", pld="sc1", kburst=1, vburst=5, spread=2, dmax=5, pubfrom=99, code=3, codeit=10, ost="", thr=0x41000000, skip0=2, skipn=8, lazy=1, wotouch=99, wotn=3, epoch=1, w3=1, touch="", tfl="", win=5, kst="01", vst="56", dynq=1, eps="55", pre=1, delay=0, tst="", tt="7", dist=3, wwin=0, tl=1, mid=0, fn=1, w2l=0)
for a in sys.argv[2:]:
    k, v = a.split("=", 1)
    assert k in OPT, k
    OPT[k] = int(v) if v.lstrip("-").isdigit() else v

SLOT = 24576
S = [i * SLOT for i in range(6)]
LDS_BYTES = 6 * SLOT
PART = 122880
FLAG_OFF = 32 << 20
STAMP_OFF = 64 << 20

sX, sWQ, sK, sV, sWO, sP = 28, 32, 36, 40, 44, 48
sFL, sFG, sFA, sDG = 4, 8, 12, 16
sPG, sOUT = 28, 32
pOUT, pDBG, pWS = 20, 22, 24
def srd(b): return f"s[{b}:{b+3}]"
sW, sB, sHP, sBR, sC = "s52", "s53", "s54", "s55", "s56"
sWQo, sWQlim, sXo, sWQm, sXm, sRd, sI = "s57", "s58", "s59", "s60", "s61", "s62", "s63"
sKo, sVo, sKm, sVm, sDK, sDV = "s64", "s65", "s66", "s67", "s68", "s69"
sT0, sT1, sT2, sT3 = "s70", "s71", "s72", "s73"
sW6, sXd, sCrot, sKrot = "s74", "s75", "s76", "s77"
sCo = ["s78", "s79", "s80", "s81", "s82"]
sKq = ["s83", "s84", "s85", "s86"]
sJ, sSk, sG, sRet = "s87", "s88", "s89", "s90"
sThr = "s91"; sKV0 = "s101"; sKb, sVb, sBm = "s3", "s90", "s69"
sE = ["s97", "s58"]; sTb = 98
sNeed, sTodo, sReady, sPrev, sCur, sFirst, sCnt, sOo = "s57", "s58", "s59", "s60", "s61", "s62", "s63", "s64"
sST, sSI = 92, "s96"
def ACC(t, qb): return (t * 3 + qb) * 4
def SS(kb, qb): return 144 + (kb * 3 + qb) * 4
def PP(qb): return 168 + qb * 4
vM = [180, 181, 182]; vL = [183, 184, 185]; vAl = [186, 188, 190]; vMx = [192, 193, 194]; vTm = [195, 196, 197]; vMc = [187, 189, 191]
vKs = list(range(200, 206)); vVs = [206, 207, 208]; vWs = [209, 210, 211]; vXs = [212, 213, 214]; vOs = [215, 216, 217, 218, 219, 220]
vKr = [221, 222]; vVr = [223, 224, 225, 226]; vXr = [227, 228]; vOr = [[229, 230, 231], [232, 233, 234]]; vOw = 235; vBr = [236, 237, 198, 199]; vPs = [238, 239]
vPt = vWs + vXs + vXr
vLn = 240; vFo = 241; vFv = 242; vF4 = 243; vIn = 244; vCo = 245; vCd = 246; T = list(range(248, 254))
def v4(r): return f"v[{r}:{r+3}]"
def a4(r): return f"a[{r}:{r+3}]"
def QF(ks, qb): return (ks * 3 + qb) * 4
def FA(p, t): return 72 + 48 * p + 4 * t
def FB(p, qb): return 168 + 12 * p + 4 * qb

M16 = "v_mfma_f32_16x16x32_bf16"

class VM:
    def __init__(self, q): self.q = list(q)
    def issue(self, tag, n=1): self.q += [tag] * n
    def wait(self, *tags):
        idx = max((k for k, t in enumerate(self.q) if t in tags), default=-1)
        n = len(self.q) - 1 - idx
        self.q = self.q[idx + 1:]
        assert n <= 63
        return f"s_waitcnt vmcnt({n})"
    def done(self, tag): return tag not in self.q

def stamp(p, cls=""):
    if OPT["stamps"] and (not cls or cls in OPT["fine"]):
        p(f"s_memrealtime s[{sST}:{sST+1}]\ns_memtime s[{sST+2}:{sST+3}]\ns_mov_b32 s100, m0\ns_mov_b32 m0, {sSI}\ns_add_u32 {sSI}, {sSI}, 1\ns_waitcnt lgkmcnt(0)")
        p(f"v_writelane_b32 v255, s{sST}, m0\nv_writelane_b32 v254, s{sST+2}, m0\ns_mov_b32 m0, s100")

def dma6(vs, srdb, so, mbase, flags, src_step, six=False):
    def val(dst, x, extra):
        if isinstance(x, tuple): r, imm = x
        else: r, imm = x, 0
        imm += extra
        return f"s_add_u32 {dst}, {r}, {imm}" if imm else f"s_mov_b32 {dst}, {r}"
    g = []
    for j in range(6):
        pre = []
        sreg = so if (j < 3 or src_step == 0) else sT3
        if j % 3 == 0:
            pre = [val("m0", mbase, 3072 * (j // 3))]
            if j == 3 and src_step: pre.append(val(sT3, so, src_step))
        v = vs[j] if six else vs[j % 3]
        g.append(pre + [f"buffer_load_dwordx4 v{v}, {srd(srdb)}, {sreg} offen offset:{1024*(j%3)} {flags} lds"])
    return g
def dma_k(): return dma6(vKs, sK, sKo, sKm, OPT["kv"], 0, six=True)
def dma_v(): return dma6(vVs, sV, sVo, sVm, OPT["kv"], 3072)
def dma_wq(): return dma6(vWs, sWQ, sWQo, sWQm, OPT["wq"], 16 * 12288)
def dma_x():
    g = []
    for j in range(3):
        pre = [f"s_mov_b32 m0, {sXm}"] if j == 0 else []
        g.append(pre + [f"buffer_load_dwordx4 v{vXs[j]}, {srd(sX)}, {sXo} offen offset:{1024*j} {OPT['x']} lds"])
    return g
def dma_wo(sig, slot):
    ci, kq = divmod(sig, 4)
    g = dma6(vOs, sWO, sT2, (sW6, S[slot]), OPT["wo"], 0, six=True)
    g[0] = [g[0][0], f"s_add_u32 {sT2}, {sCo[ci]}, {sKq[kq]}"] + g[0][1:]
    return g
def set_wq(e): return [f"s_mul_i32 {sWQo}, {sXo}, 6144", f"s_add_u32 {sWQo}, {sWQo}, {sE[e]}"]
def adv_wqm(): return [f"s_add_u32 {sWQm}, {sWQm}, {SLOT}", f"s_cmp_ge_u32 {sWQm}, {3*SLOT}", f"s_cselect_b32 {sWQm}, {sW6}, {sWQm}"]
def next_pair():
    return [[f"s_lshr_b64 s[{sTb}:{sTb+1}], s[{sTb}:{sTb+1}], 4", f"s_and_b32 {sXo}, s{sTb}, 15", f"s_lshl_b32 {sXo}, {sXo}, 7"]]
def flip_x(): return [f"s_xor_b32 {sXm}, {sXm}, {sXd}"]
def adv_kv(so, sm, step="12288"):
    if step == "12288": a = [f"s_add_u32 {so}, {so}, 12288", f"s_add_u32 {sm}, {sm}, {2*SLOT}"]
    else: a = [f"s_add_u32 {so}, {so}, {step}", f"s_lshl2_add_u32 {sm}, {step}, {sm}"]
    return [a, [f"s_cmp_ge_u32 {sm}, {6*SLOT}", f"s_cselect_b32 {sT0}, {6*SLOT}, 0", f"s_sub_u32 {sm}, {sm}, {sT0}"]]
def adv_k(step="12288"): return adv_kv(sKo, sKm, step)
def adv_v(step="12288"): return adv_kv(sVo, sVm, step)
def flat(g): return [x for y in g for x in ([y] if isinstance(y, str) else y)]

def reads_t(dstf, n=12):
    g = []
    for t in range(n):
        r = dstf(t); o = (t >> 2) * 128
        g.append(f"ds_read_b64_tr_b16 a[{r}:{r+1}], v{vVr[t&3]} offset:{o}")
        g.append(f"ds_read_b64_tr_b16 a[{r+2}:{r+3}], v{vVr[t&3]} offset:{o+6144}")
    return g
def reads_x(p, e): return [f"ds_read_b128 {a4(FB(p, qb))}, v{vXr[e]} offset:{qb*2048}" for qb in range(3)]
def adv_rd_wq():
    return [[f"s_add_u32 {sRd}, {sRd}, 1", f"s_cmp_ge_u32 {sRd}, 3", f"s_cselect_b32 {sRd}, 0, {sRd}",
             f"s_cselect_b32 {sT1}, {-2*SLOT & 0xffffffff}, {sT2}"]] + [f"v_add_u32 v{r}, {sT1}, v{r}" for r in vVr]

def kernel():
    p = Prog()
    p(f"{NAME}_kernel:")
    p("s_cmp_ge_u32 s2, 256\ns_cbranch_scc1 L_exit")
    p("s_bfe_u32 s55, s2, 0x10002\ns_mul_i32 s3, s55, 40")
    p("s_load_dwordx8 s[4:11], s[0:1], s3\ns_add_u32 s3, s3, 32\ns_load_dwordx2 s[12:13], s[0:1], s3")
    p(f"s_load_dwordx4 s[{pOUT}:{pOUT+3}], s[0:1], 80\ns_load_dwordx2 s[{pWS}:{pWS+1}], s[0:1], 96")
    if OPT["stamps"]: p(f"v_mov_b32 v255, 0\nv_mov_b32 v254, 0\ns_mov_b32 {sSI}, 0")
    l = f"v{vLn}"
    t0, t1, t2, t3, t4 = (f"v{r}" for r in T[:5])
    p(f"v_lshrrev_b32 {t0}, 6, v0\nv_and_b32 {l}, 63, v0")
    p(f"s_and_b32 {sT0}, s2, 3\ns_bfe_u32 {sB}, s2, 0x30003\ns_lshr_b32 {sJ}, s2, 6")
    p(f"v_readfirstlane_b32 {sW}, {t0}")
    p(f"s_lshl_b32 {sHP}, {sT0}, 2\ns_add_u32 {sHP}, {sHP}, {sJ}")
    if OPT["code"]:
        p("s_getpc_b64 s[26:27]\nL_pc:")
        p(f"s_sub_u32 s26, s26, L_pc-{NAME}_kernel\ns_subb_u32 s27, s27, 0")
        p(f"s_lshr_b32 {sT1}, s2, 3\ns_lshl_b32 {sT1}, {sT1}, 2\ns_add_u32 {sT1}, {sT1}, {sW}\ns_mul_i32 {sT1}, {sT1}, 384")
        p(f"v_and_b32 v{vCo}, 3, {l}\nv_lshlrev_b32 v{vCo}, 7, v{vCo}\nv_add_u32 v{vCo}, {sT1}, v{vCo}\nv_min_u32 v{vCo}, L_exit-{NAME}_kernel, v{vCo}")
        if OPT["code"] & 1: p(f"global_load_dword v{vCd}, v{vCo}, s[26:27]")
    p(f"s_lshr_b32 {sCrot}, {sB}, 1\ns_and_b32 {sKrot}, {sB}, 1\ns_add_u32 {sT1}, {sCrot}, {sJ}")
    p(f"s_mov_b64 s[{sTb}:{sTb+1}], 0")
    e0 = 0
    for n in (int(c) for c in str(OPT["eps"])):
        seq = [e0 + k % n for k in range(16)]
        lo = sum(v << (4 * k) for k, v in enumerate(seq[:8])); hi = sum(v << (4 * k) for k, v in enumerate(seq[8:]))
        if n == 5: p(f"s_cmp_eq_u32 {sB}, 7\ns_addc_u32 {sT0}, {sT1}, 0 ; carry-ok\ns_lshl_b32 {sT0}, {sT0}, 2")
        else: p(f"s_lshl_b32 {sT0}, {sT1}, 2")
        p(f"s_mov_b32 s72, {lo:#x}\ns_mov_b32 s73, {hi:#x}\ns_lshr_b64 s[72:73], s[72:73], {sT0}\ns_and_b32 s72, s72, {(1 << (4 * n)) - 1:#x}\ns_mov_b32 s73, 0")
        p(f"s_lshl_b64 s[72:73], s[72:73], {4*e0}\ns_or_b64 s[{sTb}:{sTb+1}], s[{sTb}:{sTb+1}], s[72:73]")
        e0 += n
    assert e0 == 10
    p(f"s_and_b32 {sXo}, s{sTb}, 15\ns_lshl_b32 {sXo}, {sXo}, 7\ns_mul_i32 {sW6}, {sW}, 6144")
    p(f"s_and_b32 {sT1}, {sW}, 1\ns_lshr_b32 {sT2}, {sW}, 1")
    p(f"s_mul_i32 {sT0}, {sT1}, {4*12288}\ns_mul_i32 {sT3}, {sT2}, 384\ns_add_u32 {sT0}, {sT0}, {sT3}")
    p(f"s_mul_i32 {sE[0]}, {sKrot}, {32*12288}\ns_sub_u32 {sE[1]}, {32*12288}, {sE[0]}\ns_add_u32 {sE[0]}, {sE[0]}, {sT0}\ns_add_u32 {sE[1]}, {sE[1]}, {sT0}")
    p.ext(set_wq(0))
    p(f"s_add_u32 {sWQm}, {sW6}, {S[1]}")
    p(f"s_mul_i32 {sXm}, {sW}, 3072\ns_add_u32 {sXm}, {sXm}, {S[3]}")
    p(f"s_add_u32 {sXd}, {sXm}, 12288\ns_xor_b32 {sXd}, {sXd}, {sXm}")
    p(f"s_mul_i32 {sT0}, {sW}, 24\nv_lshrrev_b32 {t0}, 3, {l}\nv_add_u32 {t0}, {sT0}, {t0}")
    p(f"v_lshrrev_b32 {t1}, 1, {t0}\nv_xor_b32 {t1}, {t1}, {l}\nv_and_b32 {t1}, 7, {t1}\nv_mul_u32_u24 {t0}, 1280, {t0}")
    p(f"v_lshl_add_u32 v{vXs[0]}, {t1}, 4, {t0}\nv_xor_b32 {t1}, 64, v{vXs[0]}")
    p(f"v_add_u32 v{vXs[1]}, {10240-1024}, {t1}\nv_add_u32 v{vXs[2]}, {2*(10240-1024)}, v{vXs[0]}")
    def rowof(j): p(f"v_add_u32 {t0}, {64*j}, {l}\nv_mul_u32_u24 {t1}, 2731, {t0}\nv_lshrrev_b32 {t1}, 16, {t1}")
    for j in range(3):
        rowof(j)
        p(f"v_and_b32 {t2}, 6, {t1}\nv_xor_b32 {t3}, {t2}, {l}\nv_lshlrev_b32 v{vVs[j]}, 4, {t3}")
        p(f"v_and_b32 {t2}, 12, {t1}\nv_add_u32 {t2}, {t2}, {t1}\nv_mul_u32_u24 {t2}, 12288, {t2}")
        p(f"v_mul_u32_u24 {t3}, 384, {t1}\nv_sub_u32 {t2}, {t2}, {t3}\nv_add_u32 v{vWs[j]}, {t2}, v{vVs[j]}")
    p("s_waitcnt lgkmcnt(0)")
    stamp(p)
    if OPT["delay"]:
        p(f"s_bitcmp0_b32 {sB}, 0\ns_cbranch_scc1 L_nd")
        for _ in range(OPT["delay"]): p("s_sleep 37")
        p("L_nd:")
    def mk(b, ptr, off_s, size):
        p(f"s_add_u32 s{b}, s{ptr}, {off_s}\ns_addc_u32 s{b+1}, s{ptr+1}, 0\ns_and_b32 s{b+1}, s{b+1}, 0xffff")
        p(f"s_mov_b32 s{b+2}, {size}\ns_mov_b32 s{b+3}, 0x20000")
    p(f"s_mul_i32 {sT0}, {sB}, 122880"); mk(sX, 4, sT0, 122880)
    p.ext(flat(dma_x()))
    p(f"s_mul_i32 {sT0}, {sHP}, 768"); mk(sWQ, 10, sT0, 639 * 12288 + 768)
    p.ext(flat(dma_wq() + [adv_wqm(), set_wq(1), flip_x()]))
    wq1 = dma_wq()
    p.ext(flat(wq1[:3]))
    p(f"s_and_b32 {sT1}, {sW}, 1\ns_lshr_b32 {sT2}, {sW}, 1")
    p(f"s_mul_i32 {sKo}, {sT2}, 196608\ns_mul_i32 {sT3}, {sT1}, 6144\ns_add_u32 {sKo}, {sKo}, {sT3}\ns_mov_b32 {sVo}, {sKo}\ns_mov_b32 {sKV0}, {sKo}")
    p(f"s_add_u32 {sKm}, {sW6}, {S[4]}\ns_add_u32 {sVm}, {sW6}, {S[5]}")
    p(f"s_lshr_b32 {sSk}, s2, 3\ns_and_b32 {sSk}, {sSk}, {OPT['skipn']-1}\ns_add_u32 {sSk}, {sSk}, {OPT['skip0']}\ns_mov_b32 {sThr}, {OPT['thr']}")
    p(f"s_lshl_b32 {sT0}, {sB}, 4\ns_add_u32 {sT0}, {sT0}, {sHP}\ns_mul_i32 {sT3}, {sT0}, 393216")
    mk(sK, 6, sT3, 393216); mk(sV, 8, sT3, 393216)
    p(f"s_mul_i32 {sT3}, {sHP}, 491520"); mk(sWO, 12, sT3, 491520)
    p(f"s_lshl_b32 {sG}, {sBR}, 3\ns_add_u32 {sG}, {sG}, {sB}\ns_lshl_b32 {sT0}, {sG}, 4\ns_add_u32 {sT0}, {sT0}, {sHP}")
    p(f"s_mul_i32 {sT3}, {sT0}, {PART}"); mk(sP, pWS, sT3, PART)
    p(f"s_lshl_b32 {sT3}, {sT0}, 7\ns_add_u32 {sT3}, {sT3}, {FLAG_OFF}"); mk(sFL, pWS, sT3, 64)
    p(f"s_lshl_b32 {sT3}, {sG}, 11\ns_add_u32 {sT3}, {sT3}, {FLAG_OFF}"); mk(sFG, pWS, sT3, 2048)
    mk(sFA, pWS, FLAG_OFF, 32768)
    mk(sDG, pDBG, 0, 64)
    p(f"s_cmp_eq_u32 {sW}, 0\ns_cselect_b32 s{sFL+2}, 64, 0")
    p(f"v_lshlrev_b32 v{vFo}, 7, {l}\nv_lshlrev_b32 v{vF4}, 2, {l}")
    c = (192 ** -0.5) * math.log2(math.e)
    p(f"s_mov_b32 {sC}, {struct.unpack('<I', struct.pack('<f', c))[0]:#x}")
    p(f"s_lshr_b32 {sCrot}, {sB}, 1\ns_and_b32 {sKrot}, {sB}, 1\ns_lshl_b32 {sKrot}, {sKrot}, 1")
    p(f"s_cmp_eq_u32 {sB}, 7\ns_cselect_b32 {sCrot}, 4, {sCrot}\ns_cselect_b32 {sKrot}, 0, {sKrot}")
    for ci in range(5):
        p(f"s_add_u32 {sT0}, {sCrot}, {ci}\ns_cmp_ge_u32 {sT0}, 5\ns_cselect_b32 {sT3}, 5, 0\ns_sub_u32 {sT0}, {sT0}, {sT3}\ns_lshl_b32 {sCo[ci]}, {sT0}, 8")
    for kq in range(4):
        p(f"s_xor_b32 {sT0}, {sKrot}, {kq}\ns_mul_i32 {sKq[kq]}, {sT0}, {96*1280}")
    p(f"s_mul_i32 {sT0}, {sT2}, 12288")
    for j in range(6):
        rowof(j)
        p(f"v_bfe_u32 {t2}, {t1}, 1, 3\nv_xor_b32 {t2}, {t2}, {l}\nv_lshlrev_b32 v{vKs[j]}, 4, {t2}")
        if j >= 3: p(f"v_add_u32 v{vKs[j]}, 3072, v{vKs[j]}")
    p(f"v_and_b32 {t0}, 15, {l}\nv_lshrrev_b32 {t1}, 4, {l}\nv_lshrrev_b32 {t2}, 1, {t0}\nv_xor_b32 {t2}, {t2}, {t1}")
    p(f"v_mul_u32_u24 {t3}, 384, {t0}\nv_add_u32 {t3}, {sT0}, {t3}\nv_add_u32 {t3}, {S[4]}, {t3}")
    p(f"v_lshl_add_u32 v{vKr[0]}, {t2}, 4, {t3}\nv_xor_b32 {t4}, 4, {t2}\nv_lshl_add_u32 v{vKr[1]}, {t4}, 4, {t3}")
    p(f"s_mul_i32 {sT3}, {sT1}, {48*128}\ns_add_u32 {sT3}, {sT3}, {S[3]}")
    p(f"v_lshlrev_b32 {t3}, 7, {t0}\nv_add_u32 {t3}, {sT3}, {t3}")
    p(f"v_lshl_add_u32 v{vXr[0]}, {t2}, 4, {t3}")
    p(f"s_and_b32 {sT3}, {sB}, 1\ns_lshl_b32 {sT3}, {sT3}, 6\nv_xor_b32 v{vXr[0]}, {sT3}, v{vXr[0]}")
    p(f"v_xor_b32 v{vXr[1]}, 64, v{vXr[0]}")
    p(f"s_mul_i32 {sT3}, {sW}, 24\nv_lshlrev_b32 {t2}, 1, {t1}\nv_xor_b32 {t2}, {t2}, {t0}\nv_add_u32 {t3}, {sT3}, {t1}")
    p(f"v_mul_u32_u24 {t3}, 1280, {t3}\nv_lshl_add_u32 v{vOs[0]}, {t2}, 4, {t3}\nv_xor_b32 {t2}, 128, v{vOs[0]}")
    for j in range(1, 6):
        p(f"v_add_u32 v{vOs[j]}, {5120*j-1024*(j%3)}, " + (t2 if j & 1 else f"v{vOs[0]}"))
    p(f"v_lshrrev_b32 {t0}, 2, {l}\nv_and_b32 {t1}, 3, {l}\nv_bfe_u32 {t2}, {l}, 3, 2")
    p(f"v_mul_u32_u24 {t3}, 384, {t0}\nv_lshl_add_u32 {t3}, {t1}, 3, {t3}\nv_add_u32 {t3}, {sT0}, {t3}\nv_add_u32 {t3}, {S[1]}, {t3}")
    for dl in range(4):
        p(f"v_xor_b32 {t4}, {dl}, {t2}\nv_lshl_add_u32 v{vVr[dl]}, {t4}, 5, {t3}")
    p(f"v_lshlrev_b32 {t3}, 8, {t0}\nv_lshl_add_u32 {t3}, {t1}, 3, {t3}\nv_and_b32 {t2}, 7, {t0}\ns_lshl_b32 {sT3}, {sW}, 1\nv_xor_b32 {t2}, {sT3}, {t2}")
    p(f"v_lshl_add_u32 v{vOr[0][0]}, {t2}, 5, {t3}\nv_xor_b32 v{vOr[1][0]}, 32, v{vOr[0][0]}")
    for nu in range(2): p(f"v_add_u32 v{vOr[nu][1]}, {S[2]}, v{vOr[nu][0]}\nv_add_u32 v{vOr[nu][2]}, {S[4]}, v{vOr[nu][0]}")
    p(f"v_lshlrev_b32 {t0}, 4, {l}")
    p(f"s_mul_i32 {sT3}, {sW}, 3072\ns_add_u32 {sT3}, {sT3}, {S[3]}\nv_add_u32 v{vOw}, {sT3}, {t0}")
    p(f"s_mul_i32 {sT3}, {sKrot}, 3072\ns_add_u32 {sT3}, {sT3}, {S[3]}\nv_add_u32 v{vBr[0]}, {sT3}, {t0}\nv_add_u32 v{vBr[1]}, 36864, v{vBr[0]}")
    p(f"s_xor_b32 {sT3}, {sKrot}, 2\ns_mul_i32 {sT3}, {sT3}, 3072\ns_add_u32 {sT3}, {sT3}, {S[3]}\nv_add_u32 v{vBr[2]}, {sT3}, {t0}\nv_add_u32 v{vBr[3]}, 36864, v{vBr[2]}")
    p(f"v_add_u32 v{vPs[0]}, {sW6}, {t0}\nv_add_u32 v{vPs[1]}, 3072, v{vPs[0]}")
    for r in range(144): p(f"v_mov_b32 v{r}, 0")
    for qb in range(3): p(f"v_mov_b32 v{vM[qb]}, 0xff7fffff\nv_mov_b32 v{vMc[qb]}, 0xff7fffff\nv_mov_b32 v{vL[qb]}, 0")
    p(f"s_mov_b32 {sRd}, 1\ns_mov_b32 {sT2}, {SLOT}\ns_mov_b32 {sI}, 0\ns_mov_b32 {sDK}, 12288")
    p("s_cmp_lg_u32 s2, 0\ns_cbranch_scc1 L_nc")
    p(f"v_lshrrev_b32 {t0}, 2, {l}\nv_lshlrev_b32 {t0}, 7, {t0}\nv_and_b32 {t1}, 3, {l}\nv_lshl_add_u32 {t0}, {t1}, 4, {t0}\ns_lshl_b32 {sT0}, {sW}, 13")
    for k in range(4): p(f"buffer_store_dwordx4 v[0:3], {t0}, {srd(sFA)}, {sT0} offen sc1\ns_add_u32 {sT0}, {sT0}, 2048")
    p("L_nc:")
    rd0 = reads_x(0, 0) + reads_t(lambda t: FA(0, t))
    rest = dma_x() + dma_wq() + [adv_wqm(), set_wq(1), flip_x()]
    if OPT["pre"] == 0:
        p("s_waitcnt vmcnt(3)\ns_barrier"); stamp(p)
        p.ext(weave(rd0, wq1[3:] + [adv_wqm(), flat(next_pair()), set_wq(0)] + rest))
    elif OPT["pre"] == 1:
        p.ext(flat(wq1[3:] + [adv_wqm(), flat(next_pair()), set_wq(0)] + rest[:3]))
        p("s_waitcnt vmcnt(9)\ns_barrier"); stamp(p)
        p.ext(weave(rd0, rest[3:]))
    else:
        p.ext(flat(wq1[3:] + [adv_wqm(), flat(next_pair()), set_wq(0)] + rest[:6]))
        p("s_waitcnt vmcnt(12)\ns_barrier"); stamp(p)
        p.ext(weave(rd0, rest[6:]))
    p.ext(flat(adv_rd_wq()))
    p(f"v_add_u32 v{vXr[0]}, {sDK}, v{vXr[0]}")
    DS9 = list(range(0, 36, 4))
    def conv(ks):
        g = []
        R = lambda qb: 144 + 4 * qb + 12 * (ks & 1)
        for qb in range(3):
            a, b, r = ACC(2 * ks, qb), ACC(2 * ks + 1, qb), R(qb)
            g += [f"v_cvt_pk_bf16_f32 v{r}, v{a}, v{a+1}", f"v_cvt_pk_bf16_f32 v{r+1}, v{a+2}, v{a+3}",
                  f"v_cvt_pk_bf16_f32 v{r+2}, v{b}, v{b+1}", f"v_cvt_pk_bf16_f32 v{r+3}, v{b+2}, v{b+3}"]
        for op in ("v_permlane32_swap_b32", "v_permlane16_swap_b32"):
            for qb in range(3): g += [f"{op} v{R(qb)}, v{R(qb)+2}", f"{op} v{R(qb)+1}, v{R(qb)+3}"]
        for qb in range(3): g += [f"v_accvgpr_write_b32 a{QF(ks, qb)+i}, v{R(qb)+i}" for i in range(4)]
        return g
    def qstep(par, wait, dmas, advs, do_reads=True, tail=[], valu=[]):
        if wait: p(wait + " lgkmcnt(0)")
        p("s_barrier")
        stamp(p, "q")
        G = Gaps([f"{M16} {v4(ACC(t, qb))}, {a4(FA(par, t))}, {a4(FB(par, qb))}, {v4(ACC(t, qb))}" for t in range(12) for qb in range(3)])
        slots = DS9 if len(dmas) > 6 else [0, 5, 10, 15, 20, 25]
        G.vm(dmas, slots)
        for k, a in advs: G.put(k, a)
        if do_reads:
            pos = G.mems(reads_x(1 - par, 1 - par) + reads_t(lambda t: FA(1 - par, t)), 0, 32)
            ad = adv_rd_wq()
            G.put(17, ad[0][:2]); G.put(18, ad[0][2:])
            for k in range(4): G.put(pos[3 + 17 + 2 * k] + 1, ad[1 + k])
            if par == 0: G.put(9, f"v_add_u32 v{vXr[1]}, {sDK}, v{vXr[1]}")
            else: G.put(9, [f"s_sub_u32 {sDK}, 0, {sDK}", f"v_add_u32 v{vXr[0]}, {sDK}, v{vXr[0]}"])
        G.spread(valu, 10, 36)
        G.put(34, tail)
        p.ext(G.out())
    npr = next_pair()
    def table(dst, digits):
        d = (str(digits) * 8)[:8]
        p(f"s_add_u32 {sT0}, {sB}, {sJ}\ns_and_b32 {sT0}, {sT0}, 7\ns_lshl_b32 {sT0}, {sT0}, 2\ns_lshr_b32 {dst}, {sum((int(c) + 1) << (4 * k) for k, c in enumerate(d)):#x}, {sT0}\ns_and_b32 {dst}, {dst}, 15")
    table(sKb, OPT["kst"]); table(sVb, OPT["vst"])
    p(f"s_mov_b32 {sBm}, 256\ns_bitset1_b32 {sBm}, {sKb}\ns_bitset1_b32 {sBm}, {sVb}")
    TS = list(zip([x for x in str(OPT["tst"]).split(",") if x], [int(x) for x in str(OPT["tt"]).split(",")], ["s87", "s0", "s1"][::-1]))
    for st, _, r in TS:
        table(r, st); p(f"s_bitset1_b32 {sBm}, {r}")
    if TS: p(f"v_and_b32 {t4}, 7, {l}\nv_lshlrev_b32 {t4}, 7, {t4}")
    def qwait(n, tag):
        if not OPT["dynq"]: return f"s_waitcnt vmcnt({n})"
        p(f"s_bitcmp1_b32 {sBm}, {sI}\ns_waitcnt vmcnt({n+6}) lgkmcnt(0)\ns_cbranch_scc1 L_qw{tag}\ns_waitcnt vmcnt({n})\nL_qw{tag}:")
        return None
    p("s_waitcnt lgkmcnt(0)")
    p("L_q:")
    qstep(0, qwait(9, "e"), dma_wq(), [(26, adv_wqm())] + [(27 + k, g) for k, g in enumerate(npr)] + [(33, set_wq(0))])
    qstep(1, qwait(6, "o"), dma_x() + dma_wq(), [(13, flip_x()), (29, adv_wqm()), (33, set_wq(1))],
          tail=[f"s_add_u32 {sI}, {sI}, 1", f"s_bitcmp0_b32 {sBm}, {sI}"])
    p("s_waitcnt lgkmcnt(0)")
    p("s_cbranch_scc1 L_q")
    p(f"s_cmp_lg_u32 {sI}, {sKb}\ns_cbranch_scc1 L_q1")
    p.ext(flat(dma_k() + adv_k()))
    p("L_q1:")
    p(f"s_cmp_lg_u32 {sI}, {sVb}\ns_cbranch_scc1 L_q2")
    p.ext(flat(dma_v() + adv_v()))
    p("L_q2:")
    for k, (_, t, r) in enumerate(TS):
        p(f"s_cmp_lg_u32 {sI}, {r}\ns_cbranch_scc1 L_qt{k}\ns_add_u32 {sT0}, {sKV0}, {12288*(t>>1)}\ns_add_u32 {sT3}, {sT0}, 3072")
        for j in range(6): p(f"buffer_load_dword v{vCd}, {t4}, {srd(sV if t & 1 else sK)}, {sT0 if j < 3 else sT3} offen offset:{1024*(j%3)} {OPT['tfl']}")
        p(f"L_qt{k}:")
    p(f"s_cmp_lt_u32 {sI}, 8\ns_cbranch_scc1 L_q")
    vm = VM(["wq17"] * 6 + ["x9"] * 3 + ["wq18"] * 6)
    kv = lambda a: [(27, a[0]), (29, a[1])]
    w = vm.wait("wq17"); vm.issue("wq19", 6); qstep(0, w, dma_wq(), [])
    w = vm.wait("wq18"); vm.issue("t2", 6); qstep(1, w, dma_k(), kv(adv_k()))
    w = vm.wait("wq19"); vm.issue("t3", 6); qstep(0, w, dma_v(), kv(adv_v()))
    c01 = conv(0) + conv(1)[:12]
    if OPT["dist"] == 4: qstep(1, "s_waitcnt", [], [], do_reads=False, valu=c01)
    else: qstep(1, "s_waitcnt", dma_k(), kv(adv_k()), do_reads=False, valu=c01)
    stamp(p)
    p.ext(conv(1)[12:])
    for ks in range(2, 6): p.ext(conv(ks))
    for r in vVr: p(f"v_add_u32 v{r}, {S[5]}, v{r}")
    p(f"s_mov_b32 {sRd}, {S[4]}\ns_mov_b32 {sI}, 0\ns_mov_b32 {sRet}, 0")
    p(f"s_or_b32 {sT0}, s2, {sW} ; scc-ok\ns_cbranch_scc1 L_na\nv_mov_b32 v{vFv}, 1\nbuffer_store_dword v{vFv}, v{vF4}, {srd(sDG)}, 0 offen sc1\nL_na:")
    stamp(p)

    sv = lambda qb: [SS(0, qb) + i for i in range(4)] + [SS(1, qb) + i for i in range(4)]
    def probs(qb, check, dst=None, pack=True):
        x = sv(qb); y = dst or vPt; g = []
        g += [f"v_fma_f32 v{y[i]}, v{x[i]}, {sC}, -v{vMc[qb]}" for i in range(8)]
        if check:
            m = vMx[0]
            if qb == 0: g += [f"v_max3_f32 v{m}, v{y[0]}, v{y[1]}, v{y[2]}", f"v_max3_f32 v{m}, v{m}, v{y[3]}, v{y[4]}", f"v_max3_f32 v{m}, v{m}, v{y[5]}, v{y[6]}", f"v_max_f32 v{m}, v{m}, v{y[7]}"]
            else: g += [f"v_max3_f32 v{m}, v{m}, v{y[2*i]}, v{y[2*i+1]}" for i in range(4)]
        g += [f"v_exp_f32 v{y[i]}, v{y[i]}" for i in range(8)]
        t = vTm[qb]; u = vMx[1]
        g += [f"v_add_f32 v{t}, v{y[0]}, v{y[1]}", f"v_add_f32 v{u}, v{y[2]}, v{y[3]}", f"v_add_f32 v{t}, v{t}, v{y[4]}", f"v_add_f32 v{u}, v{u}, v{y[5]}",
              f"v_add_f32 v{t}, v{t}, v{y[6]}", f"v_add_f32 v{u}, v{u}, v{y[7]}"]
        if pack: g += [f"v_cvt_pk_bf16_f32 v{PP(qb)+i}, v{y[2*i]}, v{y[2*i+1]}" for i in range(4)]
        g += [f"v_add_f32 v{t}, v{t}, v{u}"]
        return g
    def rescale():
        return [f"v_pk_mul_f32 v[{ACC(t, qb)+h}:{ACC(t, qb)+h+1}], v[{ACC(t, qb)+h}:{ACC(t, qb)+h+1}], v[{vAl[qb]}:{vAl[qb]+1}] op_sel_hi:[1,0]"
                for t in range(12) for qb in range(3) for h in (0, 2)]
    def xlane(regs, op, vPt=vPt):
        g = []
        for sw in ("v_permlane32_swap_b32", "v_permlane16_swap_b32"):
            g += [f"v_mov_b32 v{vPt[qb]}, v{regs[qb]}" for qb in range(3)]
            g += [f"{sw} v{regs[qb]}, v{vPt[qb]}" for qb in range(3)]
            g += [f"{op} v{regs[qb]}, v{regs[qb]}, v{vPt[qb]}" for qb in range(3)]
        return g
    def slow_path():
        g = []
        for k in range(4):
            for qb in range(3):
                x = sv(qb)
                g.append(f"v_max3_f32 v{vMx[qb]}, v{vM[qb] if k == 0 else vMx[qb]}, v{x[2*k]}, v{x[2*k+1]}")
        g += xlane(vMx, "v_max_f32")
        g += [f"v_sub_f32 v{vTm[qb]}, v{vM[qb]}, v{vMx[qb]}" for qb in range(3)]
        g += [f"v_mul_f32 v{vMc[qb]}, {sC}, v{vMx[qb]}" for qb in range(3)]
        g += [f"v_mul_f32 v{vTm[qb]}, {sC}, v{vTm[qb]}" for qb in range(3)]
        g += [f"v_mov_b32 v{vM[qb]}, v{vMx[qb]}" for qb in range(3)]
        g += [f"v_exp_f32 v{vAl[qb]}, v{vTm[qb]}" for qb in range(3)]
        for qb in range(3): g += probs(qb, False)
        g += [f"v_mul_f32 v{vL[qb]}, v{vL[qb]}, v{vAl[qb]}" for qb in range(3)]
        return g + rescale()
    vKeep = [vPt, vKs + vVs[:2], [vVs[2]] + T[2:6] + [vFv, 247, vIn]]
    def kstep(dmas, advs, ret):
        last = ret == 1 and OPT["fn"]
        pr = (lambda qb: probs(qb, True, vKeep[qb], False)) if last else (lambda qb: probs(qb, True))
        p("s_barrier")
        stamp(p, "a")
        rd = [f"ds_read_b128 {a4(FA(0, ks*2+kb))}, v{vKr[ks&1]} offset:{kb*6144+(ks>>1)*128}" for ks in range(6) for kb in range(2)]
        G = Gaps([f"{M16} {v4(SS(kb, qb))}, {a4(FA(0, ks*2+kb))}, {a4(QF(ks, qb))}, {'0' if ks == 0 else v4(SS(kb, qb))}"
                  for qb in range(3) for ks in range(6) for kb in range(2)])
        p.ext(rd[:7])
        G.mems(rd[7:], 0, 5)
        G.put(5, [f"s_add_u32 {sRd}, {sRd}, {2*SLOT}", f"s_cmp_ge_u32 {sRd}, {6*SLOT}"])
        G.put(6, [f"s_cselect_b32 {sRd}, 0, {sRd}", f"s_cselect_b32 {sDK}, {-4*SLOT & 0xffffffff}, {sT2}"])
        G.put(8, f"v_add_u32 v{vKr[0]}, {sDK}, v{vKr[0]}"); G.put(9, f"v_add_u32 v{vKr[1]}, {sDK}, v{vKr[1]}")
        G.vm(dmas[:4], [8, 14, 22, 30])
        G.spread(pr(0), 14, 25); G.spread(pr(1), 26, 36)
        p.ext(G.out())
        p.ext(weave(pr(2), dmas[4:] + advs, 2, 26))
        if OPT["lazy"]: p(f"v_cmp_lt_f32 vcc, {sThr}, v{vMx[0]}\ns_cbranch_vccnz L_slow")
        else: p("s_branch L_slow")
        p(f"L_ret{ret}:")
        for qb in range(3): p(f"v_add_f32 v{vL[qb]}, v{vL[qb]}, v{vTm[qb]}")
    def pv_mfmas(): return [f"{M16} {v4(ACC(t, qb))}, {a4(FA(1, t))}, {v4(PP(qb))}, {v4(ACC(t, qb))}" for t in range(12) for qb in range(3)]
    def vstep(dmas, advs, tail=[]):
        p("s_barrier")
        stamp(p, "a")
        rd = reads_t(lambda t: FA(1, t))
        p.ext(rd[:6])
        G = Gaps(pv_mfmas())
        G.vm(dmas, [3, 8, 13, 18, 23, 28])
        G.mems(rd[6:], 0, 23)
        for k in range(4): G.put(24 + k, f"v_add_u32 v{vVr[k]}, {sDK}, v{vVr[k]}")
        for k, a in enumerate(advs): G.put(30 + k, a)
        G.put(33, tail)
        p.ext(G.out())
    def dynwait(n, tag):
        p(f"s_add_u32 {sT0}, {sSk}, {n}\ns_cmp_le_u32 {sI}, {sT0}\ns_waitcnt vmcnt(24)\ns_cbranch_scc1 L_dw{tag}\ns_waitcnt vmcnt(12)\nL_dw{tag}:")
    p(f"s_mov_b32 {sT2}, {2*SLOT}")
    def windowed(g, n=OPT["win"]): return [x[:-1] + [f"s_waitcnt vmcnt({n})", x[-1]] for x in g] if n else g
    D = OPT["dist"]
    nxt_it = [f"s_add_u32 {sI}, {sI}, 1", f"s_cmp_lg_u32 {sI}, {OPT['codeit']}"]
    p("L_a:")
    if D == 3:
        p(f"s_cmp_eq_u32 {sI}, {sSk}\ns_cselect_b32 {sDV}, 0, 12288\ns_cselect_b32 s{sK+2}, 0, 393216\ns_cselect_b32 s{sV+2}, 0, 393216")
        dynwait(2, "k")
        kstep(windowed(dma_v()), adv_v(sDV), 0)
        p(f"s_cmp_eq_u32 {sI}, 14\ns_cbranch_scc1 L_ae")
        dynwait(1, "v")
        vstep(windowed(dma_k()), adv_k(sDV), nxt_it)
    elif D == 5:
        p("s_waitcnt vmcnt(24)")
        kstep(windowed(dma_v()), adv_v(), 0)
        p(f"s_cmp_eq_u32 {sI}, 13\ns_cbranch_scc1 L_ae\ns_waitcnt vmcnt(24)")
        vstep(windowed(dma_k()), adv_k(), nxt_it)
    else:
        p(f"s_cmp_eq_u32 {sI}, 14\ns_cbranch_scc1 L_ae\ns_waitcnt vmcnt(18)")
        kstep(windowed(dma_k()), adv_k(), 0)
        p("s_waitcnt vmcnt(18)")
        vstep(windowed(dma_v()), adv_v(), nxt_it)
    p("s_cbranch_scc1 L_a")
    if OPT["code"] & 2: p(f"global_load_dword v{vCd}, v{vCo}, s[26:27]")
    p("s_branch L_a")
    p("L_slow:")
    p.ext(slow_path())
    p(f"s_cmp_eq_u32 {sRet}, 0\ns_cbranch_scc1 L_ret0")
    if D != 3: p(f"s_cmp_eq_u32 {sRet}, 2\ns_cbranch_scc1 L_ret2")
    if OPT["fn"]:
        for qb in range(3): p.ext(probs(qb, False, vKeep[qb], False))
    p("s_branch L_ret1")
    p("L_ae:")
    stamp(p)
    vm = VM([f"t{t}" for t in range(32 - D, 32) for _ in range(6)])
    def w3touch():
        p(f"s_lshr_b32 {sT0}, {sB}, 1\ns_lshl_b32 {sT0}, {sT0}, 2\ns_add_u32 {sT0}, {sT0}, {sW}\ns_mul_i32 {sT0}, {sT0}, {6*1280}")
        p(f"s_and_b32 {sT1}, {sB}, 1\ns_lshl_b32 {sT1}, {sT1}, 8\ns_add_u32 {sT0}, {sT0}, {sT1}\ns_add_u32 {sT0}, {sT0}, {3*96*1280+3*256}")
        p(f"v_min_u32 {t0}, 11, {l}\nv_lshrrev_b32 {t1}, 1, {t0}\nv_and_b32 {t0}, 1, {t0}\nv_mul_u32_u24 {t1}, 1280, {t1}\nv_lshl_add_u32 {t0}, {t0}, 7, {t1}")
        p(f"buffer_load_dword v{vCd}, {t0}, {srd(sWO)}, {sT0} offen"); vm.issue("touch")
    if OPT["w3"] and not OPT["tl"]: w3touch()
    nw = 0
    for t in range(32 - D, 31):
        p(vm.wait(f"t{t}"))
        g = []
        if nw < 3:
            vm.issue(f"w{nw}", 6); g = windowed(dma_wo(nw, nw), OPT["wwin"]); nw += 1
        if t & 1: vstep(g, [])
        else:
            r = 1 if t == 30 else 2
            p(f"s_mov_b32 {sRet}, {r}\ns_mov_b32 {sT2}, {2*SLOT}"); kstep(g, [], r)
    if OPT["w3"] and OPT["tl"]: w3touch()
    if OPT["fn"]:
        p.ext(xlane(vL, "v_add_f32", vTm))
        for qb in range(3): p(f"v_rcp_f32 v{vAl[qb]}, v{vL[qb]}")
        for qb in range(3):
            y = vKeep[qb]
            for r in y: p(f"v_mul_f32 v{r}, v{vAl[qb]}, v{r}")
            for i in range(4): p(f"v_cvt_pk_bf16_f32 v{PP(qb)+i}, v{y[2*i]}, v{y[2*i+1]}")
    else:
        p.ext(xlane(vL, "v_add_f32"))
        for qb in range(3): p(f"v_rcp_f32 v{vAl[qb]}, v{vL[qb]}\nv_log_f32 v{vTm[qb]}, v{vL[qb]}")
        for qb in range(3): p(f"v_add_f32 v{vMc[qb]}, v{vMc[qb]}, v{vTm[qb]}")
        for qb in range(3): p.ext([x for x in probs(qb, False) if not x.startswith("v_add")])
    p.ext(rescale())
    p(f"s_mul_i32 {sT0}, {sG}, {16*PART}"); mk(sPG, pWS, sT0, 16 * PART)
    mk(sOUT, pOUT, 0, 1966080)
    p(vm.wait("t31")); p("s_barrier")
    stamp(p)
    AB = [144, 96]
    def AF(sig, tp, nu): return AB[sig & 1] + 8 * tp + 4 * nu
    def reads_wo(sig, slot):
        g = []
        for tp in range(3):
            for nu in range(2):
                r = AF(sig, tp, nu); o = (slot & 1) * SLOT + 32 * tp * 256
                g.append(f"ds_read_b64_tr_b16 v[{r}:{r+1}], v{vOr[nu][slot>>1]} offset:{o}")
                g.append(f"ds_read_b64_tr_b16 v[{r+2}:{r+3}], v{vOr[nu][slot>>1]} offset:{o+4096}")
        return g
    def o_out(tp):
        g = []
        for qb in range(3):
            a, b = ACC(2 * tp, qb), ACC(2 * tp + 1, qb)
            g += [f"v_cvt_pk_bf16_f32 v{a}, v{a}, v{a+1}", f"v_cvt_pk_bf16_f32 v{a+1}, v{a+2}, v{a+3}",
                  f"v_cvt_pk_bf16_f32 v{a+2}, v{b}, v{b+1}", f"v_cvt_pk_bf16_f32 v{a+3}, v{b+2}, v{b+3}",
                  f"ds_write_b128 v{vOw}, {v4(a)} offset:{tp*12288+qb*1024}"]
        return g
    rd = reads_t(lambda t: FA(1, t))
    p.ext(rd[:10])
    G = Gaps(pv_mfmas())
    G.mems(rd[10:], 0, 10)
    if nw < 3 and not OPT["w2l"]:
        vm.issue("w2", 6)
        G.vm(dma_wo(2, 2), [3, 9, 15, 21, 27, 33])
    for tp in range(4): G.spread(o_out(tp), 10 + 6 * tp, 16 + 6 * tp + (2 if tp == 3 else 0))
    p.ext(G.out())
    p(vm.wait("w0")); p("s_barrier")
    if nw < 3 and OPT["w2l"]:
        vm.issue("w2", 6)
        p.ext(weave2(o_out(4) + o_out(5), [(reads_wo(0, 0), 0, 30), (dma_wo(2, 2), 2, 30)]))
    else: p.ext(weave(o_out(4) + o_out(5), reads_wo(0, 0)))
    def BF(kq, tp, q):
        f = (kq * 3 + tp) * 6 + q
        return a4(4 * f) if f < 64 else v4(168 + 4 * (f - 64))
    def reads_b(k): return [f"ds_read_b128 {BF(k//3, k%3, q)}, v{vBr[k//3]} offset:{(k%3)*12288+q*1024}" for q in range(6)] if k < 12 else []
    def OA(ci, q, nu): return 48 * (ci & 1) + 8 * q + 4 * nu
    def out1(ci, q):
        r = 120 + 4 * q; a = OA(ci, q, 0)
        g = [f"v_cvt_pk_bf16_f32 v{r+i}, v{a+2*i}, v{a+2*i+1}" for i in range(4)]
        if q == 0: g = [f"s_mul_i32 {sT0}, {sCo[ci]}, 96"] + g
        return g + [f"buffer_store_dwordx4 {v4(r)}, v{vPs[q//3]}, {srd(sP)}, {sT0} offen offset:{1024*(q%3)} {OPT['pst']}"]
    slot_of = {0: 0, 1: 1, 2: 2}
    free = []; nxt = 3; pend = []
    def sched(ci, kq):
        if OPT["spread"] == 2: return [[0, 1, 2, 3, 4, 5], [], [], []][kq]
        if OPT["spread"] == 3: return [[], [0, 1, 2, 3, 4, 5], [], []][kq] if ci < 4 else [[0, 1, 2, 3, 4, 5], [], [], []][kq]
        if ci == 4 or OPT["spread"] == 0: return [[0, 1, 2], [3, 4, 5], [], []][kq]
        return [[0, 1], [2], [3, 4], [5]][kq]
    for sig in range(20):
        ci, kq = divmod(sig, 4)
        force = {9: 1, 13: 2, 17: 3, 19: 4}.get(sig, 0) if sig >= OPT["pubfrom"] else 0
        assert not any(t == sig + 1 for t, _ in pend)
        mid = sig == 0 and OPT["mid"]
        if mid: p("s_waitcnt lgkmcnt(0)\ns_barrier")
        elif sig < 19 or force:
            p(vm.wait(f"w{sig+1}", f"st{force-1}") + " lgkmcnt(0)"); p("s_barrier")
        if sig == 0: stamp(p)
        elif kq == 0 and "c" in OPT["fine"]: stamp(p)
        else: stamp(p, "o")
        G = Gaps([f"{M16} {v4(OA(ci, q, nu))}, {v4(AF(sig, tp, nu))}, {BF(kq, tp, q)}, " + ("0" if kq == 0 and tp == 0 else v4(OA(ci, q, nu)))
                  for tp in range(3) for q in range(6) for nu in range(2)])
        if sig == 0: p.ext(reads_b(0))
        free.append(slot_of[sig])
        if sig == 4: free += [3, 4, 5]
        while free and nxt < 20 and nxt - sig <= OPT["dmax"] + 1:
            slot_of[nxt] = free.pop(0); pend += [(nxt, g) for g in dma_wo(nxt, slot_of[nxt])]; nxt += 1
        ops = []
        if force: ops.append(("fl", [f"v_mov_b32 v{vFv}, {force}", f"buffer_store_dword v{vFv}, v{vF4}, {srd(sFL)}, 0 offen sc1"]))
        if sig == 0: ops.append(("init", [f"buffer_load_dword v{vIn}, off, {srd(sDG)}, 0 sc1"]))
        sts = [out1(ci - 1, q) for q in sched(ci, kq)] if ci > 0 else []
        nd = min(len(pend), 9 - len(ops) - len(sts))
        ops += [(f"w{t}", g) for t, g in pend[:nd]]; pend = pend[nd:]
        n = len(ops) + len(sts)
        slots = DS9 if n > 7 else [1 + 5 * k for k in range(7)]
        if not ops: slots = slots[1:]
        G.vm([g for _, g in ops], slots)
        for k, (t, _) in enumerate(ops):
            if mid and slots[k] > 18 and not vm.done("w1"): G.put(18, [vm.wait("w1"), "s_barrier"])
            vm.issue(t)
        for k, g in enumerate(sts):
            at = slots[len(ops) + k]
            G.spread(g[:-1], at - 4, at); G.put(at, g[-1]); vm.issue(f"st{ci-1}")
        ra = reads_wo(sig + 1, slot_of[sig + 1]) if sig < 19 else []
        if mid:
            G.mems(reads_b(1) + reads_b(2) + reads_b(3)[:2], 0, 19); G.mems(ra + reads_b(3)[2:], 19, 33)
        elif sig < 4:
            for tp in range(3): G.mems(reads_b(3 * sig + tp + 1) + ra[4*tp:4*tp+4], 12 * tp, 12 * tp + (12 if tp < 2 else 8))
        else: G.mems(ra, 0, 30)
        p.ext(G.out())
        if sig == 8:
            assert vm.done("init")
            p("s_waitcnt lgkmcnt(0)")
            p(f"s_mov_b32 {sCnt}, 0")
            p("L_i0:")
            p(f"v_readfirstlane_b32 {sT1}, v{vIn}\ns_cmp_eq_u32 {sT1}, 1\ns_cbranch_scc1 L_i1")
            p(f"buffer_load_dword v{vIn}, off, {srd(sDG)}, 0 sc1\ns_add_u32 {sCnt}, {sCnt}, 1\ns_cmp_lt_u32 {sCnt}, 100000\ns_waitcnt vmcnt(0)\ns_cbranch_scc1 L_i0")
            p("L_i1:")
        if sig == 18:
            p(f"buffer_load_dword v{vIn}, v{vFo}, {srd(sFG)}, 0 offen sc1"); vm.issue("poll")
            p(f"s_mul_i32 {sNeed}, {sHP}, 86\ns_lshr_b32 {sNeed}, {sNeed}, 8\ns_mul_i32 {sT1}, {sNeed}, 3\ns_sub_u32 {sT1}, {sHP}, {sT1}")
            p(f"s_add_u32 {sCur}, {sNeed}, {sCrot}\ns_cmp_ge_u32 {sCur}, 5\ns_cselect_b32 {sT3}, 5, 0\ns_sub_u32 {sCur}, {sCur}, {sT3}")
            p(f"s_mul_i32 {sT3}, {sCur}, 24576\ns_lshl_b32 {sPrev}, {sT1}, 11\ns_add_u32 {sT3}, {sT3}, {sPrev}\nv_add_u32 v{vBr[0]}, {sT3}, v{vPs[0]}")
            p(f"s_mul_i32 {sOo}, {sB}, 96\ns_lshl_b32 {sT1}, {sT1}, 5\ns_add_u32 {sOo}, {sOo}, {sT1}\ns_mul_i32 {sOo}, {sOo}, 2560")
            p(f"s_mul_i32 {sT1}, {sBR}, 1280\ns_add_u32 {sOo}, {sOo}, {sT1}\ns_lshl_b32 {sT1}, {sCur}, 8\ns_add_u32 {sOo}, {sOo}, {sT1}\ns_lshl_b32 {sT1}, {sW}, 6\ns_add_u32 {sOo}, {sOo}, {sT1}")
            p(f"v_and_b32 {t0}, 15, {l}\nv_mul_u32_u24 {t0}, 2560, {t0}\nv_and_b32 {t1}, 48, {l}\nv_add_u32 v{vBr[1]}, {t0}, {t1}")
            p(f"s_add_u32 {sNeed}, {sNeed}, 1\ns_cmp_eq_u32 {sHP}, 15\ns_cselect_b32 {sTodo}, 0, 15\ns_mov_b32 {sPrev}, -1\ns_mov_b32 {sFirst}, 1\ns_mov_b32 {sCnt}, 0")
    for q in range(6):
        p.ext(out1(4, q)); vm.issue("st4")
    stamp(p)
    p(vm.wait("poll"))
    DR = lambda G: 32 * G
    p(f"v_mov_b32 v{vFv}, 5")
    p("L_r0:")
    p(f"v_cmp_le_u32 vcc, {sNeed}, v{vIn}")
    p(f"s_lshr_b32 {sT0}, vcc_lo, 1\ns_and_b32 {sT0}, {sT0}, vcc_lo\ns_lshr_b32 {sT1}, {sT0}, 2\ns_and_b32 {sT0}, {sT0}, {sT1}\ns_and_b32 {sT0}, {sT0}, 0x1111")
    p(f"s_mul_i32 {sT0}, {sT0}, 0x249\ns_bfe_u32 {sReady}, {sT0}, 0x40009")
    p("L_r:")
    p(f"s_and_b32 {sT0}, {sReady}, {sTodo} ; scc-ok\ns_ff1_i32_b32 {sCur}, {sT0}\ns_cbranch_scc0 L_rp")
    p(f"s_bitset0_b32 {sTodo}, {sCur}")
    for G in range(4):
        if G < 3: p(f"s_cmp_lg_u32 {sCur}, {G}\ns_cbranch_scc1 L_ri{G+1}")
        for h in range(4):
            p(f"s_mov_b32 {sT0}, {(4*G+h)*PART}")
            for j in range(2):
                p(f"buffer_load_dwordx4 {v4(DR(G)+8*h+4*j)}, v{vBr[0]}, {srd(sPG)}, {sT0} offen offset:{1024*j} {OPT['pld']}")
        if G < 3: p(f"s_branch L_rw\nL_ri{G+1}:")
    p("L_rw:\ns_waitcnt vmcnt(8)\ns_branch L_rs")
    p("L_rp:")
    p(f"buffer_load_dword v{vIn}, v{vFo}, {srd(sFG)}, 0 offen sc1\ns_waitcnt vmcnt(1)")
    p("L_rs:")
    p(f"s_cmp_eq_u32 {sFirst}, 0\ns_cbranch_scc1 L_rs0")
    p(f"s_barrier\nbuffer_store_dword v{vFv}, v{vF4}, {srd(sFL)}, 0 offen sc1\ns_mov_b32 {sFirst}, 0")
    for G in range(4):
        p(f"L_rs{G}:\ns_cmp_lg_u32 {sPrev}, {G}\ns_cbranch_scc1 L_rs{G+1}")
        for h in range(4):
            for i in range(8):
                r = DR(G) + 8 * h + i; d = 128 + 16 * G + 2 * i; u = 192 + 2 * (i & 1)
                if h == 0: p(f"v_lshlrev_b32 v{d}, 16, v{r}\nv_and_b32 v{d+1}, 0xffff0000, v{r}")
                else: p(f"v_lshlrev_b32 v{u}, 16, v{r}\nv_and_b32 v{u+1}, 0xffff0000, v{r}\nv_pk_add_f32 v[{d}:{d+1}], v[{d}:{d+1}], v[{u}:{u+1}]")
    p("L_rs4:")
    p(f"s_mov_b32 {sPrev}, {sCur}\ns_cmp_ge_i32 {sCur}, 0\ns_cbranch_scc1 L_r")
    p(f"s_cmp_eq_u32 {sTodo}, 0\ns_cbranch_scc1 L_rd")
    p(f"s_add_u32 {sCnt}, {sCnt}, 1\ns_cmp_lt_u32 {sCnt}, 100000\ns_waitcnt vmcnt(0)\ns_cbranch_scc1 L_r0")
    p("L_rd:")
    stamp(p)
    p(f"s_cmp_eq_u32 {sHP}, 15\ns_cbranch_scc1 L_fin")
    for a, b in ((128, 144), (160, 176), (128, 160)):
        for i in range(8): p(f"v_pk_add_f32 v[{a+2*i}:{a+2*i+1}], v[{a+2*i}:{a+2*i+1}], v[{b+2*i}:{b+2*i+1}]")
    for i in range(8): p(f"v_cvt_pk_bf16_f32 v{i}, v{128+2*i}, v{129+2*i}")
    for op in ("v_permlane32_swap_b32", "v_permlane16_swap_b32"):
        for r in (0, 4): p(f"{op} v{r}, v{r+2}\n{op} v{r+1}, v{r+3}")
    p(f"s_add_u32 {sT0}, {sOo}, 40960")
    p(f"buffer_store_dwordx4 v[0:3], v{vBr[1]}, {srd(sOUT)}, {sOo} offen {OPT['ost']}\nbuffer_store_dwordx4 v[4:7], v{vBr[1]}, {srd(sOUT)}, {sT0} offen {OPT['ost']}")
    p("L_fin:")
    if OPT["stamps"]:
        p("s_waitcnt vmcnt(0)")
        stamp(p)
        p(f"s_lshl_b32 {sT0}, s2, 2\ns_add_u32 {sT0}, {sT0}, {sW}\ns_lshl_b32 {sT0}, {sT0}, 9\ns_add_u32 {sT0}, {sT0}, {STAMP_OFF}")
        p(f"v_lshlrev_b32 v0, 2, v{vLn}\nv_add_u32 v0, {sT0}, v0")
        p(f"global_store_dword v0, v255, s[{pWS}:{pWS+1}]\nglobal_store_dword v0, v254, s[{pWS}:{pWS+1}] offset:256")
    p("L_exit:\ns_endpgm")
    d = OPT["drop"]
    def keep(i):
        if "m" in d and i.kind == "mfma": return False
        if "w" in d and i.lds_dma and i.src & {("s", sWQ), ("s", sX), ("s", sWO)}: return False
        if "r" in d and i.kind == "ds": return False
        if "s" in d and i.wide_store: return False
        return True
    p.auto_lgkm(); p.auto_nop(); p.lint_scc()
    p.ins = [i if keep(i) else Ins("s_nop 0") for i in p.ins]
    return p

def build():
    ref = open(f"cdna_kernels/{NAME}.s.ref").read().split("\n")
    head = [l for l in ref if l.startswith(";") and "@launch" not in l]
    out = "\n".join(head) + "\n"
    out += f"; @launch grid=(256,1,1) block=(256,1,1) lds={LDS_BYTES}\n"
    out += '.amdgcn_target "amdgcn-amd-amdhsa--gfx950"\n.text\n'
    nm = NAME + "_kernel"
    out += f".globl {nm}\n.p2align 8\n.type {nm},@function\n" + kernel().text()
    out += f""".section .rodata,"a"
.p2align 6
.amdhsa_kernel {nm}
  .amdhsa_next_free_vgpr 512
  .amdhsa_next_free_sgpr 102
  .amdhsa_accum_offset 256
  .amdhsa_group_segment_fixed_size 0
  .amdhsa_kernarg_size 104
  .amdhsa_user_sgpr_count 2
  .amdhsa_user_sgpr_kernarg_segment_ptr 1
  .amdhsa_system_sgpr_workgroup_id_x 1
  .amdhsa_float_denorm_mode_32 3
.end_amdhsa_kernel
"""
    return out

if __name__ == "__main__":
    txt = build()
    open(sys.argv[1], "w").write(txt)
```

```python
import sys, struct, math
from asmlib import *

NAME = "concat_heads__gqa_block_cached__mha_block_cached__near_ridge"
OPT = dict(stamps=0, fw=128, fs=7, fine="", drop="", kv="nt", wq="", x="", wo="", pst="sc1", pld="sc1", kburst=1, vburst=5, spread=2, dmax=3, pubfrom=99, code=1, codeit=10, ost="", thr=0x41000000, skip0=2, skipn=8, lazy=1, wotouch=99, wotn=3, epoch=1, w3=1, touch="", tfl="", win=5, kst="01", vst="56", dynq=1, eps="55", pre=1, delay=0, tst="", tt="7", dist=3, wwin=0, tl=1, mid=0, fn=1, w2l=0, pub4=18, r0=20, mode=3, slp=0, tk=2, ntk=3, early=1, wnr=6, win2=0, fair=0, wbig=7, fth=6, fper=1, ann=1, ws="4,8,12,16", pubs="8,12,16", cap=9, bfree=4)
for a in sys.argv[2:]:
    k, v = a.split("=", 1)
    assert k in OPT, k
    OPT[k] = int(v) if v.lstrip("-").isdigit() else v

SLOT = 24576
S = [i * SLOT for i in range(6)]
LDS_BYTES = 6 * SLOT
PART = 122880
FLAG_OFF = 32 << 20
STAMP_OFF = 64 << 20

sX, sWQ, sK, sV, sWO, sP = 28, 32, 36, 40, 44, 48
sFL, sFG, sFA, sDG = 4, 8, 12, 16
sPG, sOUT = 28, 32
pOUT, pDBG, pWS = 20, 22, 24
def srd(b): return f"s[{b}:{b+3}]"
sW, sB, sHP, sBR, sC = "s52", "s53", "s54", "s55", "s56"
sWQo, sWQlim, sXo, sWQm, sXm, sRd, sI = "s57", "s58", "s59", "s60", "s61", "s62", "s63"
sKo, sVo, sKm, sVm, sDK, sDV = "s64", "s65", "s66", "s67", "s68", "s69"
sT0, sT1, sT2, sT3 = "s70", "s71", "s72", "s73"
sW6, sXd, sCrot, sKrot = "s74", "s75", "s76", "s77"
sCo = ["s78", "s79", "s80", "s81", "s82"]
sKq = ["s83", "s84", "s85", "s86"]
sJ, sSk, sG, sRet = "s87", "s88", "s89", "s90"
sThr = "s91"; sKV0 = "s101"; sKb, sVb, sBm = "s3", "s90", "s69"
sE = ["s97", "s58"]; sTb = 98
sNeed, sTodo, sReady, sPrev, sCur, sFirst, sCnt, sOo = "s57", "s58", "s59", "s60", "s61", "s62", "s63", "s64"
sST, sSI = 92, "s96"
def ACC(t, qb): return (t * 3 + qb) * 4
def SS(kb, qb): return 144 + (kb * 3 + qb) * 4
def PP(qb): return 168 + qb * 4
vM = [180, 181, 182]; vL = [183, 184, 185]; vAl = [186, 188, 190]; vMx = [192, 193, 194]; vTm = [195, 196, 197]; vMc = [187, 189, 191]
vKs = list(range(200, 206)); vVs = [206, 207, 208]; vWs = [209, 210, 211]; vXs = [212, 213, 214]; vOs = [215, 216, 217, 218, 219, 220]
vKr = [221, 222]; vVr = [223, 224, 225, 226]; vXr = [227, 228]; vOr = [[229, 230, 231], [232, 233, 234]]; vOw = 235; vBr = [236, 237, 198, 199]; vPs = [238, 239]
vPt = vWs + vXs + vXr
vLn = 240; vFo = 241; vFv = 242; vF4 = 243; vIn = 244; vCo = 245; vCd = 246; T = list(range(248, 254))
def v4(r): return f"v[{r}:{r+3}]"
def a4(r): return f"a[{r}:{r+3}]"
def QF(ks, qb): return (ks * 3 + qb) * 4
def FA(p, t): return 72 + 48 * p + 4 * t
def FB(p, qb): return 168 + 12 * p + 4 * qb

M16 = "v_mfma_f32_16x16x32_bf16"

class VM:
    def __init__(self, q): self.q = list(q)
    def issue(self, tag, n=1): self.q += [tag] * n
    def wait(self, *tags):
        idx = max((k for k, t in enumerate(self.q) if t in tags), default=-1)
        n = len(self.q) - 1 - idx
        self.q = self.q[idx + 1:]
        assert n <= 63
        return f"s_waitcnt vmcnt({n})"
    def done(self, tag): return tag not in self.q

def stamp(p, cls=""):
    if OPT["stamps"] and (not cls or cls in OPT["fine"]):
        p(f"s_memrealtime s[{sST}:{sST+1}]\ns_memtime s[{sST+2}:{sST+3}]\ns_mov_b32 s100, m0\ns_mov_b32 m0, {sSI}\ns_add_u32 {sSI}, {sSI}, 1\ns_waitcnt lgkmcnt(0)")
        p(f"v_writelane_b32 v255, s{sST}, m0\nv_writelane_b32 v254, s{sST+2}, m0\ns_mov_b32 m0, s100")

def dma6(vs, srdb, so, mbase, flags, src_step, six=False):
    def val(dst, x, extra):
        if isinstance(x, tuple): r, imm = x
        else: r, imm = x, 0
        imm += extra
        return f"s_add_u32 {dst}, {r}, {imm}" if imm else f"s_mov_b32 {dst}, {r}"
    g = []
    for j in range(6):
        pre = []
        sreg = so if (j < 3 or src_step == 0) else sT3
        if j % 3 == 0:
            pre = [val("m0", mbase, 3072 * (j // 3))]
            if j == 3 and src_step: pre.append(val(sT3, so, src_step))
        v = vs[j] if six else vs[j % 3]
        g.append(pre + [f"buffer_load_dwordx4 v{v}, {srd(srdb)}, {sreg} offen offset:{1024*(j%3)} {flags} lds"])
    return g
def dma_k(): return dma6(vKs, sK, sKo, sKm, OPT["kv"], 0, six=True)
def dma_v(): return dma6(vVs, sV, sVo, sVm, OPT["kv"], 3072)
def dma_wq(): return dma6(vWs, sWQ, sWQo, sWQm, OPT["wq"], 16 * 12288)
def dma_x():
    g = []
    for j in range(3):
        pre = [f"s_mov_b32 m0, {sXm}"] if j == 0 else []
        g.append(pre + [f"buffer_load_dwordx4 v{vXs[j]}, {srd(sX)}, {sXo} offen offset:{1024*j} {OPT['x']} lds"])
    return g
def dma_wo(sig, slot):
    ci, kq = divmod(sig, 4)
    g = dma6(vOs, sWO, sT2, (sW6, S[slot]), OPT["wo"], 0, six=True)
    g[0] = [g[0][0], f"s_add_u32 {sT2}, {sCo[ci]}, {sKq[kq]}"] + g[0][1:]
    return g
def set_wq(e): return [f"s_mul_i32 {sWQo}, {sXo}, 6144", f"s_add_u32 {sWQo}, {sWQo}, {sE[e]}"]
def adv_wqm(): return [f"s_add_u32 {sWQm}, {sWQm}, {SLOT}", f"s_cmp_ge_u32 {sWQm}, {3*SLOT}", f"s_cselect_b32 {sWQm}, {sW6}, {sWQm}"]
def next_pair():
    return [[f"s_lshr_b64 s[{sTb}:{sTb+1}], s[{sTb}:{sTb+1}], 4", f"s_and_b32 {sXo}, s{sTb}, 15", f"s_lshl_b32 {sXo}, {sXo}, 7"]]
def flip_x(): return [f"s_xor_b32 {sXm}, {sXm}, {sXd}"]
def adv_kv(so, sm, step="12288"):
    if step == "12288": a = [f"s_add_u32 {so}, {so}, 12288", f"s_add_u32 {sm}, {sm}, {2*SLOT}"]
    else: a = [f"s_add_u32 {so}, {so}, {step}", f"s_lshl2_add_u32 {sm}, {step}, {sm}"]
    return [a, [f"s_cmp_ge_u32 {sm}, {6*SLOT}", f"s_cselect_b32 {sT0}, {6*SLOT}, 0", f"s_sub_u32 {sm}, {sm}, {sT0}"]]
def adv_k(step="12288"): return adv_kv(sKo, sKm, step)
def adv_v(step="12288"): return adv_kv(sVo, sVm, step)
def flat(g): return [x for y in g for x in ([y] if isinstance(y, str) else y)]

def reads_t(dstf, n=12):
    g = []
    for t in range(n):
        r = dstf(t); o = (t >> 2) * 128
        g.append(f"ds_read_b64_tr_b16 a[{r}:{r+1}], v{vVr[t&3]} offset:{o}")
        g.append(f"ds_read_b64_tr_b16 a[{r+2}:{r+3}], v{vVr[t&3]} offset:{o+6144}")
    return g
def reads_x(p, e): return [f"ds_read_b128 {a4(FB(p, qb))}, v{vXr[e]} offset:{qb*2048}" for qb in range(3)]
def adv_rd_wq():
    return [[f"s_add_u32 {sRd}, {sRd}, 1", f"s_cmp_ge_u32 {sRd}, 3", f"s_cselect_b32 {sRd}, 0, {sRd}",
             f"s_cselect_b32 {sT1}, {-2*SLOT & 0xffffffff}, {sT2}"]] + [f"v_add_u32 v{r}, {sT1}, v{r}" for r in vVr]

def kernel():
    p = Prog()
    p(f"{NAME}_kernel:")
    p("s_cmp_ge_u32 s2, 256\ns_cbranch_scc1 L_exit")
    p("s_bfe_u32 s55, s2, 0x10002\ns_mul_i32 s3, s55, 40")
    p("s_load_dwordx8 s[4:11], s[0:1], s3\ns_add_u32 s3, s3, 32\ns_load_dwordx2 s[12:13], s[0:1], s3")
    p(f"s_load_dwordx4 s[{pOUT}:{pOUT+3}], s[0:1], 80\ns_load_dwordx2 s[{pWS}:{pWS+1}], s[0:1], 96")
    if OPT["stamps"]: p(f"v_mov_b32 v255, 0\nv_mov_b32 v254, 0\ns_mov_b32 {sSI}, 0")
    l = f"v{vLn}"
    t0, t1, t2, t3, t4 = (f"v{r}" for r in T[:5])
    p(f"v_lshrrev_b32 {t0}, 6, v0\nv_and_b32 {l}, 63, v0")
    p(f"s_and_b32 {sT0}, s2, 3\ns_bfe_u32 {sB}, s2, 0x30003\ns_lshr_b32 {sJ}, s2, 6")
    p(f"v_readfirstlane_b32 {sW}, {t0}")
    p(f"s_lshl_b32 {sHP}, {sT0}, 2\ns_add_u32 {sHP}, {sHP}, {sJ}")
    if OPT["code"]:
        p("s_getpc_b64 s[26:27]\nL_pc:")
        p(f"s_sub_u32 s26, s26, L_pc-{NAME}_kernel\ns_subb_u32 s27, s27, 0")
        p(f"s_lshr_b32 {sT1}, s2, 3\ns_lshl_b32 {sT1}, {sT1}, 2\ns_add_u32 {sT1}, {sT1}, {sW}\ns_mul_i32 {sT1}, {sT1}, 384")
        p(f"v_and_b32 v{vCo}, 3, {l}\nv_lshlrev_b32 v{vCo}, 7, v{vCo}\nv_add_u32 v{vCo}, {sT1}, v{vCo}\nv_min_u32 v{vCo}, L_exit-{NAME}_kernel, v{vCo}")
        if OPT["code"] & 1: p(f"global_load_dword v{vCd}, v{vCo}, s[26:27]")
    p(f"s_lshr_b32 {sCrot}, {sB}, 1\ns_and_b32 {sKrot}, {sB}, 1\ns_add_u32 {sT1}, {sCrot}, {sJ}")
    p(f"s_mov_b64 s[{sTb}:{sTb+1}], 0")
    e0 = 0
    for n in (int(c) for c in str(OPT["eps"])):
        seq = [e0 + k % n for k in range(16)]
        lo = sum(v << (4 * k) for k, v in enumerate(seq[:8])); hi = sum(v << (4 * k) for k, v in enumerate(seq[8:]))
        if n == 5: p(f"s_cmp_eq_u32 {sB}, 7\ns_addc_u32 {sT0}, {sT1}, 0 ; carry-ok\ns_lshl_b32 {sT0}, {sT0}, 2")
        else: p(f"s_lshl_b32 {sT0}, {sT1}, 2")
        p(f"s_mov_b32 s72, {lo:#x}\ns_mov_b32 s73, {hi:#x}\ns_lshr_b64 s[72:73], s[72:73], {sT0}\ns_and_b32 s72, s72, {(1 << (4 * n)) - 1:#x}\ns_mov_b32 s73, 0")
        p(f"s_lshl_b64 s[72:73], s[72:73], {4*e0}\ns_or_b64 s[{sTb}:{sTb+1}], s[{sTb}:{sTb+1}], s[72:73]")
        e0 += n
    assert e0 == 10
    p(f"s_and_b32 {sXo}, s{sTb}, 15\ns_lshl_b32 {sXo}, {sXo}, 7\ns_mul_i32 {sW6}, {sW}, 6144")
    p(f"s_and_b32 {sT1}, {sW}, 1\ns_lshr_b32 {sT2}, {sW}, 1")
    p(f"s_mul_i32 {sT0}, {sT1}, {4*12288}\ns_mul_i32 {sT3}, {sT2}, 384\ns_add_u32 {sT0}, {sT0}, {sT3}")
    p(f"s_mul_i32 {sE[0]}, {sKrot}, {32*12288}\ns_sub_u32 {sE[1]}, {32*12288}, {sE[0]}\ns_add_u32 {sE[0]}, {sE[0]}, {sT0}\ns_add_u32 {sE[1]}, {sE[1]}, {sT0}")
    p.ext(set_wq(0))
    p(f"s_add_u32 {sWQm}, {sW6}, {S[1]}")
    p(f"s_mul_i32 {sXm}, {sW}, 3072\ns_add_u32 {sXm}, {sXm}, {S[3]}")
    p(f"s_add_u32 {sXd}, {sXm}, 12288\ns_xor_b32 {sXd}, {sXd}, {sXm}")
    p(f"s_mul_i32 {sT0}, {sW}, 24\nv_lshrrev_b32 {t0}, 3, {l}\nv_add_u32 {t0}, {sT0}, {t0}")
    p(f"v_lshrrev_b32 {t1}, 1, {t0}\nv_xor_b32 {t1}, {t1}, {l}\nv_and_b32 {t1}, 7, {t1}\nv_mul_u32_u24 {t0}, 1280, {t0}")
    p(f"v_lshl_add_u32 v{vXs[0]}, {t1}, 4, {t0}\nv_xor_b32 {t1}, 64, v{vXs[0]}")
    p(f"v_add_u32 v{vXs[1]}, {10240-1024}, {t1}\nv_add_u32 v{vXs[2]}, {2*(10240-1024)}, v{vXs[0]}")
    def rowof(j): p(f"v_add_u32 {t0}, {64*j}, {l}\nv_mul_u32_u24 {t1}, 2731, {t0}\nv_lshrrev_b32 {t1}, 16, {t1}")
    for j in range(3):
        rowof(j)
        p(f"v_and_b32 {t2}, 6, {t1}\nv_xor_b32 {t3}, {t2}, {l}\nv_lshlrev_b32 v{vVs[j]}, 4, {t3}")
        p(f"v_and_b32 {t2}, 12, {t1}\nv_add_u32 {t2}, {t2}, {t1}\nv_mul_u32_u24 {t2}, 12288, {t2}")
        p(f"v_mul_u32_u24 {t3}, 384, {t1}\nv_sub_u32 {t2}, {t2}, {t3}\nv_add_u32 v{vWs[j]}, {t2}, v{vVs[j]}")
    p("s_waitcnt lgkmcnt(0)")
    stamp(p)
    if OPT["delay"]:
        p(f"s_bitcmp0_b32 {sB}, 0\ns_cbranch_scc1 L_nd")
        for _ in range(OPT["delay"]): p("s_sleep 37")
        p("L_nd:")
    def mk(b, ptr, off_s, size):
        p(f"s_add_u32 s{b}, s{ptr}, {off_s}\ns_addc_u32 s{b+1}, s{ptr+1}, 0\ns_and_b32 s{b+1}, s{b+1}, 0xffff")
        p(f"s_mov_b32 s{b+2}, {size}\ns_mov_b32 s{b+3}, 0x20000")
    p(f"s_mul_i32 {sT0}, {sB}, 122880"); mk(sX, 4, sT0, 122880)
    p.ext(flat(dma_x()))
    p(f"s_mul_i32 {sT0}, {sHP}, 768"); mk(sWQ, 10, sT0, 639 * 12288 + 768)
    p.ext(flat(dma_wq() + [adv_wqm(), set_wq(1), flip_x()]))
    wq1 = dma_wq()
    p.ext(flat(wq1[:3]))
    p(f"s_and_b32 {sT1}, {sW}, 1\ns_lshr_b32 {sT2}, {sW}, 1")
    p(f"s_mul_i32 {sKo}, {sT2}, 196608\ns_mul_i32 {sT3}, {sT1}, 6144\ns_add_u32 {sKo}, {sKo}, {sT3}\ns_mov_b32 {sVo}, {sKo}\ns_mov_b32 {sKV0}, {sKo}")
    p(f"s_add_u32 {sKm}, {sW6}, {S[4]}\ns_add_u32 {sVm}, {sW6}, {S[5]}")
    p(f"s_lshr_b32 {sSk}, s2, 3\ns_and_b32 {sSk}, {sSk}, {OPT['skipn']-1}\ns_add_u32 {sSk}, {sSk}, {OPT['skip0']}\ns_mov_b32 {sThr}, {OPT['thr']}")
    p(f"s_lshl_b32 {sT0}, {sB}, 4\ns_add_u32 {sT0}, {sT0}, {sHP}\ns_mul_i32 {sT3}, {sT0}, 393216")
    mk(sK, 6, sT3, 393216); mk(sV, 8, sT3, 393216)
    p(f"s_mul_i32 {sT3}, {sHP}, 491520"); mk(sWO, 12, sT3, 491520)
    p(f"s_lshl_b32 {sG}, {sBR}, 3\ns_add_u32 {sG}, {sG}, {sB}\ns_lshl_b32 {sT0}, {sG}, 4\ns_add_u32 {sT0}, {sT0}, {sHP}")
    p(f"s_mul_i32 {sT3}, {sT0}, {PART}"); mk(sP, pWS, sT3, PART)
    p(f"s_lshl_b32 {sT3}, {sT0}, {OPT['fs']}\ns_add_u32 {sT3}, {sT3}, {FLAG_OFF}"); mk(sFL, pWS, sT3, OPT["fw"])
    p(f"s_lshl_b32 {sT3}, {sG}, {OPT['fs']+4}\ns_add_u32 {sT3}, {sT3}, {FLAG_OFF}"); mk(sFG, pWS, sT3, 16 << OPT["fs"])
    mk(sFA, pWS, FLAG_OFF, 352 << OPT['fs'])
    mk(sDG, pDBG, 0, OPT['fw'])
    p(f"s_cmp_eq_u32 {sW}, 0\ns_cselect_b32 s{sFL+2}, {OPT['fw']}, 0")
    p(f"v_lshlrev_b32 v{vFo}, {OPT['fs']}, {l}\nv_lshlrev_b32 v{vF4}, 2, {l}")
    c = (192 ** -0.5) * math.log2(math.e)
    p(f"s_mov_b32 {sC}, {struct.unpack('<I', struct.pack('<f', c))[0]:#x}")
    p(f"s_lshr_b32 {sCrot}, {sB}, 1\ns_and_b32 {sKrot}, {sB}, 1\ns_lshl_b32 {sKrot}, {sKrot}, 1")
    p(f"s_cmp_eq_u32 {sB}, 7\ns_cselect_b32 {sCrot}, 4, {sCrot}\ns_cselect_b32 {sKrot}, 0, {sKrot}")
    for ci in range(5):
        p(f"s_add_u32 {sT0}, {sCrot}, {ci}\ns_cmp_ge_u32 {sT0}, 5\ns_cselect_b32 {sT3}, 5, 0\ns_sub_u32 {sT0}, {sT0}, {sT3}\ns_lshl_b32 {sCo[ci]}, {sT0}, 8")
    for kq in range(4):
        p(f"s_xor_b32 {sT0}, {sKrot}, {kq}\ns_mul_i32 {sKq[kq]}, {sT0}, {96*1280}")
    p(f"s_mul_i32 {sT0}, {sT2}, 12288")
    for j in range(6):
        rowof(j)
        p(f"v_bfe_u32 {t2}, {t1}, 1, 3\nv_xor_b32 {t2}, {t2}, {l}\nv_lshlrev_b32 v{vKs[j]}, 4, {t2}")
        if j >= 3: p(f"v_add_u32 v{vKs[j]}, 3072, v{vKs[j]}")
    p(f"v_and_b32 {t0}, 15, {l}\nv_lshrrev_b32 {t1}, 4, {l}\nv_lshrrev_b32 {t2}, 1, {t0}\nv_xor_b32 {t2}, {t2}, {t1}")
    p(f"v_mul_u32_u24 {t3}, 384, {t0}\nv_add_u32 {t3}, {sT0}, {t3}\nv_add_u32 {t3}, {S[4]}, {t3}")
    p(f"v_lshl_add_u32 v{vKr[0]}, {t2}, 4, {t3}\nv_xor_b32 {t4}, 4, {t2}\nv_lshl_add_u32 v{vKr[1]}, {t4}, 4, {t3}")
    p(f"s_mul_i32 {sT3}, {sT1}, {48*128}\ns_add_u32 {sT3}, {sT3}, {S[3]}")
    p(f"v_lshlrev_b32 {t3}, 7, {t0}\nv_add_u32 {t3}, {sT3}, {t3}")
    p(f"v_lshl_add_u32 v{vXr[0]}, {t2}, 4, {t3}")
    p(f"s_and_b32 {sT3}, {sB}, 1\ns_lshl_b32 {sT3}, {sT3}, 6\nv_xor_b32 v{vXr[0]}, {sT3}, v{vXr[0]}")
    p(f"v_xor_b32 v{vXr[1]}, 64, v{vXr[0]}")
    p(f"s_mul_i32 {sT3}, {sW}, 24\nv_lshlrev_b32 {t2}, 1, {t1}\nv_xor_b32 {t2}, {t2}, {t0}\nv_add_u32 {t3}, {sT3}, {t1}")
    p(f"v_mul_u32_u24 {t3}, 1280, {t3}\nv_lshl_add_u32 v{vOs[0]}, {t2}, 4, {t3}\nv_xor_b32 {t2}, 128, v{vOs[0]}")
    for j in range(1, 6):
        p(f"v_add_u32 v{vOs[j]}, {5120*j-1024*(j%3)}, " + (t2 if j & 1 else f"v{vOs[0]}"))
    p(f"v_lshrrev_b32 {t0}, 2, {l}\nv_and_b32 {t1}, 3, {l}\nv_bfe_u32 {t2}, {l}, 3, 2")
    p(f"v_mul_u32_u24 {t3}, 384, {t0}\nv_lshl_add_u32 {t3}, {t1}, 3, {t3}\nv_add_u32 {t3}, {sT0}, {t3}\nv_add_u32 {t3}, {S[1]}, {t3}")
    for dl in range(4):
        p(f"v_xor_b32 {t4}, {dl}, {t2}\nv_lshl_add_u32 v{vVr[dl]}, {t4}, 5, {t3}")
    p(f"v_lshlrev_b32 {t3}, 8, {t0}\nv_lshl_add_u32 {t3}, {t1}, 3, {t3}\nv_and_b32 {t2}, 7, {t0}\ns_lshl_b32 {sT3}, {sW}, 1\nv_xor_b32 {t2}, {sT3}, {t2}")
    p(f"v_lshl_add_u32 v{vOr[0][0]}, {t2}, 5, {t3}\nv_xor_b32 v{vOr[1][0]}, 32, v{vOr[0][0]}")
    for nu in range(2): p(f"v_add_u32 v{vOr[nu][1]}, {S[2]}, v{vOr[nu][0]}\nv_add_u32 v{vOr[nu][2]}, {S[4]}, v{vOr[nu][0]}")
    p(f"v_lshlrev_b32 {t0}, 4, {l}")
    p(f"s_mul_i32 {sT3}, {sW}, 3072\ns_add_u32 {sT3}, {sT3}, {S[3]}\nv_add_u32 v{vOw}, {sT3}, {t0}")
    p(f"s_mul_i32 {sT3}, {sKrot}, 3072\ns_add_u32 {sT3}, {sT3}, {S[3]}\nv_add_u32 v{vBr[0]}, {sT3}, {t0}\nv_add_u32 v{vBr[1]}, 36864, v{vBr[0]}")
    p(f"s_xor_b32 {sT3}, {sKrot}, 2\ns_mul_i32 {sT3}, {sT3}, 3072\ns_add_u32 {sT3}, {sT3}, {S[3]}\nv_add_u32 v{vBr[2]}, {sT3}, {t0}\nv_add_u32 v{vBr[3]}, 36864, v{vBr[2]}")
    p(f"v_add_u32 v{vPs[0]}, {sW6}, {t0}\nv_add_u32 v{vPs[1]}, 3072, v{vPs[0]}")
    for r in range(144): p(f"v_mov_b32 v{r}, 0")
    for qb in range(3): p(f"v_mov_b32 v{vM[qb]}, 0xff7fffff\nv_mov_b32 v{vMc[qb]}, 0xff7fffff\nv_mov_b32 v{vL[qb]}, 0")
    p(f"s_mov_b32 {sRd}, 1\ns_mov_b32 {sT2}, {SLOT}\ns_mov_b32 {sI}, 0\ns_mov_b32 {sDK}, 12288")
    p("s_cmp_lg_u32 s2, 0\ns_cbranch_scc1 L_nc")
    lg = OPT["fw"].bit_length() - 5
    p(f"v_lshrrev_b32 {t0}, {lg}, {l}\nv_lshlrev_b32 {t0}, {OPT['fs']}, {t0}\nv_and_b32 {t1}, {(1 << lg) - 1}, {l}\nv_lshl_add_u32 {t0}, {t1}, 4, {t0}\ns_lshl_b32 {sT0}, {sW}, {OPT['fs']+6}")
    for k in range(1 << lg): p(f"buffer_store_dwordx4 v[0:3], {t0}, {srd(sFA)}, {sT0} offen sc1\ns_add_u32 {sT0}, {sT0}, {(64 >> lg) << OPT['fs']}")
    if OPT["tk"]:
        p(f"s_lshl_b32 {sT0}, {sW}, {OPT['fs']+4}\ns_add_u32 {sT0}, {sT0}, {256 << OPT['fs']}")
        for k in range(2): p(f"buffer_store_dwordx4 v[0:3], {t0}, {srd(sFA)}, {sT0} offen sc1\ns_add_u32 {sT0}, {sT0}, {8 << OPT['fs']}")
    if OPT["fair"]:
        p(f"s_lshl_b32 {sT0}, {sW}, {OPT['fs']+3}\ns_add_u32 {sT0}, {sT0}, {320 << OPT['fs']}\nbuffer_store_dwordx4 v[0:3], {t0}, {srd(sFA)}, {sT0} offen sc1")
    p("L_nc:")
    rd0 = reads_x(0, 0) + reads_t(lambda t: FA(0, t))
    rest = dma_x() + dma_wq() + [adv_wqm(), set_wq(1), flip_x()]
    if OPT["pre"] == 0:
        p("s_waitcnt vmcnt(3)\ns_barrier"); stamp(p)
        p.ext(weave(rd0, wq1[3:] + [adv_wqm(), flat(next_pair()), set_wq(0)] + rest))
    elif OPT["pre"] == 1:
        p.ext(flat(wq1[3:] + [adv_wqm(), flat(next_pair()), set_wq(0)] + rest[:3]))
        p("s_waitcnt vmcnt(9)\ns_barrier"); stamp(p)
        p.ext(weave(rd0, rest[3:]))
    else:
        p.ext(flat(wq1[3:] + [adv_wqm(), flat(next_pair()), set_wq(0)] + rest[:6]))
        p("s_waitcnt vmcnt(12)\ns_barrier"); stamp(p)
        p.ext(weave(rd0, rest[6:]))
    p.ext(flat(adv_rd_wq()))
    p(f"v_add_u32 v{vXr[0]}, {sDK}, v{vXr[0]}")
    DS9 = list(range(0, 36, 4))
    def conv(ks):
        g = []
        R = lambda qb: 144 + 4 * qb + 12 * (ks & 1)
        for qb in range(3):
            a, b, r = ACC(2 * ks, qb), ACC(2 * ks + 1, qb), R(qb)
            g += [f"v_cvt_pk_bf16_f32 v{r}, v{a}, v{a+1}", f"v_cvt_pk_bf16_f32 v{r+1}, v{a+2}, v{a+3}",
                  f"v_cvt_pk_bf16_f32 v{r+2}, v{b}, v{b+1}", f"v_cvt_pk_bf16_f32 v{r+3}, v{b+2}, v{b+3}"]
        for op in ("v_permlane32_swap_b32", "v_permlane16_swap_b32"):
            for qb in range(3): g += [f"{op} v{R(qb)}, v{R(qb)+2}", f"{op} v{R(qb)+1}, v{R(qb)+3}"]
        for qb in range(3): g += [f"v_accvgpr_write_b32 a{QF(ks, qb)+i}, v{R(qb)+i}" for i in range(4)]
        return g
    def qstep(par, wait, dmas, advs, do_reads=True, tail=[], valu=[]):
        if wait: p(wait + " lgkmcnt(0)")
        p("s_barrier")
        stamp(p, "q")
        G = Gaps([f"{M16} {v4(ACC(t, qb))}, {a4(FA(par, t))}, {a4(FB(par, qb))}, {v4(ACC(t, qb))}" for t in range(12) for qb in range(3)])
        slots = DS9 if len(dmas) > 6 else [0, 5, 10, 15, 20, 25]
        G.vm(dmas, slots)
        for k, a in advs: G.put(k, a)
        if do_reads:
            pos = G.mems(reads_x(1 - par, 1 - par) + reads_t(lambda t: FA(1 - par, t)), 0, 32)
            ad = adv_rd_wq()
            G.put(17, ad[0][:2]); G.put(18, ad[0][2:])
            for k in range(4): G.put(pos[3 + 17 + 2 * k] + 1, ad[1 + k])
            if par == 0: G.put(9, f"v_add_u32 v{vXr[1]}, {sDK}, v{vXr[1]}")
            else: G.put(9, [f"s_sub_u32 {sDK}, 0, {sDK}", f"v_add_u32 v{vXr[0]}, {sDK}, v{vXr[0]}"])
        G.spread(valu, 10, 36)
        G.put(34, tail)
        p.ext(G.out())
    def announce():
        p(f"s_or_b32 {sT0}, s2, {sW} ; scc-ok\ns_cbranch_scc1 L_na\nv_mov_b32 v{vFv}, 1\nbuffer_store_dword v{vFv}, v{vF4}, {srd(sDG)}, 0 offen sc1\nL_na:")
    sFo, sFt, sCn2 = "s0", "s1", "s3"
    npr = next_pair()
    def table(dst, digits):
        d = (str(digits) * 8)[:8]
        p(f"s_add_u32 {sT0}, {sB}, {sJ}\ns_and_b32 {sT0}, {sT0}, 7\ns_lshl_b32 {sT0}, {sT0}, 2\ns_lshr_b32 {dst}, {sum((int(c) + 1) << (4 * k) for k, c in enumerate(d)):#x}, {sT0}\ns_and_b32 {dst}, {dst}, 15")
    table(sKb, OPT["kst"]); table(sVb, OPT["vst"])
    p(f"s_mov_b32 {sBm}, 256\ns_bitset1_b32 {sBm}, {sKb}\ns_bitset1_b32 {sBm}, {sVb}")
    TS = list(zip([x for x in str(OPT["tst"]).split(",") if x], [int(x) for x in str(OPT["tt"]).split(",")], ["s87", "s0", "s1"][::-1]))
    for st, _, r in TS:
        table(r, st); p(f"s_bitset1_b32 {sBm}, {r}")
    if TS: p(f"v_and_b32 {t4}, 7, {l}\nv_lshlrev_b32 {t4}, 7, {t4}")
    def qwait(n, tag):
        if not OPT["dynq"]: return f"s_waitcnt vmcnt({n})"
        p(f"s_bitcmp1_b32 {sBm}, {sI}\ns_waitcnt vmcnt({n+6}) lgkmcnt(0)\ns_cbranch_scc1 L_qw{tag}\ns_waitcnt vmcnt({n})\nL_qw{tag}:")
        return None
    p("s_waitcnt lgkmcnt(0)")
    p("L_q:")
    qstep(0, qwait(9, "e"), dma_wq(), [(26, adv_wqm())] + [(27 + k, g) for k, g in enumerate(npr)] + [(33, set_wq(0))])
    qstep(1, qwait(6, "o"), dma_x() + dma_wq(), [(13, flip_x()), (29, adv_wqm()), (33, set_wq(1))],
          tail=[f"s_add_u32 {sI}, {sI}, 1", f"s_bitcmp0_b32 {sBm}, {sI}"])
    p("s_waitcnt lgkmcnt(0)")
    p("s_cbranch_scc1 L_q")
    p(f"s_cmp_lg_u32 {sI}, {sKb}\ns_cbranch_scc1 L_q1")
    if OPT["fair"] or OPT["ann"]: announce()
    p.ext(flat(dma_k() + adv_k()))
    p("L_q1:")
    p(f"s_cmp_lg_u32 {sI}, {sVb}\ns_cbranch_scc1 L_q2")
    p.ext(flat(dma_v() + adv_v()))
    p("L_q2:")
    for k, (_, t, r) in enumerate(TS):
        p(f"s_cmp_lg_u32 {sI}, {r}\ns_cbranch_scc1 L_qt{k}\ns_add_u32 {sT0}, {sKV0}, {12288*(t>>1)}\ns_add_u32 {sT3}, {sT0}, 3072")
        for j in range(6): p(f"buffer_load_dword v{vCd}, {t4}, {srd(sV if t & 1 else sK)}, {sT0 if j < 3 else sT3} offen offset:{1024*(j%3)} {OPT['tfl']}")
        p(f"L_qt{k}:")
    p(f"s_cmp_lt_u32 {sI}, 8\ns_cbranch_scc1 L_q")
    vm = VM(["wq17"] * 6 + ["x9"] * 3 + ["wq18"] * 6)
    kv = lambda a: [(27, a[0]), (29, a[1])]
    w = vm.wait("wq17"); vm.issue("wq19", 6); qstep(0, w, dma_wq(), [])
    if OPT["fair"]: p(f"buffer_load_dword v{vIn}, off, {srd(sDG)}, 0 sc1"); vm.issue("init")
    w = vm.wait("wq18"); vm.issue("t2", 6); qstep(1, w, dma_k(), kv(adv_k()))
    w = vm.wait("wq19"); vm.issue("t3", 6); qstep(0, w, dma_v(), kv(adv_v()))
    c01 = conv(0) + conv(1)[:12]
    if OPT["dist"] == 4: qstep(1, "s_waitcnt", [], [], do_reads=False, valu=c01)
    else: qstep(1, "s_waitcnt", dma_k(), kv(adv_k()), do_reads=False, valu=c01)
    stamp(p)
    p.ext(conv(1)[12:])
    for ks in range(2, 6): p.ext(conv(ks))
    for r in vVr: p(f"v_add_u32 v{r}, {S[5]}, v{r}")
    p(f"s_mov_b32 {sRd}, {S[4]}\ns_mov_b32 {sI}, 0\ns_mov_b32 {sRet}, 0")
    if OPT["fair"]:
        p(f"s_mov_b32 {sCn2}, 0\ns_waitcnt vmcnt(18)\nL_c0:\nv_readfirstlane_b32 {sT1}, v{vIn}\ns_cmp_eq_u32 {sT1}, 1\ns_cbranch_scc0 L_s0\nL_k0:")
        p(f"s_add_u32 {sFo}, {sB}, s2\ns_and_b32 {sFo}, {sFo}, 7\ns_lshl3_add_u32 {sFo}, {sW}, {sFo}\ns_add_u32 {sFo}, {sFo}, 320\ns_lshl_b32 {sFo}, {sFo}, {OPT['fs']}")
        p(f"s_mul_i32 {sFt}, {sW}, {OPT['fth']}\ns_add_u32 {sFt}, {sFt}, {16 - (3 * OPT['fth']) // 2 - 32}")
        p(f"v_lshlrev_b32 v247, 20, {l}\nv_mov_b32 v{vIn}, -16")
    elif not OPT["ann"]: announce()
    stamp(p)

    sv = lambda qb: [SS(0, qb) + i for i in range(4)] + [SS(1, qb) + i for i in range(4)]
    def probs(qb, check, dst=None, pack=True):
        x = sv(qb); y = dst or vPt; g = []
        g += [f"v_fma_f32 v{y[i]}, v{x[i]}, {sC}, -v{vMc[qb]}" for i in range(8)]
        if check:
            m = vMx[0]
            if qb == 0: g += [f"v_max3_f32 v{m}, v{y[0]}, v{y[1]}, v{y[2]}", f"v_max3_f32 v{m}, v{m}, v{y[3]}, v{y[4]}", f"v_max3_f32 v{m}, v{m}, v{y[5]}, v{y[6]}", f"v_max_f32 v{m}, v{m}, v{y[7]}"]
            else: g += [f"v_max3_f32 v{m}, v{m}, v{y[2*i]}, v{y[2*i+1]}" for i in range(4)]
        g += [f"v_exp_f32 v{y[i]}, v{y[i]}" for i in range(8)]
        t = vTm[qb]; u = vMx[1]
        g += [f"v_add_f32 v{t}, v{y[0]}, v{y[1]}", f"v_add_f32 v{u}, v{y[2]}, v{y[3]}", f"v_add_f32 v{t}, v{t}, v{y[4]}", f"v_add_f32 v{u}, v{u}, v{y[5]}",
              f"v_add_f32 v{t}, v{t}, v{y[6]}", f"v_add_f32 v{u}, v{u}, v{y[7]}"]
        if pack: g += [f"v_cvt_pk_bf16_f32 v{PP(qb)+i}, v{y[2*i]}, v{y[2*i+1]}" for i in range(4)]
        g += [f"v_add_f32 v{t}, v{t}, v{u}"]
        return g
    def rescale():
        return [f"v_pk_mul_f32 v[{ACC(t, qb)+h}:{ACC(t, qb)+h+1}], v[{ACC(t, qb)+h}:{ACC(t, qb)+h+1}], v[{vAl[qb]}:{vAl[qb]+1}] op_sel_hi:[1,0]"
                for t in range(12) for qb in range(3) for h in (0, 2)]
    def xlane(regs, op, vPt=vPt):
        g = []
        for sw in ("v_permlane32_swap_b32", "v_permlane16_swap_b32"):
            g += [f"v_mov_b32 v{vPt[qb]}, v{regs[qb]}" for qb in range(3)]
            g += [f"{sw} v{regs[qb]}, v{vPt[qb]}" for qb in range(3)]
            g += [f"{op} v{regs[qb]}, v{regs[qb]}, v{vPt[qb]}" for qb in range(3)]
        return g
    def slow_path():
        g = []
        for k in range(4):
            for qb in range(3):
                x = sv(qb)
                g.append(f"v_max3_f32 v{vMx[qb]}, v{vM[qb] if k == 0 else vMx[qb]}, v{x[2*k]}, v{x[2*k+1]}")
        g += xlane(vMx, "v_max_f32")
        g += [f"v_sub_f32 v{vTm[qb]}, v{vM[qb]}, v{vMx[qb]}" for qb in range(3)]
        g += [f"v_mul_f32 v{vMc[qb]}, {sC}, v{vMx[qb]}" for qb in range(3)]
        g += [f"v_mul_f32 v{vTm[qb]}, {sC}, v{vTm[qb]}" for qb in range(3)]
        g += [f"v_mov_b32 v{vM[qb]}, v{vMx[qb]}" for qb in range(3)]
        g += [f"v_exp_f32 v{vAl[qb]}, v{vTm[qb]}" for qb in range(3)]
        for qb in range(3): g += probs(qb, False)
        g += [f"v_mul_f32 v{vL[qb]}, v{vL[qb]}, v{vAl[qb]}" for qb in range(3)]
        return g + rescale()
    vKeep = [vPt, vKs + vVs[:2], [vVs[2]] + T[2:6] + [vFv, 247, vIn]]
    def kstep(dmas, advs, ret):
        last = ret == 1 and OPT["fn"]
        pr = (lambda qb: probs(qb, True, vKeep[qb], False)) if last else (lambda qb: probs(qb, True))
        p("s_barrier")
        stamp(p, "a")
        rd = [f"ds_read_b128 {a4(FA(0, ks*2+kb))}, v{vKr[ks&1]} offset:{kb*6144+(ks>>1)*128}" for ks in range(6) for kb in range(2)]
        G = Gaps([f"{M16} {v4(SS(kb, qb))}, {a4(FA(0, ks*2+kb))}, {a4(QF(ks, qb))}, {'0' if ks == 0 else v4(SS(kb, qb))}"
                  for qb in range(3) for ks in range(6) for kb in range(2)])
        p.ext(rd[:7])
        G.mems(rd[7:], 0, 5)
        G.put(5, [f"s_add_u32 {sRd}, {sRd}, {2*SLOT}", f"s_cmp_ge_u32 {sRd}, {6*SLOT}"])
        G.put(6, [f"s_cselect_b32 {sRd}, 0, {sRd}", f"s_cselect_b32 {sDK}, {-4*SLOT & 0xffffffff}, {sT2}"])
        G.put(8, f"v_add_u32 v{vKr[0]}, {sDK}, v{vKr[0]}"); G.put(9, f"v_add_u32 v{vKr[1]}, {sDK}, v{vKr[1]}")
        G.vm(dmas[:4], [8, 14, 22, 30])
        G.spread(pr(0), 14, 25); G.spread(pr(1), 26, 36)
        p.ext(G.out())
        p.ext(weave(pr(2), dmas[4:] + advs, 2, 26))
        if OPT["lazy"]: p(f"v_cmp_lt_f32 vcc, {sThr}, v{vMx[0]}\ns_cbranch_vccnz L_slow")
        else: p("s_branch L_slow")
        p(f"L_ret{ret}:")
        for qb in range(3): p(f"v_add_f32 v{vL[qb]}, v{vL[qb]}, v{vTm[qb]}")
    def pv_mfmas(): return [f"{M16} {v4(ACC(t, qb))}, {a4(FA(1, t))}, {v4(PP(qb))}, {v4(ACC(t, qb))}" for t in range(12) for qb in range(3)]
    def vstep(dmas, advs, tail=[]):
        p("s_barrier")
        stamp(p, "a")
        rd = reads_t(lambda t: FA(1, t))
        p.ext(rd[:6])
        G = Gaps(pv_mfmas())
        G.vm(dmas, [3, 8, 13, 18, 23, 28])
        G.mems(rd[6:], 0, 23)
        for k in range(4): G.put(24 + k, f"v_add_u32 v{vVr[k]}, {sDK}, v{vVr[k]}")
        for k, a in enumerate(advs): G.put(30 + k, a)
        G.put(33, tail)
        p.ext(G.out())
    def dynwait(n, tag):
        p(f"s_add_u32 {sT0}, {sSk}, {n}\ns_cmp_le_u32 {sI}, {sT0}\ns_waitcnt vmcnt(24)\ns_cbranch_scc1 L_dw{tag}\ns_waitcnt vmcnt(12)\nL_dw{tag}:")
    p(f"s_mov_b32 {sT2}, {2*SLOT}")
    def windowed(g, n=OPT["win"]): return [x[:-1] + [f"s_waitcnt vmcnt({n})", x[-1]] for x in g] if n else g
    D = OPT["dist"]
    nxt_it = [f"s_add_u32 {sI}, {sI}, 1", f"s_cmp_lg_u32 {sI}, {OPT['codeit']}"]
    p("L_a:")
    if D == 3:
        p(f"s_cmp_eq_u32 {sI}, {sSk}\ns_cselect_b32 {sDV}, 0, 12288\ns_cselect_b32 s{sK+2}, 0, 393216\ns_cselect_b32 s{sV+2}, 0, 393216")
        def body(n, n2, ret, tg):
            dynwait(2, "k" + tg)
            kstep(windowed(dma_v(), n), adv_v(sDV), ret)
            p(f"s_cmp_eq_u32 {sI}, 14\ns_cbranch_scc1 L_ae")
            dynwait(1, "v" + tg)
            vstep(windowed(dma_k(), n2), adv_k(sDV), nxt_it)
        if OPT["fair"]:
            if OPT["fper"] > 1: p(f"s_and_b32 {sT0}, {sI}, {OPT['fper']-1} ; scc-ok\ns_cbranch_scc1 L_f1")
            p(f"v_readfirstlane_b32 {sT0}, v{vIn}\nv_mov_b32 v{vIn}, 1\ns_cmp_gt_i32 {sT0}, {sFt}\ns_cselect_b32 {sRet}, 3, 0\ns_add_u32 {sFt}, {sFt}, 32")
            p(f"buffer_atomic_add v{vIn}, v247, {srd(sFA)}, {sFo} offen sc0 sc1")
            p(f"L_f1:\ns_cmp_eq_u32 {sRet}, 0\ns_cbranch_scc1 L_a0")
            body(OPT["wbig"], OPT["wbig"], 3, "b")
            p("s_branch L_a2\nL_a0:")
        body(OPT["win"], OPT["win2"] or OPT["win"], 0, "")
        p("L_a2:")
    elif D == 5:
        p("s_waitcnt vmcnt(24)")
        kstep(windowed(dma_v()), adv_v(), 0)
        p(f"s_cmp_eq_u32 {sI}, 13\ns_cbranch_scc1 L_ae\ns_waitcnt vmcnt(24)")
        vstep(windowed(dma_k()), adv_k(), nxt_it)
    else:
        p(f"s_cmp_eq_u32 {sI}, 14\ns_cbranch_scc1 L_ae\ns_waitcnt vmcnt(18)")
        kstep(windowed(dma_k()), adv_k(), 0)
        p("s_waitcnt vmcnt(18)")
        vstep(windowed(dma_v()), adv_v(), nxt_it)
    p("s_cbranch_scc1 L_a")
    if OPT["code"] & 2: p(f"global_load_dword v{vCd}, v{vCo}, s[26:27]")
    p("s_branch L_a")
    p("L_slow:")
    p.ext(slow_path())
    p(f"s_cmp_eq_u32 {sRet}, 0\ns_cbranch_scc1 L_ret0")
    if D != 3: p(f"s_cmp_eq_u32 {sRet}, 2\ns_cbranch_scc1 L_ret2")
    if OPT["fair"]: p(f"s_cmp_eq_u32 {sRet}, 3\ns_cbranch_scc1 L_ret3")
    if OPT["fn"]:
        for qb in range(3): p.ext(probs(qb, False, vKeep[qb], False))
    p("s_branch L_ret1")
    p("L_ae:")
    stamp(p)
    vm = VM([f"t{t}" for t in range(32 - D, 32) for _ in range(6)])
    def w3touch():
        nr = OPT["wnr"]
        p(f"s_lshr_b32 {sT0}, {sB}, 1\ns_lshl_b32 {sT0}, {sT0}, 2\ns_add_u32 {sT0}, {sT0}, {sW}\ns_mul_i32 {sT0}, {sT0}, {nr*1280}")
        p(f"s_and_b32 {sT1}, {sB}, 1\ns_lshl_b32 {sT1}, {sT1}, 8\ns_add_u32 {sT0}, {sT0}, {sT1}\ns_add_u32 {sT0}, {sT0}, {(384-16*nr)*1280+3*256}")
        p(f"v_min_u32 {t0}, {2*nr-1}, {l}\nv_lshrrev_b32 {t1}, 1, {t0}\nv_and_b32 {t0}, 1, {t0}\nv_mul_u32_u24 {t1}, 1280, {t1}\nv_lshl_add_u32 {t0}, {t0}, 7, {t1}")
        p(f"buffer_load_dword v{vCd}, {t0}, {srd(sWO)}, {sT0} offen"); vm.issue("touch")
    if OPT["w3"] and not OPT["tl"]: w3touch()
    nw = 0
    for t in range(32 - D, 31):
        p(vm.wait(f"t{t}"))
        g = []
        if nw < 3:
            vm.issue(f"w{nw}", 6); g = windowed(dma_wo(nw, nw), OPT["wwin"]); nw += 1
        if t & 1: vstep(g, [])
        else:
            r = 1 if t == 30 else 2
            p(f"s_mov_b32 {sRet}, {r}\ns_mov_b32 {sT2}, {2*SLOT}"); kstep(g, [], r)
    if OPT["w3"] and OPT["tl"]: w3touch()
    if OPT["fn"]:
        p.ext(xlane(vL, "v_add_f32", vTm))
        for qb in range(3): p(f"v_rcp_f32 v{vAl[qb]}, v{vL[qb]}")
        for qb in range(3):
            y = vKeep[qb]
            for r in y: p(f"v_mul_f32 v{r}, v{vAl[qb]}, v{r}")
            for i in range(4): p(f"v_cvt_pk_bf16_f32 v{PP(qb)+i}, v{y[2*i]}, v{y[2*i+1]}")
    else:
        p.ext(xlane(vL, "v_add_f32"))
        for qb in range(3): p(f"v_rcp_f32 v{vAl[qb]}, v{vL[qb]}\nv_log_f32 v{vTm[qb]}, v{vL[qb]}")
        for qb in range(3): p(f"v_add_f32 v{vMc[qb]}, v{vMc[qb]}, v{vTm[qb]}")
        for qb in range(3): p.ext([x for x in probs(qb, False) if not x.startswith("v_add")])
    p.ext(rescale())
    p(f"s_mul_i32 {sT0}, {sG}, {16*PART}"); mk(sPG, pWS, sT0, 16 * PART)
    mk(sOUT, pOUT, 0, 1966080)
    p(vm.wait("t31")); p("s_barrier")
    stamp(p)
    AB = [144, 96]
    def AF(sig, tp, nu): return AB[sig & 1] + 8 * tp + 4 * nu
    def reads_wo(sig, slot):
        g = []
        for tp in range(3):
            for nu in range(2):
                r = AF(sig, tp, nu); o = (slot & 1) * SLOT + 32 * tp * 256
                g.append(f"ds_read_b64_tr_b16 v[{r}:{r+1}], v{vOr[nu][slot>>1]} offset:{o}")
                g.append(f"ds_read_b64_tr_b16 v[{r+2}:{r+3}], v{vOr[nu][slot>>1]} offset:{o+4096}")
        return g
    def o_out(tp):
        g = []
        for qb in range(3):
            a, b = ACC(2 * tp, qb), ACC(2 * tp + 1, qb)
            g += [f"v_cvt_pk_bf16_f32 v{a}, v{a}, v{a+1}", f"v_cvt_pk_bf16_f32 v{a+1}, v{a+2}, v{a+3}",
                  f"v_cvt_pk_bf16_f32 v{a+2}, v{b}, v{b+1}", f"v_cvt_pk_bf16_f32 v{a+3}, v{b+2}, v{b+3}",
                  f"ds_write_b128 v{vOw}, {v4(a)} offset:{tp*12288+qb*1024}"]
        return g
    rd = reads_t(lambda t: FA(1, t))
    p.ext(rd[:10])
    G = Gaps(pv_mfmas())
    G.mems(rd[10:], 0, 10)
    if nw < 3 and not OPT["w2l"]:
        vm.issue("w2", 6)
        G.vm(dma_wo(2, 2), [3, 9, 15, 21, 27, 33])
    for tp in range(4): G.spread(o_out(tp), 10 + 6 * tp, 16 + 6 * tp + (2 if tp == 3 else 0))
    p.ext(G.out())
    p(vm.wait("w0")); p("s_barrier")
    if nw < 3 and OPT["w2l"]:
        vm.issue("w2", 6)
        p.ext(weave2(o_out(4) + o_out(5), [(reads_wo(0, 0), 0, 30), (dma_wo(2, 2), 2, 30)]))
    else: p.ext(weave(o_out(4) + o_out(5), reads_wo(0, 0)))
    p("; vmq " + " ".join(f"{t}*1" for t in vm.q))
    tag = lambda g, t: g[:-1] + [g[-1] + f" ; vm={t}"]
    def BF(kq, tp, q):
        f = (kq * 3 + tp) * 6 + q
        return a4(4 * f) if f < 64 else v4(168 + 4 * (f - 64))
    def reads_b(k): return [f"ds_read_b128 {BF(k//3, k%3, q)}, v{vBr[k//3]} offset:{(k%3)*12288+q*1024}" for q in range(6)] if k < 12 else []
    def OA(ci, q, nu): return 48 * (ci & 1) + 8 * q + 4 * nu
    def out1(ci, q):
        a = OA(ci, q, 0)
        g = [f"v_cvt_pk_bf16_f32 v{a+i}, v{a+2*i}, v{a+2*i+1}" for i in range(4)]
        if q == 0: g = [f"s_mul_i32 {sT0}, {sCo[ci]}, 96"] + g
        return g + [f"buffer_store_dwordx4 {v4(a)}, v{vPs[q//3]}, {srd(sP)}, {sT0} offen offset:{1024*(q%3)} {OPT['pst']} ; vm=st{ci}"]
    RD = [120, 124, 128, 132, 136, 140, 200, 204]; vRs, vRp, vSel, vRb, vOb, vRo, vOo = 208, 212, 224, 221, 222, 223, 214
    sRo = ["s57", "s58", "s59", "s60", "s61"]; sRq = ["s64", "s65", "s66", "s67", "s68"]
    def rsetup():
        g = []
        g.append([f"s_mul_i32 {sDV}, {sB}, {96*2560}", f"s_mul_i32 {sT1}, {sBR}, 1280", f"s_add_u32 {sDV}, {sDV}, {sT1}"])
        g.append([f"s_lshl_b32 {sT1}, {sW}, 6", f"s_add_u32 {sDV}, {sDV}, {sT1}"])
        for r in range(5):
            if OPT["tk"] and r < OPT["ntk"]: continue
            if OPT["tk"]: g.append([f"s_add_u32 {sT1}, {sW}, {2*r}", f"s_lshl2_add_u32 {sT1}, {sT1}, {sHP}"])
            else: g.append([f"s_add_u32 {sT1}, {sHP}, {4*r}"])
            g.append([f"s_and_b32 {sT1}, {sT1}, 15", f"s_mul_i32 {sRq[r]}, {sT1}, {8*2560}"])
            g.append([f"s_add_u32 {sRq[r]}, {sRq[r]}, {sCo[r]}", f"s_lshr_b32 {sT3}, {sT1}, 1", f"s_mul_i32 {sT3}, {sT3}, 768"])
            g.append([f"s_lshl_b32 {sRo[r]}, {sT1}, 7", f"s_add_u32 {sT3}, {sT3}, {sRo[r]}", f"s_mul_i32 {sRo[r]}, {sCo[r]}, 96"])
            g.append([f"s_add_u32 {sRo[r]}, {sRo[r]}, {sT3}"])
            g.append([f"s_cmp_lt_u32 {sT1}, 12", f"s_cselect_b32 {sRo[r]}, {sRo[r]}, 0x40000000", f"s_cselect_b32 {sRq[r]}, {sRq[r]}, 0x40000000"])
        v = [f"v_lshrrev_b32 {t0}, 4, {l}", f"v_and_b32 {t1}, 15, {l}", f"v_lshlrev_b32 {t2}, 8, {t0}", f"v_lshl_add_u32 {t2}, {t1}, 3, {t2}", f"v_add_u32 v{vRb}, {sW6}, {t2}",
             f"v_lshrrev_b32 {t2}, 1, {t1}", f"v_mul_u32_u24 {t2}, 2560, {t2}", f"v_lshl_add_u32 {t2}, {t0}, 3, {t2}", f"v_and_b32 {t3}, 1, {l}", f"v_lshl_add_u32 {t2}, {t3}, 5, {t2}",
             f"v_add_u32 v{vOb}, {sDV}, {t2}",
             f"v_lshlrev_b32 {t3}, 4, {t3}", f"v_mov_b32 {t2}, 0x3f80", f"v_lshlrev_b32 {t2}, {t3}, {t2}", f"v_lshrrev_b32 {t1}, 1, {t1}", f"v_lshlrev_b32 {t0}, 1, {t0}",
             [f"v_cmp_eq_u32 vcc, {t0}, {t1}", f"v_cndmask_b32 v{vSel}, 0, {t2}, vcc"], f"v_add_u32 {t0}, 1, {t0}",
             [f"v_cmp_eq_u32 vcc, {t0}, {t1}", f"v_cndmask_b32 v{vSel+1}, 0, {t2}, vcc"], f"v_mov_b32 v{vSel+2}, v{vSel}", f"v_mov_b32 v{vSel+3}, v{vSel+1}"]
        return g, v
    def rload(r, h): return [f"s_mov_b32 {sT1}, {h*PART}", f"buffer_load_dwordx2 v[{RD[h>>1]+2*(h&1)}:{RD[h>>1]+2*(h&1)+1}], v{vRo}, {srd(sPG)}, {sT1} offen {OPT['pld']} ; vm=r{r}_{h>>1}"]
    def radd(r, k): return [f"s_waitcnt vmcnt(@r{r}_{k})", f"{M16} {v4(vRs)}, {v4(vSel)}, {v4(RD[k])}, " + ("0" if k == 0 else v4(vRs))]
    def rout(r): return [f"v_add_u32 v{vOo}, {sRq[r]}, v{vOb}", f"v_cvt_pk_bf16_f32 v{vRp}, v{vRs}, v{vRs+1}", f"v_cvt_pk_bf16_f32 v{vRp+1}, v{vRs+2}, v{vRs+3}",
                         f"buffer_store_dwordx2 v[{vRp}:{vRp+1}], v{vOo}, {srd(sOUT)}, 0 offen {OPT['ost']}"]
    def roff(r): return f"v_add_u32 v{vRo}, {sRo[r]}, v{vRb}"
    def publish(n): return [f"v_mov_b32 v{vFv}, {n}", f"buffer_store_dword v{vFv}, v{vF4}, {srd(sFL)}, 0 offen sc1"]
    poll = lambda t: [f"buffer_load_dword v{vIn}, v{vFo}, {srd(sFG)}, 0 offen sc1 ; vm={t}"]
    side = []
    sTk, sTn, vTo, vTk = "s62", "s0", 247, 246
    def ticket(): return [f"v_mov_b32 v{vTk}, 1", f"buffer_atomic_add v{vTk}, v{vTo}, {srd(sFA)}, {sTk} offen sc0 sc1"]
    def check(n):
        p(f"L_c{n}:\nv_cmp_le_u32 vcc, {n}, v{vIn}\ns_cmp_eq_u32 vcc_lo, 0xffff\ns_cbranch_scc0 L_s{n}\nL_k{n}:")
        side.append(f"L_s{n}:\n" + (f"s_sleep {OPT['slp']}\n" if OPT["slp"] else "") + f"buffer_load_dword v{vIn}, v{vFo}, {srd(sFG)}, 0 offen sc1 ; side\ns_add_u32 {sCnt}, {sCnt}, 1\ns_cmp_lt_u32 {sCnt}, 200000\ns_waitcnt vmcnt(0)\ns_cbranch_scc1 L_c{n}\ns_branch L_k{n}")
    slot_of = {0: 0, 1: 1, 2: 2}
    free = []; nxt = 3; pend = []
    R0 = OPT["r0"]
    NR = (20 - R0) // 2
    for sig in range(20):
        ci, kq = divmod(sig, 4)
        assert not any(t == sig + 1 for t, _ in pend)
        pub = {11: 2, 14: 3, OPT["pub4"]: 4}.get(sig, 0)
        if OPT["mode"] == 1: pub = {16: 3}.get(sig, 0)
        if OPT["mode"] == 2: pub = {12: 2, 16: 3}.get(sig, 0)
        WS = [int(x) for x in str(OPT["ws"]).split(",")]
        if OPT["mode"] == 3: pub = {int(x): k + 1 for k, x in enumerate(str(OPT["pubs"]).split(","))}.get(sig, 0)
        if pub: assert WS[pub - 1] < sig
        if OPT["mode"] == 4: pub = {8: 1, 12: 2, 16: 3, 19: 4}.get(sig, 0)
        if OPT["mode"] == 5: pub = {12: 2, 16: 3}.get(sig, 0)
        need = [f"w{sig+1}"]
        if pub: need.append(f"st{pub-1}")
        if sig == 6: need.append("init")
        if sig == 14: need.append("poll2")
        if sig == 18: need.append("poll3")
        if sig < 19 or pub:
            p(f"s_waitcnt vmcnt(@{','.join(need)}) lgkmcnt(0)"); p("s_barrier")
        if sig == 0: stamp(p)
        elif kq == 0 and "c" in OPT["fine"]: stamp(p)
        else: stamp(p, "o")
        ops = []
        if sig == 6 and OPT["fair"]:
            p(f"s_mov_b32 {sCnt}, 0")
            side.append(f"L_s0:\nbuffer_load_dword v{vIn}, off, {srd(sDG)}, 0 sc1 ; side\ns_add_u32 s3, s3, 1\ns_cmp_lt_u32 s3, 200000\ns_waitcnt vmcnt(0)\ns_cbranch_scc1 L_c0\ns_branch L_k0")
        elif sig == 6:
            p(f"s_mov_b32 {sCnt}, 0\nL_c0:\nv_readfirstlane_b32 {sT1}, v{vIn}\ns_cmp_eq_u32 {sT1}, 1\ns_cbranch_scc0 L_s0\nL_k0:")
            side.append(f"L_s0:\nbuffer_load_dword v{vIn}, off, {srd(sDG)}, 0 sc1 ; side\ns_add_u32 {sCnt}, {sCnt}, 1\ns_cmp_lt_u32 {sCnt}, 200000\ns_waitcnt vmcnt(0)\ns_cbranch_scc1 L_c0\ns_branch L_k0")
        if sig in (14, 18) and OPT["mode"] == 0:
            if pub: p.ext(publish(pub))
            check(2 if sig == 14 else 3)
        elif sig == 18 and OPT["mode"] == 2: check(2)
        elif pub: ops.append(publish(pub))
        G = Gaps([f"{M16} {v4(OA(ci, q, nu))}, {v4(AF(sig, tp, nu))}, {BF(kq, tp, q)}, " + ("0" if kq == 0 and tp == 0 else v4(OA(ci, q, nu)))
                  for tp in range(3) for q in range(6) for nu in range(2)])
        if sig == 0: p.ext(reads_b(0))
        free.append(slot_of[sig])
        if sig == OPT["bfree"]: free += [3, 4, 5]
        while free and nxt < 20 and nxt - sig <= OPT["dmax"] + 1:
            slot_of[nxt] = free.pop(0); pend += [(nxt, tag(g, f"w{nxt}")) for g in dma_wo(nxt, slot_of[nxt])]; nxt += 1
        if sig == 0 and not OPT["fair"]: ops.append([f"buffer_load_dword v{vIn}, off, {srd(sDG)}, 0 sc1 ; vm=init"])
        if sig == 13 and OPT["mode"] == 0: ops.append(poll("poll2"))
        if sig == 16 and OPT["mode"] in (0, 2): ops.append(poll("poll3"))
        sts = []
        if sig in WS:
            assert WS.index(sig) == ci - 1
            sts = [out1(ci - 1, q) for q in range(6)]
        nd = min(len(pend), 9 - len(ops) - len(sts))
        if sig - 1 in WS: nd = min(nd, max(OPT["cap"], sum(1 for t, _ in pend if t <= sig + 2)))
        ops += [g for _, g in pend[:nd]]; pend = pend[nd:]
        n = len(ops) + len(sts)
        slots = DS9 if n > 7 or sig >= R0 else [1 + 5 * k for k in range(7)]
        if not ops: slots = slots[1:]
        G.vm(ops, slots)
        for k, g in enumerate(sts):
            at = slots[len(ops) + k]
            G.spread(g[:-1], at - 4, at); G.put(at, g[-1])
        if sig >= R0:
            r, hf = divmod(sig - R0, 2)
            if hf == 0: G.put(0, roff(r))
            for k in range(4):
                if r > 0: G.put(8 * k + 1, radd(r - 1, 4 * hf + k))
                G.vm([rload(r, 8 * hf + 2 * k), rload(r, 8 * hf + 2 * k + 1)], [8 * k + 2, 8 * k + 6])
            if r > 0 and hf == 1: G.spread(rout(r - 1), 30, 35)
        if sig == 19: G.put(20, poll("poll4"))
        if sig == 19 and OPT["tk"]:
            G.put(4, [f"s_lshl_b32 {sTk}, {sG}, 2", f"s_add_u32 {sTk}, {sTk}, {sW}", f"s_add_u32 {sTk}, {sTk}, 256"])
            G.put(5, [f"s_lshl_b32 {sTk}, {sTk}, {OPT['fs']}", f"v_lshlrev_b32 v{vTo}, 20, {l}"])
            G.put(12, tag(ticket(), "tk"))
        if sig in (9, 10):
            sg, vg = rsetup()
            if sig == 9: G.spread(sg, 0, 34)
            else: G.spread(vg, 2, 34)
        ra = reads_wo(sig + 1, slot_of[sig + 1]) if sig < 19 else []
        if OPT["bfree"] < 4 and sig < OPT["bfree"]:
            allb = [x for k in range(1, 12) for x in reads_b(k)]
            n_ = len(allb) // OPT["bfree"]
            mine = allb[sig * n_:(sig + 1) * n_]
            G.mems(mine[:12] + ra + mine[12:], 0, 32)
        elif sig < 4 and OPT["bfree"] == 4:
            for tp in range(3): G.mems(reads_b(3 * sig + tp + 1) + ra[4*tp:4*tp+4], 12 * tp, 12 * tp + (12 if tp < 2 else 8))
        else: G.mems(ra, 0, 30)
        p.ext(G.out())
    if OPT["tk"] and OPT["ntk"] == 4:
        p("s_waitcnt vmcnt(@st3)\ns_barrier"); p.ext(publish(4))
    for q in range(6): p.ext(out1(4, q))
    stamp(p)
    p("s_waitcnt vmcnt(@poll4)")
    LV = 4 if OPT["mode"] in (0, 4) or (OPT["tk"] and OPT["ntk"] == 4) else 3
    if OPT["mode"] < 3: check(LV)
    def round_(r, prev):
        p(roff(r))
        for k in range(8):
            if prev: p.ext(radd(r - 1, k))
            p.ext(rload(r, 2 * k) + rload(r, 2 * k + 1))
    if OPT["tk"]:
        sFi = "s58"
        def ensure(tag_, n):
            return f"s_cmp_eq_u32 {sFi}, 0\ns_cbranch_scc1 L_e{tag_}\ns_waitcnt vmcnt({n})\ns_barrier\n" + " ; side\n".join(publish(5)) + f" ; side\ns_mov_b32 {sFi}, 0\nL_e{tag_}:\n"
        if OPT["early"]: p(f"s_mov_b32 {sFi}, 1")
        else: p("s_waitcnt vmcnt(@st4)\ns_barrier"); p.ext(publish(5))
        p("L_t:")
        p(f"v_readfirstlane_b32 {sTn}, v{vTk}\ns_cmp_ge_u32 {sTn}, {12*OPT['ntk']}\ns_cbranch_scc1 L_te")
        p(f"s_mul_i32 s1, {sTn}, 43\ns_lshr_b32 s1, s1, 9\ns_mul_i32 {sT1}, s1, 12\ns_sub_u32 {sT1}, {sTn}, {sT1}")
        p(f"s_add_u32 {sT0}, s1, {sCrot}\ns_cmp_ge_u32 {sT0}, 5\ns_cselect_b32 {sT3}, 5, 0\ns_sub_u32 {sT0}, {sT0}, {sT3}\ns_lshl_b32 {sT0}, {sT0}, 8")
        p(f"s_mul_i32 {sRq[0]}, {sT1}, {8*2560}\ns_add_u32 {sRq[0]}, {sRq[0]}, {sT0}\ns_lshr_b32 {sT3}, {sT1}, 1\ns_mul_i32 {sT3}, {sT3}, 768")
        p(f"s_lshl_b32 {sT1}, {sT1}, 7\ns_add_u32 {sT3}, {sT3}, {sT1}\ns_mul_i32 {sRo[0]}, {sT0}, 96\ns_add_u32 {sRo[0]}, {sRo[0]}, {sT3}")
        p(roff(0))
        p(f"L_ct:\nv_cmp_lt_u32 vcc, s1, v{vIn}\ns_cmp_eq_u32 vcc_lo, 0xffff\ns_cbranch_scc0 L_st\nL_kt:")
        side.append(f"L_st:\n" + (ensure("a", 0) if OPT["early"] else "") + (f"s_sleep {OPT['slp']}\n" if OPT["slp"] else "") + f"buffer_load_dword v{vIn}, v{vFo}, {srd(sFG)}, 0 offen sc1 ; side\ns_add_u32 {sCnt}, {sCnt}, 1\ns_cmp_lt_u32 {sCnt}, 200000\ns_waitcnt vmcnt(0)\ns_cbranch_scc1 L_ct\ns_branch L_kt")
        if OPT["tk"] == 1: p.ext(ticket())
        for h in range(16): p.ext(rload(0, h))
        if OPT["tk"] == 2: p.ext(tag(ticket(), "tk2"))
        if OPT["early"]: p(ensure("b", 17))
        for k in range(8): p.ext(radd(0, k))
        p.ext(rout(0))
        if OPT["tk"] == 2: p("s_waitcnt vmcnt(@tk2)")
        p("s_branch L_t\nL_te:")
        if OPT["early"]: p(ensure("c", 0))
        p.ext(poll("poll5"))
    else:
        for r in range(NR, LV):
            if OPT["mode"] >= 3: check(r + 1)
            round_(r, r > 0)
            if r == NR: p("s_waitcnt vmcnt(@st4)\ns_barrier"); p.ext(publish(5))
            if r > 0: p.ext(rout(r - 1))
        p.ext(poll("poll5"))
        for k in range(8): p.ext(radd(LV - 1, k))
        p.ext(rout(LV - 1))
    stamp(p)
    p("s_waitcnt vmcnt(@poll5)")
    check(5)
    stamp(p)
    for r in range(LV, 5):
        round_(r, r > LV)
        if r > LV: p.ext(rout(r - 1))
    for k in range(8): p.ext(radd(4, k))
    p.ext(rout(4))
    if OPT["stamps"]:
        p("s_waitcnt vmcnt(0)")
        stamp(p)
        p(f"s_lshl_b32 {sT0}, s2, 2\ns_add_u32 {sT0}, {sT0}, {sW}\ns_lshl_b32 {sT0}, {sT0}, 9\ns_add_u32 {sT0}, {sT0}, {STAMP_OFF}")
        p(f"v_lshlrev_b32 v0, 2, v{vLn}\nv_add_u32 v0, {sT0}, v0")
        p(f"global_store_dword v0, v255, s[{pWS}:{pWS+1}]\nglobal_store_dword v0, v254, s[{pWS}:{pWS+1}] offset:256")
    p("L_exit:\ns_endpgm")
    for x in side: p(x)
    p.resolve_vm()
    d = OPT["drop"]
    def keep(i):
        if "m" in d and i.kind == "mfma": return False
        if "w" in d and i.lds_dma and i.src & {("s", sWQ), ("s", sX), ("s", sWO)}: return False
        if "r" in d and i.kind == "ds": return False
        if "s" in d and i.wide_store: return False
        return True
    p.auto_lgkm(); p.auto_nop(); p.lint_scc()
    p.ins = [i if keep(i) else Ins("s_nop 0") for i in p.ins]
    return p

def build():
    ref = open(f"cdna_kernels/{NAME}.s.ref").read().split("\n")
    head = [l for l in ref if l.startswith(";") and "@launch" not in l]
    out = "\n".join(head) + "\n"
    out += f"; @launch grid=(256,1,1) block=(256,1,1) lds={LDS_BYTES}\n"
    out += '.amdgcn_target "amdgcn-amd-amdhsa--gfx950"\n.text\n'
    nm = NAME + "_kernel"
    out += f".globl {nm}\n.p2align 8\n.type {nm},@function\n" + kernel().text()
    out += f""".section .rodata,"a"
.p2align 6
.amdhsa_kernel {nm}
  .amdhsa_next_free_vgpr 512
  .amdhsa_next_free_sgpr 102
  .amdhsa_accum_offset 256
  .amdhsa_group_segment_fixed_size 0
  .amdhsa_kernarg_size 104
  .amdhsa_user_sgpr_count 2
  .amdhsa_user_sgpr_kernarg_segment_ptr 1
  .amdhsa_system_sgpr_workgroup_id_x 1
  .amdhsa_float_denorm_mode_32 3
.end_amdhsa_kernel
"""
    return out

if __name__ == "__main__":
    txt = build()
    open(sys.argv[1], "w").write(txt)
```

```python
import sys, struct, math
from asmlib import *

NAME = "concat_heads__gqa_block_cached__mha_block_cached__near_ridge"
OPT = dict(stamps=0, fw=128, fs=7, fine="", drop="", kv="nt", wq="", x="", wo="", pst="sc1", pld="sc1", kburst=1, vburst=5, spread=2, dmax=3, pubfrom=99, code=1, codeit=10, ost="", thr=0x41000000, skip0=2, skipn=8, lazy=1, wotouch=99, wotn=3, epoch=1, w3=1, touch="", tfl="", win=5, kst="01", vst="56", dynq=1, eps="55", pre=1, delay=0, tst="", tt="7", dist=3, wwin=0, tl=1, mid=0, fn=1, w2l=0, pub4=18, r0=20, mode=3, slp=0, tk=0, ntk=3, early=1, wnr=6, win2=0, fair=0, wbig=7, fth=6, fper=1, ann=1, pubs="6,10,14", pols="9,13,17", adds="11,15,19", cap=9, bfree=4, krot=0, qlast=1, both=1, gfl="", xfl="sc1", fb=1, forcefb=0, ffl="", plast=1, sp=0, pfl="sc1", w0p=1, a0=13, astep=4, ws="4,8,12,16")
for a in sys.argv[2:]:
    k, v = a.split("=", 1)
    assert k in OPT, k
    OPT[k] = int(v) if v.lstrip("-").isdigit() else v

SLOT = 24576
S = [i * SLOT for i in range(6)]
LDS_BYTES = 6 * SLOT
PART = 49152
FLAG_OFF = 32 << 20
STAMP_OFF = 64 << 20

sX, sWQ, sK, sV, sWO, sP = 28, 32, 36, 40, 44, 48
sFL, sFG, sFA, sDG = 4, 8, 12, 16
sPG, sOUT = 28, 32
pOUT, pDBG, pWS = 20, 22, 24
def srd(b): return f"s[{b}:{b+3}]"
sW, sB, sHP, sBR, sC = "s52", "s53", "s54", "s55", "s56"
sWQo, sWQlim, sXo, sWQm, sXm, sRd, sI = "s57", "s58", "s59", "s60", "s61", "s62", "s63"
sKo, sVo, sKm, sVm, sDK, sDV = "s64", "s65", "s66", "s67", "s68", "s69"
sT0, sT1, sT2, sT3 = "s70", "s71", "s72", "s73"
sW6, sXd, sCrot, sKrot = "s74", "s75", "s76", "s77"
sCo = ["s78", "s79", "s80", "s81", "s82"]
sKq = ["s83", "s84", "s85", "s86"]
sJ, sSk, sG, sRet = "s87", "s88", "s89", "s90"
sThr = "s91"; sKV0 = "s101"; sKb, sVb, sBm = "s3", "s90", "s69"; sId, sStop, sLoc = "s0", "s1", "s1"
sE = ["s97", "s58"]; sTb = 98
sNeed, sTodo, sReady, sPrev, sCur, sFirst, sCnt, sOo = "s57", "s58", "s59", "s60", "s61", "s62", "s63", "s64"
sST, sSI = 92, "s96"
def ACC(t, qb): return (t * 3 + qb) * 4
def SS(kb, qb): return 144 + (kb * 3 + qb) * 4
def PP(qb): return 168 + qb * 4
vM = [180, 181, 182]; vL = [183, 184, 185]; vAl = [186, 188, 190]; vMx = [192, 193, 194]; vTm = [195, 196, 197]; vMc = [187, 189, 191]
vKs = list(range(200, 206)); vVs = [206, 207, 208]; vWs = [209, 210, 211]; vXs = [212, 213, 214]; vOs = [215, 216, 217, 218, 219, 220]
vKr = [221, 222]; vVr = [223, 224, 225, 226]; vXr = [227, 228]; vOr = [[229, 230, 231], [232, 233, 234]]; vOw = 235; vBr = [236, 237, 198, 199]; vPs = [238, 239]
vPt = vWs + vXs + vXr
vLn = 240; vFo = 241; vFv = 242; vF4 = 243; vIn = 244; vCo = 245; vCd = 246; T = list(range(248, 254))
def v4(r): return f"v[{r}:{r+3}]"
def a4(r): return f"a[{r}:{r+3}]"
def QF(ks, qb): return (ks * 3 + qb) * 4
def FA(p, t): return 72 + 48 * p + 4 * t
def FB(p, qb): return 168 + 12 * p + 4 * qb

M16 = "v_mfma_f32_16x16x32_bf16"

class VM:
    def __init__(self, q): self.q = list(q)
    def issue(self, tag, n=1): self.q += [tag] * n
    def wait(self, *tags):
        idx = max((k for k, t in enumerate(self.q) if t in tags), default=-1)
        n = len(self.q) - 1 - idx
        self.q = self.q[idx + 1:]
        assert n <= 63
        return f"s_waitcnt vmcnt({n})"
    def done(self, tag): return tag not in self.q

def stamp(p, cls=""):
    if OPT["stamps"] and (not cls or cls in OPT["fine"]):
        p(f"s_memrealtime s[{sST}:{sST+1}]\ns_memtime s[{sST+2}:{sST+3}]\ns_mov_b32 s100, m0\ns_mov_b32 m0, {sSI}\ns_add_u32 {sSI}, {sSI}, 1\ns_waitcnt lgkmcnt(0)")
        p(f"v_writelane_b32 v255, s{sST}, m0\nv_writelane_b32 v254, s{sST+2}, m0\ns_mov_b32 m0, s100")

def dma6(vs, srdb, so, mbase, flags, src_step, six=False):
    def val(dst, x, extra):
        if isinstance(x, tuple): r, imm = x
        else: r, imm = x, 0
        imm += extra
        return f"s_add_u32 {dst}, {r}, {imm}" if imm else f"s_mov_b32 {dst}, {r}"
    g = []
    for j in range(6):
        pre = []
        sreg = so if (j < 3 or src_step == 0) else sT3
        if j % 3 == 0:
            pre = [val("m0", mbase, 3072 * (j // 3))]
            if j == 3 and src_step: pre.append(val(sT3, so, src_step))
        v = vs[j] if six else vs[j % 3]
        g.append(pre + [f"buffer_load_dwordx4 v{v}, {srd(srdb)}, {sreg} offen offset:{1024*(j%3)} {flags} lds"])
    return g
def dma_k(): return dma6(vKs, sK, sKo, sKm, OPT["kv"], 0, six=True)
def dma_v(): return dma6(vVs, sV, sVo, sVm, OPT["kv"], 3072)
def dma_wq(): return dma6(vWs, sWQ, sWQo, sWQm, OPT["wq"], 16 * 12288)
def dma_x():
    g = []
    for j in range(3):
        pre = [f"s_mov_b32 m0, {sXm}"] if j == 0 else []
        g.append(pre + [f"buffer_load_dwordx4 v{vXs[j]}, {srd(sX)}, {sXo} offen offset:{1024*j} {OPT['x']} lds"])
    return g
def dma_wo(sig, slot):
    ci, kq = divmod(sig, 4)
    g = dma6(vOs, sWO, sT2, (sW6, S[slot]), OPT["wo"], 0, six=True)
    g[0] = [g[0][0], f"s_add_u32 {sT2}, {sCo[ci]}, {sKq[kq]}"] + g[0][1:]
    return g
def set_wq(e): return [f"s_mul_i32 {sWQo}, {sXo}, 6144", f"s_add_u32 {sWQo}, {sWQo}, {sE[e]}"]
def adv_wqm(): return [f"s_add_u32 {sWQm}, {sWQm}, {SLOT}", f"s_cmp_ge_u32 {sWQm}, {3*SLOT}", f"s_cselect_b32 {sWQm}, {sW6}, {sWQm}"]
def next_pair():
    return [[f"s_lshr_b64 s[{sTb}:{sTb+1}], s[{sTb}:{sTb+1}], 4", f"s_and_b32 {sXo}, s{sTb}, 15", f"s_lshl_b32 {sXo}, {sXo}, 7"]]
def flip_x(): return [f"s_xor_b32 {sXm}, {sXm}, {sXd}"]
def adv_kv(so, sm, step="12288"):
    if step == "12288": a = [f"s_add_u32 {so}, {so}, 12288", f"s_add_u32 {sm}, {sm}, {2*SLOT}"]
    else: a = [f"s_add_u32 {so}, {so}, {step}", f"s_lshl2_add_u32 {sm}, {step}, {sm}"]
    g = [a, [f"s_cmp_ge_u32 {sm}, {6*SLOT}", f"s_cselect_b32 {sT0}, {6*SLOT}, 0", f"s_sub_u32 {sm}, {sm}, {sT0}"]]
    if OPT["krot"]: g.append([f"s_cmp_ge_u32 {so}, {sKV0}", f"s_cselect_b32 {sT0}, 196608, 0", f"s_sub_u32 {so}, {so}, {sT0}"])
    return g
def adv_k(step="12288"): return adv_kv(sKo, sKm, step)
def adv_v(step="12288"): return adv_kv(sVo, sVm, step)
def flat(g): return [x for y in g for x in ([y] if isinstance(y, str) else y)]

def reads_t(dstf, n=12):
    g = []
    for t in range(n):
        r = dstf(t); o = (t >> 2) * 128
        g.append(f"ds_read_b64_tr_b16 a[{r}:{r+1}], v{vVr[t&3]} offset:{o}")
        g.append(f"ds_read_b64_tr_b16 a[{r+2}:{r+3}], v{vVr[t&3]} offset:{o+6144}")
    return g
def reads_x(p, e): return [f"ds_read_b128 {a4(FB(p, qb))}, v{vXr[e]} offset:{qb*2048}" for qb in range(3)]
def adv_rd_wq():
    return [[f"s_add_u32 {sRd}, {sRd}, 1", f"s_cmp_ge_u32 {sRd}, 3", f"s_cselect_b32 {sRd}, 0, {sRd}",
             f"s_cselect_b32 {sT1}, {-2*SLOT & 0xffffffff}, {sT2}"]] + [f"v_add_u32 v{r}, {sT1}, v{r}" for r in vVr]

def kernel():
    p = Prog()
    p(f"{NAME}_kernel:")
    p("s_cmp_ge_u32 s2, 256\ns_cbranch_scc1 L_exit")
    p("s_bfe_u32 s55, s2, 0x10002\ns_mul_i32 s3, s55, 40")
    p("s_load_dwordx8 s[4:11], s[0:1], s3\ns_add_u32 s3, s3, 32\ns_load_dwordx2 s[12:13], s[0:1], s3")
    p(f"s_load_dwordx4 s[{pOUT}:{pOUT+3}], s[0:1], 80\ns_load_dwordx2 s[{pWS}:{pWS+1}], s[0:1], 96")
    if OPT["stamps"]: p(f"v_mov_b32 v255, 0\nv_mov_b32 v254, 0\ns_mov_b32 {sSI}, 0")
    l = f"v{vLn}"
    t0, t1, t2, t3, t4 = (f"v{r}" for r in T[:5])
    p(f"v_lshrrev_b32 {t0}, 6, v0\nv_and_b32 {l}, 63, v0")
    p(f"s_and_b32 {sT0}, s2, 3\ns_bfe_u32 {sB}, s2, 0x30003\ns_lshr_b32 {sJ}, s2, 6")
    p(f"v_readfirstlane_b32 {sW}, {t0}")
    p(f"s_lshl_b32 {sHP}, {sT0}, 2\ns_add_u32 {sHP}, {sHP}, {sJ}")
    if OPT["code"]:
        p("s_getpc_b64 s[26:27]\nL_pc:")
        p(f"s_sub_u32 s26, s26, L_pc-{NAME}_kernel\ns_subb_u32 s27, s27, 0")
        p(f"s_lshr_b32 {sT1}, s2, 3\ns_lshl_b32 {sT1}, {sT1}, 2\ns_add_u32 {sT1}, {sT1}, {sW}\ns_mul_i32 {sT1}, {sT1}, 384")
        p(f"v_and_b32 v{vCo}, 3, {l}\nv_lshlrev_b32 v{vCo}, 7, v{vCo}\nv_add_u32 v{vCo}, {sT1}, v{vCo}\nv_min_u32 v{vCo}, L_exit-{NAME}_kernel, v{vCo}")
        if OPT["code"] & 1: p(f"global_load_dword v{vCd}, v{vCo}, s[26:27]")
    p(f"s_lshr_b32 {sCrot}, {sB}, 1\ns_and_b32 {sKrot}, {sB}, 1\ns_add_u32 {sT1}, {sCrot}, {sJ}")
    p(f"s_mov_b64 s[{sTb}:{sTb+1}], 0")
    e0 = 0
    for n in (int(c) for c in str(OPT["eps"])):
        seq = [e0 + k % n for k in range(16)]
        lo = sum(v << (4 * k) for k, v in enumerate(seq[:8])); hi = sum(v << (4 * k) for k, v in enumerate(seq[8:]))
        if n == 5: p(f"s_cmp_eq_u32 {sB}, 7\ns_addc_u32 {sT0}, {sT1}, 0 ; carry-ok\ns_lshl_b32 {sT0}, {sT0}, 2")
        else: p(f"s_lshl_b32 {sT0}, {sT1}, 2")
        p(f"s_mov_b32 s72, {lo:#x}\ns_mov_b32 s73, {hi:#x}\ns_lshr_b64 s[72:73], s[72:73], {sT0}\ns_and_b32 s72, s72, {(1 << (4 * n)) - 1:#x}\ns_mov_b32 s73, 0")
        p(f"s_lshl_b64 s[72:73], s[72:73], {4*e0}\ns_or_b64 s[{sTb}:{sTb+1}], s[{sTb}:{sTb+1}], s[72:73]")
        e0 += n
    assert e0 == 10
    p(f"s_and_b32 {sXo}, s{sTb}, 15\ns_lshl_b32 {sXo}, {sXo}, 7\ns_mul_i32 {sW6}, {sW}, 6144")
    p(f"s_and_b32 {sT1}, {sW}, 1\ns_lshr_b32 {sT2}, {sW}, 1")
    p(f"s_mul_i32 {sT0}, {sT1}, {4*12288}\ns_mul_i32 {sT3}, {sT2}, 384\ns_add_u32 {sT0}, {sT0}, {sT3}")
    p(f"s_mul_i32 {sE[0]}, {sKrot}, {32*12288}\ns_sub_u32 {sE[1]}, {32*12288}, {sE[0]}\ns_add_u32 {sE[0]}, {sE[0]}, {sT0}\ns_add_u32 {sE[1]}, {sE[1]}, {sT0}")
    p.ext(set_wq(0))
    p(f"s_add_u32 {sWQm}, {sW6}, {S[1]}")
    p(f"s_mul_i32 {sXm}, {sW}, 3072\ns_add_u32 {sXm}, {sXm}, {S[3]}")
    p(f"s_add_u32 {sXd}, {sXm}, 12288\ns_xor_b32 {sXd}, {sXd}, {sXm}")
    p(f"s_mul_i32 {sT0}, {sW}, 24\nv_lshrrev_b32 {t0}, 3, {l}\nv_add_u32 {t0}, {sT0}, {t0}")
    p(f"v_lshrrev_b32 {t1}, 1, {t0}\nv_xor_b32 {t1}, {t1}, {l}\nv_and_b32 {t1}, 7, {t1}\nv_mul_u32_u24 {t0}, 1280, {t0}")
    p(f"v_lshl_add_u32 v{vXs[0]}, {t1}, 4, {t0}\nv_xor_b32 {t1}, 64, v{vXs[0]}")
    p(f"v_add_u32 v{vXs[1]}, {10240-1024}, {t1}\nv_add_u32 v{vXs[2]}, {2*(10240-1024)}, v{vXs[0]}")
    def rowof(j): p(f"v_add_u32 {t0}, {64*j}, {l}\nv_mul_u32_u24 {t1}, 2731, {t0}\nv_lshrrev_b32 {t1}, 16, {t1}")
    for j in range(3):
        rowof(j)
        p(f"v_and_b32 {t2}, 6, {t1}\nv_xor_b32 {t3}, {t2}, {l}\nv_lshlrev_b32 v{vVs[j]}, 4, {t3}")
        p(f"v_and_b32 {t2}, 12, {t1}\nv_add_u32 {t2}, {t2}, {t1}\nv_mul_u32_u24 {t2}, 12288, {t2}")
        p(f"v_mul_u32_u24 {t3}, 384, {t1}\nv_sub_u32 {t2}, {t2}, {t3}\nv_add_u32 v{vWs[j]}, {t2}, v{vVs[j]}")
    p("s_waitcnt lgkmcnt(0)")
    stamp(p)
    if OPT["delay"]:
        p(f"s_bitcmp0_b32 {sB}, 0\ns_cbranch_scc1 L_nd")
        for _ in range(OPT["delay"]): p("s_sleep 37")
        p("L_nd:")
    def mk(b, ptr, off_s, size):
        p(f"s_add_u32 s{b}, s{ptr}, {off_s}\ns_addc_u32 s{b+1}, s{ptr+1}, 0\ns_and_b32 s{b+1}, s{b+1}, 0xffff")
        p(f"s_mov_b32 s{b+2}, {size}\ns_mov_b32 s{b+3}, 0x20000")
    p(f"s_mul_i32 {sT0}, {sB}, 122880"); mk(sX, 4, sT0, 122880)
    p.ext(flat(dma_x()))
    p(f"s_mul_i32 {sT0}, {sHP}, 768"); mk(sWQ, 10, sT0, 639 * 12288 + 768)
    p.ext(flat(dma_wq() + [adv_wqm(), set_wq(1), flip_x()]))
    wq1 = dma_wq()
    p.ext(flat(wq1[:3]))
    p(f"s_and_b32 {sT1}, {sW}, 1\ns_lshr_b32 {sT2}, {sW}, 1")
    p(f"s_mul_i32 {sKo}, {sT2}, 196608\ns_mul_i32 {sT3}, {sT1}, 6144\ns_add_u32 {sKo}, {sKo}, {sT3}\ns_mov_b32 {sVo}, {sKo}\ns_mov_b32 {sKV0}, {sKo}")
    if OPT["krot"]:
        if OPT["krot"] == 1: p(f"s_lshr_b32 {sT0}, s2, 3\ns_add_u32 {sT0}, {sT0}, s2")
        if OPT["krot"] == 2: p(f"s_mul_i32 {sT0}, s2, 0x9e3779b1\ns_lshr_b32 {sT0}, {sT0}, 28\ns_lshl3_add_u32 {sT0}, {sT2}, {sT0}")
        if OPT["krot"] == 5: p(f"s_lshl_b32 {sT0}, {sT2}, 3")
        if OPT["krot"] == 6: p(f"s_lshl_b32 {sT0}, s2, 1\ns_add_u32 {sT0}, {sT0}, {sT2}\ns_mul_i32 {sT0}, {sT0}, 0x9e3779b1\ns_lshr_b32 {sT0}, {sT0}, 28")
        if OPT["krot"] == 7: p(f"s_mul_i32 {sT0}, s2, 0x9e3779b1\ns_lshr_b32 {sT0}, {sT0}, 28")
        if OPT["krot"] == 3: p(f"s_lshl_b32 {sT0}, {sHP}, 1\ns_add_u32 {sT0}, {sT0}, {sT2}")
        if OPT["krot"] == 4: p(f"s_lshl_b32 {sT0}, {sB}, 1\ns_add_u32 {sT0}, {sT0}, {sBR}")
        p(f"s_and_b32 {sT0}, {sT0}, 15\ns_mul_i32 {sT0}, {sT0}, 12288\ns_add_u32 {sKV0}, {sKo}, 196608\ns_add_u32 {sKo}, {sKo}, {sT0}\ns_mov_b32 {sVo}, {sKo}")
    p(f"s_add_u32 {sKm}, {sW6}, {S[4]}\ns_add_u32 {sVm}, {sW6}, {S[5]}")
    p(f"s_lshr_b32 {sSk}, s2, 3\ns_and_b32 {sSk}, {sSk}, {OPT['skipn']-1}\ns_add_u32 {sSk}, {sSk}, {OPT['skip0']}\ns_mov_b32 {sThr}, {OPT['thr']}")
    p(f"s_lshl_b32 {sT0}, {sB}, 4\ns_add_u32 {sT0}, {sT0}, {sHP}\ns_mul_i32 {sT3}, {sT0}, 393216")
    mk(sK, 6, sT3, 393216); mk(sV, 8, sT3, 393216)
    p(f"s_mul_i32 {sT3}, {sHP}, 491520"); mk(sWO, 12, sT3, 491520)
    p(f"s_lshl_b32 {sG}, {sBR}, 3\ns_add_u32 {sG}, {sG}, {sB}\ns_lshl_b32 {sT0}, {sG}, 4\ns_add_u32 {sT0}, {sT0}, {sHP}")
    p(f"s_mul_i32 {sT3}, {sT0}, {PART}"); mk(sP, pWS, sT3, PART)
    p(f"s_lshl_b32 {sT3}, {sT0}, {OPT['fs']}\ns_add_u32 {sT3}, {sT3}, {FLAG_OFF}"); mk(sFL, pWS, sT3, OPT["fw"])
    p(f"s_lshl_b32 {sT3}, {sG}, {OPT['fs']+4}\ns_add_u32 {sT3}, {sT3}, {FLAG_OFF}"); mk(sFG, pWS, sT3, 16 << OPT["fs"])
    mk(sFA, pWS, FLAG_OFF, 352 << OPT['fs'])
    mk(sDG, pDBG, 0, OPT['fw'])
    p(f"s_cmp_eq_u32 {sW}, 0\ns_cselect_b32 s{sFL+2}, {OPT['fw']}, 0")
    p(f"v_lshlrev_b32 v{vFo}, {OPT['fs']}, {l}\nv_lshlrev_b32 v{vF4}, 2, {l}")
    c = (192 ** -0.5) * math.log2(math.e)
    p(f"s_mov_b32 {sC}, {struct.unpack('<I', struct.pack('<f', c))[0]:#x}")
    p(f"s_lshr_b32 {sCrot}, {sB}, 1\ns_and_b32 {sKrot}, {sB}, 1\ns_lshl_b32 {sKrot}, {sKrot}, 1")
    p(f"s_cmp_eq_u32 {sB}, 7\ns_cselect_b32 {sCrot}, 4, {sCrot}\ns_cselect_b32 {sKrot}, 0, {sKrot}")
    for ci, x in enumerate((3, 1, 2, None, 0)):
        p(f"s_mov_b32 {sT0}, 4" if x is None else f"s_xor_b32 {sT0}, {sJ}, {x}")
        p(f"s_add_u32 {sT0}, {sCrot}, {sT0}\ns_cmp_ge_u32 {sT0}, 5\ns_cselect_b32 {sT3}, 5, 0\ns_sub_u32 {sT0}, {sT0}, {sT3}\ns_lshl_b32 {sCo[ci]}, {sT0}, 8")
    for kq in range(4):
        p(f"s_xor_b32 {sT0}, {sKrot}, {kq}\ns_mul_i32 {sKq[kq]}, {sT0}, {96*1280}")
    p(f"s_mul_i32 {sT0}, {sT2}, 12288")
    for j in range(6):
        rowof(j)
        p(f"v_bfe_u32 {t2}, {t1}, 1, 3\nv_xor_b32 {t2}, {t2}, {l}\nv_lshlrev_b32 v{vKs[j]}, 4, {t2}")
        if j >= 3: p(f"v_add_u32 v{vKs[j]}, 3072, v{vKs[j]}")
    p(f"v_and_b32 {t0}, 15, {l}\nv_lshrrev_b32 {t1}, 4, {l}\nv_lshrrev_b32 {t2}, 1, {t0}\nv_xor_b32 {t2}, {t2}, {t1}")
    p(f"v_mul_u32_u24 {t3}, 384, {t0}\nv_add_u32 {t3}, {sT0}, {t3}\nv_add_u32 {t3}, {S[4]}, {t3}")
    p(f"v_lshl_add_u32 v{vKr[0]}, {t2}, 4, {t3}\nv_xor_b32 {t4}, 4, {t2}\nv_lshl_add_u32 v{vKr[1]}, {t4}, 4, {t3}")
    p(f"s_mul_i32 {sT3}, {sT1}, {48*128}\ns_add_u32 {sT3}, {sT3}, {S[3]}")
    p(f"v_lshlrev_b32 {t3}, 7, {t0}\nv_add_u32 {t3}, {sT3}, {t3}")
    p(f"v_lshl_add_u32 v{vXr[0]}, {t2}, 4, {t3}")
    p(f"s_and_b32 {sT3}, {sB}, 1\ns_lshl_b32 {sT3}, {sT3}, 6\nv_xor_b32 v{vXr[0]}, {sT3}, v{vXr[0]}")
    p(f"v_xor_b32 v{vXr[1]}, 64, v{vXr[0]}")
    p(f"s_mul_i32 {sT3}, {sW}, 24\nv_lshlrev_b32 {t2}, 1, {t1}\nv_xor_b32 {t2}, {t2}, {t0}\nv_add_u32 {t3}, {sT3}, {t1}")
    p(f"v_mul_u32_u24 {t3}, 1280, {t3}\nv_lshl_add_u32 v{vOs[0]}, {t2}, 4, {t3}\nv_xor_b32 {t2}, 128, v{vOs[0]}")
    for j in range(1, 6):
        p(f"v_add_u32 v{vOs[j]}, {5120*j-1024*(j%3)}, " + (t2 if j & 1 else f"v{vOs[0]}"))
    p(f"v_lshrrev_b32 {t0}, 2, {l}\nv_and_b32 {t1}, 3, {l}\nv_bfe_u32 {t2}, {l}, 3, 2")
    p(f"v_mul_u32_u24 {t3}, 384, {t0}\nv_lshl_add_u32 {t3}, {t1}, 3, {t3}\nv_add_u32 {t3}, {sT0}, {t3}\nv_add_u32 {t3}, {S[1]}, {t3}")
    for dl in range(4):
        p(f"v_xor_b32 {t4}, {dl}, {t2}\nv_lshl_add_u32 v{vVr[dl]}, {t4}, 5, {t3}")
    p(f"v_lshlrev_b32 {t3}, 8, {t0}\nv_lshl_add_u32 {t3}, {t1}, 3, {t3}\nv_and_b32 {t2}, 7, {t0}\ns_lshl_b32 {sT3}, {sW}, 1\nv_xor_b32 {t2}, {sT3}, {t2}")
    p(f"v_lshl_add_u32 v{vOr[0][0]}, {t2}, 5, {t3}\nv_xor_b32 v{vOr[1][0]}, 32, v{vOr[0][0]}")
    for nu in range(2): p(f"v_add_u32 v{vOr[nu][1]}, {S[2]}, v{vOr[nu][0]}\nv_add_u32 v{vOr[nu][2]}, {S[4]}, v{vOr[nu][0]}")
    p(f"v_lshlrev_b32 {t0}, 4, {l}")
    p(f"s_mul_i32 {sT3}, {sW}, 3072\ns_add_u32 {sT3}, {sT3}, {S[3]}\nv_add_u32 v{vOw}, {sT3}, {t0}")
    p(f"s_mul_i32 {sT3}, {sKrot}, 3072\ns_add_u32 {sT3}, {sT3}, {S[3]}\nv_add_u32 v{vBr[0]}, {sT3}, {t0}\nv_add_u32 v{vBr[1]}, 36864, v{vBr[0]}")
    p(f"s_xor_b32 {sT3}, {sKrot}, 2\ns_mul_i32 {sT3}, {sT3}, 3072\ns_add_u32 {sT3}, {sT3}, {S[3]}\nv_add_u32 v{vBr[2]}, {sT3}, {t0}\nv_add_u32 v{vBr[3]}, 36864, v{vBr[2]}")
    p(f"v_add_u32 v{vPs[0]}, {sW6}, {t0}\nv_add_u32 v{vPs[1]}, 3072, v{vPs[0]}")
    for r in range(144): p(f"v_mov_b32 v{r}, 0")
    for qb in range(3): p(f"v_mov_b32 v{vM[qb]}, 0xff7fffff\nv_mov_b32 v{vMc[qb]}, 0xff7fffff\nv_mov_b32 v{vL[qb]}, 0")
    p(f"s_mov_b32 {sRd}, 1\ns_mov_b32 {sT2}, {SLOT}\ns_mov_b32 {sI}, 0\ns_mov_b32 {sDK}, 12288")
    p("s_cmp_lg_u32 s2, 0\ns_cbranch_scc1 L_nc")
    lg = OPT["fw"].bit_length() - 5
    p(f"v_lshrrev_b32 {t0}, {lg}, {l}\nv_lshlrev_b32 {t0}, {OPT['fs']}, {t0}\nv_and_b32 {t1}, {(1 << lg) - 1}, {l}\nv_lshl_add_u32 {t0}, {t1}, 4, {t0}\ns_lshl_b32 {sT0}, {sW}, {OPT['fs']+6}")
    for k in range(1 << lg): p(f"buffer_store_dwordx4 v[0:3], {t0}, {srd(sFA)}, {sT0} offen sc1\ns_add_u32 {sT0}, {sT0}, {(64 >> lg) << OPT['fs']}")
    if OPT["tk"]:
        p(f"s_lshl_b32 {sT0}, {sW}, {OPT['fs']+4}\ns_add_u32 {sT0}, {sT0}, {256 << OPT['fs']}")
        for k in range(2): p(f"buffer_store_dwordx4 v[0:3], {t0}, {srd(sFA)}, {sT0} offen sc1\ns_add_u32 {sT0}, {sT0}, {8 << OPT['fs']}")
    if OPT["fair"]:
        p(f"s_lshl_b32 {sT0}, {sW}, {OPT['fs']+3}\ns_add_u32 {sT0}, {sT0}, {320 << OPT['fs']}\nbuffer_store_dwordx4 v[0:3], {t0}, {srd(sFA)}, {sT0} offen sc1")
    p("L_nc:")
    rd0 = reads_x(0, 0) + reads_t(lambda t: FA(0, t))
    rest = dma_x() + dma_wq() + [adv_wqm(), set_wq(1), flip_x()]
    if OPT["pre"] == 0:
        p("s_waitcnt vmcnt(3)\ns_barrier"); stamp(p)
        p.ext(weave(rd0, wq1[3:] + [adv_wqm(), flat(next_pair()), set_wq(0)] + rest))
    elif OPT["pre"] == 1:
        p.ext(flat(wq1[3:] + [adv_wqm(), flat(next_pair()), set_wq(0)] + rest[:3]))
        p("s_waitcnt vmcnt(9)\ns_barrier"); stamp(p)
        p.ext(weave(rd0, rest[3:]))
    else:
        p.ext(flat(wq1[3:] + [adv_wqm(), flat(next_pair()), set_wq(0)] + rest[:6]))
        p("s_waitcnt vmcnt(12)\ns_barrier"); stamp(p)
        p.ext(weave(rd0, rest[6:]))
    p.ext(flat(adv_rd_wq()))
    p(f"v_add_u32 v{vXr[0]}, {sDK}, v{vXr[0]}")
    DS9 = list(range(0, 36, 4))
    def conv(ks):
        g = []
        R = lambda qb: 144 + 4 * qb + 12 * (ks & 1)
        for qb in range(3):
            a, b, r = ACC(2 * ks, qb), ACC(2 * ks + 1, qb), R(qb)
            g += [f"v_cvt_pk_bf16_f32 v{r}, v{a}, v{a+1}", f"v_cvt_pk_bf16_f32 v{r+1}, v{a+2}, v{a+3}",
                  f"v_cvt_pk_bf16_f32 v{r+2}, v{b}, v{b+1}", f"v_cvt_pk_bf16_f32 v{r+3}, v{b+2}, v{b+3}"]
        for op in ("v_permlane32_swap_b32", "v_permlane16_swap_b32"):
            for qb in range(3): g += [f"{op} v{R(qb)}, v{R(qb)+2}", f"{op} v{R(qb)+1}, v{R(qb)+3}"]
        for qb in range(3): g += [f"v_accvgpr_write_b32 a{QF(ks, qb)+i}, v{R(qb)+i}" for i in range(4)]
        return g
    def qstep(par, wait, dmas, advs, do_reads=True, tail=[], valu=[]):
        if wait: p(wait + " lgkmcnt(0)")
        p("s_barrier")
        stamp(p, "q")
        G = Gaps([f"{M16} {v4(ACC(t, qb))}, {a4(FA(par, t))}, {a4(FB(par, qb))}, {v4(ACC(t, qb))}" for t in range(12) for qb in range(3)])
        slots = DS9 if len(dmas) > 6 else [0, 5, 10, 15, 20, 25]
        G.vm(dmas, slots)
        for k, a in advs: G.put(k, a)
        if do_reads:
            pos = G.mems(reads_x(1 - par, 1 - par) + reads_t(lambda t: FA(1 - par, t)), 0, 32)
            ad = adv_rd_wq()
            G.put(17, ad[0][:2]); G.put(18, ad[0][2:])
            for k in range(4): G.put(pos[3 + 17 + 2 * k] + 1, ad[1 + k])
            if par == 0: G.put(9, f"v_add_u32 v{vXr[1]}, {sDK}, v{vXr[1]}")
            else: G.put(9, [f"s_sub_u32 {sDK}, 0, {sDK}", f"v_add_u32 v{vXr[0]}, {sDK}, v{vXr[0]}"])
        G.spread(valu, 10, 36)
        G.put(34, tail)
        p.ext(G.out())
    def announce():
        p(f"s_or_b32 {sT0}, s2, {sW} ; scc-ok\ns_cbranch_scc1 L_na\nv_mov_b32 v{vFv}, 1\nbuffer_store_dword v{vFv}, v{vF4}, {srd(sDG)}, 0 offen sc1\nL_na:")
    sFo, sFt, sCn2 = "s0", "s1", "s3"
    npr = next_pair()
    def table(dst, digits):
        d = (str(digits) * 8)[:8]
        p(f"s_add_u32 {sT0}, {sB}, {sJ}\ns_and_b32 {sT0}, {sT0}, 7\ns_lshl_b32 {sT0}, {sT0}, 2\ns_lshr_b32 {dst}, {sum((int(c) + 1) << (4 * k) for k, c in enumerate(d)):#x}, {sT0}\ns_and_b32 {dst}, {dst}, 15")
    table(sKb, OPT["kst"]); table(sVb, OPT["vst"])
    p(f"s_mov_b32 {sBm}, 256\ns_bitset1_b32 {sBm}, {sKb}\ns_bitset1_b32 {sBm}, {sVb}")
    p(f"s_or_b32 {sStop}, {sBm}, 16\ns_getreg_b32 {sId}, hwreg(HW_REG_XCC_ID, 0, 4)\ns_add_u32 {sId}, {sId}, 1\ns_lshl_b32 {sId}, {sId}, 8")
    side = []
    ld_init = f"buffer_load_dword v{vIn}, off, {srd(sDG)}, 0 sc1"
    def publish(n, fl="sc1"): return [f"s_add_u32 {sT1}, {sId}, {n}", f"v_mov_b32 v{vFv}, {sT1}", f"buffer_store_dword v{vFv}, v{vF4}, {srd(sFL)}, 0 offen {fl}"]
    def spin(n, load, cnt=sCnt): side.append(f"L_s{n}:\n" + (f"s_sleep {OPT['slp']}\n" if OPT["slp"] else "") + f"{load} ; side\ns_add_u32 {cnt}, {cnt}, 1\ns_cmp_lt_u32 {cnt}, 200000\ns_waitcnt vmcnt(0)\ns_cbranch_scc1 L_c{n}\ns_branch L_k{n}")
    TS = list(zip([x for x in str(OPT["tst"]).split(",") if x], [int(x) for x in str(OPT["tt"]).split(",")], ["s87", "s0", "s1"][::-1]))
    for st, _, r in TS:
        table(r, st); p(f"s_bitset1_b32 {sBm}, {r}")
    if TS: p(f"v_and_b32 {t4}, 7, {l}\nv_lshlrev_b32 {t4}, 7, {t4}")
    def qwait(n, tag):
        if not OPT["dynq"]: return f"s_waitcnt vmcnt({n})"
        p(f"s_bitcmp1_b32 {sBm}, {sI}\ns_waitcnt vmcnt({n+6}) lgkmcnt(0)\ns_cbranch_scc1 L_qw{tag}\ns_waitcnt vmcnt({n})\nL_qw{tag}:")
        return None
    p("s_waitcnt lgkmcnt(0)")
    p("L_q:")
    qstep(0, qwait(9, "e"), dma_wq(), [(26, adv_wqm())] + [(27 + k, g) for k, g in enumerate(npr)] + [(33, set_wq(0))])
    qstep(1, qwait(6, "o"), dma_x() + dma_wq(), [(13, flip_x()), (29, adv_wqm()), (33, set_wq(1))],
          tail=[f"s_add_u32 {sI}, {sI}, 1", f"s_bitcmp0_b32 {sStop}, {sI}"])
    p("s_waitcnt lgkmcnt(0)")
    p("s_cbranch_scc1 L_q")
    p(f"s_cmp_lg_u32 {sI}, {sKb}\ns_cbranch_scc1 L_q1")
    if OPT["fair"] or OPT["ann"]: announce()
    p.ext(flat(dma_k() + adv_k()))
    p("L_q1:")
    p(f"s_cmp_lg_u32 {sI}, 4\ns_cbranch_scc1 L_q3\n{ld_init}\nL_q3:")
    p(f"s_cmp_lg_u32 {sI}, {sVb}\ns_cbranch_scc1 L_q2")
    assert min(int(c) for c in str(OPT["vst"])) >= 5 and max(int(c) for c in str(OPT["kst"])) <= 2
    p(f"s_mov_b32 {sT3}, 0\nL_c0:\nv_readfirstlane_b32 {sT0}, v{vIn}\ns_cmp_eq_u32 {sT0}, 1\ns_cbranch_scc0 L_s0\nL_k0:"); spin(0, ld_init, sT3)
    p.ext(publish(0))
    p.ext(flat(dma_v() + adv_v()))
    p("L_q2:")
    for k, (_, t, r) in enumerate(TS):
        p(f"s_cmp_lg_u32 {sI}, {r}\ns_cbranch_scc1 L_qt{k}\ns_add_u32 {sT0}, {sKV0}, {12288*(t>>1)}\ns_add_u32 {sT3}, {sT0}, 3072")
        for j in range(6): p(f"buffer_load_dword v{vCd}, {t4}, {srd(sV if t & 1 else sK)}, {sT0 if j < 3 else sT3} offen offset:{1024*(j%3)} {OPT['tfl']}")
        p(f"L_qt{k}:")
    p(f"s_cmp_lt_u32 {sI}, 8\ns_cbranch_scc1 L_q")
    vm = VM(["wq17"] * 6 + ["x9"] * 3 + ["wq18"] * 6)
    kv = lambda a: [(27 + 2 * k, x) for k, x in enumerate(a)]
    w = vm.wait("wq17"); vm.issue("wq19", 6); qstep(0, w, dma_wq(), [])
    if OPT["fair"]: p(f"buffer_load_dword v{vIn}, off, {srd(sDG)}, 0 sc1"); vm.issue("init")
    w = vm.wait("wq18"); vm.issue("t2", 6); qstep(1, w, dma_k(), kv(adv_k()))
    w = vm.wait("wq19"); vm.issue("t3", 6); qstep(0, w, dma_v(), kv(adv_v()))
    c01 = conv(0) + conv(1)[:12]
    if OPT["dist"] == 4: qstep(1, "s_waitcnt", [], [], do_reads=False, valu=c01)
    else: qstep(1, "s_waitcnt", dma_k(), kv(adv_k()), do_reads=False, valu=c01)
    stamp(p)
    p.ext(conv(1)[12:])
    for ks in range(2, 6): p.ext(conv(ks))
    for r in vVr: p(f"v_add_u32 v{r}, {S[5]}, v{r}")
    p(f"s_mov_b32 {sRd}, {S[4]}\ns_mov_b32 {sI}, 0\ns_mov_b32 {sRet}, 0")
    if OPT["fair"]:
        p(f"s_mov_b32 {sCn2}, 0\ns_waitcnt vmcnt(18)\nL_c0:\nv_readfirstlane_b32 {sT1}, v{vIn}\ns_cmp_eq_u32 {sT1}, 1\ns_cbranch_scc0 L_s0\nL_k0:")
        p(f"s_add_u32 {sFo}, {sB}, s2\ns_and_b32 {sFo}, {sFo}, 7\ns_lshl3_add_u32 {sFo}, {sW}, {sFo}\ns_add_u32 {sFo}, {sFo}, 320\ns_lshl_b32 {sFo}, {sFo}, {OPT['fs']}")
        p(f"s_mul_i32 {sFt}, {sW}, {OPT['fth']}\ns_add_u32 {sFt}, {sFt}, {16 - (3 * OPT['fth']) // 2 - 32}")
        p(f"v_lshlrev_b32 v247, 20, {l}\nv_mov_b32 v{vIn}, -16")
    elif not OPT["ann"]: announce()
    stamp(p)

    sv = lambda qb: [SS(0, qb) + i for i in range(4)] + [SS(1, qb) + i for i in range(4)]
    def probs(qb, check, dst=None, pack=True):
        x = sv(qb); y = dst or vPt; g = []
        g += [f"v_fma_f32 v{y[i]}, v{x[i]}, {sC}, -v{vMc[qb]}" for i in range(8)]
        if check:
            m = vMx[0]
            if qb == 0: g += [f"v_max3_f32 v{m}, v{y[0]}, v{y[1]}, v{y[2]}", f"v_max3_f32 v{m}, v{m}, v{y[3]}, v{y[4]}", f"v_max3_f32 v{m}, v{m}, v{y[5]}, v{y[6]}", f"v_max_f32 v{m}, v{m}, v{y[7]}"]
            else: g += [f"v_max3_f32 v{m}, v{m}, v{y[2*i]}, v{y[2*i+1]}" for i in range(4)]
        g += [f"v_exp_f32 v{y[i]}, v{y[i]}" for i in range(8)]
        t = vTm[qb]; u = vMx[1]
        g += [f"v_add_f32 v{t}, v{y[0]}, v{y[1]}", f"v_add_f32 v{u}, v{y[2]}, v{y[3]}", f"v_add_f32 v{t}, v{t}, v{y[4]}", f"v_add_f32 v{u}, v{u}, v{y[5]}",
              f"v_add_f32 v{t}, v{t}, v{y[6]}", f"v_add_f32 v{u}, v{u}, v{y[7]}"]
        if pack: g += [f"v_cvt_pk_bf16_f32 v{PP(qb)+i}, v{y[2*i]}, v{y[2*i+1]}" for i in range(4)]
        g += [f"v_add_f32 v{t}, v{t}, v{u}"]
        return g
    def rescale():
        return [f"v_pk_mul_f32 v[{ACC(t, qb)+h}:{ACC(t, qb)+h+1}], v[{ACC(t, qb)+h}:{ACC(t, qb)+h+1}], v[{vAl[qb]}:{vAl[qb]+1}] op_sel_hi:[1,0]"
                for t in range(12) for qb in range(3) for h in (0, 2)]
    def xlane(regs, op, vPt=vPt):
        g = []
        for sw in ("v_permlane32_swap_b32", "v_permlane16_swap_b32"):
            g += [f"v_mov_b32 v{vPt[qb]}, v{regs[qb]}" for qb in range(3)]
            g += [f"{sw} v{regs[qb]}, v{vPt[qb]}" for qb in range(3)]
            g += [f"{op} v{regs[qb]}, v{regs[qb]}, v{vPt[qb]}" for qb in range(3)]
        return g
    def slow_path():
        g = []
        for k in range(4):
            for qb in range(3):
                x = sv(qb)
                g.append(f"v_max3_f32 v{vMx[qb]}, v{vM[qb] if k == 0 else vMx[qb]}, v{x[2*k]}, v{x[2*k+1]}")
        g += xlane(vMx, "v_max_f32")
        g += [f"v_sub_f32 v{vTm[qb]}, v{vM[qb]}, v{vMx[qb]}" for qb in range(3)]
        g += [f"v_mul_f32 v{vMc[qb]}, {sC}, v{vMx[qb]}" for qb in range(3)]
        g += [f"v_mul_f32 v{vTm[qb]}, {sC}, v{vTm[qb]}" for qb in range(3)]
        g += [f"v_mov_b32 v{vM[qb]}, v{vMx[qb]}" for qb in range(3)]
        g += [f"v_exp_f32 v{vAl[qb]}, v{vTm[qb]}" for qb in range(3)]
        for qb in range(3): g += probs(qb, False)
        g += [f"v_mul_f32 v{vL[qb]}, v{vL[qb]}, v{vAl[qb]}" for qb in range(3)]
        return g + rescale()
    vKeep = [vPt, vKs + vVs[:2], [vVs[2]] + T[2:6] + [vFv, 247, vIn]]
    def kstep(dmas, advs, ret):
        last = ret == 1 and OPT["fn"]
        pr = (lambda qb: probs(qb, True, vKeep[qb], False)) if last else (lambda qb: probs(qb, True))
        p("s_barrier")
        stamp(p, "a")
        rd = [f"ds_read_b128 {a4(FA(0, ks*2+kb))}, v{vKr[ks&1]} offset:{kb*6144+(ks>>1)*128}" for ks in range(6) for kb in range(2)]
        G = Gaps([f"{M16} {v4(SS(kb, qb))}, {a4(FA(0, ks*2+kb))}, {a4(QF(ks, qb))}, {'0' if ks == 0 else v4(SS(kb, qb))}"
                  for qb in range(3) for ks in range(6) for kb in range(2)])
        p.ext(rd[:7])
        G.mems(rd[7:], 0, 5)
        G.put(5, [f"s_add_u32 {sRd}, {sRd}, {2*SLOT}", f"s_cmp_ge_u32 {sRd}, {6*SLOT}"])
        G.put(6, [f"s_cselect_b32 {sRd}, 0, {sRd}", f"s_cselect_b32 {sDK}, {-4*SLOT & 0xffffffff}, {sT2}"])
        G.put(8, f"v_add_u32 v{vKr[0]}, {sDK}, v{vKr[0]}"); G.put(9, f"v_add_u32 v{vKr[1]}, {sDK}, v{vKr[1]}")
        G.vm(dmas[:4], [8, 14, 22, 30])
        G.spread(pr(0), 14, 25); G.spread(pr(1), 26, 36)
        p.ext(G.out())
        p.ext(weave(pr(2), dmas[4:] + advs, 2, 26))
        if OPT["lazy"]: p(f"v_cmp_lt_f32 vcc, {sThr}, v{vMx[0]}\ns_cbranch_vccnz L_slow")
        else: p("s_branch L_slow")
        p(f"L_ret{ret}:")
        for qb in range(3): p(f"v_add_f32 v{vL[qb]}, v{vL[qb]}, v{vTm[qb]}")
    def pv_mfmas(): return [f"{M16} {v4(ACC(t, qb))}, {a4(FA(1, t))}, {v4(PP(qb))}, {v4(ACC(t, qb))}" for t in range(12) for qb in range(3)]
    def vstep(dmas, advs, tail=[]):
        p("s_barrier")
        stamp(p, "a")
        rd = reads_t(lambda t: FA(1, t))
        p.ext(rd[:6])
        G = Gaps(pv_mfmas())
        G.vm(dmas, [3, 8, 13, 18, 23, 28])
        G.mems(rd[6:], 0, 23)
        for k in range(4): G.put(24 + k, f"v_add_u32 v{vVr[k]}, {sDK}, v{vVr[k]}")
        for k, a in enumerate(advs): G.put(30 + k, a)
        G.put(33, tail)
        p.ext(G.out())
    def dynwait(n, tag):
        p(f"s_add_u32 {sT0}, {sSk}, {n}\ns_cmp_le_u32 {sI}, {sT0}\ns_waitcnt vmcnt(24)\ns_cbranch_scc1 L_dw{tag}\ns_waitcnt vmcnt(12)\nL_dw{tag}:")
    p(f"s_mov_b32 {sT2}, {2*SLOT}")
    def windowed(g, n=OPT["win"]): return [x[:-1] + [f"s_waitcnt vmcnt({n})", x[-1]] for x in g] if n else g
    D = OPT["dist"]
    nxt_it = [f"s_add_u32 {sI}, {sI}, 1", f"s_cmp_lg_u32 {sI}, {OPT['codeit']}"]
    p("L_a:")
    if D == 3:
        p(f"s_cmp_eq_u32 {sI}, {sSk}\ns_cselect_b32 {sDV}, 0, 12288\ns_cselect_b32 s{sK+2}, 0, 393216\ns_cselect_b32 s{sV+2}, 0, 393216")
        def body(n, n2, ret, tg):
            dynwait(2, "k" + tg)
            kstep(windowed(dma_v(), n), adv_v(sDV), ret)
            p(f"s_cmp_eq_u32 {sI}, 14\ns_cbranch_scc1 L_ae")
            dynwait(1, "v" + tg)
            vstep(windowed(dma_k(), n2), adv_k(sDV), nxt_it)
        if OPT["fair"]:
            if OPT["fper"] > 1: p(f"s_and_b32 {sT0}, {sI}, {OPT['fper']-1} ; scc-ok\ns_cbranch_scc1 L_f1")
            p(f"v_readfirstlane_b32 {sT0}, v{vIn}\nv_mov_b32 v{vIn}, 1\ns_cmp_gt_i32 {sT0}, {sFt}\ns_cselect_b32 {sRet}, 3, 0\ns_add_u32 {sFt}, {sFt}, 32")
            p(f"buffer_atomic_add v{vIn}, v247, {srd(sFA)}, {sFo} offen sc0 sc1")
            p(f"L_f1:\ns_cmp_eq_u32 {sRet}, 0\ns_cbranch_scc1 L_a0")
            body(OPT["wbig"], OPT["wbig"], 3, "b")
            p("s_branch L_a2\nL_a0:")
        body(OPT["win"], OPT["win2"] or OPT["win"], 0, "")
        p("L_a2:")
    elif D == 5:
        p("s_waitcnt vmcnt(24)")
        kstep(windowed(dma_v()), adv_v(), 0)
        p(f"s_cmp_eq_u32 {sI}, 13\ns_cbranch_scc1 L_ae\ns_waitcnt vmcnt(24)")
        vstep(windowed(dma_k()), adv_k(), nxt_it)
    else:
        p(f"s_cmp_eq_u32 {sI}, 14\ns_cbranch_scc1 L_ae\ns_waitcnt vmcnt(18)")
        kstep(windowed(dma_k()), adv_k(), 0)
        p("s_waitcnt vmcnt(18)")
        vstep(windowed(dma_v()), adv_v(), nxt_it)
    p("s_cbranch_scc1 L_a")
    if OPT["code"] & 2: p(f"global_load_dword v{vCd}, v{vCo}, s[26:27]")
    p("s_branch L_a")
    p("L_slow:")
    p.ext(slow_path())
    p(f"s_cmp_eq_u32 {sRet}, 0\ns_cbranch_scc1 L_ret0")
    if D != 3: p(f"s_cmp_eq_u32 {sRet}, 2\ns_cbranch_scc1 L_ret2")
    if OPT["fair"]: p(f"s_cmp_eq_u32 {sRet}, 3\ns_cbranch_scc1 L_ret3")
    if OPT["fn"]:
        for qb in range(3): p.ext(probs(qb, False, vKeep[qb], False))
    p("s_branch L_ret1")
    p("L_ae:")
    stamp(p)
    vm = VM([f"t{t}" for t in range(32 - D, 32) for _ in range(6)])
    def w3touch():
        nr = OPT["wnr"]
        p(f"s_lshr_b32 {sT0}, {sB}, 1\ns_lshl_b32 {sT0}, {sT0}, 2\ns_add_u32 {sT0}, {sT0}, {sW}\ns_mul_i32 {sT0}, {sT0}, {nr*1280}")
        p(f"s_and_b32 {sT1}, {sB}, 1\ns_xor_b32 {sT3}, {sJ}, 3\ns_add_u32 {sT1}, {sT1}, {sT3}\ns_add_u32 {sT1}, {sT1}, 3\ns_cmp_ge_u32 {sT1}, 5\ns_cselect_b32 {sT3}, 5, 0\ns_sub_u32 {sT1}, {sT1}, {sT3}")
        p(f"s_lshl_b32 {sT1}, {sT1}, 8\ns_add_u32 {sT0}, {sT0}, {sT1}\ns_add_u32 {sT0}, {sT0}, {(384-16*nr)*1280}")
        p(f"v_min_u32 {t0}, {2*nr-1}, {l}\nv_lshrrev_b32 {t1}, 1, {t0}\nv_and_b32 {t0}, 1, {t0}\nv_mul_u32_u24 {t1}, 1280, {t1}\nv_lshl_add_u32 {t0}, {t0}, 7, {t1}")
        p(f"buffer_load_dword v{vCd}, {t0}, {srd(sWO)}, {sT0} offen"); vm.issue("touch")
        p(f"v_and_b32 {t1}, 1, {l}\nv_add_u32 {t1}, 1, {t1}\nv_xor_b32 {t1}, {sHP}, {t1}\nv_lshlrev_b32 {t1}, {OPT['fs']}, {t1}")
        p(f"buffer_load_dword v{vCo}, {t1}, {srd(sFG)}, 0 offen sc1"); vm.issue("ids")
    if OPT["w3"] and not OPT["tl"]: w3touch()
    nw = 0
    for t in range(32 - D, 31):
        p(vm.wait(f"t{t}"))
        g = []
        if nw < 3:
            vm.issue(f"w{nw}", 6); g = windowed(dma_wo(nw, nw), OPT["wwin"]); nw += 1
        if t & 1: vstep(g, [])
        else:
            r = 1 if t == 30 else 2
            p(f"s_mov_b32 {sRet}, {r}\ns_mov_b32 {sT2}, {2*SLOT}"); kstep(g, [], r)
    if OPT["w3"] and OPT["tl"]: w3touch()
    if OPT["fn"]:
        p.ext(xlane(vL, "v_add_f32", vTm))
        for qb in range(3): p(f"v_rcp_f32 v{vAl[qb]}, v{vL[qb]}")
        for qb in range(3):
            y = vKeep[qb]
            for r in y: p(f"v_mul_f32 v{r}, v{vAl[qb]}, v{r}")
            for i in range(4): p(f"v_cvt_pk_bf16_f32 v{PP(qb)+i}, v{y[2*i]}, v{y[2*i+1]}")
    else:
        p.ext(xlane(vL, "v_add_f32"))
        for qb in range(3): p(f"v_rcp_f32 v{vAl[qb]}, v{vL[qb]}\nv_log_f32 v{vTm[qb]}, v{vL[qb]}")
        for qb in range(3): p(f"v_add_f32 v{vMc[qb]}, v{vMc[qb]}, v{vTm[qb]}")
        for qb in range(3): p.ext([x for x in probs(qb, False) if not x.startswith("v_add")])
    p.ext(rescale())
    p(f"s_mul_i32 {sT0}, {sG}, {16*PART}"); mk(sPG, pWS, sT0, 16 * PART)
    mk(sOUT, pOUT, 0, 1966080)
    p(vm.wait("t31")); p("s_barrier")
    stamp(p)
    AB = [144, 96]
    def AF(sig, tp, nu): return AB[sig & 1] + 8 * tp + 4 * nu
    def reads_wo(sig, slot):
        g = []
        for tp in range(3):
            for nu in range(2):
                r = AF(sig, tp, nu); o = (slot & 1) * SLOT + 32 * tp * 256
                g.append(f"ds_read_b64_tr_b16 v[{r}:{r+1}], v{vOr[nu][slot>>1]} offset:{o}")
                g.append(f"ds_read_b64_tr_b16 v[{r+2}:{r+3}], v{vOr[nu][slot>>1]} offset:{o+4096}")
        return g
    def o_out(tp):
        g = []
        for qb in range(3):
            a, b = ACC(2 * tp, qb), ACC(2 * tp + 1, qb)
            g += [f"v_cvt_pk_bf16_f32 v{a}, v{a}, v{a+1}", f"v_cvt_pk_bf16_f32 v{a+1}, v{a+2}, v{a+3}",
                  f"v_cvt_pk_bf16_f32 v{a+2}, v{b}, v{b+1}", f"v_cvt_pk_bf16_f32 v{a+3}, v{b+2}, v{b+3}",
                  f"ds_write_b128 v{vOw}, {v4(a)} offset:{tp*12288+qb*1024}"]
        return g
    rd = reads_t(lambda t: FA(1, t))
    p.ext(rd[:10])
    G = Gaps(pv_mfmas())
    G.mems(rd[10:], 0, 10)
    if nw < 3 and not OPT["w2l"]:
        vm.issue("w2", 6)
        G.vm(dma_wo(2, 2), [3, 9, 15, 21, 27, 33])
    for tp in range(4): G.spread(o_out(tp), 10 + 6 * tp, 16 + 6 * tp + (2 if tp == 3 else 0))
    p.ext(G.out())
    p(vm.wait("w0")); p("s_barrier")
    if nw < 3 and OPT["w2l"]:
        vm.issue("w2", 6)
        p.ext(weave2(o_out(4) + o_out(5), [(reads_wo(0, 0), 0, 30), (dma_wo(2, 2), 2, 30)]))
    else: p.ext(weave(o_out(4) + o_out(5), reads_wo(0, 0)))
    p("; vmq " + " ".join(f"{t}*1" for t in vm.q))
    tag = lambda g, t: g[:-1] + [g[-1] + f" ; vm={t}"]
    def BF(kq, tp, q):
        f = (kq * 3 + tp) * 6 + q
        return a4(4 * f) if f < 64 else v4(168 + 4 * (f - 64))
    def reads_b(k): return [f"ds_read_b128 {BF(k//3, k%3, q)}, v{vBr[k//3]} offset:{(k%3)*12288+q*1024}" for q in range(6)] if k < 12 else []
    def OA(ci, q, nu): return 48 * (ci & 1) + 8 * q + 4 * nu
    sBuf = ["s57", "s58", "s59", "s60", "s61"]
    sPf = ["s64", "s65"]
    sRo = ["s66", "s67"]; sRq = ["s68", "s62"]
    def out1(ci, q):
        a = OA(ci, q, 0)
        g = [f"v_cvt_pk_bf16_f32 v{a+i}, v{a+2*i}, v{a+2*i+1}" for i in range(4)]
        return g + [f"buffer_store_dwordx4 {v4(a)}, v{vPs[q//3]}, {srd(sPG)}, {sBuf[ci]} offen offset:{1024*(q%3)} {OPT['gfl'] if ci < 3 else 'sc1'} ; vm=st{ci}"]
    vZ, vSel, vRb, vOb, vRo, vOo = 200, 224, 221, 222, 223, 214
    def xload(n, q): return [f"buffer_load_dwordx4 {v4(120+4*q)}, v{vPs[q//3]}, {srd(sPG)}, {sBuf[2+n]} offen offset:{1024*(q%3)} {OPT['xfl']} ; vm=x{n}_{q}"]
    def xadd(n, q): return [f"s_waitcnt vmcnt(@x{n}_{q})"] + [f"{M16} {v4(OA(0, q, nu))}, {v4(vZ+2-2*nu)}, {v4(120+4*q)}, " + ("0" if n == 1 else v4(OA(0, q, nu))) for nu in range(2)]
    def setup0():
        g = [[f"s_mul_i32 {sBuf[0]}, {sHP}, {PART}", f"s_add_u32 {sBuf[1]}, {sBuf[0]}, 24576", f"s_xor_b32 {sT1}, {sHP}, 1"],
             [f"s_mul_i32 {sBuf[2]}, {sT1}, {PART}", f"s_add_u32 {sBuf[3]}, {sBuf[2]}, 24576", f"s_lshl_b32 {sPf[0]}, {sT1}, {OPT['fs']}"],
             [f"s_xor_b32 {sT1}, {sHP}, 3", f"s_mul_i32 {sBuf[4]}, {sT1}, {PART}"], [f"s_xor_b32 {sT1}, {sHP}, 2", f"s_lshl_b32 {sPf[1]}, {sT1}, {OPT['fs']}"]]
        return g
    def rsetup():
        g = []
        g.append([f"s_mul_i32 {sDV}, {sB}, {96*2560}", f"s_mul_i32 {sT1}, {sBR}, 1280", f"s_add_u32 {sDV}, {sDV}, {sT1}"])
        g.append([f"s_lshl_b32 {sT1}, {sW}, 6", f"s_add_u32 {sDV}, {sDV}, {sT1}"])
        for r in range(2):
            g.append([f"s_add_u32 {sT1}, {sW}, {2*r}", f"s_lshl2_add_u32 {sT1}, {sT1}, {sHP}", f"s_and_b32 {sT1}, {sT1}, 15"])
            g.append([f"s_mul_i32 {sRq[r]}, {sT1}, {8*2560}", f"s_lshr_b32 {sT3}, {sT1}, 1", f"s_mul_i32 {sT3}, {sT3}, 768"])
            g.append([f"s_lshl_b32 {sRo[r]}, {sT1}, 7", f"s_add_u32 {sRo[r]}, {sRo[r]}, {sT3}", f"s_add_u32 {sRo[r]}, {sRo[r]}, {24576*r}"])
            g.append([f"s_cmp_lt_u32 {sT1}, 12", f"s_cselect_b32 {sRo[r]}, {sRo[r]}, 0x40000000", f"s_cselect_b32 {sRq[r]}, {sRq[r]}, 0x40000000"])
        v = [f"v_lshrrev_b32 {t0}, 4, {l}", f"v_and_b32 {t1}, 15, {l}", f"v_lshlrev_b32 {t2}, 8, {t0}", f"v_lshl_add_u32 {t2}, {t1}, 3, {t2}", f"v_add_u32 v{vRb}, {sW6}, {t2}",
             f"v_lshrrev_b32 {t2}, 1, {t1}", f"v_mul_u32_u24 {t2}, 2560, {t2}", f"v_lshl_add_u32 {t2}, {t0}, 3, {t2}", f"v_and_b32 {t3}, 1, {l}", f"v_lshl_add_u32 {t2}, {t3}, 5, {t2}",
             f"v_add_u32 v{vOb}, {sDV}, {t2}",
             f"v_lshlrev_b32 {t3}, 4, {t3}", f"v_mov_b32 {t2}, 0x3f80", f"v_lshlrev_b32 {t2}, {t3}, {t2}", f"v_lshrrev_b32 {t1}, 1, {t1}", f"v_lshlrev_b32 {t0}, 1, {t0}",
             [f"v_cmp_eq_u32 vcc, {t0}, {t1}", f"v_cndmask_b32 v{vSel}, 0, {t2}, vcc"], f"v_add_u32 {t0}, 1, {t0}",
             [f"v_cmp_eq_u32 vcc, {t0}, {t1}", f"v_cndmask_b32 v{vSel+1}, 0, {t2}, vcc"], f"v_mov_b32 v{vSel+2}, v{vSel}", f"v_mov_b32 v{vSel+3}, v{vSel+1}",
             f"v_mov_b32 v{vZ}, 0", f"v_mov_b32 v{vZ+1}, 0", f"v_mov_b32 v{vZ+2}, v{vSel}", f"v_mov_b32 v{vZ+3}, v{vSel+1}", f"v_mov_b32 v{vZ+4}, 0", f"v_mov_b32 v{vZ+5}, 0"]
        return g, v
    def check1(n, load):
        p(f"L_c{n}:\nv_readfirstlane_b32 {sT1}, v{vIn}\ns_and_b32 {sT1}, {sT1}, 0xff\ns_cmp_ge_u32 {sT1}, {n}\ns_cbranch_scc0 L_s{n}\nL_k{n}:"); spin(n, load)
    ld_peer = lambda n: f"buffer_load_dword v{vIn}, off, {srd(sFG)}, {sPf[n == 3]} sc1"
    ld_all = f"buffer_load_dword v{vIn}, v{vFo}, {srd(sFG)}, 0 offen {OPT['pfl']}"
    PUB = {int(x): k + 1 for k, x in enumerate(str(OPT["pubs"]).split(","))}
    if OPT["sp"]: PUB[18] = 4
    POL = {int(x): k + 1 for k, x in enumerate(str(OPT["pols"]).split(","))}
    ADD = {int(x): k for k, x in enumerate(str(OPT["adds"]).split(","))}
    slot_of = {0: 0, 1: 1, 2: 2}
    free = []; nxt = 3; pend = []
    p(f"s_mov_b32 {sCnt}, 0")
    for sig in range(20):
        ci, kq = divmod(sig, 4)
        assert not any(t == sig + 1 for t, _ in pend)
        pub = PUB.get(sig, 0); chk = POL.get(sig - 1, 0)
        need = [f"w{sig+1}"]
        if pub: need.append(f"st{pub-1}")
        if sig == 2: need.append("ids")
        if 0 < pub < 4:
            p(f"s_cmp_eq_u32 {sLoc}, 0\ns_waitcnt lgkmcnt(0)\ns_cbranch_scc1 L_f{pub}\nL_g{pub}:")
            side.append(f"L_f{pub}:\n" + "".join(out1(pub - 1, q)[-1].split(";")[0] + " sc1 ; side\n" for q in range(6)) + f"s_waitcnt vmcnt(0)\ns_barrier\n"
                        + " ; side\n".join(publish(pub)) + f" ; side\ns_branch L_h{pub}")
        if chk: need.append(f"poll{chk}")
        if sig < 19 or pub:
            p(f"s_waitcnt vmcnt(@{','.join(need)}) lgkmcnt(0)"); p("s_barrier")
        if 0 < pub < 4: p(f"L_h{pub}:")
        if sig == 0: stamp(p)
        elif kq == 0 and "c" in OPT["fine"]: stamp(p)
        else: stamp(p, "o")
        ops = []
        if chk: check1(chk, ld_peer(chk))
        if pub and not (OPT["plast"] and chk): ops.append(publish(pub, OPT['ffl'] if pub < 4 else 'sc1'))
        G = Gaps([f"{M16} {v4(OA(ci, q, nu))}, {v4(AF(sig, tp, nu))}, {BF(kq, tp, q)}, " + ("0" if kq == 0 and tp == 0 and ci < 4 else v4(OA(ci, q, nu)))
                  for tp, q, nu in ([(tp, q, nu) for q in range(6) for tp in range(3) for nu in range(2)] if sig == 19 else
                                    [(tp, q, nu) for tp in range(3) for q in range(6) for nu in range(2)])])
        if sig == 0: p.ext(reads_b(0))
        free.append(slot_of[sig])
        if sig == 4: free += [3, 4, 5]
        while free and nxt < 20 and nxt - sig <= OPT["dmax"] + 1:
            slot_of[nxt] = free.pop(0); pend += [(nxt, tag(g, f"w{nxt}")) for g in dma_wo(nxt, slot_of[nxt])]; nxt += 1
        if sig in POL: ops.append([ld_peer(POL[sig]) + f" ; vm=poll{POL[sig]}"])
        if chk: ops += [xload(chk - 1, q) for q in range(6)]
        if pub and OPT["plast"] and chk: ops.append(publish(pub, OPT['ffl'] if pub < 4 else 'sc1'))
        WS = [int(x) for x in str(OPT["ws"]).split(",")]
        sts = [out1(ci - 1, q) for q in range(6)] if sig in WS else []
        if sts: assert WS.index(sig) == ci - 1
        nd = min(len(pend), max(9 - len(ops) - len(sts), sum(1 for t, _ in pend if t <= sig + 2)))
        ops += [g for _, g in pend[:nd]]; pend = pend[nd:]
        n = len(ops) + len(sts)
        slots = [1 + 5 * k for k in range(7)] if n <= 7 else DS9 if n <= 9 else list(range(0, 36, 3))
        if not ops: slots = slots[1:]
        G.vm(ops, slots)
        for k, g in enumerate(sts):
            at = slots[len(ops) + k]
            G.spread(g[:-1], at - 4 if n <= 9 else at - 3, at); G.put(at, g[-1])
        if sig in ADD:
            for q in range(6): G.put((1 + 6 * q) if sig == 19 else (OPT['a0'] + OPT['astep'] * q), xadd(ADD[sig], q))
        if sig == 19:
            for q in range(4): G.spread(out1(4, q), 10 + 6 * q, 16 + 6 * q)
        if sig == 1: G.spread(setup0(), 2, 30)
        if sig == 2:
            G.put(13, f"v_and_b32 v{vCo}, 0xff00, v{vCo}"); G.put(17, f"v_cmp_eq_u32 vcc, {sId}, v{vCo}")
            G.put(22, [f"s_cmp_eq_u32 vcc_lo, -1", f"s_cselect_b32 {sLoc}, {0 if OPT['forcefb'] else 1}, 0"])
        if sig in (5, 6, 7, 9):
            sg, vg = rsetup()
            G.spread({5: sg, 6: vg[:11], 7: vg[11:19], 9: vg[19:]}[sig], 2, 34)
        if sig == 19 and OPT["sp"]: G.put(33, ld_all + " ; vm=poll4")
        ra = reads_wo(sig + 1, slot_of[sig + 1]) if sig < 19 else []
        if sig < 4:
            for tp in range(3): G.mems(reads_b(3 * sig + tp + 1) + ra[4*tp:4*tp+4], 12 * tp, 12 * tp + (12 if tp < 2 else 8))
        else: G.mems(ra, 0, 30)
        p.ext(G.out())
    for q in range(4, 6): p.ext(out1(4, q))
    stamp(p)
    sCol = ["s57", "s58", "s59", "s60"]
    for jj in range(4):
        p(f"s_add_u32 {sT0}, {sCrot}, {jj^3}\ns_cmp_ge_u32 {sT0}, 5\ns_cselect_b32 {sT3}, 5, 0\ns_sub_u32 {sT0}, {sT0}, {sT3}\ns_lshl_b32 {sCol[jj]}, {sT0}, 8")
    order = [jj + 4 * x for jj in range(4) for x in range(4)]
    def rloads(r, sfx=""):
        g = [f"v_add_u32 v{vRo}, {sRo[r]}, v{vRb}"]
        for k, h in enumerate(order):
            d = 48 + 32 * r + 2 * k
            g += [f"s_mov_b32 {sT1}, {h*PART}", f"buffer_load_dwordx2 v[{d}:{d+1}], v{vRo}, {srd(sPG)}, {sT1} offen {OPT['pld']} ; vm=r{r}_{k>>1}"]
        return g
    def check(n): p(f"L_c{n}:\nv_and_b32 v{vIn}, 0xff, v{vIn}\nv_cmp_le_u32 vcc, {n}, v{vIn}\ns_cmp_eq_u32 vcc_lo, 0xffff\ns_cbranch_scc0 L_s{n}\nL_k{n}:")
    if OPT["sp"]:
        sFi = "s3"
        p(f"s_mov_b32 {sFi}, 1\ns_waitcnt vmcnt(@poll4)")
        check(4)
        fin = lambda t, n: f"s_cmp_eq_u32 {sFi}, 0\ns_cbranch_scc1 L_e{t}\ns_waitcnt vmcnt({n})\ns_barrier\n" + " ; side\n".join(publish(5)) + f" ; side\ns_mov_b32 {sFi}, 0\nL_e{t}:\n"
        spin(4, fin("a", 0) + ld_all)
        p.ext(rloads(1))
        p(fin("b", 16))
    else:
        p("s_waitcnt vmcnt(@st4)\ns_barrier"); p.ext(publish(5))
    stamp(p)
    if OPT["w0p"]: p(f"s_cmp_lg_u32 {sW}, 1\ns_cbranch_scc1 L_k5")
    p(ld_all + " ; side\ns_waitcnt vmcnt(0)")
    check(5); spin(5, ld_all)
    if OPT["w0p"]: p("s_barrier")
    stamp(p)
    if not OPT["sp"]: p.ext(rloads(1))
    p.ext(rloads(0))
    def rout(acc, pk, so): return [f"v_cvt_pk_bf16_f32 v{pk}, v{acc}, v{acc+1}", f"v_cvt_pk_bf16_f32 v{pk+1}, v{acc+2}, v{acc+3}",
                                   f"buffer_store_dwordx2 v[{pk}:{pk+1}], v{vOo}, {srd(sOUT)}, {so} offen {OPT['ost']}"]
    for k in range(8): p(f"s_waitcnt vmcnt(@r1_{k})\n{M16} v[120:123], {v4(vSel)}, {v4(80+4*k)}, " + ("0" if k == 0 else "v[120:123]"))
    p(f"v_add_u32 v{vOo}, {sRq[1]}, v{vOb}"); p.ext(rout(120, 144, sCo[3]))
    for k in range(8): p(f"s_waitcnt vmcnt(@r0_{k})\n{M16} {v4(124+4*(k>>1))}, {v4(vSel)}, {v4(48+4*k)}, " + ("0" if k % 2 == 0 else v4(124+4*(k>>1))))
    p(f"v_add_u32 v{vOo}, {sRq[0]}, v{vOb}")
    for jj in range(4): p.ext(rout(124 + 4 * jj, 146 + 2 * jj, sCol[jj]))
    if OPT["stamps"]:
        p("s_waitcnt vmcnt(0)")
        stamp(p)
        p(f"s_lshl_b32 {sT0}, s2, 2\ns_add_u32 {sT0}, {sT0}, {sW}\ns_lshl_b32 {sT0}, {sT0}, 9\ns_add_u32 {sT0}, {sT0}, {STAMP_OFF}")
        p(f"v_lshlrev_b32 v0, 2, v{vLn}\nv_add_u32 v0, {sT0}, v0")
        p(f"global_store_dword v0, v255, s[{pWS}:{pWS+1}]\nglobal_store_dword v0, v254, s[{pWS}:{pWS+1}] offset:256")
    p("L_exit:\ns_endpgm")
    for x in side: p(x)
    p.resolve_vm()
    d = OPT["drop"]
    def keep(i):
        if "m" in d and i.kind == "mfma": return False
        if "w" in d and i.lds_dma and i.src & {("s", sWQ), ("s", sX), ("s", sWO)}: return False
        if "r" in d and i.kind == "ds": return False
        if "s" in d and i.wide_store: return False
        return True
    p.auto_lgkm(); p.auto_nop(); p.lint_scc()
    p.ins = [i if keep(i) else Ins("s_nop 0") for i in p.ins]
    return p

def build():
    ref = open(f"cdna_kernels/{NAME}.s.ref").read().split("\n")
    head = [l for l in ref if l.startswith(";") and "@launch" not in l]
    out = "\n".join(head) + "\n"
    out += f"; @launch grid=(256,1,1) block=(256,1,1) lds={LDS_BYTES}\n"
    out += '.amdgcn_target "amdgcn-amd-amdhsa--gfx950"\n.text\n'
    nm = NAME + "_kernel"
    out += f".globl {nm}\n.p2align 8\n.type {nm},@function\n" + kernel().text()
    out += f""".section .rodata,"a"
.p2align 6
.amdhsa_kernel {nm}
  .amdhsa_next_free_vgpr 512
  .amdhsa_next_free_sgpr 102
  .amdhsa_accum_offset 256
  .amdhsa_group_segment_fixed_size 0
  .amdhsa_kernarg_size 104
  .amdhsa_user_sgpr_count 2
  .amdhsa_user_sgpr_kernarg_segment_ptr 1
  .amdhsa_system_sgpr_workgroup_id_x 1
  .amdhsa_float_denorm_mode_32 3
.end_amdhsa_kernel
"""
    return out

if __name__ == "__main__":
    txt = build()
    open(sys.argv[1], "w").write(txt)
```

```python
import sys, struct, math
from asmlib import *

NAME = "concat_heads__gqa_block_cached__mha_block_cached__near_ridge"
OPT = dict(stamps=0, fw=128, fs=7, fine="", drop="", kv="nt", wq="", x="", wo="", pst="sc1", pld="sc1", kburst=1, vburst=5, spread=2, dmax=3, pubfrom=99, code=1, codeit=10, ost="", thr=0x41000000, skip0=2, skipn=8, lazy=1, wotouch=99, wotn=3, epoch=1, w3=1, touch="", tfl="", win=5, kst="01", vst="56", dynq=1, eps="55", pre=1, delay=0, tst="", tt="7", dist=3, wwin=0, tl=1, mid=0, fn=1, w2l=1, pub4=18, r0=20, mode=3, slp=0, tk=0, ntk=3, early=1, wnr=6, win2=0, fair=0, wbig=7, fth=6, fper=1, ann=1, pubs="6,10,14", pols="9,13,17", adds="11,15,19", cap=9, bfree=4, krot=0, qlast=1, both=1, gfl="", xfl="sc1", fb=1, forcefb=0, fresh=0, lay=1, arr=0, idm=1, w2n=0, thru=0, post=0, pk=1, late=2, pt="", ffl="", plast=1, sp=0, pfl="sc1", w0p=1, a0=13, astep=4, ws="4,8,12,16")
for a in sys.argv[2:]:
    k, v = a.split("=", 1)
    assert k in OPT, k
    OPT[k] = int(v) if v.lstrip("-").isdigit() else v

SLOT = 24576
S = [i * SLOT for i in range(6)]
LDS_BYTES = 6 * SLOT
PART = {0: 49152, 1: 24576, 2: 24576, 3: 49152 + 1024}[OPT['lay']]
SL1 = {0: 24576, 1: 256 * 24576, 2: 16 * 24576, 3: 24576}[OPT['lay']]
GRP = {0: 16 * PART, 1: 16 * PART, 2: 32 * PART, 3: 16 * PART}[OPT['lay']]
FLAG_OFF = 32 << 20
STAMP_OFF = 64 << 20

sX, sWQ, sK, sV, sWO, sP = 28, 32, 36, 40, 44, 48
sFL, sFG, sFA, sDG = 4, 8, 12, 16
sPG, sOUT = 28, 32
pOUT, pDBG, pWS = 20, 22, 24
def srd(b): return f"s[{b}:{b+3}]"
sW, sB, sHP, sBR, sC = "s52", "s53", "s54", "s55", "s56"
sWQo, sWQlim, sXo, sWQm, sXm, sRd, sI = "s57", "s58", "s59", "s60", "s61", "s62", "s63"
sKo, sVo, sKm, sVm, sDK, sDV = "s64", "s65", "s66", "s67", "s68", "s69"
sT0, sT1, sT2, sT3 = "s70", "s71", "s72", "s73"
sW6, sXd, sCrot, sKrot = "s74", "s75", "s76", "s77"
sCo = ["s78", "s79", "s80", "s81", "s82"]
sKq = ["s83", "s84", "s85", "s86"]
sJ, sSk, sG, sRet = "s87", "s88", "s89", "s90"
sThr = "s91"; sKV0 = "s101"; sKb, sVb, sBm = "s3", "s90", "s69"; sId, sStop, sLoc = "s0", "s1", "s1"
sE = ["s97", "s58"]; sTb = 98
sNeed, sTodo, sReady, sPrev, sCur, sFirst, sCnt, sOo = "s57", "s58", "s59", "s60", "s61", "s62", "s63", "s64"
sST, sSI = 92, "s96"
def ACC(t, qb): return (t * 3 + qb) * 4
def SS(kb, qb): return 144 + (kb * 3 + qb) * 4
def PP(qb): return 168 + qb * 4
vM = [180, 181, 182]; vL = [183, 184, 185]; vAl = [186, 188, 190]; vMx = [192, 193, 194]; vTm = [195, 196, 197]; vMc = [187, 189, 191]
vKs = list(range(200, 206)); vVs = [206, 207, 208]; vWs = [209, 210, 211]; vXs = [212, 213, 214]; vOs = [215, 216, 217, 218, 219, 220]
vKr = [221, 222]; vVr = [223, 224, 225, 226]; vXr = [227, 228]; vOr = [[229, 230, 231], [232, 233, 234]]; vOw = 235; vBr = [236, 237, 198, 199]; vPs = [238, 239]
vPt = vWs + vXs + vXr
vLn = 240; vFo = 241; vFv = 242; vF4 = 243; vIn = 244; vCo = 245; vCd = 246; T = list(range(248, 254))
def v4(r): return f"v[{r}:{r+3}]"
def a4(r): return f"a[{r}:{r+3}]"
def QF(ks, qb): return (ks * 3 + qb) * 4
def FA(p, t): return 72 + 48 * p + 4 * t
def FB(p, qb): return 168 + 12 * p + 4 * qb

M16 = "v_mfma_f32_16x16x32_bf16"

class VM:
    def __init__(self, q): self.q = list(q)
    def issue(self, tag, n=1): self.q += [tag] * n
    def wait(self, *tags):
        idx = max((k for k, t in enumerate(self.q) if t in tags), default=-1)
        n = len(self.q) - 1 - idx
        self.q = self.q[idx + 1:]
        assert n <= 63
        return f"s_waitcnt vmcnt({n})"
    def done(self, tag): return tag not in self.q

def stamp(p, cls=""):
    if OPT["stamps"] and (not cls or cls in OPT["fine"]):
        p(f"s_memrealtime s[{sST}:{sST+1}]\ns_memtime s[{sST+2}:{sST+3}]\ns_mov_b32 s100, m0\ns_mov_b32 m0, {sSI}\ns_add_u32 {sSI}, {sSI}, 1\ns_waitcnt lgkmcnt(0)")
        p(f"v_writelane_b32 v255, s{sST}, m0\nv_writelane_b32 v254, s{sST+2}, m0\ns_mov_b32 m0, s100")

def dma6(vs, srdb, so, mbase, flags, src_step, six=False):
    def val(dst, x, extra):
        if isinstance(x, tuple): r, imm = x
        else: r, imm = x, 0
        imm += extra
        return f"s_add_u32 {dst}, {r}, {imm}" if imm else f"s_mov_b32 {dst}, {r}"
    g = []
    for j in range(6):
        pre = []
        sreg = so if (j < 3 or src_step == 0) else sT3
        if j % 3 == 0:
            pre = [val("m0", mbase, 3072 * (j // 3))]
            if j == 3 and src_step: pre.append(val(sT3, so, src_step))
        v = vs[j] if six else vs[j % 3]
        g.append(pre + [f"buffer_load_dwordx4 v{v}, {srd(srdb)}, {sreg} offen offset:{1024*(j%3)} {flags} lds"])
    return g
def dma_k(): return dma6(vKs, sK, sKo, sKm, OPT["kv"], 0, six=True)
def dma_v(): return dma6(vVs, sV, sVo, sVm, OPT["kv"], 3072)
def dma_wq(): return dma6(vWs, sWQ, sWQo, sWQm, OPT["wq"], 16 * 12288)
def dma_x():
    g = []
    for j in range(3):
        pre = [f"s_mov_b32 m0, {sXm}"] if j == 0 else []
        g.append(pre + [f"buffer_load_dwordx4 v{vXs[j]}, {srd(sX)}, {sXo} offen offset:{1024*j} {OPT['x']} lds"])
    return g
def dma_wo(sig, slot):
    ci, kq = divmod(sig, 4)
    g = dma6(vOs, sWO, sT2, (sW6, S[slot]), OPT["wo"], 0, six=True)
    g[0] = [g[0][0], f"s_add_u32 {sT2}, {sCo[ci]}, {sKq[kq]}"] + g[0][1:]
    return g
def set_wq(e): return [f"s_mul_i32 {sWQo}, {sXo}, 6144", f"s_add_u32 {sWQo}, {sWQo}, {sE[e]}"]
def adv_wqm(): return [f"s_add_u32 {sWQm}, {sWQm}, {SLOT}", f"s_cmp_ge_u32 {sWQm}, {3*SLOT}", f"s_cselect_b32 {sWQm}, {sW6}, {sWQm}"]
def next_pair():
    return [[f"s_lshr_b64 s[{sTb}:{sTb+1}], s[{sTb}:{sTb+1}], 4", f"s_and_b32 {sXo}, s{sTb}, 15", f"s_lshl_b32 {sXo}, {sXo}, 7"]]
def flip_x(): return [f"s_xor_b32 {sXm}, {sXm}, {sXd}"]
def adv_kv(so, sm, step="12288"):
    if step == "12288": a = [f"s_add_u32 {so}, {so}, 12288", f"s_add_u32 {sm}, {sm}, {2*SLOT}"]
    else: a = [f"s_add_u32 {so}, {so}, {step}", f"s_lshl2_add_u32 {sm}, {step}, {sm}"]
    g = [a, [f"s_cmp_ge_u32 {sm}, {6*SLOT}", f"s_cselect_b32 {sT0}, {6*SLOT}, 0", f"s_sub_u32 {sm}, {sm}, {sT0}"]]
    if OPT["krot"]: g.append([f"s_cmp_ge_u32 {so}, {sKV0}", f"s_cselect_b32 {sT0}, 196608, 0", f"s_sub_u32 {so}, {so}, {sT0}"])
    return g
def adv_k(step="12288"): return adv_kv(sKo, sKm, step)
def adv_v(step="12288"): return adv_kv(sVo, sVm, step)
def flat(g): return [x for y in g for x in ([y] if isinstance(y, str) else y)]

def reads_t(dstf, n=12):
    g = []
    for t in range(n):
        r = dstf(t); o = (t >> 2) * 128
        g.append(f"ds_read_b64_tr_b16 a[{r}:{r+1}], v{vVr[t&3]} offset:{o}")
        g.append(f"ds_read_b64_tr_b16 a[{r+2}:{r+3}], v{vVr[t&3]} offset:{o+6144}")
    return g
def reads_x(p, e): return [f"ds_read_b128 {a4(FB(p, qb))}, v{vXr[e]} offset:{qb*2048}" for qb in range(3)]
def adv_rd_wq():
    return [[f"s_add_u32 {sRd}, {sRd}, 1", f"s_cmp_ge_u32 {sRd}, 3", f"s_cselect_b32 {sRd}, 0, {sRd}",
             f"s_cselect_b32 {sT1}, {-2*SLOT & 0xffffffff}, {sT2}"]] + [f"v_add_u32 v{r}, {sT1}, v{r}" for r in vVr]

def kernel():
    p = Prog()
    p(f"{NAME}_kernel:")
    p("s_cmp_ge_u32 s2, 256\ns_cbranch_scc1 L_exit")
    p("s_bfe_u32 s55, s2, 0x10002\ns_mul_i32 s3, s55, 40")
    p("s_load_dwordx8 s[4:11], s[0:1], s3\ns_add_u32 s3, s3, 32\ns_load_dwordx2 s[12:13], s[0:1], s3")
    p(f"s_load_dwordx4 s[{pOUT}:{pOUT+3}], s[0:1], 80\ns_load_dwordx2 s[{pWS}:{pWS+1}], s[0:1], 96")
    if OPT["stamps"]: p(f"v_mov_b32 v255, 0\nv_mov_b32 v254, 0\ns_mov_b32 {sSI}, 0")
    l = f"v{vLn}"
    t0, t1, t2, t3, t4 = (f"v{r}" for r in T[:5])
    p(f"v_lshrrev_b32 {t0}, 6, v0\nv_and_b32 {l}, 63, v0")
    p(f"s_and_b32 {sT0}, s2, 3\ns_bfe_u32 {sB}, s2, 0x30003\ns_lshr_b32 {sJ}, s2, 6")
    p(f"v_readfirstlane_b32 {sW}, {t0}")
    p(f"s_lshl_b32 {sHP}, {sT0}, 2\ns_add_u32 {sHP}, {sHP}, {sJ}")
    if OPT["code"]:
        p("s_getpc_b64 s[26:27]\nL_pc:")
        p(f"s_sub_u32 s26, s26, L_pc-{NAME}_kernel\ns_subb_u32 s27, s27, 0")
        p(f"s_lshr_b32 {sT1}, s2, 3\ns_lshl_b32 {sT1}, {sT1}, 2\ns_add_u32 {sT1}, {sT1}, {sW}\ns_mul_i32 {sT1}, {sT1}, 384")
        p(f"v_and_b32 v{vCo}, 3, {l}\nv_lshlrev_b32 v{vCo}, 7, v{vCo}\nv_add_u32 v{vCo}, {sT1}, v{vCo}\nv_min_u32 v{vCo}, L_exit-{NAME}_kernel, v{vCo}")
        if OPT["code"] & 1: p(f"global_load_dword v{vCd}, v{vCo}, s[26:27]")
    p(f"s_lshr_b32 {sCrot}, {sB}, 1\ns_and_b32 {sKrot}, {sB}, 1\ns_add_u32 {sT1}, {sCrot}, {sJ}")
    p(f"s_mov_b64 s[{sTb}:{sTb+1}], 0")
    e0 = 0
    for n in (int(c) for c in str(OPT["eps"])):
        seq = [e0 + k % n for k in range(16)]
        lo = sum(v << (4 * k) for k, v in enumerate(seq[:8])); hi = sum(v << (4 * k) for k, v in enumerate(seq[8:]))
        if n == 5: p(f"s_cmp_eq_u32 {sB}, 7\ns_addc_u32 {sT0}, {sT1}, 0 ; carry-ok\ns_lshl_b32 {sT0}, {sT0}, 2")
        else: p(f"s_lshl_b32 {sT0}, {sT1}, 2")
        p(f"s_mov_b32 s72, {lo:#x}\ns_mov_b32 s73, {hi:#x}\ns_lshr_b64 s[72:73], s[72:73], {sT0}\ns_and_b32 s72, s72, {(1 << (4 * n)) - 1:#x}\ns_mov_b32 s73, 0")
        p(f"s_lshl_b64 s[72:73], s[72:73], {4*e0}\ns_or_b64 s[{sTb}:{sTb+1}], s[{sTb}:{sTb+1}], s[72:73]")
        e0 += n
    assert e0 == 10
    p(f"s_and_b32 {sXo}, s{sTb}, 15\ns_lshl_b32 {sXo}, {sXo}, 7\ns_mul_i32 {sW6}, {sW}, 6144")
    p(f"s_and_b32 {sT1}, {sW}, 1\ns_lshr_b32 {sT2}, {sW}, 1")
    p(f"s_mul_i32 {sT0}, {sT1}, {4*12288}\ns_mul_i32 {sT3}, {sT2}, 384\ns_add_u32 {sT0}, {sT0}, {sT3}")
    p(f"s_mul_i32 {sE[0]}, {sKrot}, {32*12288}\ns_sub_u32 {sE[1]}, {32*12288}, {sE[0]}\ns_add_u32 {sE[0]}, {sE[0]}, {sT0}\ns_add_u32 {sE[1]}, {sE[1]}, {sT0}")
    p.ext(set_wq(0))
    p(f"s_add_u32 {sWQm}, {sW6}, {S[1]}")
    p(f"s_mul_i32 {sXm}, {sW}, 3072\ns_add_u32 {sXm}, {sXm}, {S[3]}")
    p(f"s_add_u32 {sXd}, {sXm}, 12288\ns_xor_b32 {sXd}, {sXd}, {sXm}")
    p(f"s_mul_i32 {sT0}, {sW}, 24\nv_lshrrev_b32 {t0}, 3, {l}\nv_add_u32 {t0}, {sT0}, {t0}")
    p(f"v_lshrrev_b32 {t1}, 1, {t0}\nv_xor_b32 {t1}, {t1}, {l}\nv_and_b32 {t1}, 7, {t1}\nv_mul_u32_u24 {t0}, 1280, {t0}")
    p(f"v_lshl_add_u32 v{vXs[0]}, {t1}, 4, {t0}\nv_xor_b32 {t1}, 64, v{vXs[0]}")
    p(f"v_add_u32 v{vXs[1]}, {10240-1024}, {t1}\nv_add_u32 v{vXs[2]}, {2*(10240-1024)}, v{vXs[0]}")
    def rowof(j): p(f"v_add_u32 {t0}, {64*j}, {l}\nv_mul_u32_u24 {t1}, 2731, {t0}\nv_lshrrev_b32 {t1}, 16, {t1}")
    for j in range(3):
        rowof(j)
        p(f"v_and_b32 {t2}, 6, {t1}\nv_xor_b32 {t3}, {t2}, {l}\nv_lshlrev_b32 v{vVs[j]}, 4, {t3}")
        p(f"v_and_b32 {t2}, 12, {t1}\nv_add_u32 {t2}, {t2}, {t1}\nv_mul_u32_u24 {t2}, 12288, {t2}")
        p(f"v_mul_u32_u24 {t3}, 384, {t1}\nv_sub_u32 {t2}, {t2}, {t3}\nv_add_u32 v{vWs[j]}, {t2}, v{vVs[j]}")
    p("s_waitcnt lgkmcnt(0)")
    stamp(p)
    if OPT["delay"]:
        p(f"s_bitcmp0_b32 {sB}, 0\ns_cbranch_scc1 L_nd")
        for _ in range(OPT["delay"]): p("s_sleep 37")
        p("L_nd:")
    def mk(b, ptr, off_s, size):
        p(f"s_add_u32 s{b}, s{ptr}, {off_s}\ns_addc_u32 s{b+1}, s{ptr+1}, 0\ns_and_b32 s{b+1}, s{b+1}, 0xffff")
        p(f"s_mov_b32 s{b+2}, {size}\ns_mov_b32 s{b+3}, 0x20000")
    p(f"s_mul_i32 {sT0}, {sB}, 122880"); mk(sX, 4, sT0, 122880)
    p.ext(flat(dma_x()))
    p(f"s_mul_i32 {sT0}, {sHP}, 768"); mk(sWQ, 10, sT0, 639 * 12288 + 768)
    p.ext(flat(dma_wq() + [adv_wqm(), set_wq(1), flip_x()]))
    wq1 = dma_wq()
    p.ext(flat(wq1[:3]))
    p(f"s_and_b32 {sT1}, {sW}, 1\ns_lshr_b32 {sT2}, {sW}, 1")
    p(f"s_mul_i32 {sKo}, {sT2}, 196608\ns_mul_i32 {sT3}, {sT1}, 6144\ns_add_u32 {sKo}, {sKo}, {sT3}\ns_mov_b32 {sVo}, {sKo}\ns_mov_b32 {sKV0}, {sKo}")
    if OPT["krot"]:
        if OPT["krot"] == 1: p(f"s_lshr_b32 {sT0}, s2, 3\ns_add_u32 {sT0}, {sT0}, s2")
        if OPT["krot"] == 2: p(f"s_mul_i32 {sT0}, s2, 0x9e3779b1\ns_lshr_b32 {sT0}, {sT0}, 28\ns_lshl3_add_u32 {sT0}, {sT2}, {sT0}")
        if OPT["krot"] == 5: p(f"s_lshl_b32 {sT0}, {sT2}, 3")
        if OPT["krot"] == 6: p(f"s_lshl_b32 {sT0}, s2, 1\ns_add_u32 {sT0}, {sT0}, {sT2}\ns_mul_i32 {sT0}, {sT0}, 0x9e3779b1\ns_lshr_b32 {sT0}, {sT0}, 28")
        if OPT["krot"] == 7: p(f"s_mul_i32 {sT0}, s2, 0x9e3779b1\ns_lshr_b32 {sT0}, {sT0}, 28")
        if OPT["krot"] == 3: p(f"s_lshl_b32 {sT0}, {sHP}, 1\ns_add_u32 {sT0}, {sT0}, {sT2}")
        if OPT["krot"] == 4: p(f"s_lshl_b32 {sT0}, {sB}, 1\ns_add_u32 {sT0}, {sT0}, {sBR}")
        p(f"s_and_b32 {sT0}, {sT0}, 15\ns_mul_i32 {sT0}, {sT0}, 12288\ns_add_u32 {sKV0}, {sKo}, 196608\ns_add_u32 {sKo}, {sKo}, {sT0}\ns_mov_b32 {sVo}, {sKo}")
    p(f"s_add_u32 {sKm}, {sW6}, {S[4]}\ns_add_u32 {sVm}, {sW6}, {S[5]}")
    p(f"s_lshr_b32 {sSk}, s2, 3\ns_and_b32 {sSk}, {sSk}, {OPT['skipn']-1}\ns_add_u32 {sSk}, {sSk}, {OPT['skip0']}\ns_mov_b32 {sThr}, {OPT['thr']}")
    p(f"s_lshl_b32 {sT0}, {sB}, 4\ns_add_u32 {sT0}, {sT0}, {sHP}\ns_mul_i32 {sT3}, {sT0}, 393216")
    mk(sK, 6, sT3, 393216); mk(sV, 8, sT3, 393216)
    p(f"s_mul_i32 {sT3}, {sHP}, 491520"); mk(sWO, 12, sT3, 491520)
    p(f"s_lshl_b32 {sG}, {sBR}, 3\ns_add_u32 {sG}, {sG}, {sB}\ns_lshl_b32 {sT0}, {sG}, 4\ns_add_u32 {sT0}, {sT0}, {sHP}")
    p(f"s_lshl_b32 {sT3}, {sT0}, {OPT['fs']}\ns_add_u32 {sT3}, {sT3}, {FLAG_OFF}"); mk(sFL, pWS, sT3, OPT["fw"])
    p(f"s_lshl_b32 {sT3}, {sG}, {OPT['fs']+4}\ns_add_u32 {sT3}, {sT3}, {FLAG_OFF}"); mk(sFG, pWS, sT3, 16 << OPT["fs"])
    mk(sFA, pWS, FLAG_OFF, 352 << OPT['fs'])
    mk(sDG, pDBG, 0, OPT['fw'])
    p(f"s_cmp_eq_u32 {sW}, 0\ns_cselect_b32 s{sFL+2}, {OPT['fw']}, 0")
    p(f"v_lshlrev_b32 v{vFo}, {OPT['fs']}, {l}\nv_lshlrev_b32 v{vF4}, 2, {l}")
    c = (192 ** -0.5) * math.log2(math.e)
    p(f"s_mov_b32 {sC}, {struct.unpack('<I', struct.pack('<f', c))[0]:#x}")
    p(f"s_lshr_b32 {sCrot}, {sB}, 1\ns_and_b32 {sKrot}, {sB}, 1\ns_lshl_b32 {sKrot}, {sKrot}, 1")
    p(f"s_cmp_eq_u32 {sB}, 7\ns_cselect_b32 {sCrot}, 4, {sCrot}\ns_cselect_b32 {sKrot}, 0, {sKrot}")
    for ci, x in enumerate((3, 1, 2, None, 0)):
        p(f"s_mov_b32 {sT0}, 4" if x is None else f"s_xor_b32 {sT0}, {sJ}, {x}")
        p(f"s_add_u32 {sT0}, {sCrot}, {sT0}\ns_cmp_ge_u32 {sT0}, 5\ns_cselect_b32 {sT3}, 5, 0\ns_sub_u32 {sT0}, {sT0}, {sT3}\ns_lshl_b32 {sCo[ci]}, {sT0}, 8")
    for kq in range(4):
        p(f"s_xor_b32 {sT0}, {sKrot}, {kq}\ns_mul_i32 {sKq[kq]}, {sT0}, {96*1280}")
    p(f"s_mul_i32 {sT0}, {sT2}, 12288")
    for j in range(6):
        rowof(j)
        p(f"v_bfe_u32 {t2}, {t1}, 1, 3\nv_xor_b32 {t2}, {t2}, {l}\nv_lshlrev_b32 v{vKs[j]}, 4, {t2}")
        if j >= 3: p(f"v_add_u32 v{vKs[j]}, 3072, v{vKs[j]}")
    p(f"v_and_b32 {t0}, 15, {l}\nv_lshrrev_b32 {t1}, 4, {l}\nv_lshrrev_b32 {t2}, 1, {t0}\nv_xor_b32 {t2}, {t2}, {t1}")
    p(f"v_mul_u32_u24 {t3}, 384, {t0}\nv_add_u32 {t3}, {sT0}, {t3}\nv_add_u32 {t3}, {S[4]}, {t3}")
    p(f"v_lshl_add_u32 v{vKr[0]}, {t2}, 4, {t3}\nv_xor_b32 {t4}, 4, {t2}\nv_lshl_add_u32 v{vKr[1]}, {t4}, 4, {t3}")
    p(f"s_mul_i32 {sT3}, {sT1}, {48*128}\ns_add_u32 {sT3}, {sT3}, {S[3]}")
    p(f"v_lshlrev_b32 {t3}, 7, {t0}\nv_add_u32 {t3}, {sT3}, {t3}")
    p(f"v_lshl_add_u32 v{vXr[0]}, {t2}, 4, {t3}")
    p(f"s_and_b32 {sT3}, {sB}, 1\ns_lshl_b32 {sT3}, {sT3}, 6\nv_xor_b32 v{vXr[0]}, {sT3}, v{vXr[0]}")
    p(f"v_xor_b32 v{vXr[1]}, 64, v{vXr[0]}")
    p(f"s_mul_i32 {sT3}, {sW}, 24\nv_lshlrev_b32 {t2}, 1, {t1}\nv_xor_b32 {t2}, {t2}, {t0}\nv_add_u32 {t3}, {sT3}, {t1}")
    p(f"v_mul_u32_u24 {t3}, 1280, {t3}\nv_lshl_add_u32 v{vOs[0]}, {t2}, 4, {t3}\nv_xor_b32 {t2}, 128, v{vOs[0]}")
    for j in range(1, 6):
        p(f"v_add_u32 v{vOs[j]}, {5120*j-1024*(j%3)}, " + (t2 if j & 1 else f"v{vOs[0]}"))
    p(f"v_lshrrev_b32 {t0}, 2, {l}\nv_and_b32 {t1}, 3, {l}\nv_bfe_u32 {t2}, {l}, 3, 2")
    p(f"v_mul_u32_u24 {t3}, 384, {t0}\nv_lshl_add_u32 {t3}, {t1}, 3, {t3}\nv_add_u32 {t3}, {sT0}, {t3}\nv_add_u32 {t3}, {S[1]}, {t3}")
    for dl in range(4):
        p(f"v_xor_b32 {t4}, {dl}, {t2}\nv_lshl_add_u32 v{vVr[dl]}, {t4}, 5, {t3}")
    p(f"v_lshlrev_b32 {t3}, 8, {t0}\nv_lshl_add_u32 {t3}, {t1}, 3, {t3}\nv_and_b32 {t2}, 7, {t0}\ns_lshl_b32 {sT3}, {sW}, 1\nv_xor_b32 {t2}, {sT3}, {t2}")
    p(f"v_lshl_add_u32 v{vOr[0][0]}, {t2}, 5, {t3}\nv_xor_b32 v{vOr[1][0]}, 32, v{vOr[0][0]}")
    for nu in range(2): p(f"v_add_u32 v{vOr[nu][1]}, {S[2]}, v{vOr[nu][0]}\nv_add_u32 v{vOr[nu][2]}, {S[4]}, v{vOr[nu][0]}")
    p(f"v_lshlrev_b32 {t0}, 4, {l}")
    p(f"s_mul_i32 {sT3}, {sW}, 3072\ns_add_u32 {sT3}, {sT3}, {S[3]}\nv_add_u32 v{vOw}, {sT3}, {t0}")
    p(f"s_mul_i32 {sT3}, {sKrot}, 3072\ns_add_u32 {sT3}, {sT3}, {S[3]}\nv_add_u32 v{vBr[0]}, {sT3}, {t0}\nv_add_u32 v{vBr[1]}, 36864, v{vBr[0]}")
    p(f"s_xor_b32 {sT3}, {sKrot}, 2\ns_mul_i32 {sT3}, {sT3}, 3072\ns_add_u32 {sT3}, {sT3}, {S[3]}\nv_add_u32 v{vBr[2]}, {sT3}, {t0}\nv_add_u32 v{vBr[3]}, 36864, v{vBr[2]}")
    p(f"v_add_u32 v{vPs[0]}, {sW6}, {t0}\nv_add_u32 v{vPs[1]}, 3072, v{vPs[0]}")
    for r in range(144): p(f"v_mov_b32 v{r}, 0")
    for qb in range(3): p(f"v_mov_b32 v{vM[qb]}, 0xff7fffff\nv_mov_b32 v{vMc[qb]}, 0xff7fffff\nv_mov_b32 v{vL[qb]}, 0")
    p(f"s_mov_b32 {sRd}, 1\ns_mov_b32 {sT2}, {SLOT}\ns_mov_b32 {sI}, 0\ns_mov_b32 {sDK}, 12288")
    p("s_cmp_lg_u32 s2, 0\ns_cbranch_scc1 L_nc")
    lg = OPT["fw"].bit_length() - 5
    p(f"v_lshrrev_b32 {t0}, {lg}, {l}\nv_lshlrev_b32 {t0}, {OPT['fs']}, {t0}\nv_and_b32 {t1}, {(1 << lg) - 1}, {l}\nv_lshl_add_u32 {t0}, {t1}, 4, {t0}\ns_lshl_b32 {sT0}, {sW}, {OPT['fs']+6}")
    for k in range(1 << lg): p(f"buffer_store_dwordx4 v[0:3], {t0}, {srd(sFA)}, {sT0} offen sc1\ns_add_u32 {sT0}, {sT0}, {(64 >> lg) << OPT['fs']}")
    if OPT["tk"]:
        p(f"s_lshl_b32 {sT0}, {sW}, {OPT['fs']+4}\ns_add_u32 {sT0}, {sT0}, {256 << OPT['fs']}")
        for k in range(2): p(f"buffer_store_dwordx4 v[0:3], {t0}, {srd(sFA)}, {sT0} offen sc1\ns_add_u32 {sT0}, {sT0}, {8 << OPT['fs']}")
    if OPT["fair"]:
        p(f"s_lshl_b32 {sT0}, {sW}, {OPT['fs']+3}\ns_add_u32 {sT0}, {sT0}, {320 << OPT['fs']}\nbuffer_store_dwordx4 v[0:3], {t0}, {srd(sFA)}, {sT0} offen sc1")
    p("L_nc:")
    rd0 = reads_x(0, 0) + reads_t(lambda t: FA(0, t))
    rest = dma_x() + dma_wq() + [adv_wqm(), set_wq(1), flip_x()]
    if OPT["pre"] == 0:
        p("s_waitcnt vmcnt(3)\ns_barrier"); stamp(p)
        p.ext(weave(rd0, wq1[3:] + [adv_wqm(), flat(next_pair()), set_wq(0)] + rest))
    elif OPT["pre"] == 1:
        p.ext(flat(wq1[3:] + [adv_wqm(), flat(next_pair()), set_wq(0)] + rest[:3]))
        p("s_waitcnt vmcnt(9)\ns_barrier"); stamp(p)
        p.ext(weave(rd0, rest[3:]))
    else:
        p.ext(flat(wq1[3:] + [adv_wqm(), flat(next_pair()), set_wq(0)] + rest[:6]))
        p("s_waitcnt vmcnt(12)\ns_barrier"); stamp(p)
        p.ext(weave(rd0, rest[6:]))
    p.ext(flat(adv_rd_wq()))
    p(f"v_add_u32 v{vXr[0]}, {sDK}, v{vXr[0]}")
    DS9 = list(range(0, 36, 4))
    def conv(ks):
        g = []
        R = lambda qb: 144 + 4 * qb + 12 * (ks & 1)
        for qb in range(3):
            a, b, r = ACC(2 * ks, qb), ACC(2 * ks + 1, qb), R(qb)
            g += [f"v_cvt_pk_bf16_f32 v{r}, v{a}, v{a+1}", f"v_cvt_pk_bf16_f32 v{r+1}, v{a+2}, v{a+3}",
                  f"v_cvt_pk_bf16_f32 v{r+2}, v{b}, v{b+1}", f"v_cvt_pk_bf16_f32 v{r+3}, v{b+2}, v{b+3}"]
        for op in ("v_permlane32_swap_b32", "v_permlane16_swap_b32"):
            for qb in range(3): g += [f"{op} v{R(qb)}, v{R(qb)+2}", f"{op} v{R(qb)+1}, v{R(qb)+3}"]
        for qb in range(3): g += [f"v_accvgpr_write_b32 a{QF(ks, qb)+i}, v{R(qb)+i}" for i in range(4)]
        return g
    def qstep(par, wait, dmas, advs, do_reads=True, tail=[], valu=[]):
        if wait: p(wait + " lgkmcnt(0)")
        p("s_barrier")
        stamp(p, "q")
        G = Gaps([f"{M16} {v4(ACC(t, qb))}, {a4(FA(par, t))}, {a4(FB(par, qb))}, {v4(ACC(t, qb))}" for t in range(12) for qb in range(3)])
        slots = DS9 if len(dmas) > 6 else [0, 5, 10, 15, 20, 25]
        G.vm(dmas, slots)
        for k, a in advs: G.put(k, a)
        if do_reads:
            pos = G.mems(reads_x(1 - par, 1 - par) + reads_t(lambda t: FA(1 - par, t)), 0, 32)
            ad = adv_rd_wq()
            G.put(17, ad[0][:2]); G.put(18, ad[0][2:])
            for k in range(4): G.put(pos[3 + 17 + 2 * k] + 1, ad[1 + k])
            if par == 0: G.put(9, f"v_add_u32 v{vXr[1]}, {sDK}, v{vXr[1]}")
            else: G.put(9, [f"s_sub_u32 {sDK}, 0, {sDK}", f"v_add_u32 v{vXr[0]}, {sDK}, v{vXr[0]}"])
        G.spread(valu, 10, 36)
        G.put(34, tail)
        p.ext(G.out())
    def announce():
        p(f"s_or_b32 {sT0}, s2, {sW} ; scc-ok\ns_cbranch_scc1 L_na\nv_mov_b32 v{vFv}, 1\nbuffer_store_dword v{vFv}, v{vF4}, {srd(sDG)}, 0 offen sc1\nL_na:")
    sFo, sFt, sCn2 = "s0", "s1", "s3"
    npr = next_pair()
    def table(dst, digits):
        d = (str(digits) * 8)[:8]
        p(f"s_add_u32 {sT0}, {sB}, {sJ}\ns_and_b32 {sT0}, {sT0}, 7\ns_lshl_b32 {sT0}, {sT0}, 2\ns_lshr_b32 {dst}, {sum((int(c) + 1) << (4 * k) for k, c in enumerate(d)):#x}, {sT0}\ns_and_b32 {dst}, {dst}, 15")
    table(sKb, OPT["kst"]); table(sVb, OPT["vst"])
    p(f"s_mov_b32 {sBm}, 256\ns_bitset1_b32 {sBm}, {sKb}\ns_bitset1_b32 {sBm}, {sVb}")
    p(f"s_or_b32 {sStop}, {sBm}, 16\ns_getreg_b32 {sId}, hwreg(HW_REG_XCC_ID, 0, 4)\ns_add_u32 {sId}, {sId}, 1\ns_lshl_b32 {sId}, {sId}, 8")
    side = []
    ld_init = f"buffer_load_dword v{vIn}, off, {srd(sDG)}, 0 sc1"
    def publish(n, fl="sc1"): return [f"s_add_u32 {sT1}, {sId}, {n}", f"v_mov_b32 v{vFv}, {sT1}", f"buffer_store_dword v{vFv}, v{vF4}, {srd(sFL)}, 0 offen {fl}"]
    def spin(n, load, cnt=sCnt): side.append(f"L_s{n}:\n" + (f"s_sleep {OPT['slp']}\n" if OPT["slp"] else "") + f"{load} ; side\ns_add_u32 {cnt}, {cnt}, 1\ns_cmp_lt_u32 {cnt}, 200000\ns_waitcnt vmcnt(0)\ns_cbranch_scc1 L_c{n}\ns_branch L_k{n}")
    TS = list(zip([x for x in str(OPT["tst"]).split(",") if x], [int(x) for x in str(OPT["tt"]).split(",")], ["s87", "s0", "s1"][::-1]))
    for st, _, r in TS:
        table(r, st); p(f"s_bitset1_b32 {sBm}, {r}")
    if TS: p(f"v_and_b32 {t4}, 7, {l}\nv_lshlrev_b32 {t4}, 7, {t4}")
    def qwait(n, tag):
        if not OPT["dynq"]: return f"s_waitcnt vmcnt({n})"
        p(f"s_bitcmp1_b32 {sBm}, {sI}\ns_waitcnt vmcnt({n+6}) lgkmcnt(0)\ns_cbranch_scc1 L_qw{tag}\ns_waitcnt vmcnt({n})\nL_qw{tag}:")
        return None
    p("s_waitcnt lgkmcnt(0)")
    p("L_q:")
    qstep(0, qwait(9, "e"), dma_wq(), [(26, adv_wqm())] + [(27 + k, g) for k, g in enumerate(npr)] + [(33, set_wq(0))])
    qstep(1, qwait(6, "o"), dma_x() + dma_wq(), [(13, flip_x()), (29, adv_wqm()), (33, set_wq(1))],
          tail=[f"s_add_u32 {sI}, {sI}, 1", f"s_bitcmp0_b32 {sStop}, {sI}"])
    p("s_waitcnt lgkmcnt(0)")
    p("s_cbranch_scc1 L_q")
    p(f"s_cmp_lg_u32 {sI}, {sKb}\ns_cbranch_scc1 L_q1")
    if OPT["fair"] or OPT["ann"]: announce()
    p.ext(flat(dma_k() + adv_k()))
    p("L_q1:")
    p(f"s_cmp_lg_u32 {sI}, 4\ns_cbranch_scc1 L_q3\n{ld_init}\nL_q3:")
    p(f"s_cmp_lg_u32 {sI}, {sVb}\ns_cbranch_scc1 L_q2")
    assert min(int(c) for c in str(OPT["vst"])) >= 5 and max(int(c) for c in str(OPT["kst"])) <= 2
    p(f"s_mov_b32 {sT3}, 0\nL_c0:\nv_readfirstlane_b32 {sT0}, v{vIn}\ns_cmp_eq_u32 {sT0}, 1\ns_cbranch_scc0 L_s0\nL_k0:"); spin(0, ld_init, sT3)
    p.ext(publish(0))
    p.ext(flat(dma_v() + adv_v()))
    p("L_q2:")
    for k, (_, t, r) in enumerate(TS):
        p(f"s_cmp_lg_u32 {sI}, {r}\ns_cbranch_scc1 L_qt{k}\ns_add_u32 {sT0}, {sKV0}, {12288*(t>>1)}\ns_add_u32 {sT3}, {sT0}, 3072")
        for j in range(6): p(f"buffer_load_dword v{vCd}, {t4}, {srd(sV if t & 1 else sK)}, {sT0 if j < 3 else sT3} offen offset:{1024*(j%3)} {OPT['tfl']}")
        p(f"L_qt{k}:")
    p(f"s_cmp_lt_u32 {sI}, 8\ns_cbranch_scc1 L_q")
    vm = VM(["wq17"] * 6 + ["x9"] * 3 + ["wq18"] * 6)
    kv = lambda a: [(27 + 2 * k, x) for k, x in enumerate(a)]
    w = vm.wait("wq17"); vm.issue("wq19", 6); qstep(0, w, dma_wq(), [])
    if OPT["fair"]: p(f"buffer_load_dword v{vIn}, off, {srd(sDG)}, 0 sc1"); vm.issue("init")
    w = vm.wait("wq18"); vm.issue("t2", 6); qstep(1, w, dma_k(), kv(adv_k()))
    w = vm.wait("wq19"); vm.issue("t3", 6); qstep(0, w, dma_v(), kv(adv_v()))
    c01 = conv(0) + conv(1)[:12]
    if OPT["dist"] == 4: qstep(1, "s_waitcnt", [], [], do_reads=False, valu=c01)
    else: qstep(1, "s_waitcnt", dma_k(), kv(adv_k()), do_reads=False, valu=c01)
    stamp(p)
    p.ext(conv(1)[12:])
    for ks in range(2, 6): p.ext(conv(ks))
    for r in vVr: p(f"v_add_u32 v{r}, {S[5]}, v{r}")
    p(f"s_mov_b32 {sRd}, {S[4]}\ns_mov_b32 {sI}, 0\ns_mov_b32 {sRet}, 0")
    if OPT["fair"]:
        p(f"s_mov_b32 {sCn2}, 0\ns_waitcnt vmcnt(18)\nL_c0:\nv_readfirstlane_b32 {sT1}, v{vIn}\ns_cmp_eq_u32 {sT1}, 1\ns_cbranch_scc0 L_s0\nL_k0:")
        p(f"s_add_u32 {sFo}, {sB}, s2\ns_and_b32 {sFo}, {sFo}, 7\ns_lshl3_add_u32 {sFo}, {sW}, {sFo}\ns_add_u32 {sFo}, {sFo}, 320\ns_lshl_b32 {sFo}, {sFo}, {OPT['fs']}")
        p(f"s_mul_i32 {sFt}, {sW}, {OPT['fth']}\ns_add_u32 {sFt}, {sFt}, {16 - (3 * OPT['fth']) // 2 - 32}")
        p(f"v_lshlrev_b32 v247, 20, {l}\nv_mov_b32 v{vIn}, -16")
    elif not OPT["ann"]: announce()
    stamp(p)

    sv = lambda qb: [SS(0, qb) + i for i in range(4)] + [SS(1, qb) + i for i in range(4)]
    def probs(qb, check, dst=None, pack=True):
        x = sv(qb); y = dst or vPt; g = []
        g += [f"v_fma_f32 v{y[i]}, v{x[i]}, {sC}, -v{vMc[qb]}" for i in range(8)]
        if check:
            m = vMx[0]
            if qb == 0: g += [f"v_max3_f32 v{m}, v{y[0]}, v{y[1]}, v{y[2]}", f"v_max3_f32 v{m}, v{m}, v{y[3]}, v{y[4]}", f"v_max3_f32 v{m}, v{m}, v{y[5]}, v{y[6]}", f"v_max_f32 v{m}, v{m}, v{y[7]}"]
            else: g += [f"v_max3_f32 v{m}, v{m}, v{y[2*i]}, v{y[2*i+1]}" for i in range(4)]
        g += [f"v_exp_f32 v{y[i]}, v{y[i]}" for i in range(8)]
        t = vTm[qb]; u = vMx[1]
        g += [f"v_add_f32 v{t}, v{y[0]}, v{y[1]}", f"v_add_f32 v{u}, v{y[2]}, v{y[3]}", f"v_add_f32 v{t}, v{t}, v{y[4]}", f"v_add_f32 v{u}, v{u}, v{y[5]}",
              f"v_add_f32 v{t}, v{t}, v{y[6]}", f"v_add_f32 v{u}, v{u}, v{y[7]}"]
        if pack: g += [f"v_cvt_pk_bf16_f32 v{PP(qb)+i}, v{y[2*i]}, v{y[2*i+1]}" for i in range(4)]
        g += [f"v_add_f32 v{t}, v{t}, v{u}"]
        return g
    def rescale():
        return [f"v_pk_mul_f32 v[{ACC(t, qb)+h}:{ACC(t, qb)+h+1}], v[{ACC(t, qb)+h}:{ACC(t, qb)+h+1}], v[{vAl[qb]}:{vAl[qb]+1}] op_sel_hi:[1,0]"
                for t in range(12) for qb in range(3) for h in (0, 2)]
    def xlane(regs, op, vPt=vPt):
        g = []
        for sw in ("v_permlane32_swap_b32", "v_permlane16_swap_b32"):
            g += [f"v_mov_b32 v{vPt[qb]}, v{regs[qb]}" for qb in range(3)]
            g += [f"{sw} v{regs[qb]}, v{vPt[qb]}" for qb in range(3)]
            g += [f"{op} v{regs[qb]}, v{regs[qb]}, v{vPt[qb]}" for qb in range(3)]
        return g
    def slow_path():
        g = []
        for k in range(4):
            for qb in range(3):
                x = sv(qb)
                g.append(f"v_max3_f32 v{vMx[qb]}, v{vM[qb] if k == 0 else vMx[qb]}, v{x[2*k]}, v{x[2*k+1]}")
        g += xlane(vMx, "v_max_f32")
        g += [f"v_sub_f32 v{vTm[qb]}, v{vM[qb]}, v{vMx[qb]}" for qb in range(3)]
        g += [f"v_mul_f32 v{vMc[qb]}, {sC}, v{vMx[qb]}" for qb in range(3)]
        g += [f"v_mul_f32 v{vTm[qb]}, {sC}, v{vTm[qb]}" for qb in range(3)]
        g += [f"v_mov_b32 v{vM[qb]}, v{vMx[qb]}" for qb in range(3)]
        g += [f"v_exp_f32 v{vAl[qb]}, v{vTm[qb]}" for qb in range(3)]
        for qb in range(3): g += probs(qb, False)
        g += [f"v_mul_f32 v{vL[qb]}, v{vL[qb]}, v{vAl[qb]}" for qb in range(3)]
        return g + rescale()
    vKeep = [vPt, vKs + vVs[:2], [vVs[2]] + T[2:6] + [vFv, 247, vIn]]
    def kstep(dmas, advs, ret):
        last = ret == 1 and OPT["fn"] and not OPT["post"]
        pr = (lambda qb: probs(qb, True, vKeep[qb], False)) if last else (lambda qb: probs(qb, True))
        p("s_barrier")
        stamp(p, "a")
        rd = [f"ds_read_b128 {a4(FA(0, ks*2+kb))}, v{vKr[ks&1]} offset:{kb*6144+(ks>>1)*128}" for ks in range(6) for kb in range(2)]
        G = Gaps([f"{M16} {v4(SS(kb, qb))}, {a4(FA(0, ks*2+kb))}, {a4(QF(ks, qb))}, {'0' if ks == 0 else v4(SS(kb, qb))}"
                  for qb in range(3) for ks in range(6) for kb in range(2)])
        p.ext(rd[:7])
        G.mems(rd[7:], 0, 5)
        G.put(5, [f"s_add_u32 {sRd}, {sRd}, {2*SLOT}", f"s_cmp_ge_u32 {sRd}, {6*SLOT}"])
        G.put(6, [f"s_cselect_b32 {sRd}, 0, {sRd}", f"s_cselect_b32 {sDK}, {-4*SLOT & 0xffffffff}, {sT2}"])
        G.put(8, f"v_add_u32 v{vKr[0]}, {sDK}, v{vKr[0]}"); G.put(9, f"v_add_u32 v{vKr[1]}, {sDK}, v{vKr[1]}")
        G.vm(dmas[:4], [8, 14, 22, 30])
        G.spread(pr(0), 14, 25); G.spread(pr(1), 26, 36)
        p.ext(G.out())
        p.ext(weave(pr(2), dmas[4:] + advs, 2, 26))
        if OPT["lazy"]: p(f"v_cmp_lt_f32 vcc, {sThr}, v{vMx[0]}\ns_cbranch_vccnz L_slow")
        else: p("s_branch L_slow")
        p(f"L_ret{ret}:")
        for qb in range(3): p(f"v_add_f32 v{vL[qb]}, v{vL[qb]}, v{vTm[qb]}")
    def pv_mfmas(): return [f"{M16} {v4(ACC(t, qb))}, {a4(FA(1, t))}, {v4(PP(qb))}, {v4(ACC(t, qb))}" for t in range(12) for qb in range(3)]
    def vstep(dmas, advs, tail=[]):
        p("s_barrier")
        stamp(p, "a")
        rd = reads_t(lambda t: FA(1, t))
        p.ext(rd[:6])
        G = Gaps(pv_mfmas())
        G.vm(dmas, [3, 8, 13, 18, 23, 28])
        G.mems(rd[6:], 0, 23)
        for k in range(4): G.put(24 + k, f"v_add_u32 v{vVr[k]}, {sDK}, v{vVr[k]}")
        for k, a in enumerate(advs): G.put(30 + k, a)
        G.put(33, tail)
        p.ext(G.out())
    def dynwait(n, tag):
        p(f"s_add_u32 {sT0}, {sSk}, {n}\ns_cmp_le_u32 {sI}, {sT0}\ns_waitcnt vmcnt(24)\ns_cbranch_scc1 L_dw{tag}\ns_waitcnt vmcnt(12)\nL_dw{tag}:")
    p(f"s_mov_b32 {sT2}, {2*SLOT}")
    def windowed(g, n=OPT["win"]): return [x[:-1] + [f"s_waitcnt vmcnt({n})", x[-1]] for x in g] if n else g
    D = OPT["dist"]
    nxt_it = [f"s_add_u32 {sI}, {sI}, 1", f"s_cmp_lg_u32 {sI}, {OPT['codeit']}"]
    p("L_a:")
    if D == 3:
        p(f"s_cmp_eq_u32 {sI}, {sSk}\ns_cselect_b32 {sDV}, 0, 12288\ns_cselect_b32 s{sK+2}, 0, 393216\ns_cselect_b32 s{sV+2}, 0, 393216")
        def body(n, n2, ret, tg):
            if OPT["late"]: p(f"s_cmp_eq_u32 {sI}, 14\ns_cbranch_scc1 L_ae")
            dynwait(2, "k" + tg)
            kstep(windowed(dma_v(), n), adv_v(sDV), ret)
            if not OPT["late"]: p(f"s_cmp_eq_u32 {sI}, 14\ns_cbranch_scc1 L_ae")
            dynwait(1, "v" + tg)
            vstep(windowed(dma_k(), n2), adv_k(sDV), nxt_it)
        if OPT["fair"]:
            if OPT["fper"] > 1: p(f"s_and_b32 {sT0}, {sI}, {OPT['fper']-1} ; scc-ok\ns_cbranch_scc1 L_f1")
            p(f"v_readfirstlane_b32 {sT0}, v{vIn}\nv_mov_b32 v{vIn}, 1\ns_cmp_gt_i32 {sT0}, {sFt}\ns_cselect_b32 {sRet}, 3, 0\ns_add_u32 {sFt}, {sFt}, 32")
            p(f"buffer_atomic_add v{vIn}, v247, {srd(sFA)}, {sFo} offen sc0 sc1")
            p(f"L_f1:\ns_cmp_eq_u32 {sRet}, 0\ns_cbranch_scc1 L_a0")
            body(OPT["wbig"], OPT["wbig"], 3, "b")
            p("s_branch L_a2\nL_a0:")
        body(OPT["win"], OPT["win2"] or OPT["win"], 0, "")
        p("L_a2:")
    elif D == 5:
        p("s_waitcnt vmcnt(24)")
        kstep(windowed(dma_v()), adv_v(), 0)
        p(f"s_cmp_eq_u32 {sI}, 13\ns_cbranch_scc1 L_ae\ns_waitcnt vmcnt(24)")
        vstep(windowed(dma_k()), adv_k(), nxt_it)
    else:
        p(f"s_cmp_eq_u32 {sI}, 14\ns_cbranch_scc1 L_ae\ns_waitcnt vmcnt(18)")
        kstep(windowed(dma_k()), adv_k(), 0)
        p("s_waitcnt vmcnt(18)")
        vstep(windowed(dma_v()), adv_v(), nxt_it)
    p("s_cbranch_scc1 L_a")
    def ids():
        p(f"v_and_b32 {t1}, 1, {l}\nv_add_u32 {t1}, 1, {t1}\nv_xor_b32 {t1}, {sHP}, {t1}\nv_lshlrev_b32 {t1}, {OPT['fs']}, {t1}")
        p(f"buffer_load_dword v{vCo}, {t1}, {srd(sFG)}, 0 offen sc1")
    assert not OPT["code"] & 2
    if OPT["idm"]: ids()
    p("s_branch L_a")
    p("L_slow:")
    p.ext(slow_path())
    p(f"s_cmp_eq_u32 {sRet}, 0\ns_cbranch_scc1 L_ret0")
    if D != 3 or OPT["late"]: p(f"s_cmp_eq_u32 {sRet}, 2\ns_cbranch_scc1 L_ret2")
    if OPT["fair"]: p(f"s_cmp_eq_u32 {sRet}, 3\ns_cbranch_scc1 L_ret3")
    if OPT["fn"] and not OPT["post"]:
        for qb in range(3): p.ext(probs(qb, False, vKeep[qb], False))
    p("s_branch L_ret1")
    p("L_ae:")
    if OPT["late"]:
        p(f"s_waitcnt vmcnt(12)\ns_mov_b32 {sRet}, 2"); kstep(dma_v(), [], 2)
    stamp(p)
    vm = VM([f"t{t}" for t in range(32 - D, 32) for _ in range(6)])
    def w3touch():
        nr = OPT["wnr"]
        p(f"s_lshr_b32 {sT0}, {sB}, 1\ns_lshl_b32 {sT0}, {sT0}, 2\ns_add_u32 {sT0}, {sT0}, {sW}\ns_mul_i32 {sT0}, {sT0}, {nr*1280}")
        p(f"s_and_b32 {sT1}, {sB}, 1\ns_xor_b32 {sT3}, {sJ}, 3\ns_add_u32 {sT1}, {sT1}, {sT3}\ns_add_u32 {sT1}, {sT1}, 3\ns_cmp_ge_u32 {sT1}, 5\ns_cselect_b32 {sT3}, 5, 0\ns_sub_u32 {sT1}, {sT1}, {sT3}")
        p(f"s_lshl_b32 {sT1}, {sT1}, 8\ns_add_u32 {sT0}, {sT0}, {sT1}\ns_add_u32 {sT0}, {sT0}, {(384-16*nr)*1280}")
        p(f"v_min_u32 {t0}, {2*nr-1}, {l}\nv_lshrrev_b32 {t1}, 1, {t0}\nv_and_b32 {t0}, 1, {t0}\nv_mul_u32_u24 {t1}, 1280, {t1}\nv_lshl_add_u32 {t0}, {t0}, 7, {t1}")
        p(f"buffer_load_dword v{vCd}, {t0}, {srd(sWO)}, {sT0} offen"); vm.issue("touch")
        if not OPT["idm"]: ids(); vm.issue("ids")
    if OPT["w3"] and not OPT["tl"]: w3touch()
    nw = 0
    for t in range(32 - D, 31):
        p(vm.wait(f"t{t}"))
        g = []
        if nw < 3 and not (OPT["late"] >= 2 and t == 29):
            vm.issue(f"w{nw}", 6); g = windowed(dma_wo(nw, nw), OPT["wwin"]); nw += 1
        if t & 1: vstep(g, [])
        else:
            r = 1 if t == 30 else 2
            stamp(p, "x")
            p(f"s_mov_b32 {sRet}, {r}\ns_mov_b32 {sT2}, {2*SLOT}"); kstep(g, [], r)
    stamp(p, "x")
    if OPT["w3"] and OPT["tl"]: w3touch()
    if OPT["post"]:
        p.ext(xlane(vL, "v_add_f32", vTm))
        for qb in range(3): p(f"v_rcp_f32 v{vAl[qb]}, v{vL[qb]}")
    elif OPT["fn"]:
        p.ext(xlane(vL, "v_add_f32", vTm))
        for qb in range(3): p(f"v_rcp_f32 v{vAl[qb]}, v{vL[qb]}")
        for qb in range(3):
            y = vKeep[qb]
            for r in y: p(f"v_mul_f32 v{r}, v{vAl[qb]}, v{r}")
            for i in range(4): p(f"v_cvt_pk_bf16_f32 v{PP(qb)+i}, v{y[2*i]}, v{y[2*i+1]}")
    else:
        p.ext(xlane(vL, "v_add_f32"))
        for qb in range(3): p(f"v_rcp_f32 v{vAl[qb]}, v{vL[qb]}\nv_log_f32 v{vTm[qb]}, v{vL[qb]}")
        for qb in range(3): p(f"v_add_f32 v{vMc[qb]}, v{vMc[qb]}, v{vTm[qb]}")
        for qb in range(3): p.ext([x for x in probs(qb, False) if not x.startswith("v_add")])
    if OPT["late"] >= 2:
        vm.issue("w1", 6); nw = 2
        p.ext(weave(rescale(), dma_wo(1, 1), *{2: (0, 72), 3: (40, 72)}[OPT["late"]]))
    elif OPT["w2n"] and nw < 3:
        vm.issue("w2", 6); nw = 3
        p.ext(weave(rescale(), dma_wo(2, 2), *{1: (0, 72), 2: (40, 72), 3: (71, 72)}[OPT["w2n"]]))
    elif not OPT["post"]: p.ext(rescale())
    p(f"s_mul_i32 {sT0}, {sG}, {GRP}"); mk(sPG, pWS, sT0, 15 * PART + SL1 + 24576)
    mk(sOUT, pOUT, 0, 1966080)
    stamp(p, "x")
    p(vm.wait("t31")); p("s_barrier")
    stamp(p)
    AB = [144, 96]
    def AF(sig, tp, nu): return AB[sig & 1] + 8 * tp + 4 * nu
    def reads_wo(sig, slot):
        g = []
        for tp in range(3):
            for nu in range(2):
                r = AF(sig, tp, nu); o = (slot & 1) * SLOT + 32 * tp * 256
                g.append(f"ds_read_b64_tr_b16 v[{r}:{r+1}], v{vOr[nu][slot>>1]} offset:{o}")
                g.append(f"ds_read_b64_tr_b16 v[{r+2}:{r+3}], v{vOr[nu][slot>>1]} offset:{o+4096}")
        return g
    def o_out(tp):
        g = []
        for qb in range(3):
            a, b = ACC(2 * tp, qb), ACC(2 * tp + 1, qb)
            if OPT["post"] and OPT["pk"]: g += [f"v_pk_mul_f32 v[{r}:{r+1}], v[{r}:{r+1}], v[{vAl[qb]}:{vAl[qb]+1}] op_sel_hi:[1,0]" for r in (a, a + 2, b, b + 2)]
            elif OPT["post"]: g += [f"v_mul_f32 v{r+i}, v{vAl[qb]}, v{r+i}" for r in (a, b) for i in range(4)]
            g += [f"v_cvt_pk_bf16_f32 v{a}, v{a}, v{a+1}", f"v_cvt_pk_bf16_f32 v{a+1}, v{a+2}, v{a+3}",
                  f"v_cvt_pk_bf16_f32 v{a+2}, v{b}, v{b+1}", f"v_cvt_pk_bf16_f32 v{a+3}, v{b+2}, v{b+3}",
                  f"ds_write_b128 v{vOw}, {v4(a)} offset:{tp*12288+qb*1024}"]
        return g
    rd = reads_t(lambda t: FA(1, t))
    p.ext(rd[:10])
    G = Gaps(pv_mfmas())
    G.mems(rd[10:], 0, 10)
    if nw < 3 and not OPT["w2l"]:
        vm.issue("w2", 6)
        G.vm(dma_wo(2, 2), [3, 9, 15, 21, 27, 33])
    if OPT["post"] == 2:
        for tp in range(4): G.spread(o_out(tp), 8 + 7 * tp, 15 + 7 * tp)
    else:
        for tp in range(4): G.spread(o_out(tp), 10 + 6 * tp, 16 + 6 * tp + (2 if tp == 3 else 0))
    p.ext(G.out())
    stamp(p, "x")
    p(vm.wait("w0")); p("s_barrier")
    stamp(p, "x")
    if nw < 3 and OPT["w2l"]:
        vm.issue("w2", 6)
        p.ext(weave2(o_out(4) + o_out(5), [(reads_wo(0, 0), 0, 30), (dma_wo(2, 2), 2, 30)]))
    else: p.ext(weave(o_out(4) + o_out(5), reads_wo(0, 0)))
    stamp(p, "x")
    p("; vmq " + " ".join(f"{t}*1" for t in vm.q))
    tag = lambda g, t: g[:-1] + [g[-1] + f" ; vm={t}"]
    def BF(kq, tp, q):
        f = (kq * 3 + tp) * 6 + q
        return a4(4 * f) if f < 64 else v4(168 + 4 * (f - 64))
    def reads_b(k): return [f"ds_read_b128 {BF(k//3, k%3, q)}, v{vBr[k//3]} offset:{(k%3)*12288+q*1024}" for q in range(6)] if k < 12 else []
    def OA(ci, q, nu): return 48 * (ci & 1) + 8 * q + 4 * nu
    sBuf = ["s57", "s58", "s59", "s60", "s61"]
    sPf = ["s64", "s65"]
    sRo = ["s66", "s67"]; sRq = ["s68", "s62"]
    def out1(ci, q):
        a = OA(ci, q, 0)
        g = [f"v_cvt_pk_bf16_f32 v{a+i}, v{a+2*i}, v{a+2*i+1}" for i in range(4)]
        return g + [f"buffer_store_dwordx4 {v4(a)}, v{vPs[q//3]}, {srd(sPG)}, {sBuf[ci]} offen offset:{1024*(q%3)} {OPT['gfl'] if ci < 3 and not OPT['thru'] >> ci & 1 else 'sc1'} ; vm=st{ci}"]
    vZ, vSel, vRb, vOb, vRo, vOo = 200, 224, 221, 222, 223, 214
    def xload(n, q): return [f"buffer_load_dwordx4 {v4(120+4*q)}, v{vPs[q//3]}, {srd(sPG)}, {sBuf[2+n]} offen offset:{1024*(q%3)} {OPT['xfl']} ; vm=x{n}_{q}"]
    def xadd(n, q): return [f"s_waitcnt vmcnt(@x{n}_{q})"] + [f"{M16} {v4(OA(0, q, nu))}, {v4(vZ+2-2*nu)}, {v4(120+4*q)}, " + ("0" if n == 1 else v4(OA(0, q, nu))) for nu in range(2)]
    def setup0():
        g = [[f"s_mul_i32 {sBuf[0]}, {sHP}, {PART}", f"s_add_u32 {sBuf[1]}, {sBuf[0]}, {SL1}", f"s_xor_b32 {sT1}, {sHP}, 1"],
             [f"s_mul_i32 {sBuf[2]}, {sT1}, {PART}", f"s_add_u32 {sBuf[3]}, {sBuf[2]}, {SL1}", f"s_lshl_b32 {sPf[0]}, {sT1}, {OPT['fs']}"],
             [f"s_xor_b32 {sT1}, {sHP}, 3", f"s_mul_i32 {sBuf[4]}, {sT1}, {PART}"], [f"s_xor_b32 {sT1}, {sHP}, 2", f"s_lshl_b32 {sPf[1]}, {sT1}, {OPT['fs']}"]]
        return g
    def rsetup():
        g = []
        g.append([f"s_mul_i32 {sDV}, {sB}, {96*2560}", f"s_mul_i32 {sT1}, {sBR}, 1280", f"s_add_u32 {sDV}, {sDV}, {sT1}"])
        g.append([f"s_lshl_b32 {sT1}, {sW}, 6", f"s_add_u32 {sDV}, {sDV}, {sT1}"])
        for r in range(2):
            g.append([f"s_add_u32 {sT1}, {sW}, {2*r}", f"s_lshl2_add_u32 {sT1}, {sT1}, {sHP}", f"s_and_b32 {sT1}, {sT1}, 15"])
            g.append([f"s_mul_i32 {sRq[r]}, {sT1}, {8*2560}", f"s_lshr_b32 {sT3}, {sT1}, 1", f"s_mul_i32 {sT3}, {sT3}, 768"])
            g.append([f"s_lshl_b32 {sRo[r]}, {sT1}, 7", f"s_add_u32 {sRo[r]}, {sRo[r]}, {sT3}", f"s_add_u32 {sRo[r]}, {sRo[r]}, {SL1*r}"])
            g.append([f"s_cmp_lt_u32 {sT1}, 12", f"s_cselect_b32 {sRo[r]}, {sRo[r]}, 0x40000000", f"s_cselect_b32 {sRq[r]}, {sRq[r]}, 0x40000000"])
        v = [f"v_lshrrev_b32 {t0}, 4, {l}", f"v_and_b32 {t1}, 15, {l}", f"v_lshlrev_b32 {t2}, 8, {t0}", f"v_lshl_add_u32 {t2}, {t1}, 3, {t2}", f"v_add_u32 v{vRb}, {sW6}, {t2}",
             f"v_lshrrev_b32 {t2}, 1, {t1}", f"v_mul_u32_u24 {t2}, 2560, {t2}", f"v_lshl_add_u32 {t2}, {t0}, 3, {t2}", f"v_and_b32 {t3}, 1, {l}", f"v_lshl_add_u32 {t2}, {t3}, 5, {t2}",
             f"v_add_u32 v{vOb}, {sDV}, {t2}",
             f"v_lshlrev_b32 {t3}, 4, {t3}", f"v_mov_b32 {t2}, 0x3f80", f"v_lshlrev_b32 {t2}, {t3}, {t2}", f"v_lshrrev_b32 {t1}, 1, {t1}", f"v_lshlrev_b32 {t0}, 1, {t0}",
             [f"v_cmp_eq_u32 vcc, {t0}, {t1}", f"v_cndmask_b32 v{vSel}, 0, {t2}, vcc"], f"v_add_u32 {t0}, 1, {t0}",
             [f"v_cmp_eq_u32 vcc, {t0}, {t1}", f"v_cndmask_b32 v{vSel+1}, 0, {t2}, vcc"], f"v_mov_b32 v{vSel+2}, v{vSel}", f"v_mov_b32 v{vSel+3}, v{vSel+1}",
             f"v_mov_b32 v{vZ}, 0", f"v_mov_b32 v{vZ+1}, 0", f"v_mov_b32 v{vZ+2}, v{vSel}", f"v_mov_b32 v{vZ+3}, v{vSel+1}", f"v_mov_b32 v{vZ+4}, 0", f"v_mov_b32 v{vZ+5}, 0"]
        return g, v
    def check1(n, load):
        p(f"L_c{n}:\nv_readfirstlane_b32 {sT1}, v{vIn}\ns_and_b32 {sT1}, {sT1}, 0xff\ns_cmp_ge_u32 {sT1}, {n}\ns_cbranch_scc0 L_s{n}\nL_k{n}:"); spin(n, load)
    ld_peer = lambda n: f"buffer_load_dword v{vIn}, off, {srd(sFG)}, {sPf[n == 3]} sc1"
    ld_all = f"buffer_load_dword v{vIn}, v{vFo}, {srd(sFG)}, 0 offen {OPT['pfl']}"
    PUB = {int(x): k + 1 for k, x in enumerate(str(OPT["pubs"]).split(","))}
    if OPT["sp"]: PUB[18] = 4
    POL = {int(x): k + 1 for k, x in enumerate(str(OPT["pols"]).split(","))}
    ADD = {int(x): k for k, x in enumerate(str(OPT["adds"]).split(","))}
    slot_of = {0: 0, 1: 1, 2: 2}
    free = []; nxt = 3; pend = []
    sCn = "s88"
    p(f"s_mov_b32 {sCnt}, 0")
    for sig in range(20):
        ci, kq = divmod(sig, 4)
        assert not any(t == sig + 1 for t, _ in pend)
        pub = PUB.get(sig, 0); chk = POL.get(sig - 1, 0)
        need = [f"w{sig+1}"]
        if pub: need.append(f"st{pub-1}")
        if sig == 2: need.append("ids")
        if 0 < pub < 4:
            p(f"s_cmp_eq_u32 {sLoc}, 0\ns_waitcnt lgkmcnt(0)\ns_cbranch_scc1 L_f{pub}\nL_g{pub}:")
            side.append(f"L_f{pub}:\n" + "".join(out1(pub - 1, q)[-1].split(";")[0] + " sc1 ; side\n" for q in range(6) if "sc1" not in out1(pub - 1, q)[-1]) + f"s_waitcnt vmcnt(0)\ns_barrier\n"
                        + " ; side\n".join(publish(pub)) + f" ; side\ns_branch L_h{pub}")
        if chk: need.append(f"poll{chk}")
        if sig < 19 or pub:
            p(f"s_waitcnt vmcnt(@{','.join(need)}) lgkmcnt(0)"); p("s_barrier")
        if 0 < pub < 4: p(f"L_h{pub}:")
        if sig == 0: stamp(p)
        elif kq == 0 and "c" in OPT["fine"]: stamp(p)
        else: stamp(p, "o")
        ops = []
        if chk: check1(chk, ld_peer(chk))
        if pub and not (OPT["plast"] and chk): ops.append(publish(pub, OPT['ffl'] if pub < 4 else 'sc1'))
        G = Gaps([f"{M16} {v4(OA(ci, q, nu))}, {v4(AF(sig, tp, nu))}, {BF(kq, tp, q)}, " + ("0" if kq == 0 and tp == 0 and ci < 4 else v4(OA(ci, q, nu)))
                  for tp, q, nu in ([(tp, q, nu) for q in range(6) for tp in range(3) for nu in range(2)] if sig == 19 else
                                    [(tp, q, nu) for tp in range(3) for q in range(6) for nu in range(2)])])
        if sig == 0: p.ext(reads_b(0))
        free.append(slot_of[sig])
        if sig == 4: free += [3, 4, 5]
        while free and nxt < 20 and nxt - sig <= OPT["dmax"] + 1:
            slot_of[nxt] = free.pop(0); pend += [(nxt, tag(g, f"w{nxt}")) for g in dma_wo(nxt, slot_of[nxt])]; nxt += 1
        PT = {int(x): k for k, x in enumerate(str(OPT["pt"]).split(",")) if x}
        if sig in PT:
            ops.append([f"v_min_u32 {t4}, 47, {l}", f"v_lshl_add_u32 {t4}, {t4}, 7, {sW6}", f"buffer_load_dword v{vCd}, {t4}, {srd(sPG)}, {sBuf[PT[sig]]} offen"])
        if sig in POL: ops.append([ld_peer(POL[sig]) + f" ; vm=poll{POL[sig]}"])
        if chk: ops += [xload(chk - 1, q) for q in range(6)]
        if pub and OPT["plast"] and chk: ops.append(publish(pub, OPT['ffl'] if pub < 4 else 'sc1'))
        WS = [int(x) for x in str(OPT["ws"]).split(",")]
        sts = [out1(ci - 1, q) for q in range(6)] if sig in WS else []
        if sts: assert WS.index(sig) == ci - 1
        nd = min(len(pend), max(9 - len(ops) - len(sts), sum(1 for t, _ in pend if t <= sig + 2)))
        ops += [g for _, g in pend[:nd]]; pend = pend[nd:]
        n = len(ops) + len(sts)
        slots = [1 + 5 * k for k in range(7)] if n <= 7 else DS9 if n <= 9 else list(range(0, 36, 3))
        if not ops: slots = slots[1:]
        G.vm(ops, slots)
        for k, g in enumerate(sts):
            at = slots[len(ops) + k]
            G.spread(g[:-1], at - 4 if n <= 9 else at - 3, at); G.put(at, g[-1])
        if sig in ADD:
            for q in range(6): G.put((1 + 6 * q) if sig == 19 else (OPT['a0'] + OPT['astep'] * q), xadd(ADD[sig], q))
        if sig == 19:
            for q in range(4): G.spread(out1(4, q), 10 + 6 * q, 16 + 6 * q)
        if sig == 0: G.spread(setup0(), 2, 30)
        if sig == 2:
            G.put(13, f"v_and_b32 v{vCo}, 0xff00, v{vCo}"); G.put(17, f"v_cmp_eq_u32 vcc, {sId}, v{vCo}")
            G.put(22, [f"s_cmp_eq_u32 vcc_lo, -1", f"s_cselect_b32 {sLoc}, {0 if OPT['forcefb'] else 1}, 0"])
        if sig in (5, 6, 7, 9):
            sg, vg = rsetup()
            G.spread({5: sg, 6: vg[:11], 7: vg[11:19], 9: vg[19:]}[sig], 2, 34)
        if sig == 19 and OPT["arr"]: G.put(33, [f"s_mov_b32 {sCn}, 0", ld_all + " ; vm=poll4"])
        ra = reads_wo(sig + 1, slot_of[sig + 1]) if sig < 19 else []
        if sig < 4:
            for tp in range(3): G.mems(reads_b(3 * sig + tp + 1) + ra[4*tp:4*tp+4], 12 * tp, 12 * tp + (12 if tp < 2 else 8))
        else: G.mems(ra, 0, 30)
        p.ext(G.out())
    for q in range(4, 6): p.ext(out1(4, q))
    stamp(p)
    sCol = ["s57", "s58", "s59", "s60"]
    for jj in range(4):
        p(f"s_add_u32 {sT0}, {sCrot}, {jj^3}\ns_cmp_ge_u32 {sT0}, 5\ns_cselect_b32 {sT3}, 5, 0\ns_sub_u32 {sT0}, {sT0}, {sT3}\ns_lshl_b32 {sCol[jj]}, {sT0}, 8")
    order = [jj + 4 * x for jj in range(4) for x in range(4)]
    def rloads(r, sfx=""):
        g = [f"v_add_u32 v{vRo}, {sRo[r]}, v{vRb}"]
        for k, h in enumerate(order):
            d = 48 + 32 * r + 2 * k
            g += [f"s_mov_b32 {sT1}, {h*PART}", f"buffer_load_dwordx2 v[{d}:{d+1}], v{vRo}, {srd(sPG)}, {sT1} offen {OPT['pld']} ; vm=r{r}_{k>>1}"]
        return g
    def check(n): p(f"L_c{n}:\nv_and_b32 v{vIn}, 0xff, v{vIn}\nv_cmp_le_u32 vcc, {n}, v{vIn}\ns_cmp_eq_u32 vcc_lo, 0xffff\ns_cbranch_scc0 L_s{n}\nL_k{n}:")
    if OPT["arr"]:
        sTodo, sFi, vLa, vMk, vRo2 = "s64", "s65", 206, 207, 208
        p(f"v_add_u32 v{vRo}, {sRo[0]}, v{vRb}\nv_add_u32 v{vRo2}, {sRo[1]}, v{vRb}\nv_mov_b32 v{vLa}, {S[slot_of[18]]}\ns_mov_b32 {sTodo}, 0x1111\ns_mov_b32 {sFi}, 1")
        if OPT["arr"] == 1: p("s_waitcnt vmcnt(@st4)")
        else: p("s_waitcnt vmcnt(@poll4)")
        p("L_r:")
        p(f"s_cmp_lg_u32 {sW}, 1\ns_cbranch_scc1 L_r1")
        p(f"v_and_b32 v{vIn}, 0xff, v{vIn}\nv_cmp_le_u32 vcc, 5, v{vIn}\nv_mov_b32 v{vMk}, vcc_lo\nds_write_b32 v{vLa}, v{vMk}\ns_waitcnt lgkmcnt(0)")
        p("L_r1:\ns_barrier")
        if OPT["arr"] == 1:
            p(f"s_cmp_eq_u32 {sFi}, 0\ns_cbranch_scc1 L_r2\n" + " ; side\n".join(publish(5)) + f" ; side\ns_mov_b32 {sFi}, 0\nL_r2:")
        p(f"ds_read_b32 v{vMk}, v{vLa}\nv_xor_b32 v{vLa}, 4, v{vLa}\nv_readfirstlane_b32 {sT0}, v{vMk}")
        p(f"s_lshr_b32 {sT1}, {sT0}, 1\ns_and_b32 {sT0}, {sT0}, {sT1}\ns_lshr_b32 {sT1}, {sT0}, 2\ns_and_b32 {sT0}, {sT0}, {sT1}\ns_and_b32 {sT0}, {sT0}, {sTodo}\ns_xor_b32 {sTodo}, {sTodo}, {sT0}")
        for x in range(4):
            p(f"s_bitcmp0_b32 {sT0}, {4*x}\ns_cbranch_scc1 L_rx{x}")
            for jj in range(4):
                p(f"s_mov_b32 {sT1}, {(4*x+jj)*PART}")
                for r in range(2):
                    d = 48 + 32 * r + 2 * (4 * jj + x)
                    p(f"buffer_load_dwordx2 v[{d}:{d+1}], v{vRo2 if r else vRo}, {srd(sPG)}, {sT1} offen {OPT['pld']} ; side")
            p(f"L_rx{x}:")
        p(f"s_cmp_eq_u32 {sTodo}, 0\ns_cbranch_scc1 L_re")
        p(f"s_add_u32 {sCn}, {sCn}, 1\ns_cmp_ge_u32 {sCn}, 200000\ns_cbranch_scc1 L_re")
        p(f"s_cmp_lg_u32 {sW}, 1\ns_cbranch_scc1 L_r1")
        if OPT["slp"]: p(f"s_sleep {OPT['slp']}")
        p(ld_all + " ; side\ns_waitcnt vmcnt(0)\ns_branch L_r")
        p("L_re:")
        stamp(p); stamp(p)
        p("s_waitcnt vmcnt(0)\n; vmq none*0")
    else:
        p("s_waitcnt vmcnt(@st4)\ns_barrier"); p.ext(publish(5))
        stamp(p)
        if OPT["w0p"]: p(f"s_cmp_lg_u32 {sW}, 1\ns_cbranch_scc1 L_k5")
        p(ld_all + " ; side\ns_waitcnt vmcnt(0)")
        check(5); spin(5, ld_all)
        if OPT["w0p"]: p("s_barrier")
        stamp(p)
        p.ext(rloads(1))
        p.ext(rloads(0))
    def rout(acc, pk, so): return [f"v_cvt_pk_bf16_f32 v{pk}, v{acc}, v{acc+1}", f"v_cvt_pk_bf16_f32 v{pk+1}, v{acc+2}, v{acc+3}",
                                   f"buffer_store_dwordx2 v[{pk}:{pk+1}], v{vOo}, {srd(sOUT)}, {so} offen {OPT['ost']}"]
    for k in range(8): p(f"s_waitcnt vmcnt(@r1_{k})\n{M16} v[120:123], {v4(vSel)}, {v4(80+4*k)}, " + ("0" if k == 0 else "v[120:123]"))
    p(f"v_add_u32 v{vOo}, {sRq[1]}, v{vOb}"); p.ext(rout(120, 144, sCo[3]))
    for k in range(8): p(f"s_waitcnt vmcnt(@r0_{k})\n{M16} {v4(124+4*(k>>1))}, {v4(vSel)}, {v4(48+4*k)}, " + ("0" if k % 2 == 0 else v4(124+4*(k>>1))))
    p(f"v_add_u32 v{vOo}, {sRq[0]}, v{vOb}")
    for jj in range(4): p.ext(rout(124 + 4 * jj, 146 + 2 * jj, sCol[jj]))
    if OPT["stamps"]:
        p("s_waitcnt vmcnt(0)")
        stamp(p)
        p(f"s_lshl_b32 {sT0}, s2, 2\ns_add_u32 {sT0}, {sT0}, {sW}\ns_lshl_b32 {sT0}, {sT0}, 9\ns_add_u32 {sT0}, {sT0}, {STAMP_OFF}")
        p(f"v_lshlrev_b32 v0, 2, v{vLn}\nv_add_u32 v0, {sT0}, v0")
        p(f"global_store_dword v0, v255, s[{pWS}:{pWS+1}]\nglobal_store_dword v0, v254, s[{pWS}:{pWS+1}] offset:256")
    p("L_exit:\ns_endpgm")
    for x in side: p(x)
    p.resolve_vm()
    d = OPT["drop"]
    def keep(i):
        if "m" in d and i.kind == "mfma": return False
        if "w" in d and i.lds_dma and i.src & {("s", sWQ), ("s", sX), ("s", sWO)}: return False
        if "r" in d and i.kind == "ds": return False
        if "s" in d and i.wide_store: return False
        return True
    p.auto_lgkm(); p.auto_nop(); p.lint_scc()
    p.ins = [i if keep(i) else Ins("s_nop 0") for i in p.ins]
    return p

def build():
    ref = open(f"cdna_kernels/{NAME}.s.ref").read().split("\n")
    head = [l for l in ref if l.startswith(";") and "@launch" not in l]
    out = "\n".join(head) + "\n"
    out += f"; @launch grid=(256,1,1) block=(256,1,1) lds={LDS_BYTES}\n"
    out += '.amdgcn_target "amdgcn-amd-amdhsa--gfx950"\n.text\n'
    nm = NAME + "_kernel"
    out += f".globl {nm}\n.p2align 8\n.type {nm},@function\n" + kernel().text()
    out += f""".section .rodata,"a"
.p2align 6
.amdhsa_kernel {nm}
  .amdhsa_next_free_vgpr 512
  .amdhsa_next_free_sgpr 102
  .amdhsa_accum_offset 256
  .amdhsa_group_segment_fixed_size 0
  .amdhsa_kernarg_size 104
  .amdhsa_user_sgpr_count 2
  .amdhsa_user_sgpr_kernarg_segment_ptr 1
  .amdhsa_system_sgpr_workgroup_id_x 1
  .amdhsa_float_denorm_mode_32 3
.end_amdhsa_kernel
"""
    return out

if __name__ == "__main__":
    txt = build()
    open(sys.argv[1], "w").write(txt)
```

```python
import sys, struct, math
from asmlib import *

NAME = "concat_heads__gqa_block_cached__mha_block_cached__near_ridge"
OPT = dict(stamps=0, fw=128, fs=7, fine="", drop="", kv="nt", wq="", x="", wo="", pst="sc1", pld="sc1", kburst=1, vburst=5, spread=2, dmax=3, pubfrom=99, code=3, cend=1, codeit=10, ost="sc1 nt", thr=0x41000000, skip0=2, skipn=8, lazy=1, wotouch=99, wotn=3, epoch=1, w3=1, touch="", tfl="", win=5, kst="01", vst="56", dynq=1, eps="55", pre=1, delay=0, tst="", tt="7", dist=3, wwin=0, tl=1, mid=0, fn=1, w2l=1, pub4=18, r0=20, mode=3, slp=0, tk=0, ntk=3, early=1, wnr=6, win2=0, fair=0, wbig=7, fth=6, fper=1, ann=1, pubs="6,10,14", pols="9,13,17", adds="11,15,19", cap=9, bfree=4, krot=0, qlast=1, both=1, gfl="", xfl="sc1", fb=1, forcefb=0, fresh=0, lay=1, arr=0, idm=1, w2n=0, thru=0, post=0, pk=1, late=2, x4=1, k0=1, tskip=1, fair2=0, ox=0, fc=8, fd=3, fj=3, fwr=1, pt="", ffl="", plast=1, sp=0, pfl="sc1", w0p=1, a0=13, astep=4, ws="4,8,12,16")
for a in sys.argv[2:]:
    k, v = a.split("=", 1)
    assert k in OPT, k
    OPT[k] = int(v) if v.lstrip("-").isdigit() else v

SLOT = 24576
S = [i * SLOT for i in range(6)]
LDS_BYTES = 6 * SLOT
PART = {0: 49152, 1: 24576, 2: 24576, 3: 49152 + 1024}[OPT['lay']]
SL1 = {0: 24576, 1: 256 * 24576, 2: 16 * 24576, 3: 24576}[OPT['lay']]
GRP = {0: 16 * PART, 1: 16 * PART, 2: 32 * PART, 3: 16 * PART}[OPT['lay']]
FLAG_OFF = 32 << 20
STAMP_OFF = 64 << 20

sX, sWQ, sK, sV, sWO, sP = 28, 32, 36, 40, 44, 48
sFL, sFG, sFA, sDG = 4, 8, 12, 16
sPG, sOUT = 28, 32
pOUT, pDBG, pWS = 20, 22, 24
def srd(b): return f"s[{b}:{b+3}]"
sW, sB, sHP, sBR, sC = "s52", "s53", "s54", "s55", "s56"
sWQo, sWQlim, sXo, sWQm, sXm, sRd, sI = "s57", "s58", "s59", "s60", "s61", "s62", "s63"
sKo, sVo, sKm, sVm, sDK, sDV = "s64", "s65", "s66", "s67", "s68", "s69"
sT0, sT1, sT2, sT3 = "s70", "s71", "s72", "s73"
sW6, sXd, sCrot, sKrot = "s74", "s75", "s76", "s77"
sCo = ["s78", "s79", "s80", "s81", "s82"]
sKq = ["s83", "s84", "s85", "s86"]
sJ, sSk, sG, sRet = "s87", "s88", "s89", "s90"
sThr = "s91"; sKV0 = "s101"; sKb, sVb, sBm = "s3", "s90", "s69"; sId, sStop, sLoc = "s0", "s1", "s1"
sE = ["s97", "s58"]; sTb = 98
sNeed, sTodo, sReady, sPrev, sCur, sFirst, sCnt, sOo = "s57", "s58", "s59", "s60", "s61", "s62", "s63", "s64"
sST, sSI = 92, "s96"
def ACC(t, qb): return (t * 3 + qb) * 4
def SS(kb, qb): return 144 + (kb * 3 + qb) * 4
def PP(qb): return 168 + qb * 4
vM = [180, 181, 182]; vL = [183, 184, 185]; vAl = [186, 188, 190]; vMx = [192, 193, 194]; vTm = [195, 196, 197]; vMc = [187, 189, 191]
vKs = list(range(200, 206)); vVs = [206, 207, 208]; vWs = [209, 210, 211]; vXs = [212, 213, 214]; vOs = [215, 216, 217, 218, 219, 220]
vKr = [221, 222]; vVr = [223, 224, 225, 226]; vXr = [227, 228]; vOr = [[229, 230, 231], [232, 233, 234]]; vOw = 235; vBr = [236, 237, 198, 199]; vPs = [238, 239]
vPt = vWs + vXs + vXr
vLn = 240; vFo = 241; vFv = 242; vF4 = 243; vIn = 244; vCo = 245; vCd = 246; T = list(range(248, 254))
def v4(r): return f"v[{r}:{r+3}]"
def a4(r): return f"a[{r}:{r+3}]"
def QF(ks, qb): return (ks * 3 + qb) * 4
def FA(p, t): return 72 + 48 * p + 4 * t
def FB(p, qb): return 168 + 12 * p + 4 * qb

M16 = "v_mfma_f32_16x16x32_bf16"

class VM:
    def __init__(self, q): self.q = list(q)
    def issue(self, tag, n=1): self.q += [tag] * n
    def wait(self, *tags):
        idx = max((k for k, t in enumerate(self.q) if t in tags), default=-1)
        n = len(self.q) - 1 - idx
        self.q = self.q[idx + 1:]
        assert n <= 63
        return f"s_waitcnt vmcnt({n})"
    def done(self, tag): return tag not in self.q

def stamp(p, cls=""):
    if OPT["stamps"] == 2:
        if not cls and not getattr(stamp, "done", 0):
            stamp.done = 1
            p(f"s_memrealtime s[{sST}:{sST+1}]\ns_lshl_b32 {sT0}, s2, 2\ns_add_u32 {sT0}, {sT0}, {sW}\ns_lshl_b32 {sT0}, {sT0}, 9\ns_add_u32 {sT0}, {sT0}, {STAMP_OFF}\ns_waitcnt lgkmcnt(0)")
            p(f"v_writelane_b32 v255, s{sST}, 0\nv_writelane_b32 v255, s{sST}, 1\nv_lshlrev_b32 v254, 2, v{vLn}\nv_add_u32 v254, {sT0}, v254\nglobal_store_dword v254, v255, s[{pWS}:{pWS+1}] sc1")
        return
    if OPT["stamps"] and (not cls or cls in OPT["fine"]):
        p(f"s_memrealtime s[{sST}:{sST+1}]\ns_memtime s[{sST+2}:{sST+3}]\ns_mov_b32 s100, m0\ns_mov_b32 m0, {sSI}\ns_add_u32 {sSI}, {sSI}, 1\ns_waitcnt lgkmcnt(0)")
        p(f"v_writelane_b32 v255, s{sST}, m0\nv_writelane_b32 v254, s{sST+2}, m0\ns_mov_b32 m0, s100")

def dma6(vs, srdb, so, mbase, flags, src_step, six=False):
    def val(dst, x, extra):
        if isinstance(x, tuple): r, imm = x
        else: r, imm = x, 0
        imm += extra
        return f"s_add_u32 {dst}, {r}, {imm}" if imm else f"s_mov_b32 {dst}, {r}"
    g = []
    for j in range(6):
        pre = []
        sreg = so if (j < 3 or src_step == 0) else sT3
        if j % 3 == 0:
            pre = [val("m0", mbase, 3072 * (j // 3))]
            if j == 3 and src_step: pre.append(val(sT3, so, src_step))
        v = vs[j] if six else vs[j % 3]
        g.append(pre + [f"buffer_load_dwordx4 v{v}, {srd(srdb)}, {sreg} offen offset:{1024*(j%3)} {flags} lds"])
    return g
def dma_k(): return dma6(vKs, sK, sKo, sKm, OPT["kv"], 0, six=True)
def dma_v(): return dma6(vVs, sV, sVo, sVm, OPT["kv"], 3072)
def dma_wq(): return dma6(vWs, sWQ, sWQo, sWQm, OPT["wq"], 16 * 12288)
def dma_x():
    g = []
    for j in range(3):
        pre = [f"s_mov_b32 m0, {sXm}"] if j == 0 else []
        g.append(pre + [f"buffer_load_dwordx4 v{vXs[j]}, {srd(sX)}, {sXo} offen offset:{1024*j} {OPT['x']} lds"])
    return g
def dma_wo(sig, slot):
    ci, kq = divmod(sig, 4)
    g = dma6(vOs, sWO, sT2, (sW6, S[slot]), OPT["wo"], 0, six=True)
    g[0] = [g[0][0], f"s_add_u32 {sT2}, {sCo[ci]}, {sKq[kq]}"] + g[0][1:]
    return g
def set_wq(e): return [f"s_mul_i32 {sWQo}, {sXo}, 6144", f"s_add_u32 {sWQo}, {sWQo}, {sE[e]}"]
def adv_wqm(): return [f"s_add_u32 {sWQm}, {sWQm}, {SLOT}", f"s_cmp_ge_u32 {sWQm}, {3*SLOT}", f"s_cselect_b32 {sWQm}, {sW6}, {sWQm}"]
def next_pair():
    return [[f"s_lshr_b64 s[{sTb}:{sTb+1}], s[{sTb}:{sTb+1}], 4", f"s_and_b32 {sXo}, s{sTb}, 15", f"s_lshl_b32 {sXo}, {sXo}, 7"]]
def flip_x(): return [f"s_xor_b32 {sXm}, {sXm}, {sXd}"]
def adv_kv(so, sm, step="12288"):
    if step == "12288": a = [f"s_add_u32 {so}, {so}, 12288", f"s_add_u32 {sm}, {sm}, {2*SLOT}"]
    else: a = [f"s_add_u32 {so}, {so}, {step}", f"s_lshl2_add_u32 {sm}, {step}, {sm}"]
    g = [a, [f"s_cmp_ge_u32 {sm}, {6*SLOT}", f"s_cselect_b32 {sT0}, {6*SLOT}, 0", f"s_sub_u32 {sm}, {sm}, {sT0}"]]
    if OPT["krot"]: g.append([f"s_cmp_ge_u32 {so}, {sKV0}", f"s_cselect_b32 {sT0}, 196608, 0", f"s_sub_u32 {so}, {so}, {sT0}"])
    return g
def adv_k(step="12288"): return adv_kv(sKo, sKm, step)
def adv_v(step="12288"): return adv_kv(sVo, sVm, step)
def flat(g): return [x for y in g for x in ([y] if isinstance(y, str) else y)]

def reads_t(dstf, n=12):
    g = []
    for t in range(n):
        r = dstf(t); o = (t >> 2) * 128
        g.append(f"ds_read_b64_tr_b16 a[{r}:{r+1}], v{vVr[t&3]} offset:{o}")
        g.append(f"ds_read_b64_tr_b16 a[{r+2}:{r+3}], v{vVr[t&3]} offset:{o+6144}")
    return g
def reads_x(p, e): return [f"ds_read_b128 {a4(FB(p, qb))}, v{vXr[e]} offset:{qb*2048}" for qb in range(3)]
def adv_rd_wq():
    return [[f"s_add_u32 {sRd}, {sRd}, 1", f"s_cmp_ge_u32 {sRd}, 3", f"s_cselect_b32 {sRd}, 0, {sRd}",
             f"s_cselect_b32 {sT1}, {-2*SLOT & 0xffffffff}, {sT2}"]] + [f"v_add_u32 v{r}, {sT1}, v{r}" for r in vVr]

def kernel():
    p = Prog()
    p(f"{NAME}_kernel:")
    p("s_cmp_ge_u32 s2, 256\ns_cbranch_scc1 L_exit")
    p("s_bfe_u32 s55, s2, 0x10002\ns_mul_i32 s3, s55, 40")
    p("s_load_dwordx8 s[4:11], s[0:1], s3\ns_add_u32 s3, s3, 32\ns_load_dwordx2 s[12:13], s[0:1], s3")
    p(f"s_load_dwordx4 s[{pOUT}:{pOUT+3}], s[0:1], 80\ns_load_dwordx2 s[{pWS}:{pWS+1}], s[0:1], 96")
    if OPT["stamps"]: p(f"v_mov_b32 v255, 0\nv_mov_b32 v254, 0\ns_mov_b32 {sSI}, 0")
    l = f"v{vLn}"
    t0, t1, t2, t3, t4 = (f"v{r}" for r in T[:5])
    p(f"v_lshrrev_b32 {t0}, 6, v0\nv_and_b32 {l}, 63, v0")
    p(f"s_and_b32 {sT0}, s2, 3\ns_bfe_u32 {sB}, s2, 0x30003\ns_lshr_b32 {sJ}, s2, 6")
    p(f"v_readfirstlane_b32 {sW}, {t0}")
    p(f"s_lshl_b32 {sHP}, {sT0}, 2\ns_add_u32 {sHP}, {sHP}, {sJ}")
    if OPT["code"]:
        p("s_getpc_b64 s[26:27]\nL_pc:")
        p(f"s_sub_u32 s26, s26, L_pc-{NAME}_kernel\ns_subb_u32 s27, s27, 0")
        p(f"s_lshr_b32 {sT1}, s2, 3\ns_lshl_b32 {sT1}, {sT1}, 2\ns_add_u32 {sT1}, {sT1}, {sW}\ns_mul_i32 {sT1}, {sT1}, 384")
        p(f"v_and_b32 v{vCo}, 3, {l}\nv_lshlrev_b32 v{vCo}, 7, v{vCo}\nv_add_u32 v{vCo}, {sT1}, v{vCo}\nv_min_u32 v{vCo}, {'L_end-4' if OPT['cend'] else 'L_exit'}-{NAME}_kernel, v{vCo}")
        if OPT["code"] & 1: p(f"global_load_dword v{vCd}, v{vCo}, s[26:27]")
    p(f"s_lshr_b32 {sCrot}, {sB}, 1\ns_and_b32 {sKrot}, {sB}, 1\ns_add_u32 {sT1}, {sCrot}, {sJ}")
    p(f"s_mov_b64 s[{sTb}:{sTb+1}], 0")
    e0 = 0
    for n in (int(c) for c in str(OPT["eps"])):
        seq = [e0 + k % n for k in range(16)]
        lo = sum(v << (4 * k) for k, v in enumerate(seq[:8])); hi = sum(v << (4 * k) for k, v in enumerate(seq[8:]))
        if n == 5: p(f"s_cmp_eq_u32 {sB}, 7\ns_addc_u32 {sT0}, {sT1}, 0 ; carry-ok\ns_lshl_b32 {sT0}, {sT0}, 2")
        else: p(f"s_lshl_b32 {sT0}, {sT1}, 2")
        p(f"s_mov_b32 s72, {lo:#x}\ns_mov_b32 s73, {hi:#x}\ns_lshr_b64 s[72:73], s[72:73], {sT0}\ns_and_b32 s72, s72, {(1 << (4 * n)) - 1:#x}\ns_mov_b32 s73, 0")
        p(f"s_lshl_b64 s[72:73], s[72:73], {4*e0}\ns_or_b64 s[{sTb}:{sTb+1}], s[{sTb}:{sTb+1}], s[72:73]")
        e0 += n
    assert e0 == 10
    p(f"s_and_b32 {sXo}, s{sTb}, 15\ns_lshl_b32 {sXo}, {sXo}, 7\ns_mul_i32 {sW6}, {sW}, 6144")
    p(f"s_and_b32 {sT1}, {sW}, 1\ns_lshr_b32 {sT2}, {sW}, 1")
    p(f"s_mul_i32 {sT0}, {sT1}, {4*12288}\ns_mul_i32 {sT3}, {sT2}, 384\ns_add_u32 {sT0}, {sT0}, {sT3}")
    p(f"s_mul_i32 {sE[0]}, {sKrot}, {32*12288}\ns_sub_u32 {sE[1]}, {32*12288}, {sE[0]}\ns_add_u32 {sE[0]}, {sE[0]}, {sT0}\ns_add_u32 {sE[1]}, {sE[1]}, {sT0}")
    p.ext(set_wq(0))
    p(f"s_add_u32 {sWQm}, {sW6}, {S[1]}")
    p(f"s_mul_i32 {sXm}, {sW}, 3072\ns_add_u32 {sXm}, {sXm}, {S[3]}")
    p(f"s_add_u32 {sXd}, {sXm}, 12288\ns_xor_b32 {sXd}, {sXd}, {sXm}")
    p(f"s_mul_i32 {sT0}, {sW}, 24\nv_lshrrev_b32 {t0}, 3, {l}\nv_add_u32 {t0}, {sT0}, {t0}")
    p(f"v_lshrrev_b32 {t1}, 1, {t0}\nv_xor_b32 {t1}, {t1}, {l}\nv_and_b32 {t1}, 7, {t1}\nv_mul_u32_u24 {t0}, 1280, {t0}")
    p(f"v_lshl_add_u32 v{vXs[0]}, {t1}, 4, {t0}\nv_xor_b32 {t1}, 64, v{vXs[0]}")
    p(f"v_add_u32 v{vXs[1]}, {10240-1024}, {t1}\nv_add_u32 v{vXs[2]}, {2*(10240-1024)}, v{vXs[0]}")
    def rowof(j): p(f"v_add_u32 {t0}, {64*j}, {l}\nv_mul_u32_u24 {t1}, 2731, {t0}\nv_lshrrev_b32 {t1}, 16, {t1}")
    for j in range(3):
        rowof(j)
        p(f"v_and_b32 {t2}, 6, {t1}\nv_xor_b32 {t3}, {t2}, {l}\nv_lshlrev_b32 v{vVs[j]}, 4, {t3}")
        p(f"v_and_b32 {t2}, 12, {t1}\nv_add_u32 {t2}, {t2}, {t1}\nv_mul_u32_u24 {t2}, 12288, {t2}")
        p(f"v_mul_u32_u24 {t3}, 384, {t1}\nv_sub_u32 {t2}, {t2}, {t3}\nv_add_u32 v{vWs[j]}, {t2}, v{vVs[j]}")
    p("s_waitcnt lgkmcnt(0)")
    stamp(p)
    if OPT["delay"]:
        p(f"s_bitcmp0_b32 {sB}, 0\ns_cbranch_scc1 L_nd")
        for _ in range(OPT["delay"]): p("s_sleep 37")
        p("L_nd:")
    def mk(b, ptr, off_s, size):
        p(f"s_add_u32 s{b}, s{ptr}, {off_s}\ns_addc_u32 s{b+1}, s{ptr+1}, 0\ns_and_b32 s{b+1}, s{b+1}, 0xffff")
        p(f"s_mov_b32 s{b+2}, {size}\ns_mov_b32 s{b+3}, 0x20000")
    p(f"s_mul_i32 {sT0}, {sB}, 122880"); mk(sX, 4, sT0, 122880)
    p.ext(flat(dma_x()))
    p(f"s_mul_i32 {sT0}, {sHP}, 768"); mk(sWQ, 10, sT0, 639 * 12288 + 768)
    p.ext(flat(dma_wq() + [adv_wqm(), set_wq(1), flip_x()]))
    wq1 = dma_wq()
    p.ext(flat(wq1[:3]))
    p(f"s_and_b32 {sT1}, {sW}, 1\ns_lshr_b32 {sT2}, {sW}, 1")
    p(f"s_mul_i32 {sKo}, {sT2}, 196608\ns_mul_i32 {sT3}, {sT1}, 6144\ns_add_u32 {sKo}, {sKo}, {sT3}\ns_mov_b32 {sVo}, {sKo}\ns_mov_b32 {sKV0}, {sKo}")
    if OPT["krot"]:
        if OPT["krot"] == 1: p(f"s_lshr_b32 {sT0}, s2, 3\ns_add_u32 {sT0}, {sT0}, s2")
        if OPT["krot"] == 2: p(f"s_mul_i32 {sT0}, s2, 0x9e3779b1\ns_lshr_b32 {sT0}, {sT0}, 28\ns_lshl3_add_u32 {sT0}, {sT2}, {sT0}")
        if OPT["krot"] == 5: p(f"s_lshl_b32 {sT0}, {sT2}, 3")
        if OPT["krot"] == 6: p(f"s_lshl_b32 {sT0}, s2, 1\ns_add_u32 {sT0}, {sT0}, {sT2}\ns_mul_i32 {sT0}, {sT0}, 0x9e3779b1\ns_lshr_b32 {sT0}, {sT0}, 28")
        if OPT["krot"] == 7: p(f"s_mul_i32 {sT0}, s2, 0x9e3779b1\ns_lshr_b32 {sT0}, {sT0}, 28")
        if OPT["krot"] == 3: p(f"s_lshl_b32 {sT0}, {sHP}, 1\ns_add_u32 {sT0}, {sT0}, {sT2}")
        if OPT["krot"] == 4: p(f"s_lshl_b32 {sT0}, {sB}, 1\ns_add_u32 {sT0}, {sT0}, {sBR}")
        p(f"s_and_b32 {sT0}, {sT0}, 15\ns_mul_i32 {sT0}, {sT0}, 12288\ns_add_u32 {sKV0}, {sKo}, 196608\ns_add_u32 {sKo}, {sKo}, {sT0}\ns_mov_b32 {sVo}, {sKo}")
    p(f"s_add_u32 {sKm}, {sW6}, {S[4]}\ns_add_u32 {sVm}, {sW6}, {S[5]}")
    p(f"s_lshr_b32 {sSk}, s2, 3\ns_and_b32 {sSk}, {sSk}, {OPT['skipn']-1}\ns_add_u32 {sSk}, {sSk}, {OPT['skip0']}\ns_mov_b32 {sThr}, {OPT['thr']}")
    p(f"s_lshl_b32 {sT0}, {sB}, 4\ns_add_u32 {sT0}, {sT0}, {sHP}\ns_mul_i32 {sT3}, {sT0}, 393216")
    mk(sK, 6, sT3, 393216); mk(sV, 8, sT3, 393216)
    p(f"s_mul_i32 {sT3}, {sHP}, 491520"); mk(sWO, 12, sT3, 491520)
    p(f"s_lshl_b32 {sG}, {sBR}, 3\ns_add_u32 {sG}, {sG}, {sB}\ns_lshl_b32 {sT0}, {sG}, 4\ns_add_u32 {sT0}, {sT0}, {sHP}")
    p(f"s_lshl_b32 {sT3}, {sT0}, {OPT['fs']}\ns_add_u32 {sT3}, {sT3}, {FLAG_OFF}"); mk(sFL, pWS, sT3, OPT["fw"])
    p(f"s_lshl_b32 {sT3}, {sG}, {OPT['fs']+4}\ns_add_u32 {sT3}, {sT3}, {FLAG_OFF}"); mk(sFG, pWS, sT3, 16 << OPT["fs"])
    mk(sFA, pWS, FLAG_OFF, 352 << OPT['fs'])
    mk(sDG, pDBG, 0, OPT['fw'])
    p(f"s_cmp_eq_u32 {sW}, 0\ns_cselect_b32 s{sFL+2}, {OPT['fw']}, 0")
    p(f"v_lshlrev_b32 v{vFo}, {OPT['fs']}, {l}\nv_lshlrev_b32 v{vF4}, 2, {l}")
    c = (192 ** -0.5) * math.log2(math.e)
    p(f"s_mov_b32 {sC}, {struct.unpack('<I', struct.pack('<f', c))[0]:#x}")
    p(f"s_xor_b32 {sT0}, {sB}, {OPT['ox']}\ns_lshr_b32 {sCrot}, {sT0}, 1\ns_and_b32 {sKrot}, {sT0}, 1\ns_lshl_b32 {sKrot}, {sKrot}, 1")
    p(f"s_cmp_eq_u32 {sT0}, 7\ns_cselect_b32 {sCrot}, 4, {sCrot}\ns_cselect_b32 {sKrot}, 0, {sKrot}")
    for ci, x in enumerate((3, 1, 2, None, 0)):
        p(f"s_mov_b32 {sT0}, 4" if x is None else f"s_xor_b32 {sT0}, {sJ}, {x}")
        p(f"s_add_u32 {sT0}, {sCrot}, {sT0}\ns_cmp_ge_u32 {sT0}, 5\ns_cselect_b32 {sT3}, 5, 0\ns_sub_u32 {sT0}, {sT0}, {sT3}\ns_lshl_b32 {sCo[ci]}, {sT0}, 8")
    for kq in range(4):
        p(f"s_xor_b32 {sT0}, {sKrot}, {kq}\ns_mul_i32 {sKq[kq]}, {sT0}, {96*1280}")
    p(f"s_mul_i32 {sT0}, {sT2}, 12288")
    for j in range(6):
        rowof(j)
        p(f"v_bfe_u32 {t2}, {t1}, 1, 3\nv_xor_b32 {t2}, {t2}, {l}\nv_lshlrev_b32 v{vKs[j]}, 4, {t2}")
        if j >= 3: p(f"v_add_u32 v{vKs[j]}, 3072, v{vKs[j]}")
    p(f"v_and_b32 {t0}, 15, {l}\nv_lshrrev_b32 {t1}, 4, {l}\nv_lshrrev_b32 {t2}, 1, {t0}\nv_xor_b32 {t2}, {t2}, {t1}")
    p(f"v_mul_u32_u24 {t3}, 384, {t0}\nv_add_u32 {t3}, {sT0}, {t3}\nv_add_u32 {t3}, {S[4]}, {t3}")
    p(f"v_lshl_add_u32 v{vKr[0]}, {t2}, 4, {t3}\nv_xor_b32 {t4}, 4, {t2}\nv_lshl_add_u32 v{vKr[1]}, {t4}, 4, {t3}")
    p(f"s_mul_i32 {sT3}, {sT1}, {48*128}\ns_add_u32 {sT3}, {sT3}, {S[3]}")
    p(f"v_lshlrev_b32 {t3}, 7, {t0}\nv_add_u32 {t3}, {sT3}, {t3}")
    p(f"v_lshl_add_u32 v{vXr[0]}, {t2}, 4, {t3}")
    p(f"s_and_b32 {sT3}, {sB}, 1\ns_lshl_b32 {sT3}, {sT3}, 6\nv_xor_b32 v{vXr[0]}, {sT3}, v{vXr[0]}")
    p(f"v_xor_b32 v{vXr[1]}, 64, v{vXr[0]}")
    p(f"s_mul_i32 {sT3}, {sW}, 24\nv_lshlrev_b32 {t2}, 1, {t1}\nv_xor_b32 {t2}, {t2}, {t0}\nv_add_u32 {t3}, {sT3}, {t1}")
    p(f"v_mul_u32_u24 {t3}, 1280, {t3}\nv_lshl_add_u32 v{vOs[0]}, {t2}, 4, {t3}\nv_xor_b32 {t2}, 128, v{vOs[0]}")
    for j in range(1, 6):
        p(f"v_add_u32 v{vOs[j]}, {5120*j-1024*(j%3)}, " + (t2 if j & 1 else f"v{vOs[0]}"))
    p(f"v_lshrrev_b32 {t0}, 2, {l}\nv_and_b32 {t1}, 3, {l}\nv_bfe_u32 {t2}, {l}, 3, 2")
    p(f"v_mul_u32_u24 {t3}, 384, {t0}\nv_lshl_add_u32 {t3}, {t1}, 3, {t3}\nv_add_u32 {t3}, {sT0}, {t3}\nv_add_u32 {t3}, {S[1]}, {t3}")
    for dl in range(4):
        p(f"v_xor_b32 {t4}, {dl}, {t2}\nv_lshl_add_u32 v{vVr[dl]}, {t4}, 5, {t3}")
    p(f"v_lshlrev_b32 {t3}, 8, {t0}\nv_lshl_add_u32 {t3}, {t1}, 3, {t3}\nv_and_b32 {t2}, 7, {t0}\ns_lshl_b32 {sT3}, {sW}, 1\nv_xor_b32 {t2}, {sT3}, {t2}")
    p(f"v_lshl_add_u32 v{vOr[0][0]}, {t2}, 5, {t3}\nv_xor_b32 v{vOr[1][0]}, 32, v{vOr[0][0]}")
    for nu in range(2): p(f"v_add_u32 v{vOr[nu][1]}, {S[2]}, v{vOr[nu][0]}\nv_add_u32 v{vOr[nu][2]}, {S[4]}, v{vOr[nu][0]}")
    p(f"v_lshlrev_b32 {t0}, 4, {l}")
    p(f"s_mul_i32 {sT3}, {sW}, 3072\ns_add_u32 {sT3}, {sT3}, {S[3]}\nv_add_u32 v{vOw}, {sT3}, {t0}")
    p(f"s_mul_i32 {sT3}, {sKrot}, 3072\ns_add_u32 {sT3}, {sT3}, {S[3]}\nv_add_u32 v{vBr[0]}, {sT3}, {t0}\nv_add_u32 v{vBr[1]}, 36864, v{vBr[0]}")
    p(f"s_xor_b32 {sT3}, {sKrot}, 2\ns_mul_i32 {sT3}, {sT3}, 3072\ns_add_u32 {sT3}, {sT3}, {S[3]}\nv_add_u32 v{vBr[2]}, {sT3}, {t0}\nv_add_u32 v{vBr[3]}, 36864, v{vBr[2]}")
    p(f"v_add_u32 v{vPs[0]}, {sW6}, {t0}\nv_add_u32 v{vPs[1]}, 3072, v{vPs[0]}")
    for r in range(144): p(f"v_mov_b32 v{r}, 0")
    for qb in range(3): p(f"v_mov_b32 v{vM[qb]}, 0xff7fffff\nv_mov_b32 v{vMc[qb]}, 0xff7fffff\nv_mov_b32 v{vL[qb]}, 0")
    p(f"s_mov_b32 {sRd}, 1\ns_mov_b32 {sT2}, {SLOT}\ns_mov_b32 {sI}, 0\ns_mov_b32 {sDK}, 12288")
    p("s_cmp_lg_u32 s2, 0\ns_cbranch_scc1 L_nc")
    lg = OPT["fw"].bit_length() - 5
    p(f"v_lshrrev_b32 {t0}, {lg}, {l}\nv_lshlrev_b32 {t0}, {OPT['fs']}, {t0}\nv_and_b32 {t1}, {(1 << lg) - 1}, {l}\nv_lshl_add_u32 {t0}, {t1}, 4, {t0}\ns_lshl_b32 {sT0}, {sW}, {OPT['fs']+6}")
    for k in range(1 << lg): p(f"buffer_store_dwordx4 v[0:3], {t0}, {srd(sFA)}, {sT0} offen sc1\ns_add_u32 {sT0}, {sT0}, {(64 >> lg) << OPT['fs']}")
    if OPT["tk"]:
        p(f"s_lshl_b32 {sT0}, {sW}, {OPT['fs']+4}\ns_add_u32 {sT0}, {sT0}, {256 << OPT['fs']}")
        for k in range(2): p(f"buffer_store_dwordx4 v[0:3], {t0}, {srd(sFA)}, {sT0} offen sc1\ns_add_u32 {sT0}, {sT0}, {8 << OPT['fs']}")
    if OPT["fair"]:
        p(f"s_lshl_b32 {sT0}, {sW}, {OPT['fs']+3}\ns_add_u32 {sT0}, {sT0}, {320 << OPT['fs']}\nbuffer_store_dwordx4 v[0:3], {t0}, {srd(sFA)}, {sT0} offen sc1")
    p("L_nc:")
    rd0 = reads_x(0, 0) + reads_t(lambda t: FA(0, t))
    rest = dma_x() + dma_wq() + [adv_wqm(), set_wq(1), flip_x()]
    if OPT["pre"] == 0:
        p("s_waitcnt vmcnt(3)\ns_barrier"); stamp(p)
        p.ext(weave(rd0, wq1[3:] + [adv_wqm(), flat(next_pair()), set_wq(0)] + rest))
    elif OPT["pre"] == 1:
        p.ext(flat(wq1[3:] + [adv_wqm(), flat(next_pair()), set_wq(0)] + rest[:3]))
        p("s_waitcnt vmcnt(9)\ns_barrier"); stamp(p)
        p.ext(weave(rd0, rest[3:]))
    else:
        p.ext(flat(wq1[3:] + [adv_wqm(), flat(next_pair()), set_wq(0)] + rest[:6]))
        p("s_waitcnt vmcnt(12)\ns_barrier"); stamp(p)
        p.ext(weave(rd0, rest[6:]))
    p.ext(flat(adv_rd_wq()))
    p(f"v_add_u32 v{vXr[0]}, {sDK}, v{vXr[0]}")
    DS9 = list(range(0, 36, 4))
    def conv(ks):
        g = []
        R = lambda qb: 144 + 4 * qb + 12 * (ks & 1)
        for qb in range(3):
            a, b, r = ACC(2 * ks, qb), ACC(2 * ks + 1, qb), R(qb)
            g += [f"v_cvt_pk_bf16_f32 v{r}, v{a}, v{a+1}", f"v_cvt_pk_bf16_f32 v{r+1}, v{a+2}, v{a+3}",
                  f"v_cvt_pk_bf16_f32 v{r+2}, v{b}, v{b+1}", f"v_cvt_pk_bf16_f32 v{r+3}, v{b+2}, v{b+3}"]
        for op in ("v_permlane32_swap_b32", "v_permlane16_swap_b32"):
            for qb in range(3): g += [f"{op} v{R(qb)}, v{R(qb)+2}", f"{op} v{R(qb)+1}, v{R(qb)+3}"]
        for qb in range(3): g += [f"v_accvgpr_write_b32 a{QF(ks, qb)+i}, v{R(qb)+i}" for i in range(4)]
        return g
    def qstep(par, wait, dmas, advs, do_reads=True, tail=[], valu=[]):
        if wait: p(wait + " lgkmcnt(0)")
        p("s_barrier")
        stamp(p, "q")
        G = Gaps([f"{M16} {v4(ACC(t, qb))}, {a4(FA(par, t))}, {a4(FB(par, qb))}, {v4(ACC(t, qb))}" for t in range(12) for qb in range(3)])
        slots = DS9 if len(dmas) > 6 else [0, 5, 10, 15, 20, 25]
        G.vm(dmas, slots)
        for k, a in advs: G.put(k, a)
        if do_reads:
            pos = G.mems(reads_x(1 - par, 1 - par) + reads_t(lambda t: FA(1 - par, t)), 0, 32)
            ad = adv_rd_wq()
            G.put(17, ad[0][:2]); G.put(18, ad[0][2:])
            for k in range(4): G.put(pos[3 + 17 + 2 * k] + 1, ad[1 + k])
            if par == 0: G.put(9, f"v_add_u32 v{vXr[1]}, {sDK}, v{vXr[1]}")
            else: G.put(9, [f"s_sub_u32 {sDK}, 0, {sDK}", f"v_add_u32 v{vXr[0]}, {sDK}, v{vXr[0]}"])
        G.spread(valu, 10, 36)
        G.put(34, tail)
        p.ext(G.out())
    def announce():
        p(f"s_or_b32 {sT0}, s2, {sW} ; scc-ok\ns_cbranch_scc1 L_na\nv_mov_b32 v{vFv}, 1\nbuffer_store_dword v{vFv}, v{vF4}, {srd(sDG)}, 0 offen sc1\nL_na:")
    sFo, sFt, sCn2 = "s0", "s1", "s3"
    npr = next_pair()
    def table(dst, digits):
        d = (str(digits) * 8)[:8]
        p(f"s_add_u32 {sT0}, {sB}, {sJ}\ns_and_b32 {sT0}, {sT0}, 7\ns_lshl_b32 {sT0}, {sT0}, 2\ns_lshr_b32 {dst}, {sum((int(c) + 1) << (4 * k) for k, c in enumerate(d)):#x}, {sT0}\ns_and_b32 {dst}, {dst}, 15")
    table(sKb, OPT["kst"]); table(sVb, OPT["vst"])
    p(f"s_mov_b32 {sBm}, 256\ns_bitset1_b32 {sBm}, {sKb}\ns_bitset1_b32 {sBm}, {sVb}")
    p(f"s_or_b32 {sStop}, {sBm}, 16\ns_getreg_b32 {sId}, hwreg(HW_REG_XCC_ID, 0, 4)\ns_add_u32 {sId}, {sId}, 1\ns_lshl_b32 {sId}, {sId}, 8")
    side = []
    ld_init = f"buffer_load_dword v{vIn}, off, {srd(sDG)}, 0 sc1"
    def publish(n, fl="sc1"): return [f"s_add_u32 {sT1}, {sId}, {n}", f"v_mov_b32 v{vFv}, {sT1}", f"buffer_store_dword v{vFv}, v{vF4}, {srd(sFL)}, 0 offen {fl}"]
    def spin(n, load, cnt=sCnt): side.append(f"L_s{n}:\n" + (f"s_sleep {OPT['slp']}\n" if OPT["slp"] else "") + f"{load} ; side\ns_add_u32 {cnt}, {cnt}, 1\ns_cmp_lt_u32 {cnt}, 200000\ns_waitcnt vmcnt(0)\ns_cbranch_scc1 L_c{n}\ns_branch L_k{n}")
    TS = list(zip([x for x in str(OPT["tst"]).split(",") if x], [int(x) for x in str(OPT["tt"]).split(",")], ["s87", "s0", "s1"][::-1]))
    for st, _, r in TS:
        table(r, st); p(f"s_bitset1_b32 {sBm}, {r}")
    if TS: p(f"v_and_b32 {t4}, 7, {l}\nv_lshlrev_b32 {t4}, 7, {t4}")
    def qwait(n, tag):
        if not OPT["dynq"]: return f"s_waitcnt vmcnt({n})"
        p(f"s_bitcmp1_b32 {sBm}, {sI}\ns_waitcnt vmcnt({n+6}) lgkmcnt(0)\ns_cbranch_scc1 L_qw{tag}\ns_waitcnt vmcnt({n})\nL_qw{tag}:")
        return None
    p("s_waitcnt lgkmcnt(0)")
    p("L_q:")
    qstep(0, qwait(9, "e"), dma_wq(), [(26, adv_wqm())] + [(27 + k, g) for k, g in enumerate(npr)] + [(33, set_wq(0))])
    qstep(1, qwait(6, "o"), dma_x() + dma_wq(), [(13, flip_x()), (29, adv_wqm()), (33, set_wq(1))],
          tail=[f"s_add_u32 {sI}, {sI}, 1", f"s_bitcmp0_b32 {sStop}, {sI}"])
    p("s_waitcnt lgkmcnt(0)")
    p("s_cbranch_scc1 L_q")
    p(f"s_cmp_lg_u32 {sI}, {sKb}\ns_cbranch_scc1 L_q1")
    if OPT["fair"] or OPT["ann"]: announce()
    p.ext(flat(dma_k() + adv_k()))
    p("L_q1:")
    p(f"s_cmp_lg_u32 {sI}, 4\ns_cbranch_scc1 L_q3\n{ld_init}\nL_q3:")
    p(f"s_cmp_lg_u32 {sI}, {sVb}\ns_cbranch_scc1 L_q2")
    assert min(int(c) for c in str(OPT["vst"])) >= 5 and max(int(c) for c in str(OPT["kst"])) <= 2 and int(str(OPT["kst"])[0]) <= 1
    p(f"s_mov_b32 {sT3}, 0\nL_c0:\nv_readfirstlane_b32 {sT0}, v{vIn}\ns_cmp_eq_u32 {sT0}, 1\ns_cbranch_scc0 L_s0\nL_k0:"); spin(0, ld_init, sT3)
    p.ext(publish(0))
    p.ext(flat(dma_v() + adv_v()))
    p("L_q2:")
    for k, (_, t, r) in enumerate(TS):
        p(f"s_cmp_lg_u32 {sI}, {r}\ns_cbranch_scc1 L_qt{k}\ns_add_u32 {sT0}, {sKV0}, {12288*(t>>1)}\ns_add_u32 {sT3}, {sT0}, 3072")
        for j in range(6): p(f"buffer_load_dword v{vCd}, {t4}, {srd(sV if t & 1 else sK)}, {sT0 if j < 3 else sT3} offen offset:{1024*(j%3)} {OPT['tfl']}")
        p(f"L_qt{k}:")
    p(f"s_cmp_lt_u32 {sI}, 8\ns_cbranch_scc1 L_q")
    vm = VM(["wq17"] * 6 + ["x9"] * 3 + ["wq18"] * 6)
    kv = lambda a: [(27 + 2 * k, x) for k, x in enumerate(a)]
    w = vm.wait("wq17"); vm.issue("wq19", 6); qstep(0, w, dma_wq(), [])
    if OPT["fair"]: p(f"buffer_load_dword v{vIn}, off, {srd(sDG)}, 0 sc1"); vm.issue("init")
    w = vm.wait("wq18"); vm.issue("t2", 6); qstep(1, w, dma_k(), kv(adv_k()))
    w = vm.wait("wq19"); vm.issue("t3", 6); qstep(0, w, dma_v(), kv(adv_v()))
    c01 = conv(0) + conv(1)[:12]
    if OPT["dist"] == 4: qstep(1, "s_waitcnt", [], [], do_reads=False, valu=c01)
    else: qstep(1, "s_waitcnt", dma_k(), kv(adv_k()), do_reads=False, valu=c01)
    stamp(p)
    p.ext(conv(1)[12:])
    for ks in range(2, 6): p.ext(conv(ks))
    for r in vVr: p(f"v_add_u32 v{r}, {S[5]}, v{r}")
    p(f"s_mov_b32 {sRd}, {S[4]}\ns_mov_b32 {sI}, 0\ns_mov_b32 {sRet}, 0")
    if OPT["fair"]:
        p(f"s_mov_b32 {sCn2}, 0\ns_waitcnt vmcnt(18)\nL_c0:\nv_readfirstlane_b32 {sT1}, v{vIn}\ns_cmp_eq_u32 {sT1}, 1\ns_cbranch_scc0 L_s0\nL_k0:")
        p(f"s_add_u32 {sFo}, {sB}, s2\ns_and_b32 {sFo}, {sFo}, 7\ns_lshl3_add_u32 {sFo}, {sW}, {sFo}\ns_add_u32 {sFo}, {sFo}, 320\ns_lshl_b32 {sFo}, {sFo}, {OPT['fs']}")
        p(f"s_mul_i32 {sFt}, {sW}, {OPT['fth']}\ns_add_u32 {sFt}, {sFt}, {16 - (3 * OPT['fth']) // 2 - 32}")
        p(f"v_lshlrev_b32 v247, 20, {l}\nv_mov_b32 v{vIn}, -16")
    elif not OPT["ann"]: announce()
    stamp(p)

    sv = lambda qb: [SS(0, qb) + i for i in range(4)] + [SS(1, qb) + i for i in range(4)]
    def probs(qb, check, dst=None, pack=True):
        x = sv(qb); y = dst or vPt; g = []
        g += [f"v_fma_f32 v{y[i]}, v{x[i]}, {sC}, -v{vMc[qb]}" for i in range(8)]
        if check:
            m = vMx[0]
            if qb == 0: g += [f"v_max3_f32 v{m}, v{y[0]}, v{y[1]}, v{y[2]}", f"v_max3_f32 v{m}, v{m}, v{y[3]}, v{y[4]}", f"v_max3_f32 v{m}, v{m}, v{y[5]}, v{y[6]}", f"v_max_f32 v{m}, v{m}, v{y[7]}"]
            else: g += [f"v_max3_f32 v{m}, v{m}, v{y[2*i]}, v{y[2*i+1]}" for i in range(4)]
        g += [f"v_exp_f32 v{y[i]}, v{y[i]}" for i in range(8)]
        t = vTm[qb]; u = vMx[1]
        g += [f"v_add_f32 v{t}, v{y[0]}, v{y[1]}", f"v_add_f32 v{u}, v{y[2]}, v{y[3]}", f"v_add_f32 v{t}, v{t}, v{y[4]}", f"v_add_f32 v{u}, v{u}, v{y[5]}",
              f"v_add_f32 v{t}, v{t}, v{y[6]}", f"v_add_f32 v{u}, v{u}, v{y[7]}"]
        if pack: g += [f"v_cvt_pk_bf16_f32 v{PP(qb)+i}, v{y[2*i]}, v{y[2*i+1]}" for i in range(4)]
        g += [f"v_add_f32 v{t}, v{t}, v{u}"]
        return g
    def rescale():
        return [f"v_pk_mul_f32 v[{ACC(t, qb)+h}:{ACC(t, qb)+h+1}], v[{ACC(t, qb)+h}:{ACC(t, qb)+h+1}], v[{vAl[qb]}:{vAl[qb]+1}] op_sel_hi:[1,0]"
                for t in range(12) for qb in range(3) for h in (0, 2)]
    def xlane(regs, op, vPt=vPt):
        g = []
        for sw in ("v_permlane32_swap_b32", "v_permlane16_swap_b32"):
            g += [f"v_mov_b32 v{vPt[qb]}, v{regs[qb]}" for qb in range(3)]
            g += [f"{sw} v{regs[qb]}, v{vPt[qb]}" for qb in range(3)]
            g += [f"{op} v{regs[qb]}, v{regs[qb]}, v{vPt[qb]}" for qb in range(3)]
        return g
    def slow_path():
        g = []
        for k in range(4):
            for qb in range(3):
                x = sv(qb)
                g.append(f"v_max3_f32 v{vMx[qb]}, v{vM[qb] if k == 0 else vMx[qb]}, v{x[2*k]}, v{x[2*k+1]}")
        g += xlane(vMx, "v_max_f32")
        g += [f"v_sub_f32 v{vTm[qb]}, v{vM[qb]}, v{vMx[qb]}" for qb in range(3)]
        g += [f"v_mul_f32 v{vMc[qb]}, {sC}, v{vMx[qb]}" for qb in range(3)]
        g += [f"v_mul_f32 v{vTm[qb]}, {sC}, v{vTm[qb]}" for qb in range(3)]
        g += [f"v_mov_b32 v{vM[qb]}, v{vMx[qb]}" for qb in range(3)]
        g += [f"v_exp_f32 v{vAl[qb]}, v{vTm[qb]}" for qb in range(3)]
        for qb in range(3): g += probs(qb, False)
        g += [f"v_mul_f32 v{vL[qb]}, v{vL[qb]}, v{vAl[qb]}" for qb in range(3)]
        return g + rescale()
    vKeep = [vPt, vKs + vVs[:2], [vVs[2]] + T[2:6] + [vFv, 247, vIn]]
    def kstep(dmas, advs, ret):
        last = ret == 1 and OPT["fn"] and not OPT["post"]
        pr = (lambda qb: probs(qb, True, vKeep[qb], False)) if last else (lambda qb: probs(qb, True))
        p("s_barrier")
        stamp(p, "a")
        rd = [f"ds_read_b128 {a4(FA(0, ks*2+kb))}, v{vKr[ks&1]} offset:{kb*6144+(ks>>1)*128}" for ks in range(6) for kb in range(2)]
        G = Gaps([f"{M16} {v4(SS(kb, qb))}, {a4(FA(0, ks*2+kb))}, {a4(QF(ks, qb))}, {'0' if ks == 0 else v4(SS(kb, qb))}"
                  for qb in range(3) for ks in range(6) for kb in range(2)])
        p.ext(rd[:7])
        G.mems(rd[7:], 0, 5)
        G.put(5, [f"s_add_u32 {sRd}, {sRd}, {2*SLOT}", f"s_cmp_ge_u32 {sRd}, {6*SLOT}"])
        G.put(6, [f"s_cselect_b32 {sRd}, 0, {sRd}", f"s_cselect_b32 {sDK}, {-4*SLOT & 0xffffffff}, {sT2}"])
        G.put(8, f"v_add_u32 v{vKr[0]}, {sDK}, v{vKr[0]}"); G.put(9, f"v_add_u32 v{vKr[1]}, {sDK}, v{vKr[1]}")
        if ret is None:
            G.vm(dmas, [8, 13, 18, 23, 28, 33])
            p.ext(G.out() + flat(advs)); p("s_branch L_slow")
            return
        G.vm(dmas[:4], [8, 14, 22, 30])
        G.spread(pr(0), 14, 25); G.spread(pr(1), 26, 36)
        p.ext(G.out())
        p.ext(weave(pr(2), dmas[4:] + advs, 2, 26))
        if OPT["lazy"]: p(f"v_cmp_lt_f32 vcc, {sThr}, v{vMx[0]}\ns_cbranch_vccnz L_slow")
        else: p("s_branch L_slow")
        p(f"L_ret{ret}:")
        for qb in range(3): p(f"v_add_f32 v{vL[qb]}, v{vL[qb]}, v{vTm[qb]}")
    def pv_mfmas(): return [f"{M16} {v4(ACC(t, qb))}, {a4(FA(1, t))}, {v4(PP(qb))}, {v4(ACC(t, qb))}" for t in range(12) for qb in range(3)]
    def vstep(dmas, advs, tail=[]):
        p("s_barrier")
        stamp(p, "a")
        rd = reads_t(lambda t: FA(1, t))
        p.ext(rd[:6])
        G = Gaps(pv_mfmas())
        G.vm(dmas, [3, 8, 13, 18, 23, 28])
        G.mems(rd[6:], 0, 23)
        for k in range(4): G.put(24 + k, f"v_add_u32 v{vVr[k]}, {sDK}, v{vVr[k]}")
        for k, a in enumerate(advs): G.put(30 + k, a)
        G.put(33, tail)
        p.ext(G.out())
    def dynwait(n, tag):
        p(f"s_add_u32 {sT0}, {sSk}, {n}\ns_cmp_le_u32 {sI}, {sT0}\ns_waitcnt vmcnt(24)\ns_cbranch_scc1 L_dw{tag}\ns_waitcnt vmcnt(12)\nL_dw{tag}:")
    p(f"s_mov_b32 {sT2}, {2*SLOT}")
    def windowed(g, n=OPT["win"]): return [x[:-1] + [f"s_waitcnt vmcnt({n})", x[-1]] for x in g] if n else g
    D = OPT["dist"]
    nxt_it = [f"s_add_u32 {sI}, {sI}, 1", f"s_cmp_lg_u32 {sI}, {OPT['codeit']}"]
    sBig, sRep, sFt = "s3", "s57", "s58"
    if OPT["fair2"]:
        p(f"s_lshl_b32 {sRep}, {sB}, 1\ns_add_u32 {sRep}, {sRep}, 1\ns_bitcmp1_b32 {(1 << OPT['fj']) | 1}, {sJ}\ns_cselect_b32 {sRep}, {sRep}, 99")
        p(f"s_mul_i32 {sFt}, {sW}, {OPT['fd']}\ns_add_u32 {sFt}, {sFt}, {OPT['fc'] - (3 * OPT['fd'] + 1) // 2}\ns_lshl_b32 {sBig}, {sW}, 2\ns_and_b32 {sBig}, {sBig}, 4")
        p(f"v_and_b32 {t0}, 1, {l}\nv_mul_u32_u24 {t0}, {OPT['fj']}, {t0}\nv_bfe_u32 {t1}, {l}, 1, 2\nv_lshl_add_u32 {t0}, {t1}, 2, {t0}\nv_lshrrev_b32 {t1}, 3, {l}")
        p(f"v_lshl_add_u32 {t0}, {t1}, 7, {t0}\nv_lshlrev_b32 v247, {OPT['fs']}, {t0}\ns_mov_b32 s{sFA+2}, {256 << OPT['fs']}")
    if OPT["k0"]:
        assert D == 3 and OPT["skip0"] > 0
        p(f"s_mov_b32 {sDV}, 12288"); kstep(dma_v(), adv_v(), None)
    p("L_a:")
    if OPT["tskip"]:
        assert D == 3 and OPT["k0"] and OPT["late"] and 0 < OPT["win"] <= 11 and OPT["skip0"] + OPT["skipn"] <= 13
        p(f"s_cmp_eq_u32 {sI}, 14\ns_cbranch_scc1 L_ae")
        mid = lambda t: None
        if OPT["fair2"]:
            p(f"s_bitcmp1_b32 {sI}, 0\ns_cbranch_scc1 L_f0")
            p(f"s_waitcnt vmcnt(6)\nv_cmp_lt_u32 vcc, 0xffff, v{vIn}\ns_bcnt1_i32_b32 {sT0}, vcc_lo\ns_cmp_gt_u32 {sT0}, {sFt}\ns_cselect_b32 {sBig}, 4, 0\ns_branch L_f9")
            p(f"L_f0:\ns_cmp_lg_u32 {sI}, {sRep}\ns_cbranch_scc1 L_f9")
            if OPT["fwr"]: p.ext(publish(0x10000))
            p("L_f9:")
            mid = lambda t: p(f"s_bitcmp0_b32 {sI}, 0\ns_cbranch_scc1 L_fm{t}\nbuffer_load_dword v{vIn}, v247, {srd(sFA)}, 0 offen sc1\nv_add_u32 v247, {16 << OPT['fs']}, v247\nL_fm{t}:")
        p(f"s_cmp_eq_u32 {sI}, {sSk}\ns_cselect_b32 {sRet}, 3, {sBig if OPT['fair2'] else 0}\ns_cbranch_scc1 L_sk")
        if OPT["fair2"]:
            p(f"s_cmp_eq_u32 {sBig}, 0\ns_cbranch_scc1 L_a0")
            kstep(windowed(dma_v(), OPT["wbig"]), adv_v(), 4); mid("b")
            vstep(windowed(dma_k(), OPT["wbig"]), adv_k(), nxt_it)
            p("s_branch L_a2\nL_a0:")
        kstep(windowed(dma_v()), adv_v(), 0); mid("a")
        vstep(windowed(dma_k()), adv_k(), nxt_it)
        p("L_a2:")
    elif D == 3:
        p(f"s_cmp_eq_u32 {sI}, {sSk}\ns_cselect_b32 {sDV}, 0, 12288\ns_cselect_b32 s{sK+2}, 0, 393216\ns_cselect_b32 s{sV+2}, 0, 393216")
        def body(n, n2, ret, tg):
            if OPT["late"]: p(f"s_cmp_eq_u32 {sI}, 14\ns_cbranch_scc1 L_ae")
            dynwait(2, "k" + tg)
            kstep(windowed(dma_v(), n), adv_v(sDV), ret)
            if not OPT["late"]: p(f"s_cmp_eq_u32 {sI}, 14\ns_cbranch_scc1 L_ae")
            dynwait(1, "v" + tg)
            vstep(windowed(dma_k(), n2), adv_k(sDV), nxt_it)
        if OPT["fair"]:
            if OPT["fper"] > 1: p(f"s_and_b32 {sT0}, {sI}, {OPT['fper']-1} ; scc-ok\ns_cbranch_scc1 L_f1")
            p(f"v_readfirstlane_b32 {sT0}, v{vIn}\nv_mov_b32 v{vIn}, 1\ns_cmp_gt_i32 {sT0}, {sFt}\ns_cselect_b32 {sRet}, 3, 0\ns_add_u32 {sFt}, {sFt}, 32")
            p(f"buffer_atomic_add v{vIn}, v247, {srd(sFA)}, {sFo} offen sc0 sc1")
            p(f"L_f1:\ns_cmp_eq_u32 {sRet}, 0\ns_cbranch_scc1 L_a0")
            body(OPT["wbig"], OPT["wbig"], 3, "b")
            p("s_branch L_a2\nL_a0:")
        body(OPT["win"], OPT["win2"] or OPT["win"], 0, "")
        p("L_a2:")
    elif D == 5:
        p("s_waitcnt vmcnt(24)")
        kstep(windowed(dma_v()), adv_v(), 0)
        p(f"s_cmp_eq_u32 {sI}, 13\ns_cbranch_scc1 L_ae\ns_waitcnt vmcnt(24)")
        vstep(windowed(dma_k()), adv_k(), nxt_it)
    else:
        p(f"s_cmp_eq_u32 {sI}, 14\ns_cbranch_scc1 L_ae\ns_waitcnt vmcnt(18)")
        kstep(windowed(dma_k()), adv_k(), 0)
        p("s_waitcnt vmcnt(18)")
        vstep(windowed(dma_v()), adv_v(), nxt_it)
    p("s_cbranch_scc1 L_a")
    def ids():
        p(f"v_and_b32 {t1}, 1, {l}\nv_add_u32 {t1}, 1, {t1}\nv_xor_b32 {t1}, {sHP}, {t1}\nv_lshlrev_b32 {t1}, {OPT['fs']}, {t1}")
        p(f"buffer_load_dword v{vCo}, {t1}, {srd(sFG)}, 0 offen sc1")
    if OPT["code"] & 2: p(f"global_load_dword v{vCd}, v{vCo}, s[26:27]")
    if OPT["idm"]: ids()
    p("s_branch L_a")
    if OPT["tskip"]:
        p("L_sk:")
        kstep([], [], 3); mid("c"); vstep([], [], nxt_it)
        if OPT["fair2"]: p("s_waitcnt vmcnt(0)")
        p("s_branch L_a2")
    p("L_slow:")
    p.ext(slow_path())
    p(f"s_cmp_eq_u32 {sRet}, 0\ns_cbranch_scc1 L_ret0")
    if D != 3 or OPT["late"]: p(f"s_cmp_eq_u32 {sRet}, 2\ns_cbranch_scc1 L_ret2")
    if OPT["fair2"]: p(f"s_cmp_eq_u32 {sRet}, 4\ns_cbranch_scc1 L_ret4")
    if OPT["fair"] or OPT["tskip"]: p(f"s_cmp_eq_u32 {sRet}, 3\ns_cbranch_scc1 L_ret3")
    if OPT["fn"] and not OPT["post"]:
        for qb in range(3): p.ext(probs(qb, False, vKeep[qb], False))
    p("s_branch L_ret1")
    p("L_ae:")
    if OPT["late"]:
        p(f"s_waitcnt vmcnt(12)\ns_mov_b32 {sRet}, 2"); kstep(dma_v(), [], 2)
    stamp(p)
    vm = VM([f"t{t}" for t in range(32 - D, 32) for _ in range(6)])
    def w3touch():
        nr = OPT["wnr"]
        p(f"s_lshr_b32 {sT0}, {sB}, 1\ns_lshl_b32 {sT0}, {sT0}, 2\ns_add_u32 {sT0}, {sT0}, {sW}\ns_mul_i32 {sT0}, {sT0}, {nr*1280}")
        p(f"s_and_b32 {sT1}, {sB}, 1\ns_xor_b32 {sT3}, {sJ}, 3\ns_add_u32 {sT1}, {sT1}, {sT3}\ns_add_u32 {sT1}, {sT1}, 3\ns_cmp_ge_u32 {sT1}, 5\ns_cselect_b32 {sT3}, 5, 0\ns_sub_u32 {sT1}, {sT1}, {sT3}")
        p(f"s_lshl_b32 {sT1}, {sT1}, 8\ns_add_u32 {sT0}, {sT0}, {sT1}\ns_add_u32 {sT0}, {sT0}, {(384-16*nr)*1280}")
        p(f"v_min_u32 {t0}, {2*nr-1}, {l}\nv_lshrrev_b32 {t1}, 1, {t0}\nv_and_b32 {t0}, 1, {t0}\nv_mul_u32_u24 {t1}, 1280, {t1}\nv_lshl_add_u32 {t0}, {t0}, 7, {t1}")
        p(f"buffer_load_dword v{vCd}, {t0}, {srd(sWO)}, {sT0} offen"); vm.issue("touch")
        if not OPT["idm"]: ids(); vm.issue("ids")
    if OPT["w3"] and not OPT["tl"]: w3touch()
    nw = 0
    for t in range(32 - D, 31):
        p(vm.wait(f"t{t}"))
        g = []
        if nw < 3 and not (OPT["late"] >= 2 and t == 29):
            vm.issue(f"w{nw}", 6); g = windowed(dma_wo(nw, nw), OPT["wwin"]); nw += 1
        if t & 1: vstep(g, [])
        else:
            r = 1 if t == 30 else 2
            stamp(p, "x")
            p(f"s_mov_b32 {sRet}, {r}\ns_mov_b32 {sT2}, {2*SLOT}"); kstep(g, [], r)
    stamp(p, "x")
    if OPT["w3"] and OPT["tl"]: w3touch()
    if OPT["post"]:
        p.ext(xlane(vL, "v_add_f32", vTm))
        for qb in range(3): p(f"v_rcp_f32 v{vAl[qb]}, v{vL[qb]}")
    elif OPT["fn"]:
        p.ext(xlane(vL, "v_add_f32", vTm))
        for qb in range(3): p(f"v_rcp_f32 v{vAl[qb]}, v{vL[qb]}")
        for qb in range(3):
            y = vKeep[qb]
            for r in y: p(f"v_mul_f32 v{r}, v{vAl[qb]}, v{r}")
            for i in range(4): p(f"v_cvt_pk_bf16_f32 v{PP(qb)+i}, v{y[2*i]}, v{y[2*i+1]}")
    else:
        p.ext(xlane(vL, "v_add_f32"))
        for qb in range(3): p(f"v_rcp_f32 v{vAl[qb]}, v{vL[qb]}\nv_log_f32 v{vTm[qb]}, v{vL[qb]}")
        for qb in range(3): p(f"v_add_f32 v{vMc[qb]}, v{vMc[qb]}, v{vTm[qb]}")
        for qb in range(3): p.ext([x for x in probs(qb, False) if not x.startswith("v_add")])
    if OPT["late"] >= 2:
        vm.issue("w1", 6); nw = 2
        p.ext(weave(rescale(), dma_wo(1, 1), *{2: (0, 72), 3: (40, 72)}[OPT["late"]]))
    elif OPT["w2n"] and nw < 3:
        vm.issue("w2", 6); nw = 3
        p.ext(weave(rescale(), dma_wo(2, 2), *{1: (0, 72), 2: (40, 72), 3: (71, 72)}[OPT["w2n"]]))
    elif not OPT["post"]: p.ext(rescale())
    p(f"s_mul_i32 {sT0}, {sG}, {GRP}"); mk(sPG, pWS, sT0, 15 * PART + SL1 + 24576)
    mk(sOUT, pOUT, 0, 1966080)
    stamp(p, "x")
    p(vm.wait("t31")); p("s_barrier")
    stamp(p)
    AB = [144, 96]
    def AF(sig, tp, nu): return AB[sig & 1] + 8 * tp + 4 * nu
    def reads_wo(sig, slot):
        g = []
        for tp in range(3):
            for nu in range(2):
                r = AF(sig, tp, nu); o = (slot & 1) * SLOT + 32 * tp * 256
                g.append(f"ds_read_b64_tr_b16 v[{r}:{r+1}], v{vOr[nu][slot>>1]} offset:{o}")
                g.append(f"ds_read_b64_tr_b16 v[{r+2}:{r+3}], v{vOr[nu][slot>>1]} offset:{o+4096}")
        return g
    def o_out(tp):
        g = []
        for qb in range(3):
            a, b = ACC(2 * tp, qb), ACC(2 * tp + 1, qb)
            if OPT["post"] and OPT["pk"]: g += [f"v_pk_mul_f32 v[{r}:{r+1}], v[{r}:{r+1}], v[{vAl[qb]}:{vAl[qb]+1}] op_sel_hi:[1,0]" for r in (a, a + 2, b, b + 2)]
            elif OPT["post"]: g += [f"v_mul_f32 v{r+i}, v{vAl[qb]}, v{r+i}" for r in (a, b) for i in range(4)]
            g += [f"v_cvt_pk_bf16_f32 v{a}, v{a}, v{a+1}", f"v_cvt_pk_bf16_f32 v{a+1}, v{a+2}, v{a+3}",
                  f"v_cvt_pk_bf16_f32 v{a+2}, v{b}, v{b+1}", f"v_cvt_pk_bf16_f32 v{a+3}, v{b+2}, v{b+3}",
                  f"ds_write_b128 v{vOw}, {v4(a)} offset:{tp*12288+qb*1024}"]
        return g
    rd = reads_t(lambda t: FA(1, t))
    p.ext(rd[:10])
    G = Gaps(pv_mfmas())
    G.mems(rd[10:], 0, 10)
    if nw < 3 and not OPT["w2l"]:
        vm.issue("w2", 6)
        G.vm(dma_wo(2, 2), [3, 9, 15, 21, 27, 33])
    if OPT["post"] == 2:
        for tp in range(4): G.spread(o_out(tp), 8 + 7 * tp, 15 + 7 * tp)
    else:
        for tp in range(4): G.spread(o_out(tp), 10 + 6 * tp, 16 + 6 * tp + (2 if tp == 3 else 0))
    p.ext(G.out())
    stamp(p, "x")
    p(vm.wait("w0")); p("s_barrier")
    stamp(p, "x")
    if nw < 3 and OPT["w2l"]:
        vm.issue("w2", 6)
        p.ext(weave2(o_out(4) + o_out(5), [(reads_wo(0, 0), 0, 30), (dma_wo(2, 2), 2, 30)]))
    else: p.ext(weave(o_out(4) + o_out(5), reads_wo(0, 0)))
    stamp(p, "x")
    p("; vmq " + " ".join(f"{t}*1" for t in vm.q))
    tag = lambda g, t: g[:-1] + [g[-1] + f" ; vm={t}"]
    def BF(kq, tp, q):
        f = (kq * 3 + tp) * 6 + q
        return a4(4 * f) if f < 64 else v4(168 + 4 * (f - 64))
    def reads_b(k): return [f"ds_read_b128 {BF(k//3, k%3, q)}, v{vBr[k//3]} offset:{(k%3)*12288+q*1024}" for q in range(6)] if k < 12 else []
    def OA(ci, q, nu): return 48 * (ci & 1) + 8 * q + 4 * nu
    sBuf = ["s57", "s58", "s59", "s60", "s61"]
    sPf = ["s64", "s65"]
    sRo = ["s66", "s67"]; sRq = ["s68", "s62"]
    def out1(ci, q):
        a = OA(ci, q, 0)
        g = [f"v_cvt_pk_bf16_f32 v{a+i}, v{a+2*i}, v{a+2*i+1}" for i in range(4)]
        return g + [f"buffer_store_dwordx4 {v4(a)}, v{vPs[q//3]}, {srd(sPG)}, {sBuf[ci]} offen offset:{1024*(q%3)} {OPT['gfl'] if ci < 3 and not OPT['thru'] >> ci & 1 else 'sc1'} ; vm=st{ci}"]
    vZ, vSel, vRb, vOb, vRo, vOo = 200, 224, 221, 222, 223, 214
    def xload(n, q): return [f"buffer_load_dwordx4 {v4(120+4*q)}, v{vPs[q//3]}, {srd(sPG)}, {sBuf[2+n]} offen offset:{1024*(q%3)} {OPT['xfl']} ; vm=x{n}_{q}"]
    def xadd(n, q): return [f"s_waitcnt vmcnt(@x{n}_{q})"] + [f"{M16} {v4(OA(0, q, nu))}, {v4(vZ+2-2*nu)}, {v4(120+4*q)}, " + ("0" if n == 1 else v4(OA(0, q, nu))) for nu in range(2)]
    def setup0():
        g = [[f"s_mul_i32 {sBuf[0]}, {sHP}, {PART}", f"s_add_u32 {sBuf[1]}, {sBuf[0]}, {SL1}", f"s_xor_b32 {sT1}, {sHP}, 1"],
             [f"s_mul_i32 {sBuf[2]}, {sT1}, {PART}", f"s_add_u32 {sBuf[3]}, {sBuf[2]}, {SL1}", f"s_lshl_b32 {sPf[0]}, {sT1}, {OPT['fs']}"],
             [f"s_xor_b32 {sT1}, {sHP}, 3", f"s_mul_i32 {sBuf[4]}, {sT1}, {PART}"], [f"s_xor_b32 {sT1}, {sHP}, 2", f"s_lshl_b32 {sPf[1]}, {sT1}, {OPT['fs']}"]]
        return g
    def rsetup4():
        g = [[f"s_mul_i32 {sT1}, {sHP}, 3", f"s_add_u32 {sT1}, {sT1}, {sW}"],
             [f"s_cmp_ge_u32 {sT1}, 24", f"s_cselect_b32 {sRo[0]}, {SL1}, 0", f"s_cselect_b32 {sRo[1]}, 24, 0"],
             [f"s_sub_u32 {sT1}, {sT1}, {sRo[1]}", f"s_and_b32 {sT3}, {sT1}, 1", f"s_lshr_b32 {sT1}, {sT1}, 1"],
             [f"s_lshl_b32 {sRq[0]}, {sT3}, 7", f"s_mul_i32 {sT3}, {sT3}, 12288", f"s_add_u32 {sRo[0]}, {sRo[0]}, {sT3}"],
             [f"s_lshr_b32 {sT3}, {sT1}, 1", f"s_mul_i32 {sT3}, {sT3}, 768", f"s_add_u32 {sRo[0]}, {sRo[0]}, {sT3}"],
             [f"s_lshl_b32 {sT3}, {sT1}, 7", f"s_add_u32 {sRo[0]}, {sRo[0]}, {sT3}", f"s_mul_i32 {sT3}, {sB}, 12"],
             [f"s_add_u32 {sT1}, {sT1}, {sT3}", f"s_mul_i32 {sT1}, {sT1}, {8*2560}", f"s_add_u32 {sRq[0]}, {sRq[0]}, {sT1}"],
             [f"s_mul_i32 {sT1}, {sBR}, 1280", f"s_add_u32 {sRq[0]}, {sRq[0]}, {sT1}"]]
        v = [f"v_lshrrev_b32 {t0}, 4, {l}", f"v_and_b32 {t1}, 7, {l}", f"v_bfe_u32 {t3}, {l}, 3, 1", f"v_mul_u32_u24 {t2}, 6144, {t3}", f"v_lshl_add_u32 {t2}, {t0}, 8, {t2}",
             f"v_lshl_add_u32 {t2}, {t1}, 4, {t2}", f"v_add_u32 v{vRo}, {sRo[0]}, {t2}",
             f"v_mul_u32_u24 {t2}, 2560, {t1}", f"v_lshl_add_u32 {t2}, {t3}, 6, {t2}", f"v_lshl_add_u32 {t2}, {t0}, 4, {t2}", f"v_add_u32 v{vOo}, {sRq[0]}, {t2}",
             f"v_and_b32 {t3}, 1, {l}", f"v_lshlrev_b32 {t3}, 4, {t3}", f"v_mov_b32 {t2}, 0x3f80", f"v_lshlrev_b32 {t2}, {t3}, {t2}", f"v_bfe_u32 {t1}, {l}, 1, 3", f"v_lshlrev_b32 {t0}, 1, {t0}",
             f"v_cmp_eq_u32 vcc, {t0}, {t1}", f"v_add_u32 {t0}, 1, {t0}", f"v_cndmask_b32 v{vZ+2}, 0, {t2}, vcc",
             f"v_cmp_eq_u32 vcc, {t0}, {t1}", f"v_mov_b32 v{vZ}, 0", f"v_cndmask_b32 v{vZ+3}, 0, {t2}, vcc",
             f"v_mov_b32 v{vZ+1}, 0", f"v_mov_b32 v{vZ+4}, 0", f"v_mov_b32 v{vZ+5}, 0"]
        return g, v
    def rsetup():
        if OPT["x4"]: return rsetup4()
        g = []
        g.append([f"s_mul_i32 {sDV}, {sB}, {96*2560}", f"s_mul_i32 {sT1}, {sBR}, 1280", f"s_add_u32 {sDV}, {sDV}, {sT1}"])
        g.append([f"s_lshl_b32 {sT1}, {sW}, 6", f"s_add_u32 {sDV}, {sDV}, {sT1}"])
        for r in range(2):
            g.append([f"s_add_u32 {sT1}, {sW}, {2*r}", f"s_lshl2_add_u32 {sT1}, {sT1}, {sHP}", f"s_and_b32 {sT1}, {sT1}, 15"])
            g.append([f"s_mul_i32 {sRq[r]}, {sT1}, {8*2560}", f"s_lshr_b32 {sT3}, {sT1}, 1", f"s_mul_i32 {sT3}, {sT3}, 768"])
            g.append([f"s_lshl_b32 {sRo[r]}, {sT1}, 7", f"s_add_u32 {sRo[r]}, {sRo[r]}, {sT3}", f"s_add_u32 {sRo[r]}, {sRo[r]}, {SL1*r}"])
            g.append([f"s_cmp_lt_u32 {sT1}, 12", f"s_cselect_b32 {sRo[r]}, {sRo[r]}, 0x40000000", f"s_cselect_b32 {sRq[r]}, {sRq[r]}, 0x40000000"])
        v = [f"v_lshrrev_b32 {t0}, 4, {l}", f"v_and_b32 {t1}, 15, {l}", f"v_lshlrev_b32 {t2}, 8, {t0}", f"v_lshl_add_u32 {t2}, {t1}, 3, {t2}", f"v_add_u32 v{vRb}, {sW6}, {t2}",
             f"v_lshrrev_b32 {t2}, 1, {t1}", f"v_mul_u32_u24 {t2}, 2560, {t2}", f"v_lshl_add_u32 {t2}, {t0}, 3, {t2}", f"v_and_b32 {t3}, 1, {l}", f"v_lshl_add_u32 {t2}, {t3}, 5, {t2}",
             f"v_add_u32 v{vOb}, {sDV}, {t2}",
             f"v_lshlrev_b32 {t3}, 4, {t3}", f"v_mov_b32 {t2}, 0x3f80", f"v_lshlrev_b32 {t2}, {t3}, {t2}", f"v_lshrrev_b32 {t1}, 1, {t1}", f"v_lshlrev_b32 {t0}, 1, {t0}",
             [f"v_cmp_eq_u32 vcc, {t0}, {t1}", f"v_cndmask_b32 v{vSel}, 0, {t2}, vcc"], f"v_add_u32 {t0}, 1, {t0}",
             [f"v_cmp_eq_u32 vcc, {t0}, {t1}", f"v_cndmask_b32 v{vSel+1}, 0, {t2}, vcc"], f"v_mov_b32 v{vSel+2}, v{vSel}", f"v_mov_b32 v{vSel+3}, v{vSel+1}",
             f"v_mov_b32 v{vZ}, 0", f"v_mov_b32 v{vZ+1}, 0", f"v_mov_b32 v{vZ+2}, v{vSel}", f"v_mov_b32 v{vZ+3}, v{vSel+1}", f"v_mov_b32 v{vZ+4}, 0", f"v_mov_b32 v{vZ+5}, 0"]
        return g, v
    def check1(n, load):
        p(f"L_c{n}:\nv_readfirstlane_b32 {sT1}, v{vIn}\ns_and_b32 {sT1}, {sT1}, 0xff\ns_cmp_ge_u32 {sT1}, {n}\ns_cbranch_scc0 L_s{n}\nL_k{n}:"); spin(n, load)
    ld_peer = lambda n: f"buffer_load_dword v{vIn}, off, {srd(sFG)}, {sPf[n == 3]} sc1"
    ld_all = f"buffer_load_dword v{vIn}, v{vFo}, {srd(sFG)}, 0 offen {OPT['pfl']}"
    PUB = {int(x): k + 1 for k, x in enumerate(str(OPT["pubs"]).split(","))}
    if OPT["sp"]: PUB[18] = 4
    POL = {int(x): k + 1 for k, x in enumerate(str(OPT["pols"]).split(","))}
    ADD = {int(x): k for k, x in enumerate(str(OPT["adds"]).split(","))}
    slot_of = {0: 0, 1: 1, 2: 2}
    free = []; nxt = 3; pend = []
    sCn = "s88"
    p(f"s_mov_b32 {sCnt}, 0")
    for sig in range(20):
        ci, kq = divmod(sig, 4)
        assert not any(t == sig + 1 for t, _ in pend)
        pub = PUB.get(sig, 0); chk = POL.get(sig - 1, 0)
        need = [f"w{sig+1}"]
        if pub: need.append(f"st{pub-1}")
        if sig == 2: need.append("ids")
        if 0 < pub < 4:
            p(f"s_cmp_eq_u32 {sLoc}, 0\ns_waitcnt lgkmcnt(0)\ns_cbranch_scc1 L_f{pub}\nL_g{pub}:")
            side.append(f"L_f{pub}:\n" + "".join(out1(pub - 1, q)[-1].split(";")[0] + " sc1 ; side\n" for q in range(6) if "sc1" not in out1(pub - 1, q)[-1]) + f"s_waitcnt vmcnt(0)\ns_barrier\n"
                        + " ; side\n".join(publish(pub)) + f" ; side\ns_branch L_h{pub}")
        if chk: need.append(f"poll{chk}")
        if sig < 19 or pub:
            p(f"s_waitcnt vmcnt(@{','.join(need)}) lgkmcnt(0)"); p("s_barrier")
        if 0 < pub < 4: p(f"L_h{pub}:")
        if sig == 0: stamp(p)
        elif kq == 0 and "c" in OPT["fine"]: stamp(p)
        else: stamp(p, "o")
        ops = []
        if chk: check1(chk, ld_peer(chk))
        if pub and not (OPT["plast"] and chk): ops.append(publish(pub, OPT['ffl'] if pub < 4 else 'sc1'))
        G = Gaps([f"{M16} {v4(OA(ci, q, nu))}, {v4(AF(sig, tp, nu))}, {BF(kq, tp, q)}, " + ("0" if kq == 0 and tp == 0 and ci < 4 else v4(OA(ci, q, nu)))
                  for tp, q, nu in ([(tp, q, nu) for q in range(6) for tp in range(3) for nu in range(2)] if sig == 19 else
                                    [(tp, q, nu) for tp in range(3) for q in range(6) for nu in range(2)])])
        if sig == 0: p.ext(reads_b(0))
        free.append(slot_of[sig])
        if sig == 4: free += [3, 4, 5]
        while free and nxt < 20 and nxt - sig <= OPT["dmax"] + 1:
            slot_of[nxt] = free.pop(0); pend += [(nxt, tag(g, f"w{nxt}")) for g in dma_wo(nxt, slot_of[nxt])]; nxt += 1
        PT = {int(x): k for k, x in enumerate(str(OPT["pt"]).split(",")) if x}
        if sig in PT:
            ops.append([f"v_min_u32 {t4}, 47, {l}", f"v_lshl_add_u32 {t4}, {t4}, 7, {sW6}", f"buffer_load_dword v{vCd}, {t4}, {srd(sPG)}, {sBuf[PT[sig]]} offen"])
        if sig in POL: ops.append([ld_peer(POL[sig]) + f" ; vm=poll{POL[sig]}"])
        if chk: ops += [xload(chk - 1, q) for q in range(6)]
        if pub and OPT["plast"] and chk: ops.append(publish(pub, OPT['ffl'] if pub < 4 else 'sc1'))
        WS = [int(x) for x in str(OPT["ws"]).split(",")]
        sts = [out1(ci - 1, q) for q in range(6)] if sig in WS else []
        if sts: assert WS.index(sig) == ci - 1
        nd = min(len(pend), max(9 - len(ops) - len(sts), sum(1 for t, _ in pend if t <= sig + 2)))
        ops += [g for _, g in pend[:nd]]; pend = pend[nd:]
        n = len(ops) + len(sts)
        slots = [1 + 5 * k for k in range(7)] if n <= 7 else DS9 if n <= 9 else list(range(0, 36, 3))
        if not ops: slots = slots[1:]
        G.vm(ops, slots)
        for k, g in enumerate(sts):
            at = slots[len(ops) + k]
            G.spread(g[:-1], at - 4 if n <= 9 else at - 3, at); G.put(at, g[-1])
        if sig in ADD:
            for q in range(6): G.put((1 + 6 * q) if sig == 19 else (OPT['a0'] + OPT['astep'] * q), xadd(ADD[sig], q))
        if sig == 19:
            for q in range(4): G.spread(out1(4, q), 10 + 6 * q, 16 + 6 * q)
        if sig == 0: G.spread(setup0(), 2, 30)
        if sig == 2:
            G.put(13, f"v_and_b32 v{vCo}, 0xff00, v{vCo}"); G.put(17, f"v_cmp_eq_u32 vcc, {sId}, v{vCo}")
            G.put(22, [f"s_cmp_eq_u32 vcc_lo, -1", f"s_cselect_b32 {sLoc}, {0 if OPT['forcefb'] else 1}, 0"])
        if sig in (5, 6, 7, 9):
            sg, vg = rsetup()
            G.spread({5: sg, 6: vg[:11], 7: vg[11:20], 9: vg[20:]}[sig], 2, 34)
        if sig == 19 and OPT["arr"]: G.put(33, [f"s_mov_b32 {sCn}, 0", ld_all + " ; vm=poll4"])
        ra = reads_wo(sig + 1, slot_of[sig + 1]) if sig < 19 else []
        if sig < 4:
            for tp in range(3): G.mems(reads_b(3 * sig + tp + 1) + ra[4*tp:4*tp+4], 12 * tp, 12 * tp + (12 if tp < 2 else 8))
        else: G.mems(ra, 0, 30)
        p.ext(G.out())
    for q in range(4, 6): p.ext(out1(4, q))
    stamp(p)
    sCol = ["s57", "s58", "s59", "s60"]
    for jj in range(4):
        p(f"s_add_u32 {sT0}, {sCrot}, {jj^3}\ns_cmp_ge_u32 {sT0}, 5\ns_cselect_b32 {sT3}, 5, 0\ns_sub_u32 {sT0}, {sT0}, {sT3}\ns_lshl_b32 {sCol[jj]}, {sT0}, 8")
    order = [jj + 4 * x for jj in range(4) for x in range(4)]
    def rloads(r, sfx=""):
        g = [f"v_add_u32 v{vRo}, {sRo[r]}, v{vRb}"]
        for k, h in enumerate(order):
            d = 48 + 32 * r + 2 * k
            g += [f"s_mov_b32 {sT1}, {h*PART}", f"buffer_load_dwordx2 v[{d}:{d+1}], v{vRo}, {srd(sPG)}, {sT1} offen {OPT['pld']} ; vm=r{r}_{k>>1}"]
        return g
    def check(n): p(f"L_c{n}:\nv_and_b32 v{vIn}, 0xff, v{vIn}\nv_cmp_le_u32 vcc, {n}, v{vIn}\ns_cmp_eq_u32 vcc_lo, 0xffff\ns_cbranch_scc0 L_s{n}\nL_k{n}:")
    if OPT["arr"]:
        sTodo, sFi, vLa, vMk, vRo2 = "s64", "s65", 206, 207, 208
        p(f"v_add_u32 v{vRo}, {sRo[0]}, v{vRb}\nv_add_u32 v{vRo2}, {sRo[1]}, v{vRb}\nv_mov_b32 v{vLa}, {S[slot_of[18]]}\ns_mov_b32 {sTodo}, 0x1111\ns_mov_b32 {sFi}, 1")
        if OPT["arr"] == 1: p("s_waitcnt vmcnt(@st4)")
        else: p("s_waitcnt vmcnt(@poll4)")
        p("L_r:")
        p(f"s_cmp_lg_u32 {sW}, 1\ns_cbranch_scc1 L_r1")
        p(f"v_and_b32 v{vIn}, 0xff, v{vIn}\nv_cmp_le_u32 vcc, 5, v{vIn}\nv_mov_b32 v{vMk}, vcc_lo\nds_write_b32 v{vLa}, v{vMk}\ns_waitcnt lgkmcnt(0)")
        p("L_r1:\ns_barrier")
        if OPT["arr"] == 1:
            p(f"s_cmp_eq_u32 {sFi}, 0\ns_cbranch_scc1 L_r2\n" + " ; side\n".join(publish(5)) + f" ; side\ns_mov_b32 {sFi}, 0\nL_r2:")
        p(f"ds_read_b32 v{vMk}, v{vLa}\nv_xor_b32 v{vLa}, 4, v{vLa}\nv_readfirstlane_b32 {sT0}, v{vMk}")
        p(f"s_lshr_b32 {sT1}, {sT0}, 1\ns_and_b32 {sT0}, {sT0}, {sT1}\ns_lshr_b32 {sT1}, {sT0}, 2\ns_and_b32 {sT0}, {sT0}, {sT1}\ns_and_b32 {sT0}, {sT0}, {sTodo}\ns_xor_b32 {sTodo}, {sTodo}, {sT0}")
        for x in range(4):
            p(f"s_bitcmp0_b32 {sT0}, {4*x}\ns_cbranch_scc1 L_rx{x}")
            for jj in range(4):
                p(f"s_mov_b32 {sT1}, {(4*x+jj)*PART}")
                for r in range(2):
                    d = 48 + 32 * r + 2 * (4 * jj + x)
                    p(f"buffer_load_dwordx2 v[{d}:{d+1}], v{vRo2 if r else vRo}, {srd(sPG)}, {sT1} offen {OPT['pld']} ; side")
            p(f"L_rx{x}:")
        p(f"s_cmp_eq_u32 {sTodo}, 0\ns_cbranch_scc1 L_re")
        p(f"s_add_u32 {sCn}, {sCn}, 1\ns_cmp_ge_u32 {sCn}, 200000\ns_cbranch_scc1 L_re")
        p(f"s_cmp_lg_u32 {sW}, 1\ns_cbranch_scc1 L_r1")
        if OPT["slp"]: p(f"s_sleep {OPT['slp']}")
        p(ld_all + " ; side\ns_waitcnt vmcnt(0)\ns_branch L_r")
        p("L_re:")
        stamp(p); stamp(p)
        p("s_waitcnt vmcnt(0)\n; vmq none*0")
    else:
        p("s_waitcnt vmcnt(@st4)\ns_barrier"); p.ext(publish(5))
        stamp(p)
        if OPT["w0p"]: p(f"s_cmp_lg_u32 {sW}, 1\ns_cbranch_scc1 L_k5")
        p(ld_all + " ; side\ns_waitcnt vmcnt(0)")
        check(5); spin(5, ld_all)
        if OPT["w0p"]: p("s_barrier")
        stamp(p)
        if not OPT["x4"]: p.ext(rloads(1) + rloads(0))
    if OPT["x4"]:
        p(f"s_cmp_eq_u32 {sW}, 3\ns_cbranch_scc1 L_fin")
        for k, h in enumerate(order):
            p(f"s_mov_b32 {sT1}, {h*PART}\nbuffer_load_dwordx4 {v4(48+4*k)}, v{vRo}, {srd(sPG)}, {sT1} offen {OPT['pld']}")
        def add4(k, acc, first): return [f"{M16} {v4(acc+4*nu)}, {v4(vZ+2-2*nu)}, {v4(48+4*k)}, " + ("0" if first else v4(acc+4*nu)) for nu in range(2)]
        def out4(acc, so):
            g = [f"v_cvt_pk_bf16_f32 v{acc+i}, v{acc+2*i}, v{acc+2*i+1}" for i in range(4)]
            for op in ("v_permlane32_swap_b32", "v_permlane16_swap_b32"): g += [f"{op} v{acc}, v{acc+2}", f"{op} v{acc+1}, v{acc+3}"]
            return g + [f"buffer_store_dwordx4 {v4(acc)}, v{vOo}, {srd(sOUT)}, {so} offen {OPT['ost']}"]
        p(f"s_cmp_lg_u32 {sRo[1]}, 0\ns_cbranch_scc1 L_sp")
        nst = 0
        for k in range(16):
            p(f"s_waitcnt vmcnt({15-k+nst})"); p.ext(add4(k, 120 + 8 * (k >> 2), k % 4 == 0))
            if k % 4 == 1 and k > 4: p.ext(out4(120 + 8 * ((k >> 2) - 1), sCol[(k >> 2) - 1])); nst += 1
        p.ext(out4(144, sCol[3]))
        p("s_branch L_fin\nL_sp:")
        for k in range(16):
            p(f"s_waitcnt vmcnt({15-k})"); p.ext(add4(k, 120, k == 0))
        p.ext(out4(120, sCo[3]))
        p("L_fin:")
    else:
        def rout(acc, pk, so): return [f"v_cvt_pk_bf16_f32 v{pk}, v{acc}, v{acc+1}", f"v_cvt_pk_bf16_f32 v{pk+1}, v{acc+2}, v{acc+3}",
                                       f"buffer_store_dwordx2 v[{pk}:{pk+1}], v{vOo}, {srd(sOUT)}, {so} offen {OPT['ost']}"]
        for k in range(8): p(f"s_waitcnt vmcnt(@r1_{k})\n{M16} v[120:123], {v4(vSel)}, {v4(80+4*k)}, " + ("0" if k == 0 else "v[120:123]"))
        p(f"v_add_u32 v{vOo}, {sRq[1]}, v{vOb}"); p.ext(rout(120, 144, sCo[3]))
        for k in range(8): p(f"s_waitcnt vmcnt(@r0_{k})\n{M16} {v4(124+4*(k>>1))}, {v4(vSel)}, {v4(48+4*k)}, " + ("0" if k % 2 == 0 else v4(124+4*(k>>1))))
        p(f"v_add_u32 v{vOo}, {sRq[0]}, v{vOb}")
        for jj in range(4): p.ext(rout(124 + 4 * jj, 146 + 2 * jj, sCol[jj]))
    if OPT["stamps"] == 1:
        p("s_waitcnt vmcnt(0)")
        stamp(p)
        p(f"s_lshl_b32 {sT0}, s2, 2\ns_add_u32 {sT0}, {sT0}, {sW}\ns_lshl_b32 {sT0}, {sT0}, 9\ns_add_u32 {sT0}, {sT0}, {STAMP_OFF}")
        p(f"v_lshlrev_b32 v0, 2, v{vLn}\nv_add_u32 v0, {sT0}, v0")
        p(f"global_store_dword v0, v255, s[{pWS}:{pWS+1}]\nglobal_store_dword v0, v254, s[{pWS}:{pWS+1}] offset:256")
    p("L_exit:\ns_endpgm")
    for x in side: p(x)
    p("L_end:")
    p.resolve_vm()
    d = OPT["drop"]
    def keep(i):
        if "m" in d and i.kind == "mfma": return False
        if "w" in d and i.lds_dma and i.src & {("s", sWQ), ("s", sX), ("s", sWO)}: return False
        if "r" in d and i.kind == "ds": return False
        if "s" in d and i.wide_store: return False
        return True
    p.auto_lgkm(); p.auto_nop(); p.lint_scc()
    p.ins = [i if keep(i) else Ins("s_nop 0") for i in p.ins]
    return p

def build():
    ref = open(f"cdna_kernels/{NAME}.s.ref").read().split("\n")
    head = [l for l in ref if l.startswith(";") and "@launch" not in l]
    out = "\n".join(head) + "\n"
    out += f"; @launch grid=(256,1,1) block=(256,1,1) lds={LDS_BYTES}\n"
    out += '.amdgcn_target "amdgcn-amd-amdhsa--gfx950"\n.text\n'
    nm = NAME + "_kernel"
    out += f".globl {nm}\n.p2align 8\n.type {nm},@function\n" + kernel().text()
    out += f""".section .rodata,"a"
.p2align 6
.amdhsa_kernel {nm}
  .amdhsa_next_free_vgpr 512
  .amdhsa_next_free_sgpr 102
  .amdhsa_accum_offset 256
  .amdhsa_group_segment_fixed_size 0
  .amdhsa_kernarg_size 104
  .amdhsa_user_sgpr_count 2
  .amdhsa_user_sgpr_kernarg_segment_ptr 1
  .amdhsa_system_sgpr_workgroup_id_x 1
  .amdhsa_float_denorm_mode_32 3
.end_amdhsa_kernel
"""
    return out

if __name__ == "__main__":
    txt = build()
    open(sys.argv[1], "w").write(txt)
```

```python
import sys, struct, math
from asmlib import *

NAME = "concat_heads__gqa_block_cached__mha_block_cached__near_ridge"
OPT = dict(stamps=0, fw=128, fs=7, fine="", drop="", kv="nt", wq="", x="", wo="", pst="sc1", pld="sc1", kburst=1, vburst=5, spread=2, dmax=5, pubfrom=99, code=3, cend=1, codeit=10, ost="sc1 nt", thr=0x41000000, skip0=2, skipn=8, lazy=1, wotouch=99, wotn=3, epoch=1, w3=1, touch="", tfl="", win=5, kst="01", vst="56", dynq=1, eps="55", pre=1, delay=0, tst="", tt="7", dist=3, wwin=0, tl=1, mid=0, fn=1, w2l=1, pub4=18, r0=20, mode=3, slp=0, tk=0, ntk=3, early=1, wnr=6, win2=0, fair=0, wbig=7, fth=6, fper=1, ann=1, pubs="6,10,14", pols="9,13,17", adds="11,15,19", cap=9, bfree=3, krot=0, qlast=1, both=1, gfl="", xfl="sc1", fb=1, forcefb=0, fresh=0, lay=1, arr=0, idm=1, w2n=0, thru=0, post=0, pk=1, late=2, x4=1, k0=1, tskip=1, fair2=0, ox=0, xl=0, snake=3, est=0, fastp=1, fc=8, fd=3, fj=3, fwr=1, pt="", ffl="", plast=1, sp=0, pfl="sc1", w0p=1, a0=13, astep=4, ws="4,8,12,16")
for a in sys.argv[2:]:
    k, v = a.split("=", 1)
    assert k in OPT, k
    OPT[k] = int(v) if v.lstrip("-").isdigit() else v

SLOT = 24576
S = [i * SLOT for i in range(6)]
LDS_BYTES = 6 * SLOT
PART = {0: 49152, 1: 24576, 2: 24576, 3: 49152 + 1024}[OPT['lay']]
SL1 = {0: 24576, 1: 256 * 24576, 2: 16 * 24576, 3: 24576}[OPT['lay']]
GRP = {0: 16 * PART, 1: 16 * PART, 2: 32 * PART, 3: 16 * PART}[OPT['lay']]
FLAG_OFF = 32 << 20
STAMP_OFF = 64 << 20

sX, sWQ, sK, sV, sWO, sP = 28, 32, 36, 40, 44, 48
sFL, sFG, sFA, sDG = 4, 8, 12, 16
sPG, sOUT = 28, 32
pOUT, pDBG, pWS = 20, 22, 24
def srd(b): return f"s[{b}:{b+3}]"
sW, sB, sHP, sBR, sC = "s52", "s53", "s54", "s55", "s56"
sWQo, sWQlim, sXo, sWQm, sXm, sRd, sI = "s57", "s58", "s59", "s60", "s61", "s62", "s63"
sKo, sVo, sKm, sVm, sDK, sDV = "s64", "s65", "s66", "s67", "s68", "s69"
sT0, sT1, sT2, sT3 = "s70", "s71", "s72", "s73"
sW6, sXd, sCrot, sKrot = "s74", "s75", "s76", "s77"
sCo = ["s78", "s79", "s80", "s81", "s82"]
sKq = ["s83", "s84", "s85", "s86"]
sJ, sSk, sG, sRet = "s87", "s88", "s89", "s90"
sThr = "s91"; sKV0 = "s101"; sKb, sVb, sBm = "s3", "s90", "s69"; sId, sStop, sLoc = "s0", "s1", "s1"
sE = ["s97", "s58"]; sTb = 98
sNeed, sTodo, sReady, sPrev, sCur, sFirst, sCnt, sOo = "s57", "s58", "s59", "s60", "s61", "s62", "s63", "s64"
sST, sSI = 92, "s96"
def ACC(t, qb): return (t * 3 + qb) * 4
def SS(kb, qb): return 144 + (kb * 3 + qb) * 4
def PP(qb): return 168 + qb * 4
vM = [180, 181, 182]; vL = [183, 184, 185]; vAl = [186, 188, 190]; vMx = [192, 193, 194]; vTm = [195, 196, 197]; vMc = [187, 189, 191]
vKs = list(range(200, 206)); vVs = [206, 207, 208]; vWs = [209, 210, 211]; vXs = [212, 213, 214]; vOs = [215, 216, 217, 218, 219, 220]
vKr = [221, 222]; vVr = [223, 224, 225, 226]; vXr = [227, 228]; vOr = [[229, 230, 231], [232, 233, 234]]; vOw = 235; vBr = [236, 237, 198, 199]; vPs = [238, 239]
vPt = vWs + vXs + vXr
vLn = 240; vFo = 241; vFv = 242; vF4 = 243; vIn = 244; vCo = 245; vCd = 246; T = list(range(248, 254))
def v4(r): return f"v[{r}:{r+3}]"
def a4(r): return f"a[{r}:{r+3}]"
def QF(ks, qb): return (ks * 3 + qb) * 4
def FA(p, t): return 72 + 48 * p + 4 * t
def FB(p, qb): return 168 + 12 * p + 4 * qb

M16 = "v_mfma_f32_16x16x32_bf16"

class VM:
    def __init__(self, q): self.q = list(q)
    def issue(self, tag, n=1): self.q += [tag] * n
    def wait(self, *tags):
        idx = max((k for k, t in enumerate(self.q) if t in tags), default=-1)
        n = len(self.q) - 1 - idx
        self.q = self.q[idx + 1:]
        assert n <= 63
        return f"s_waitcnt vmcnt({n})"
    def done(self, tag): return tag not in self.q

def stamp(p, cls=""):
    if OPT["stamps"] == 2:
        if not cls and not getattr(stamp, "done", 0):
            stamp.done = 1
            p(f"s_memrealtime s[{sST}:{sST+1}]\ns_lshl_b32 {sT0}, s2, 2\ns_add_u32 {sT0}, {sT0}, {sW}\ns_lshl_b32 {sT0}, {sT0}, 9\ns_add_u32 {sT0}, {sT0}, {STAMP_OFF}\ns_waitcnt lgkmcnt(0)")
            p(f"v_writelane_b32 v255, s{sST}, 0\nv_writelane_b32 v255, s{sST}, 1\nv_lshlrev_b32 v254, 2, v{vLn}\nv_add_u32 v254, {sT0}, v254\nglobal_store_dword v254, v255, s[{pWS}:{pWS+1}] sc1")
        return
    if OPT["stamps"] and (not cls or cls in OPT["fine"]):
        p(f"s_memrealtime s[{sST}:{sST+1}]\ns_memtime s[{sST+2}:{sST+3}]\ns_mov_b32 s100, m0\ns_mov_b32 m0, {sSI}\ns_add_u32 {sSI}, {sSI}, 1\ns_waitcnt lgkmcnt(0)")
        p(f"v_writelane_b32 v255, s{sST}, m0\nv_writelane_b32 v254, s{sST+2}, m0\ns_mov_b32 m0, s100")

def dma6(vs, srdb, so, mbase, flags, src_step, six=False):
    def val(dst, x, extra):
        if isinstance(x, tuple): r, imm = x
        else: r, imm = x, 0
        imm += extra
        return f"s_add_u32 {dst}, {r}, {imm}" if imm else f"s_mov_b32 {dst}, {r}"
    g = []
    for j in range(6):
        pre = []
        sreg = so if (j < 3 or src_step == 0) else sT3
        if j % 3 == 0:
            pre = [val("m0", mbase, 3072 * (j // 3))]
            if j == 3 and src_step: pre.append(val(sT3, so, src_step))
        v = vs[j] if six else vs[j % 3]
        g.append(pre + [f"buffer_load_dwordx4 v{v}, {srd(srdb)}, {sreg} offen offset:{1024*(j%3)} {flags} lds"])
    return g
def dma_k(): return dma6(vKs, sK, sKo, sKm, OPT["kv"], 0, six=True)
def dma_v(): return dma6(vVs, sV, sVo, sVm, OPT["kv"], 3072)
def dma_wq(): return dma6(vWs, sWQ, sWQo, sWQm, OPT["wq"], 16 * 12288)
def dma_x():
    g = []
    for j in range(3):
        pre = [f"s_mov_b32 m0, {sXm}"] if j == 0 else []
        g.append(pre + [f"buffer_load_dwordx4 v{vXs[j]}, {srd(sX)}, {sXo} offen offset:{1024*j} {OPT['x']} lds"])
    return g
def dma_wo(sig, slot):
    ci, kq = divmod(sig, 4)
    g = dma6(vOs, sWO, sT2, (sW6, S[slot]), OPT["wo"], 0, six=True)
    g[0] = [g[0][0], f"s_add_u32 {sT2}, {sCo[ci]}, {sKq[kq]}"] + g[0][1:]
    return g
def set_wq(e): return [f"s_mul_i32 {sWQo}, {sXo}, 6144", f"s_add_u32 {sWQo}, {sWQo}, {sE[e]}"]
def adv_wqm(): return [f"s_add_u32 {sWQm}, {sWQm}, {SLOT}", f"s_cmp_ge_u32 {sWQm}, {3*SLOT}", f"s_cselect_b32 {sWQm}, {sW6}, {sWQm}"]
def next_pair():
    return [[f"s_lshr_b64 s[{sTb}:{sTb+1}], s[{sTb}:{sTb+1}], 4", f"s_and_b32 {sXo}, s{sTb}, 15", f"s_lshl_b32 {sXo}, {sXo}, 7"]]
def flip_x(): return [f"s_xor_b32 {sXm}, {sXm}, {sXd}"]
def adv_kv(so, sm, step="12288"):
    if step == "12288": a = [f"s_add_u32 {so}, {so}, 12288", f"s_add_u32 {sm}, {sm}, {2*SLOT}"]
    else: a = [f"s_add_u32 {so}, {so}, {step}", f"s_lshl2_add_u32 {sm}, {step}, {sm}"]
    g = [a, [f"s_cmp_ge_u32 {sm}, {6*SLOT}", f"s_cselect_b32 {sT0}, {6*SLOT}, 0", f"s_sub_u32 {sm}, {sm}, {sT0}"]]
    if OPT["krot"]: g.append([f"s_cmp_ge_u32 {so}, {sKV0}", f"s_cselect_b32 {sT0}, 196608, 0", f"s_sub_u32 {so}, {so}, {sT0}"])
    return g
def adv_k(step="12288"): return adv_kv(sKo, sKm, step)
def adv_v(step="12288"): return adv_kv(sVo, sVm, step)
def flat(g): return [x for y in g for x in ([y] if isinstance(y, str) else y)]

def reads_t(dstf, n=12):
    g = []
    for t in range(n):
        r = dstf(t); o = (t >> 2) * 128
        g.append(f"ds_read_b64_tr_b16 a[{r}:{r+1}], v{vVr[t&3]} offset:{o}")
        g.append(f"ds_read_b64_tr_b16 a[{r+2}:{r+3}], v{vVr[t&3]} offset:{o+6144}")
    return g
def reads_x(p, e): return [f"ds_read_b128 {a4(FB(p, qb))}, v{vXr[e]} offset:{qb*2048}" for qb in range(3)]
def adv_rd_wq():
    return [[f"s_add_u32 {sRd}, {sRd}, 1", f"s_cmp_ge_u32 {sRd}, 3", f"s_cselect_b32 {sRd}, 0, {sRd}",
             f"s_cselect_b32 {sT1}, {-2*SLOT & 0xffffffff}, {sT2}"]] + [f"v_add_u32 v{r}, {sT1}, v{r}" for r in vVr]

def kernel():
    p = Prog()
    p(f"{NAME}_kernel:")
    p("s_cmp_ge_u32 s2, 256\ns_cbranch_scc1 L_exit")
    if OPT["est"]: p("s_memrealtime s[40:41]\ns_memtime s[42:43]")
    p("s_bfe_u32 s55, s2, 0x10002\ns_mul_i32 s3, s55, 40")
    p("s_load_dwordx8 s[4:11], s[0:1], s3\ns_add_u32 s3, s3, 32\ns_load_dwordx2 s[12:13], s[0:1], s3")
    p(f"s_load_dwordx4 s[{pOUT}:{pOUT+3}], s[0:1], 80\ns_load_dwordx2 s[{pWS}:{pWS+1}], s[0:1], 96")
    if OPT["stamps"]: p(f"v_mov_b32 v255, 0\nv_mov_b32 v254, 0\ns_mov_b32 {sSI}, 0")
    l = f"v{vLn}"
    t0, t1, t2, t3, t4 = (f"v{r}" for r in T[:5])
    p(f"v_lshrrev_b32 {t0}, 6, v0\nv_and_b32 {l}, 63, v0")
    p(f"s_and_b32 {sT0}, s2, 3\ns_bfe_u32 {sB}, s2, 0x30003\ns_lshr_b32 {sJ}, s2, 6")
    p(f"v_readfirstlane_b32 {sW}, {t0}")
    p(f"s_lshl_b32 {sHP}, {sT0}, 2\ns_add_u32 {sHP}, {sHP}, {sJ}")
    if OPT["code"]:
        p("s_getpc_b64 s[26:27]\nL_pc:")
        p(f"s_sub_u32 s26, s26, L_pc-{NAME}_kernel\ns_subb_u32 s27, s27, 0")
        p(f"s_lshr_b32 {sT1}, s2, 3\ns_lshl_b32 {sT1}, {sT1}, 2\ns_add_u32 {sT1}, {sT1}, {sW}\ns_mul_i32 {sT1}, {sT1}, 384")
        p(f"v_and_b32 v{vCo}, 3, {l}\nv_lshlrev_b32 v{vCo}, 7, v{vCo}\nv_add_u32 v{vCo}, {sT1}, v{vCo}\nv_min_u32 v{vCo}, {'L_end-4' if OPT['cend'] else 'L_exit'}-{NAME}_kernel, v{vCo}")
        if OPT["code"] & 1: p(f"global_load_dword v{vCd}, v{vCo}, s[26:27]")
    def rowof(j): p(f"v_add_u32 {t0}, {64*j}, {l}\nv_mul_u32_u24 {t1}, 2731, {t0}\nv_lshrrev_b32 {t1}, 16, {t1}")
    def mk(b, ptr, off_s, size):
        p(f"s_add_u32 s{b}, s{ptr}, {off_s}\ns_addc_u32 s{b+1}, s{ptr+1}, 0\ns_and_b32 s{b+1}, s{b+1}, 0xffff")
        p(f"s_mov_b32 s{b+2}, {size}\ns_mov_b32 s{b+3}, 0x20000")
    if OPT["fastp"]:
        assert str(OPT["eps"]) == "55"
        p(f"s_lshr_b32 {sCrot}, {sB}, 1\ns_cmp_eq_u32 {sB}, 7\ns_addc_u32 {sRd}, {sCrot}, {sJ} ; carry-ok\ns_cmp_ge_u32 {sRd}, 5\ns_cselect_b32 {sT1}, 5, 0\ns_sub_u32 {sRd}, {sRd}, {sT1}")
        p(f"s_lshl_b32 {sXo}, {sRd}, 7\ns_mul_i32 {sXm}, {sW}, 3072\ns_add_u32 {sXm}, {sXm}, {S[3]}")
        p(f"s_mul_i32 {sT0}, {sW}, 24\nv_lshrrev_b32 {t0}, 3, {l}\nv_add_u32 {t0}, {sT0}, {t0}")
        p(f"v_lshrrev_b32 {t1}, 1, {t0}\nv_xor_b32 {t1}, {t1}, {l}\nv_and_b32 {t1}, 7, {t1}\nv_mul_u32_u24 {t0}, 1280, {t0}")
        p(f"v_lshl_add_u32 v{vXs[0]}, {t1}, 4, {t0}\nv_xor_b32 {t1}, 64, v{vXs[0]}")
        p(f"v_add_u32 v{vXs[1]}, {10240-1024}, {t1}\nv_add_u32 v{vXs[2]}, {2*(10240-1024)}, v{vXs[0]}")
        p(f"s_mul_i32 {sT0}, {sB}, 122880")
        if OPT["est"]: p("s_memrealtime s[44:45]\ns_memtime s[46:47]")
        p("s_waitcnt lgkmcnt(0)")
        if OPT["est"]: p(f"v_writelane_b32 v255, s40, 0\nv_writelane_b32 v254, s42, 0\nv_writelane_b32 v255, s44, 1\nv_writelane_b32 v254, s46, 1\ns_mov_b32 {sSI}, 2")
        mk(sX, 4, sT0, 122880)
        p.ext(flat(dma_x()))
        stamp(p)
        p(f"s_mul_i32 {sT0}, {sHP}, 768"); mk(sWQ, 10, sT0, 639 * 12288 + 768)
        p(f"s_mul_i32 {sW6}, {sW}, 6144\ns_add_u32 {sWQm}, {sW6}, {S[1]}")
        p(f"s_and_b32 {sT1}, {sW}, 1\ns_lshr_b32 {sT2}, {sW}, 1\ns_and_b32 {sKrot}, {sB}, 1")
        p(f"s_mul_i32 {sT0}, {sT1}, {4*12288}\ns_mul_i32 {sT3}, {sT2}, 384\ns_add_u32 {sT0}, {sT0}, {sT3}")
        p(f"s_mul_i32 {sE[0]}, {sKrot}, {32*12288}\ns_sub_u32 {sE[1]}, {32*12288}, {sE[0]}\ns_add_u32 {sE[0]}, {sE[0]}, {sT0}\ns_add_u32 {sE[1]}, {sE[1]}, {sT0}")
        p.ext(set_wq(0))
        g = dma_wq()
        p(f"s_movk_i32 {sT1}, 12288\ns_movk_i32 {sT2}, -384")
        for j in range(3):
            rowof(j)
            p(f"v_and_b32 {t2}, 6, {t1}\nv_xor_b32 {t3}, {t2}, {l}\nv_lshlrev_b32 v{vVs[j]}, 4, {t3}")
            p(f"v_and_b32 {t2}, 12, {t1}\nv_add_u32 {t2}, {t2}, {t1}\nv_mad_i32_i24 {t3}, {t1}, {sT2}, v{vVs[j]}\nv_mad_u32_u24 v{vWs[j]}, {t2}, {sT1}, {t3}")
            p.ext(g[j])
        p.ext(flat(g[3:]))
        p(f"s_add_u32 {sXd}, {sXm}, 12288\ns_xor_b32 {sXd}, {sXd}, {sXm}")
        p.ext(flat([adv_wqm(), set_wq(1), flip_x()]))
    else:
        p(f"s_lshr_b32 {sCrot}, {sB}, 1\ns_and_b32 {sKrot}, {sB}, 1\ns_add_u32 {sT1}, {sCrot}, {sJ}")
        p(f"s_mov_b64 s[{sTb}:{sTb+1}], 0")
        e0 = 0
        for n in (int(c) for c in str(OPT["eps"])):
            seq = [e0 + k % n for k in range(16)]
            lo = sum(v << (4 * k) for k, v in enumerate(seq[:8])); hi = sum(v << (4 * k) for k, v in enumerate(seq[8:]))
            if n == 5: p(f"s_cmp_eq_u32 {sB}, 7\ns_addc_u32 {sT0}, {sT1}, 0 ; carry-ok\ns_lshl_b32 {sT0}, {sT0}, 2")
            else: p(f"s_lshl_b32 {sT0}, {sT1}, 2")
            p(f"s_mov_b32 s72, {lo:#x}\ns_mov_b32 s73, {hi:#x}\ns_lshr_b64 s[72:73], s[72:73], {sT0}\ns_and_b32 s72, s72, {(1 << (4 * n)) - 1:#x}\ns_mov_b32 s73, 0")
            p(f"s_lshl_b64 s[72:73], s[72:73], {4*e0}\ns_or_b64 s[{sTb}:{sTb+1}], s[{sTb}:{sTb+1}], s[72:73]")
            e0 += n
        assert e0 == 10
        p(f"s_and_b32 {sXo}, s{sTb}, 15\ns_lshl_b32 {sXo}, {sXo}, 7\ns_mul_i32 {sW6}, {sW}, 6144")
        p(f"s_and_b32 {sT1}, {sW}, 1\ns_lshr_b32 {sT2}, {sW}, 1")
        p(f"s_mul_i32 {sT0}, {sT1}, {4*12288}\ns_mul_i32 {sT3}, {sT2}, 384\ns_add_u32 {sT0}, {sT0}, {sT3}")
        p(f"s_mul_i32 {sE[0]}, {sKrot}, {32*12288}\ns_sub_u32 {sE[1]}, {32*12288}, {sE[0]}\ns_add_u32 {sE[0]}, {sE[0]}, {sT0}\ns_add_u32 {sE[1]}, {sE[1]}, {sT0}")
        p.ext(set_wq(0))
        p(f"s_add_u32 {sWQm}, {sW6}, {S[1]}")
        p(f"s_mul_i32 {sXm}, {sW}, 3072\ns_add_u32 {sXm}, {sXm}, {S[3]}")
        p(f"s_add_u32 {sXd}, {sXm}, 12288\ns_xor_b32 {sXd}, {sXd}, {sXm}")
        p(f"s_mul_i32 {sT0}, {sW}, 24\nv_lshrrev_b32 {t0}, 3, {l}\nv_add_u32 {t0}, {sT0}, {t0}")
        p(f"v_lshrrev_b32 {t1}, 1, {t0}\nv_xor_b32 {t1}, {t1}, {l}\nv_and_b32 {t1}, 7, {t1}\nv_mul_u32_u24 {t0}, 1280, {t0}")
        p(f"v_lshl_add_u32 v{vXs[0]}, {t1}, 4, {t0}\nv_xor_b32 {t1}, 64, v{vXs[0]}")
        p(f"v_add_u32 v{vXs[1]}, {10240-1024}, {t1}\nv_add_u32 v{vXs[2]}, {2*(10240-1024)}, v{vXs[0]}")
        for j in range(3):
            rowof(j)
            p(f"v_and_b32 {t2}, 6, {t1}\nv_xor_b32 {t3}, {t2}, {l}\nv_lshlrev_b32 v{vVs[j]}, 4, {t3}")
            p(f"v_and_b32 {t2}, 12, {t1}\nv_add_u32 {t2}, {t2}, {t1}\nv_mul_u32_u24 {t2}, 12288, {t2}")
            p(f"v_mul_u32_u24 {t3}, 384, {t1}\nv_sub_u32 {t2}, {t2}, {t3}\nv_add_u32 v{vWs[j]}, {t2}, v{vVs[j]}")
        if OPT["est"]: p("s_memrealtime s[44:45]\ns_memtime s[46:47]")
        p("s_waitcnt lgkmcnt(0)")
        if OPT["est"]: p(f"v_writelane_b32 v255, s40, 0\nv_writelane_b32 v254, s42, 0\nv_writelane_b32 v255, s44, 1\nv_writelane_b32 v254, s46, 1\ns_mov_b32 {sSI}, 2")
        stamp(p)
        if OPT["delay"]:
            p(f"s_bitcmp0_b32 {sB}, 0\ns_cbranch_scc1 L_nd")
            for _ in range(OPT["delay"]): p("s_sleep 37")
            p("L_nd:")
        p(f"s_mul_i32 {sT0}, {sB}, 122880"); mk(sX, 4, sT0, 122880)
        p.ext(flat(dma_x()))
        p(f"s_mul_i32 {sT0}, {sHP}, 768"); mk(sWQ, 10, sT0, 639 * 12288 + 768)
        p.ext(flat(dma_wq() + [adv_wqm(), set_wq(1), flip_x()]))
    wq1 = dma_wq()
    p.ext(flat(wq1[:3]))
    if OPT["fastp"]:
        p(f"s_lshl_b32 {sT0}, {sRd}, 2\ns_mov_b32 s72, 0x21043210\ns_mov_b32 s73, 3\ns_lshr_b64 s[72:73], s[72:73], {sT0}\ns_and_b32 s{sTb}, s72, 0xfffff")
        p(f"s_add_u32 s72, s{sTb}, 0x55555\ns_lshr_b32 s{sTb+1}, s72, 12\ns_lshl_b32 s72, s72, 20\ns_or_b32 s{sTb}, s{sTb}, s72")
    p(f"s_and_b32 {sT1}, {sW}, 1\ns_lshr_b32 {sT2}, {sW}, 1")
    p(f"s_mul_i32 {sKo}, {sT2}, 196608\ns_mul_i32 {sT3}, {sT1}, 6144\ns_add_u32 {sKo}, {sKo}, {sT3}\ns_mov_b32 {sVo}, {sKo}\ns_mov_b32 {sKV0}, {sKo}")
    if OPT["krot"]:
        if OPT["krot"] == 1: p(f"s_lshr_b32 {sT0}, s2, 3\ns_add_u32 {sT0}, {sT0}, s2")
        if OPT["krot"] == 2: p(f"s_mul_i32 {sT0}, s2, 0x9e3779b1\ns_lshr_b32 {sT0}, {sT0}, 28\ns_lshl3_add_u32 {sT0}, {sT2}, {sT0}")
        if OPT["krot"] == 5: p(f"s_lshl_b32 {sT0}, {sT2}, 3")
        if OPT["krot"] == 6: p(f"s_lshl_b32 {sT0}, s2, 1\ns_add_u32 {sT0}, {sT0}, {sT2}\ns_mul_i32 {sT0}, {sT0}, 0x9e3779b1\ns_lshr_b32 {sT0}, {sT0}, 28")
        if OPT["krot"] == 7: p(f"s_mul_i32 {sT0}, s2, 0x9e3779b1\ns_lshr_b32 {sT0}, {sT0}, 28")
        if OPT["krot"] == 3: p(f"s_lshl_b32 {sT0}, {sHP}, 1\ns_add_u32 {sT0}, {sT0}, {sT2}")
        if OPT["krot"] == 4: p(f"s_lshl_b32 {sT0}, {sB}, 1\ns_add_u32 {sT0}, {sT0}, {sBR}")
        p(f"s_and_b32 {sT0}, {sT0}, 15\ns_mul_i32 {sT0}, {sT0}, 12288\ns_add_u32 {sKV0}, {sKo}, 196608\ns_add_u32 {sKo}, {sKo}, {sT0}\ns_mov_b32 {sVo}, {sKo}")
    p(f"s_add_u32 {sKm}, {sW6}, {S[4]}\ns_add_u32 {sVm}, {sW6}, {S[5]}")
    p(f"s_lshr_b32 {sSk}, s2, 3\ns_and_b32 {sSk}, {sSk}, {OPT['skipn']-1}\ns_add_u32 {sSk}, {sSk}, {OPT['skip0']}\ns_mov_b32 {sThr}, {OPT['thr']}")
    p(f"s_lshl_b32 {sT0}, {sB}, 4\ns_add_u32 {sT0}, {sT0}, {sHP}\ns_mul_i32 {sT3}, {sT0}, 393216")
    mk(sK, 6, sT3, 393216); mk(sV, 8, sT3, 393216)
    p(f"s_mul_i32 {sT3}, {sHP}, 491520"); mk(sWO, 12, sT3, 491520)
    p(f"s_lshl_b32 {sG}, {sBR}, 3\ns_add_u32 {sG}, {sG}, {sB}\ns_lshl_b32 {sT0}, {sG}, 4\ns_add_u32 {sT0}, {sT0}, {sHP}")
    p(f"s_lshl_b32 {sT3}, {sT0}, {OPT['fs']}\ns_add_u32 {sT3}, {sT3}, {FLAG_OFF}"); mk(sFL, pWS, sT3, OPT["fw"])
    p(f"s_lshl_b32 {sT3}, {sG}, {OPT['fs']+4}\ns_add_u32 {sT3}, {sT3}, {FLAG_OFF}"); mk(sFG, pWS, sT3, 16 << OPT["fs"])
    mk(sFA, pWS, FLAG_OFF, 352 << OPT['fs'])
    mk(sDG, pDBG, 0, OPT['fw'])
    p(f"s_cmp_eq_u32 {sW}, 0\ns_cselect_b32 s{sFL+2}, {OPT['fw']}, 0")
    p(f"v_lshlrev_b32 v{vFo}, {OPT['fs']}, {l}\nv_lshlrev_b32 v{vF4}, 2, {l}")
    c = (192 ** -0.5) * math.log2(math.e)
    p(f"s_mov_b32 {sC}, {struct.unpack('<I', struct.pack('<f', c))[0]:#x}")
    p(f"s_xor_b32 {sT0}, {sB}, {OPT['ox']}\ns_lshr_b32 {sCrot}, {sT0}, 1\ns_and_b32 {sKrot}, {sT0}, 1\ns_lshl_b32 {sKrot}, {sKrot}, 1")
    p(f"s_cmp_eq_u32 {sT0}, 7\ns_cselect_b32 {sCrot}, 4, {sCrot}\ns_cselect_b32 {sKrot}, 0, {sKrot}")
    for ci, x in enumerate((3, 1, 2, None, 0)):
        p(f"s_mov_b32 {sT0}, 4" if x is None else f"s_xor_b32 {sT0}, {sJ}, {x}")
        p(f"s_add_u32 {sT0}, {sCrot}, {sT0}\ns_cmp_ge_u32 {sT0}, 5\ns_cselect_b32 {sT3}, 5, 0\ns_sub_u32 {sT0}, {sT0}, {sT3}\ns_lshl_b32 {sCo[ci]}, {sT0}, 8")
    for kq in range(4):
        p(f"s_xor_b32 {sT0}, {sKrot}, {kq}\ns_mul_i32 {sKq[kq]}, {sT0}, {96*1280}")
    p(f"s_mul_i32 {sT0}, {sT2}, 12288")
    for j in range(6):
        rowof(j)
        p(f"v_bfe_u32 {t2}, {t1}, 1, 3\nv_xor_b32 {t2}, {t2}, {l}\nv_lshlrev_b32 v{vKs[j]}, 4, {t2}")
        if j >= 3: p(f"v_add_u32 v{vKs[j]}, 3072, v{vKs[j]}")
    p(f"v_and_b32 {t0}, 15, {l}\nv_lshrrev_b32 {t1}, 4, {l}\nv_lshrrev_b32 {t2}, 1, {t0}\nv_xor_b32 {t2}, {t2}, {t1}")
    p(f"v_mul_u32_u24 {t3}, 384, {t0}\nv_add_u32 {t3}, {sT0}, {t3}\nv_add_u32 {t3}, {S[4]}, {t3}")
    p(f"v_lshl_add_u32 v{vKr[0]}, {t2}, 4, {t3}\nv_xor_b32 {t4}, 4, {t2}\nv_lshl_add_u32 v{vKr[1]}, {t4}, 4, {t3}")
    p(f"s_mul_i32 {sT3}, {sT1}, {48*128}\ns_add_u32 {sT3}, {sT3}, {S[3]}")
    p(f"v_lshlrev_b32 {t3}, 7, {t0}\nv_add_u32 {t3}, {sT3}, {t3}")
    p(f"v_lshl_add_u32 v{vXr[0]}, {t2}, 4, {t3}")
    p(f"s_and_b32 {sT3}, {sB}, 1\ns_lshl_b32 {sT3}, {sT3}, 6\nv_xor_b32 v{vXr[0]}, {sT3}, v{vXr[0]}")
    p(f"v_xor_b32 v{vXr[1]}, 64, v{vXr[0]}")
    p(f"s_mul_i32 {sT3}, {sW}, 24\nv_lshlrev_b32 {t2}, 1, {t1}\nv_xor_b32 {t2}, {t2}, {t0}\nv_add_u32 {t3}, {sT3}, {t1}")
    p(f"v_mul_u32_u24 {t3}, 1280, {t3}\nv_lshl_add_u32 v{vOs[0]}, {t2}, 4, {t3}\nv_xor_b32 {t2}, 128, v{vOs[0]}")
    for j in range(1, 6):
        p(f"v_add_u32 v{vOs[j]}, {5120*j-1024*(j%3)}, " + (t2 if j & 1 else f"v{vOs[0]}"))
    p(f"v_lshrrev_b32 {t0}, 2, {l}\nv_and_b32 {t1}, 3, {l}\nv_bfe_u32 {t2}, {l}, 3, 2")
    p(f"v_mul_u32_u24 {t3}, 384, {t0}\nv_lshl_add_u32 {t3}, {t1}, 3, {t3}\nv_add_u32 {t3}, {sT0}, {t3}\nv_add_u32 {t3}, {S[1]}, {t3}")
    for dl in range(4):
        p(f"v_xor_b32 {t4}, {dl}, {t2}\nv_lshl_add_u32 v{vVr[dl]}, {t4}, 5, {t3}")
    p(f"v_lshlrev_b32 {t3}, 8, {t0}\nv_lshl_add_u32 {t3}, {t1}, 3, {t3}\nv_and_b32 {t2}, 7, {t0}\ns_lshl_b32 {sT3}, {sW}, 1\nv_xor_b32 {t2}, {sT3}, {t2}")
    p(f"v_lshl_add_u32 v{vOr[0][0]}, {t2}, 5, {t3}\nv_xor_b32 v{vOr[1][0]}, 32, v{vOr[0][0]}")
    for nu in range(2): p(f"v_add_u32 v{vOr[nu][1]}, {S[2]}, v{vOr[nu][0]}\nv_add_u32 v{vOr[nu][2]}, {S[4]}, v{vOr[nu][0]}")
    p(f"v_lshlrev_b32 {t0}, 4, {l}")
    p(f"s_mul_i32 {sT3}, {sW}, 3072\ns_add_u32 {sT3}, {sT3}, {S[3]}\nv_add_u32 v{vOw}, {sT3}, {t0}")
    p(f"s_mul_i32 {sT3}, {sKrot}, 3072\ns_add_u32 {sT3}, {sT3}, {S[3]}\nv_add_u32 v{vBr[0]}, {sT3}, {t0}\nv_add_u32 v{vBr[1]}, 36864, v{vBr[0]}")
    p(f"s_xor_b32 {sT3}, {sKrot}, 2\ns_mul_i32 {sT3}, {sT3}, 3072\ns_add_u32 {sT3}, {sT3}, {S[3]}\nv_add_u32 v{vBr[2]}, {sT3}, {t0}\nv_add_u32 v{vBr[3]}, 36864, v{vBr[2]}")
    p(f"v_add_u32 v{vPs[0]}, {sW6}, {t0}\nv_add_u32 v{vPs[1]}, 3072, v{vPs[0]}")
    for r in range(144): p(f"v_mov_b32 v{r}, 0")
    for qb in range(3): p(f"v_mov_b32 v{vM[qb]}, 0xff7fffff\nv_mov_b32 v{vMc[qb]}, 0xff7fffff\nv_mov_b32 v{vL[qb]}, 0")
    p(f"s_mov_b32 {sRd}, 1\ns_mov_b32 {sT2}, {SLOT}\ns_mov_b32 {sI}, 0\ns_mov_b32 {sDK}, 12288")
    p("s_cmp_lg_u32 s2, 0\ns_cbranch_scc1 L_nc")
    lg = OPT["fw"].bit_length() - 5
    p(f"v_lshrrev_b32 {t0}, {lg}, {l}\nv_lshlrev_b32 {t0}, {OPT['fs']}, {t0}\nv_and_b32 {t1}, {(1 << lg) - 1}, {l}\nv_lshl_add_u32 {t0}, {t1}, 4, {t0}\ns_lshl_b32 {sT0}, {sW}, {OPT['fs']+6}")
    for k in range(1 << lg): p(f"buffer_store_dwordx4 v[0:3], {t0}, {srd(sFA)}, {sT0} offen sc1\ns_add_u32 {sT0}, {sT0}, {(64 >> lg) << OPT['fs']}")
    if OPT["tk"]:
        p(f"s_lshl_b32 {sT0}, {sW}, {OPT['fs']+4}\ns_add_u32 {sT0}, {sT0}, {256 << OPT['fs']}")
        for k in range(2): p(f"buffer_store_dwordx4 v[0:3], {t0}, {srd(sFA)}, {sT0} offen sc1\ns_add_u32 {sT0}, {sT0}, {8 << OPT['fs']}")
    if OPT["fair"]:
        p(f"s_lshl_b32 {sT0}, {sW}, {OPT['fs']+3}\ns_add_u32 {sT0}, {sT0}, {320 << OPT['fs']}\nbuffer_store_dwordx4 v[0:3], {t0}, {srd(sFA)}, {sT0} offen sc1")
    p("L_nc:")
    rd0 = reads_x(0, 0) + reads_t(lambda t: FA(0, t))
    rest = dma_x() + dma_wq() + [adv_wqm(), set_wq(1), flip_x()]
    if OPT["pre"] == 0:
        p("s_waitcnt vmcnt(3)\ns_barrier"); stamp(p)
        p.ext(weave(rd0, wq1[3:] + [adv_wqm(), flat(next_pair()), set_wq(0)] + rest))
    elif OPT["pre"] == 1:
        p.ext(flat(wq1[3:] + [adv_wqm(), flat(next_pair()), set_wq(0)] + rest[:3]))
        p("s_waitcnt vmcnt(9)\ns_barrier"); stamp(p)
        p.ext(weave(rd0, rest[3:]))
    else:
        p.ext(flat(wq1[3:] + [adv_wqm(), flat(next_pair()), set_wq(0)] + rest[:6]))
        p("s_waitcnt vmcnt(12)\ns_barrier"); stamp(p)
        p.ext(weave(rd0, rest[6:]))
    p.ext(flat(adv_rd_wq()))
    p(f"v_add_u32 v{vXr[0]}, {sDK}, v{vXr[0]}")
    DS9 = list(range(0, 36, 4))
    def conv(ks):
        g = []
        R = lambda qb: 144 + 4 * qb + 12 * (ks & 1)
        for qb in range(3):
            a, b, r = ACC(2 * ks, qb), ACC(2 * ks + 1, qb), R(qb)
            g += [f"v_cvt_pk_bf16_f32 v{r}, v{a}, v{a+1}", f"v_cvt_pk_bf16_f32 v{r+1}, v{a+2}, v{a+3}",
                  f"v_cvt_pk_bf16_f32 v{r+2}, v{b}, v{b+1}", f"v_cvt_pk_bf16_f32 v{r+3}, v{b+2}, v{b+3}"]
        for op in ("v_permlane32_swap_b32", "v_permlane16_swap_b32"):
            for qb in range(3): g += [f"{op} v{R(qb)}, v{R(qb)+2}", f"{op} v{R(qb)+1}, v{R(qb)+3}"]
        for qb in range(3): g += [f"v_accvgpr_write_b32 a{QF(ks, qb)+i}, v{R(qb)+i}" for i in range(4)]
        return g
    def qstep(par, wait, dmas, advs, do_reads=True, tail=[], valu=[]):
        if wait: p(wait + " lgkmcnt(0)")
        p("s_barrier")
        stamp(p, "q")
        G = Gaps([f"{M16} {v4(ACC(t, qb))}, {a4(FA(par, t))}, {a4(FB(par, qb))}, {v4(ACC(t, qb))}" for t in range(12) for qb in ((2, 1, 0) if OPT["snake"] & 1 and t & 1 else (0, 1, 2))])
        slots = DS9 if len(dmas) > 6 else [0, 5, 10, 15, 20, 25]
        G.vm(dmas, slots)
        for k, a in advs: G.put(k, a)
        if do_reads:
            pos = G.mems(reads_x(1 - par, 1 - par) + reads_t(lambda t: FA(1 - par, t)), 0, 32)
            ad = adv_rd_wq()
            G.put(17, ad[0][:2]); G.put(18, ad[0][2:])
            for k in range(4): G.put(pos[3 + 17 + 2 * k] + 1, ad[1 + k])
            if par == 0: G.put(9, f"v_add_u32 v{vXr[1]}, {sDK}, v{vXr[1]}")
            else: G.put(9, [f"s_sub_u32 {sDK}, 0, {sDK}", f"v_add_u32 v{vXr[0]}, {sDK}, v{vXr[0]}"])
        G.spread(valu, 10, 36)
        G.put(34, tail)
        p.ext(G.out())
    def announce():
        p(f"s_or_b32 {sT0}, s2, {sW} ; scc-ok\ns_cbranch_scc1 L_na\nv_mov_b32 v{vFv}, 1\nbuffer_store_dword v{vFv}, v{vF4}, {srd(sDG)}, 0 offen sc1\nL_na:")
    sFo, sFt, sCn2 = "s0", "s1", "s3"
    npr = next_pair()
    def table(dst, digits):
        d = (str(digits) * 8)[:8]
        p(f"s_add_u32 {sT0}, {sB}, {sJ}\ns_and_b32 {sT0}, {sT0}, 7\ns_lshl_b32 {sT0}, {sT0}, 2\ns_lshr_b32 {dst}, {sum((int(c) + 1) << (4 * k) for k, c in enumerate(d)):#x}, {sT0}\ns_and_b32 {dst}, {dst}, 15")
    table(sKb, OPT["kst"]); table(sVb, OPT["vst"])
    p(f"s_mov_b32 {sBm}, 256\ns_bitset1_b32 {sBm}, {sKb}\ns_bitset1_b32 {sBm}, {sVb}")
    p(f"s_or_b32 {sStop}, {sBm}, 16\ns_getreg_b32 {sId}, hwreg(HW_REG_XCC_ID, 0, 4)\ns_add_u32 {sId}, {sId}, 1\ns_lshl_b32 {sId}, {sId}, 8")
    side = []
    ld_init = f"buffer_load_dword v{vIn}, off, {srd(sDG)}, 0 sc1"
    def publish(n, fl="sc1"): return [f"s_add_u32 {sT1}, {sId}, {n}", f"v_mov_b32 v{vFv}, {sT1}", f"buffer_store_dword v{vFv}, v{vF4}, {srd(sFL)}, 0 offen {fl}"]
    def spin(n, load, cnt=sCnt): side.append(f"L_s{n}:\n" + (f"s_sleep {OPT['slp']}\n" if OPT["slp"] else "") + f"{load} ; side\ns_add_u32 {cnt}, {cnt}, 1\ns_cmp_lt_u32 {cnt}, 200000\ns_waitcnt vmcnt(0)\ns_cbranch_scc1 L_c{n}\ns_branch L_k{n}")
    TS = list(zip([x for x in str(OPT["tst"]).split(",") if x], [int(x) for x in str(OPT["tt"]).split(",")], ["s87", "s0", "s1"][::-1]))
    for st, _, r in TS:
        table(r, st); p(f"s_bitset1_b32 {sBm}, {r}")
    if TS: p(f"v_and_b32 {t4}, 7, {l}\nv_lshlrev_b32 {t4}, 7, {t4}")
    def qwait(n, tag):
        if not OPT["dynq"]: return f"s_waitcnt vmcnt({n})"
        p(f"s_bitcmp1_b32 {sBm}, {sI}\ns_waitcnt vmcnt({n+6}) lgkmcnt(0)\ns_cbranch_scc1 L_qw{tag}\ns_waitcnt vmcnt({n})\nL_qw{tag}:")
        return None
    p("s_waitcnt lgkmcnt(0)")
    p("L_q:")
    qstep(0, qwait(9, "e"), dma_wq(), [(26, adv_wqm())] + [(27 + k, g) for k, g in enumerate(npr)] + [(33, set_wq(0))])
    qstep(1, qwait(6, "o"), dma_x() + dma_wq(), [(13, flip_x()), (29, adv_wqm()), (33, set_wq(1))],
          tail=[f"s_add_u32 {sI}, {sI}, 1", f"s_bitcmp0_b32 {sStop}, {sI}"])
    p("s_waitcnt lgkmcnt(0)")
    p("s_cbranch_scc1 L_q")
    p(f"s_cmp_lg_u32 {sI}, {sKb}\ns_cbranch_scc1 L_q1")
    if OPT["fair"] or OPT["ann"]: announce()
    p.ext(flat(dma_k() + adv_k()))
    p("L_q1:")
    p(f"s_cmp_lg_u32 {sI}, 4\ns_cbranch_scc1 L_q3\n{ld_init}\nL_q3:")
    p(f"s_cmp_lg_u32 {sI}, {sVb}\ns_cbranch_scc1 L_q2")
    assert min(int(c) for c in str(OPT["vst"])) >= 5 and max(int(c) for c in str(OPT["kst"])) <= 2 and int(str(OPT["kst"])[0]) <= 1
    p(f"s_mov_b32 {sT3}, 0\nL_c0:\nv_readfirstlane_b32 {sT0}, v{vIn}\ns_cmp_eq_u32 {sT0}, 1\ns_cbranch_scc0 L_s0\nL_k0:"); spin(0, ld_init, sT3)
    p.ext(publish(0))
    p.ext(flat(dma_v() + adv_v()))
    p("L_q2:")
    for k, (_, t, r) in enumerate(TS):
        p(f"s_cmp_lg_u32 {sI}, {r}\ns_cbranch_scc1 L_qt{k}\ns_add_u32 {sT0}, {sKV0}, {12288*(t>>1)}\ns_add_u32 {sT3}, {sT0}, 3072")
        for j in range(6): p(f"buffer_load_dword v{vCd}, {t4}, {srd(sV if t & 1 else sK)}, {sT0 if j < 3 else sT3} offen offset:{1024*(j%3)} {OPT['tfl']}")
        p(f"L_qt{k}:")
    p(f"s_cmp_lt_u32 {sI}, 8\ns_cbranch_scc1 L_q")
    vm = VM(["wq17"] * 6 + ["x9"] * 3 + ["wq18"] * 6)
    kv = lambda a: [(27 + 2 * k, x) for k, x in enumerate(a)]
    w = vm.wait("wq17"); vm.issue("wq19", 6); qstep(0, w, dma_wq(), [])
    if OPT["fair"]: p(f"buffer_load_dword v{vIn}, off, {srd(sDG)}, 0 sc1"); vm.issue("init")
    w = vm.wait("wq18"); vm.issue("t2", 6); qstep(1, w, dma_k(), kv(adv_k()))
    w = vm.wait("wq19"); vm.issue("t3", 6); qstep(0, w, dma_v(), kv(adv_v()))
    c01 = conv(0) + conv(1)[:12]
    if OPT["dist"] == 4: qstep(1, "s_waitcnt", [], [], do_reads=False, valu=c01)
    else: qstep(1, "s_waitcnt", dma_k(), kv(adv_k()), do_reads=False, valu=c01)
    stamp(p)
    p.ext(conv(1)[12:])
    for ks in range(2, 6): p.ext(conv(ks))
    for r in vVr: p(f"v_add_u32 v{r}, {S[5]}, v{r}")
    p(f"s_mov_b32 {sRd}, {S[4]}\ns_mov_b32 {sI}, 0\ns_mov_b32 {sRet}, 0")
    if OPT["fair"]:
        p(f"s_mov_b32 {sCn2}, 0\ns_waitcnt vmcnt(18)\nL_c0:\nv_readfirstlane_b32 {sT1}, v{vIn}\ns_cmp_eq_u32 {sT1}, 1\ns_cbranch_scc0 L_s0\nL_k0:")
        p(f"s_add_u32 {sFo}, {sB}, s2\ns_and_b32 {sFo}, {sFo}, 7\ns_lshl3_add_u32 {sFo}, {sW}, {sFo}\ns_add_u32 {sFo}, {sFo}, 320\ns_lshl_b32 {sFo}, {sFo}, {OPT['fs']}")
        p(f"s_mul_i32 {sFt}, {sW}, {OPT['fth']}\ns_add_u32 {sFt}, {sFt}, {16 - (3 * OPT['fth']) // 2 - 32}")
        p(f"v_lshlrev_b32 v247, 20, {l}\nv_mov_b32 v{vIn}, -16")
    elif not OPT["ann"]: announce()
    stamp(p)

    sv = lambda qb: [SS(0, qb) + i for i in range(4)] + [SS(1, qb) + i for i in range(4)]
    def probs(qb, check, dst=None, pack=True):
        x = sv(qb); y = dst or vPt; g = []
        g += [f"v_fma_f32 v{y[i]}, v{x[i]}, {sC}, -v{vMc[qb]}" for i in range(8)]
        if check:
            m = vMx[0]
            if qb == 0: g += [f"v_max3_f32 v{m}, v{y[0]}, v{y[1]}, v{y[2]}", f"v_max3_f32 v{m}, v{m}, v{y[3]}, v{y[4]}", f"v_max3_f32 v{m}, v{m}, v{y[5]}, v{y[6]}", f"v_max_f32 v{m}, v{m}, v{y[7]}"]
            else: g += [f"v_max3_f32 v{m}, v{m}, v{y[2*i]}, v{y[2*i+1]}" for i in range(4)]
        g += [f"v_exp_f32 v{y[i]}, v{y[i]}" for i in range(8)]
        t = vTm[qb]; u = vMx[1]
        g += [f"v_add_f32 v{t}, v{y[0]}, v{y[1]}", f"v_add_f32 v{u}, v{y[2]}, v{y[3]}", f"v_add_f32 v{t}, v{t}, v{y[4]}", f"v_add_f32 v{u}, v{u}, v{y[5]}",
              f"v_add_f32 v{t}, v{t}, v{y[6]}", f"v_add_f32 v{u}, v{u}, v{y[7]}"]
        if pack: g += [f"v_cvt_pk_bf16_f32 v{PP(qb)+i}, v{y[2*i]}, v{y[2*i+1]}" for i in range(4)]
        g += [f"v_add_f32 v{t}, v{t}, v{u}"]
        return g
    def rescale():
        return [f"v_pk_mul_f32 v[{ACC(t, qb)+h}:{ACC(t, qb)+h+1}], v[{ACC(t, qb)+h}:{ACC(t, qb)+h+1}], v[{vAl[qb]}:{vAl[qb]+1}] op_sel_hi:[1,0]"
                for t in range(12) for qb in range(3) for h in (0, 2)]
    def xlane(regs, op, vPt=vPt):
        g = []
        for sw in ("v_permlane32_swap_b32", "v_permlane16_swap_b32"):
            g += [f"v_mov_b32 v{vPt[qb]}, v{regs[qb]}" for qb in range(3)]
            g += [f"{sw} v{regs[qb]}, v{vPt[qb]}" for qb in range(3)]
            g += [f"{op} v{regs[qb]}, v{regs[qb]}, v{vPt[qb]}" for qb in range(3)]
        return g
    def slow_path():
        g = []
        for k in range(4):
            for qb in range(3):
                x = sv(qb)
                g.append(f"v_max3_f32 v{vMx[qb]}, v{vM[qb] if k == 0 else vMx[qb]}, v{x[2*k]}, v{x[2*k+1]}")
        g += xlane(vMx, "v_max_f32")
        g += [f"v_sub_f32 v{vTm[qb]}, v{vM[qb]}, v{vMx[qb]}" for qb in range(3)]
        g += [f"v_mul_f32 v{vMc[qb]}, {sC}, v{vMx[qb]}" for qb in range(3)]
        g += [f"v_mul_f32 v{vTm[qb]}, {sC}, v{vTm[qb]}" for qb in range(3)]
        g += [f"v_mov_b32 v{vM[qb]}, v{vMx[qb]}" for qb in range(3)]
        g += [f"v_exp_f32 v{vAl[qb]}, v{vTm[qb]}" for qb in range(3)]
        for qb in range(3): g += probs(qb, False)
        g += [f"v_mul_f32 v{vL[qb]}, v{vL[qb]}, v{vAl[qb]}" for qb in range(3)]
        return g + rescale()
    vKeep = [vPt, vKs + vVs[:2], [vVs[2]] + T[2:6] + [vFv, 247, vIn]]
    def kstep(dmas, advs, ret):
        last = ret == 1 and OPT["fn"] and not OPT["post"]
        pr = (lambda qb: probs(qb, True, vKeep[qb], False)) if last else (lambda qb: probs(qb, True))
        p("s_barrier")
        stamp(p, "a")
        rd = [f"ds_read_b128 {a4(FA(0, ks*2+kb))}, v{vKr[ks&1]} offset:{kb*6144+(ks>>1)*128}" for ks in range(6) for kb in range(2)]
        G = Gaps([f"{M16} {v4(SS(kb, qb))}, {a4(FA(0, ks*2+kb))}, {a4(QF(ks, qb))}, {'0' if ks == 0 else v4(SS(kb, qb))}"
                  for qb in range(3) for ks in range(6) for kb in range(2)])
        p.ext(rd[:7])
        G.mems(rd[7:], 0, 5)
        G.put(5, [f"s_add_u32 {sRd}, {sRd}, {2*SLOT}", f"s_cmp_ge_u32 {sRd}, {6*SLOT}"])
        G.put(6, [f"s_cselect_b32 {sRd}, 0, {sRd}", f"s_cselect_b32 {sDK}, {-4*SLOT & 0xffffffff}, {sT2}"])
        G.put(8, f"v_add_u32 v{vKr[0]}, {sDK}, v{vKr[0]}"); G.put(9, f"v_add_u32 v{vKr[1]}, {sDK}, v{vKr[1]}")
        if ret is None:
            G.vm(dmas, [8, 13, 18, 23, 28, 33])
            p.ext(G.out() + flat(advs)); p("s_branch L_slow")
            return
        G.vm(dmas[:4], [8, 14, 22, 30])
        G.spread(pr(0), 14, 25); G.spread(pr(1), 26, 36)
        p.ext(G.out())
        p.ext(weave(pr(2), dmas[4:] + advs, 2, 26))
        if OPT["lazy"]: p(f"v_cmp_lt_f32 vcc, {sThr}, v{vMx[0]}\ns_cbranch_vccnz L_slow")
        else: p("s_branch L_slow")
        p(f"L_ret{ret}:")
        for qb in range(3): p(f"v_add_f32 v{vL[qb]}, v{vL[qb]}, v{vTm[qb]}")
    def pv_mfmas(): return [f"{M16} {v4(ACC(t, qb))}, {a4(FA(1, t))}, {v4(PP(qb))}, {v4(ACC(t, qb))}" for t in range(12) for qb in range(3)]
    def vstep(dmas, advs, tail=[]):
        p("s_barrier")
        stamp(p, "a")
        rd = reads_t(lambda t: FA(1, t))
        p.ext(rd[:6])
        G = Gaps(pv_mfmas())
        G.vm(dmas, [3, 8, 13, 18, 23, 28])
        G.mems(rd[6:], 0, 23)
        for k in range(4): G.put(24 + k, f"v_add_u32 v{vVr[k]}, {sDK}, v{vVr[k]}")
        for k, a in enumerate(advs): G.put(30 + k, a)
        G.put(33, tail)
        p.ext(G.out())
    def dynwait(n, tag):
        p(f"s_add_u32 {sT0}, {sSk}, {n}\ns_cmp_le_u32 {sI}, {sT0}\ns_waitcnt vmcnt(24)\ns_cbranch_scc1 L_dw{tag}\ns_waitcnt vmcnt(12)\nL_dw{tag}:")
    p(f"s_mov_b32 {sT2}, {2*SLOT}")
    def windowed(g, n=OPT["win"]): return [x[:-1] + [f"s_waitcnt vmcnt({n})", x[-1]] for x in g] if n else g
    D = OPT["dist"]
    nxt_it = [f"s_add_u32 {sI}, {sI}, 1", f"s_cmp_lg_u32 {sI}, {OPT['codeit']}"]
    sBig, sRep, sFt = "s3", "s57", "s58"
    if OPT["fair2"]:
        p(f"s_lshl_b32 {sRep}, {sB}, 1\ns_add_u32 {sRep}, {sRep}, 1\ns_bitcmp1_b32 {(1 << OPT['fj']) | 1}, {sJ}\ns_cselect_b32 {sRep}, {sRep}, 99")
        p(f"s_mul_i32 {sFt}, {sW}, {OPT['fd']}\ns_add_u32 {sFt}, {sFt}, {OPT['fc'] - (3 * OPT['fd'] + 1) // 2}\ns_lshl_b32 {sBig}, {sW}, 2\ns_and_b32 {sBig}, {sBig}, 4")
        p(f"v_and_b32 {t0}, 1, {l}\nv_mul_u32_u24 {t0}, {OPT['fj']}, {t0}\nv_bfe_u32 {t1}, {l}, 1, 2\nv_lshl_add_u32 {t0}, {t1}, 2, {t0}\nv_lshrrev_b32 {t1}, 3, {l}")
        p(f"v_lshl_add_u32 {t0}, {t1}, 7, {t0}\nv_lshlrev_b32 v247, {OPT['fs']}, {t0}\ns_mov_b32 s{sFA+2}, {256 << OPT['fs']}")
    if OPT["k0"]:
        assert D == 3 and OPT["skip0"] > 0
        p(f"s_mov_b32 {sDV}, 12288"); kstep(dma_v(), adv_v(), None)
    p("L_a:")
    if OPT["tskip"]:
        assert D == 3 and OPT["k0"] and OPT["late"] and 0 < OPT["win"] <= 11 and OPT["skip0"] + OPT["skipn"] <= 13
        p(f"s_cmp_eq_u32 {sI}, 14\ns_cbranch_scc1 L_ae")
        mid = lambda t: None
        if OPT["fair2"]:
            p(f"s_bitcmp1_b32 {sI}, 0\ns_cbranch_scc1 L_f0")
            p(f"s_waitcnt vmcnt(6)\nv_cmp_lt_u32 vcc, 0xffff, v{vIn}\ns_bcnt1_i32_b32 {sT0}, vcc_lo\ns_cmp_gt_u32 {sT0}, {sFt}\ns_cselect_b32 {sBig}, 4, 0\ns_branch L_f9")
            p(f"L_f0:\ns_cmp_lg_u32 {sI}, {sRep}\ns_cbranch_scc1 L_f9")
            if OPT["fwr"]: p.ext(publish(0x10000))
            p("L_f9:")
            mid = lambda t: p(f"s_bitcmp0_b32 {sI}, 0\ns_cbranch_scc1 L_fm{t}\nbuffer_load_dword v{vIn}, v247, {srd(sFA)}, 0 offen sc1\nv_add_u32 v247, {16 << OPT['fs']}, v247\nL_fm{t}:")
        p(f"s_cmp_eq_u32 {sI}, {sSk}\ns_cselect_b32 {sRet}, 3, {sBig if OPT['fair2'] else 0}\ns_cbranch_scc1 L_sk")
        if OPT["fair2"]:
            p(f"s_cmp_eq_u32 {sBig}, 0\ns_cbranch_scc1 L_a0")
            kstep(windowed(dma_v(), OPT["wbig"]), adv_v(), 4); mid("b")
            vstep(windowed(dma_k(), OPT["wbig"]), adv_k(), nxt_it)
            p("s_branch L_a2\nL_a0:")
        kstep(windowed(dma_v()), adv_v(), 0); mid("a")
        vstep(windowed(dma_k()), adv_k(), nxt_it)
        p("L_a2:")
    elif D == 3:
        p(f"s_cmp_eq_u32 {sI}, {sSk}\ns_cselect_b32 {sDV}, 0, 12288\ns_cselect_b32 s{sK+2}, 0, 393216\ns_cselect_b32 s{sV+2}, 0, 393216")
        def body(n, n2, ret, tg):
            if OPT["late"]: p(f"s_cmp_eq_u32 {sI}, 14\ns_cbranch_scc1 L_ae")
            dynwait(2, "k" + tg)
            kstep(windowed(dma_v(), n), adv_v(sDV), ret)
            if not OPT["late"]: p(f"s_cmp_eq_u32 {sI}, 14\ns_cbranch_scc1 L_ae")
            dynwait(1, "v" + tg)
            vstep(windowed(dma_k(), n2), adv_k(sDV), nxt_it)
        if OPT["fair"]:
            if OPT["fper"] > 1: p(f"s_and_b32 {sT0}, {sI}, {OPT['fper']-1} ; scc-ok\ns_cbranch_scc1 L_f1")
            p(f"v_readfirstlane_b32 {sT0}, v{vIn}\nv_mov_b32 v{vIn}, 1\ns_cmp_gt_i32 {sT0}, {sFt}\ns_cselect_b32 {sRet}, 3, 0\ns_add_u32 {sFt}, {sFt}, 32")
            p(f"buffer_atomic_add v{vIn}, v247, {srd(sFA)}, {sFo} offen sc0 sc1")
            p(f"L_f1:\ns_cmp_eq_u32 {sRet}, 0\ns_cbranch_scc1 L_a0")
            body(OPT["wbig"], OPT["wbig"], 3, "b")
            p("s_branch L_a2\nL_a0:")
        body(OPT["win"], OPT["win2"] or OPT["win"], 0, "")
        p("L_a2:")
    elif D == 5:
        p("s_waitcnt vmcnt(24)")
        kstep(windowed(dma_v()), adv_v(), 0)
        p(f"s_cmp_eq_u32 {sI}, 13\ns_cbranch_scc1 L_ae\ns_waitcnt vmcnt(24)")
        vstep(windowed(dma_k()), adv_k(), nxt_it)
    else:
        p(f"s_cmp_eq_u32 {sI}, 14\ns_cbranch_scc1 L_ae\ns_waitcnt vmcnt(18)")
        kstep(windowed(dma_k()), adv_k(), 0)
        p("s_waitcnt vmcnt(18)")
        vstep(windowed(dma_v()), adv_v(), nxt_it)
    p("s_cbranch_scc1 L_a")
    def ids():
        p(f"v_and_b32 {t1}, 1, {l}\nv_add_u32 {t1}, 1, {t1}\nv_xor_b32 {t1}, {sHP}, {t1}\nv_lshlrev_b32 {t1}, {OPT['fs']}, {t1}")
        p(f"buffer_load_dword v{vCo}, {t1}, {srd(sFG)}, 0 offen sc1")
    if OPT["code"] & 2: p(f"global_load_dword v{vCd}, v{vCo}, s[26:27]")
    if OPT["idm"]: ids()
    p("s_branch L_a")
    if OPT["tskip"]:
        p("L_sk:")
        kstep([], [], 3); mid("c"); vstep([], [], nxt_it)
        if OPT["fair2"]: p("s_waitcnt vmcnt(0)")
        p("s_branch L_a2")
    p("L_slow:")
    p.ext(slow_path())
    p(f"s_cmp_eq_u32 {sRet}, 0\ns_cbranch_scc1 L_ret0")
    if D != 3 or OPT["late"]: p(f"s_cmp_eq_u32 {sRet}, 2\ns_cbranch_scc1 L_ret2")
    if OPT["fair2"]: p(f"s_cmp_eq_u32 {sRet}, 4\ns_cbranch_scc1 L_ret4")
    if OPT["fair"] or OPT["tskip"]: p(f"s_cmp_eq_u32 {sRet}, 3\ns_cbranch_scc1 L_ret3")
    if OPT["fn"] and not OPT["post"]:
        for qb in range(3): p.ext(probs(qb, False, vKeep[qb], False))
    p("s_branch L_ret1")
    p("L_ae:")
    if OPT["late"]:
        p(f"s_waitcnt vmcnt(12)\ns_mov_b32 {sRet}, 2"); kstep(dma_v(), [], 2)
    stamp(p)
    vm = VM([f"t{t}" for t in range(32 - D, 32) for _ in range(6)])
    def w3touch():
        nr = OPT["wnr"]
        p(f"s_lshr_b32 {sT0}, {sB}, 1\ns_lshl_b32 {sT0}, {sT0}, 2\ns_add_u32 {sT0}, {sT0}, {sW}\ns_mul_i32 {sT0}, {sT0}, {nr*1280}")
        p(f"s_and_b32 {sT1}, {sB}, 1\ns_xor_b32 {sT3}, {sJ}, 3\ns_add_u32 {sT1}, {sT1}, {sT3}\ns_add_u32 {sT1}, {sT1}, 3\ns_cmp_ge_u32 {sT1}, 5\ns_cselect_b32 {sT3}, 5, 0\ns_sub_u32 {sT1}, {sT1}, {sT3}")
        p(f"s_lshl_b32 {sT1}, {sT1}, 8\ns_add_u32 {sT0}, {sT0}, {sT1}\ns_add_u32 {sT0}, {sT0}, {(384-16*nr)*1280}")
        p(f"v_min_u32 {t0}, {2*nr-1}, {l}\nv_lshrrev_b32 {t1}, 1, {t0}\nv_and_b32 {t0}, 1, {t0}\nv_mul_u32_u24 {t1}, 1280, {t1}\nv_lshl_add_u32 {t0}, {t0}, 7, {t1}")
        p(f"buffer_load_dword v{vCd}, {t0}, {srd(sWO)}, {sT0} offen"); vm.issue("touch")
        if not OPT["idm"]: ids(); vm.issue("ids")
    if OPT["w3"] and not OPT["tl"]: w3touch()
    nw = 0
    for t in range(32 - D, 31):
        p(vm.wait(f"t{t}"))
        g = []
        if nw < 3 and not (OPT["late"] >= 2 and t == 29):
            vm.issue(f"w{nw}", 6); g = windowed(dma_wo(nw, nw), OPT["wwin"]); nw += 1
        if t & 1: vstep(g, [])
        else:
            r = 1 if t == 30 else 2
            stamp(p, "x")
            p(f"s_mov_b32 {sRet}, {r}\ns_mov_b32 {sT2}, {2*SLOT}"); kstep(g, [], r)
    stamp(p, "x")
    if OPT["w3"] and OPT["tl"]: w3touch()
    if OPT["post"]:
        p.ext(xlane(vL, "v_add_f32", vTm))
        for qb in range(3): p(f"v_rcp_f32 v{vAl[qb]}, v{vL[qb]}")
    elif OPT["fn"]:
        p.ext(xlane(vL, "v_add_f32", vTm))
        for qb in range(3): p(f"v_rcp_f32 v{vAl[qb]}, v{vL[qb]}")
        for qb in range(3):
            y = vKeep[qb]
            for r in y: p(f"v_mul_f32 v{r}, v{vAl[qb]}, v{r}")
            for i in range(4): p(f"v_cvt_pk_bf16_f32 v{PP(qb)+i}, v{y[2*i]}, v{y[2*i+1]}")
    else:
        p.ext(xlane(vL, "v_add_f32"))
        for qb in range(3): p(f"v_rcp_f32 v{vAl[qb]}, v{vL[qb]}\nv_log_f32 v{vTm[qb]}, v{vL[qb]}")
        for qb in range(3): p(f"v_add_f32 v{vMc[qb]}, v{vMc[qb]}, v{vTm[qb]}")
        for qb in range(3): p.ext([x for x in probs(qb, False) if not x.startswith("v_add")])
    if OPT["late"] >= 2:
        vm.issue("w1", 6); nw = 2
        p.ext(weave(rescale(), dma_wo(1, 1), *{2: (0, 72), 3: (40, 72)}[OPT["late"]]))
    elif OPT["w2n"] and nw < 3:
        vm.issue("w2", 6); nw = 3
        p.ext(weave(rescale(), dma_wo(2, 2), *{1: (0, 72), 2: (40, 72), 3: (71, 72)}[OPT["w2n"]]))
    elif not OPT["post"]: p.ext(rescale())
    p(f"s_mul_i32 {sT0}, {sG}, {GRP}"); mk(sPG, pWS, sT0, 15 * PART + SL1 + 24576)
    mk(sOUT, pOUT, 0, 1966080)
    stamp(p, "x")
    p(vm.wait("t31")); p("s_barrier")
    stamp(p)
    AB = [144, 96]
    def AF(sig, tp, nu): return AB[sig & 1] + 8 * tp + 4 * nu
    def reads_wo(sig, slot):
        g = []
        for tp in range(3):
            for nu in range(2):
                r = AF(sig, tp, nu); o = (slot & 1) * SLOT + 32 * tp * 256
                g.append(f"ds_read_b64_tr_b16 v[{r}:{r+1}], v{vOr[nu][slot>>1]} offset:{o}")
                g.append(f"ds_read_b64_tr_b16 v[{r+2}:{r+3}], v{vOr[nu][slot>>1]} offset:{o+4096}")
        return g
    def o_out(tp):
        g = []
        for qb in range(3):
            a, b = ACC(2 * tp, qb), ACC(2 * tp + 1, qb)
            if OPT["post"] and OPT["pk"]: g += [f"v_pk_mul_f32 v[{r}:{r+1}], v[{r}:{r+1}], v[{vAl[qb]}:{vAl[qb]+1}] op_sel_hi:[1,0]" for r in (a, a + 2, b, b + 2)]
            elif OPT["post"]: g += [f"v_mul_f32 v{r+i}, v{vAl[qb]}, v{r+i}" for r in (a, b) for i in range(4)]
            g += [f"v_cvt_pk_bf16_f32 v{a}, v{a}, v{a+1}", f"v_cvt_pk_bf16_f32 v{a+1}, v{a+2}, v{a+3}",
                  f"v_cvt_pk_bf16_f32 v{a+2}, v{b}, v{b+1}", f"v_cvt_pk_bf16_f32 v{a+3}, v{b+2}, v{b+3}",
                  f"ds_write_b128 v{vOw}, {v4(a)} offset:{tp*12288+qb*1024}"]
        return g
    rd = reads_t(lambda t: FA(1, t))
    p.ext(rd[:10])
    G = Gaps(pv_mfmas())
    G.mems(rd[10:], 0, 10)
    if nw < 3 and not OPT["w2l"]:
        vm.issue("w2", 6)
        G.vm(dma_wo(2, 2), [3, 9, 15, 21, 27, 33])
    if OPT["post"] == 2:
        for tp in range(4): G.spread(o_out(tp), 8 + 7 * tp, 15 + 7 * tp)
    else:
        for tp in range(4): G.spread(o_out(tp), 10 + 6 * tp, 16 + 6 * tp + (2 if tp == 3 else 0))
    p.ext(G.out())
    stamp(p, "x")
    p(vm.wait("w0")); p("s_barrier")
    stamp(p, "x")
    if nw < 3 and OPT["w2l"]:
        vm.issue("w2", 6)
        p.ext(weave2(o_out(4) + o_out(5), [(reads_wo(0, 0), 0, 30), (dma_wo(2, 2), 2, 30)]))
    else: p.ext(weave(o_out(4) + o_out(5), reads_wo(0, 0)))
    stamp(p, "x")
    p("; vmq " + " ".join(f"{t}*1" for t in vm.q))
    tag = lambda g, t: g[:-1] + [g[-1] + f" ; vm={t}"]
    def BF(kq, tp, q):
        f = (kq * 3 + tp) * 6 + q
        return a4(4 * f) if f < 64 else v4(168 + 4 * (f - 64))
    def reads_b(k): return [f"ds_read_b128 {BF(k//3, k%3, q)}, v{vBr[k//3]} offset:{(k%3)*12288+q*1024}" for q in range(6)] if k < 12 else []
    def OA(ci, q, nu): return 48 * (ci & 1) + 8 * q + 4 * nu
    sBuf = ["s57", "s58", "s59", "s60", "s61"]
    sPf = ["s64", "s65"]
    sRo = ["s66", "s67"]; sRq = ["s68", "s62"]
    def out1(ci, q):
        a = OA(ci, q, 0)
        g = [f"v_cvt_pk_bf16_f32 v{a+i}, v{a+2*i}, v{a+2*i+1}" for i in range(4)]
        return g + [f"buffer_store_dwordx4 {v4(a)}, v{vPs[q//3]}, {srd(sPG)}, {sBuf[ci]} offen offset:{1024*(q%3)} {OPT['gfl'] if ci < 3 and not OPT['thru'] >> ci & 1 else 'sc1'} ; vm=st{ci}"]
    vZ, vSel, vRb, vOb, vRo, vOo = 200, 224, 221, 222, 223, 214
    def xload(n, q): return [f"buffer_load_dwordx4 {v4(120+4*q)}, v{vPs[q//3]}, {srd(sPG)}, {sBuf[2+n]} offen offset:{1024*(q%3)} {OPT['xfl']} ; vm=x{n}_{q}"]
    def xadd(n, q): return [f"s_waitcnt vmcnt(@x{n}_{q})"] + [f"{M16} {v4(OA(0, q, nu))}, {v4(vZ+2-2*nu)}, {v4(120+4*q)}, " + ("0" if n == 1 else v4(OA(0, q, nu))) for nu in range(2)]
    def setup0():
        g = [[f"s_mul_i32 {sBuf[0]}, {sHP}, {PART}", f"s_add_u32 {sBuf[1]}, {sBuf[0]}, {SL1}", f"s_xor_b32 {sT1}, {sHP}, 1"],
             [f"s_mul_i32 {sBuf[2]}, {sT1}, {PART}", f"s_add_u32 {sBuf[3]}, {sBuf[2]}, {SL1}", f"s_lshl_b32 {sPf[0]}, {sT1}, {OPT['fs']}"],
             [f"s_xor_b32 {sT1}, {sHP}, 3", f"s_mul_i32 {sBuf[4]}, {sT1}, {PART}"], [f"s_xor_b32 {sT1}, {sHP}, 2", f"s_lshl_b32 {sPf[1]}, {sT1}, {OPT['fs']}"]]
        return g
    def rsetup4():
        g = [[f"s_mul_i32 {sT1}, {sHP}, 3", f"s_add_u32 {sT1}, {sT1}, {sW}"],
             [f"s_cmp_ge_u32 {sT1}, 24", f"s_cselect_b32 {sRo[0]}, {SL1}, 0", f"s_cselect_b32 {sRo[1]}, 24, 0"],
             [f"s_sub_u32 {sT1}, {sT1}, {sRo[1]}", f"s_and_b32 {sT3}, {sT1}, 1", f"s_lshr_b32 {sT1}, {sT1}, 1"],
             [f"s_lshl_b32 {sRq[0]}, {sT3}, 7", f"s_mul_i32 {sT3}, {sT3}, 12288", f"s_add_u32 {sRo[0]}, {sRo[0]}, {sT3}"],
             [f"s_lshr_b32 {sT3}, {sT1}, 1", f"s_mul_i32 {sT3}, {sT3}, 768", f"s_add_u32 {sRo[0]}, {sRo[0]}, {sT3}"],
             [f"s_lshl_b32 {sT3}, {sT1}, 7", f"s_add_u32 {sRo[0]}, {sRo[0]}, {sT3}", f"s_mul_i32 {sT3}, {sB}, 12"],
             [f"s_add_u32 {sT1}, {sT1}, {sT3}", f"s_mul_i32 {sT1}, {sT1}, {8*2560}", f"s_add_u32 {sRq[0]}, {sRq[0]}, {sT1}"],
             [f"s_mul_i32 {sT1}, {sBR}, 1280", f"s_add_u32 {sRq[0]}, {sRq[0]}, {sT1}"]]
        v = [f"v_lshrrev_b32 {t0}, 4, {l}", f"v_and_b32 {t1}, 7, {l}", f"v_bfe_u32 {t3}, {l}, 3, 1", f"v_mul_u32_u24 {t2}, 6144, {t3}", f"v_lshl_add_u32 {t2}, {t0}, 8, {t2}",
             f"v_lshl_add_u32 {t2}, {t1}, 4, {t2}", f"v_add_u32 v{vRo}, {sRo[0]}, {t2}",
             f"v_mul_u32_u24 {t2}, 2560, {t1}", f"v_lshl_add_u32 {t2}, {t3}, 6, {t2}", f"v_lshl_add_u32 {t2}, {t0}, 4, {t2}", f"v_add_u32 v{vOo}, {sRq[0]}, {t2}",
             f"v_and_b32 {t3}, 1, {l}", f"v_lshlrev_b32 {t3}, 4, {t3}", f"v_mov_b32 {t2}, 0x3f80", f"v_lshlrev_b32 {t2}, {t3}, {t2}", f"v_bfe_u32 {t1}, {l}, 1, 3", f"v_lshlrev_b32 {t0}, 1, {t0}",
             f"v_cmp_eq_u32 vcc, {t0}, {t1}", f"v_add_u32 {t0}, 1, {t0}", f"v_cndmask_b32 v{vZ+2}, 0, {t2}, vcc",
             f"v_cmp_eq_u32 vcc, {t0}, {t1}", f"v_mov_b32 v{vZ}, 0", f"v_cndmask_b32 v{vZ+3}, 0, {t2}, vcc",
             f"v_mov_b32 v{vZ+1}, 0", f"v_mov_b32 v{vZ+4}, 0", f"v_mov_b32 v{vZ+5}, 0"]
        return g, v
    def rsetup():
        if OPT["x4"]: return rsetup4()
        g = []
        g.append([f"s_mul_i32 {sDV}, {sB}, {96*2560}", f"s_mul_i32 {sT1}, {sBR}, 1280", f"s_add_u32 {sDV}, {sDV}, {sT1}"])
        g.append([f"s_lshl_b32 {sT1}, {sW}, 6", f"s_add_u32 {sDV}, {sDV}, {sT1}"])
        for r in range(2):
            g.append([f"s_add_u32 {sT1}, {sW}, {2*r}", f"s_lshl2_add_u32 {sT1}, {sT1}, {sHP}", f"s_and_b32 {sT1}, {sT1}, 15"])
            g.append([f"s_mul_i32 {sRq[r]}, {sT1}, {8*2560}", f"s_lshr_b32 {sT3}, {sT1}, 1", f"s_mul_i32 {sT3}, {sT3}, 768"])
            g.append([f"s_lshl_b32 {sRo[r]}, {sT1}, 7", f"s_add_u32 {sRo[r]}, {sRo[r]}, {sT3}", f"s_add_u32 {sRo[r]}, {sRo[r]}, {SL1*r}"])
            g.append([f"s_cmp_lt_u32 {sT1}, 12", f"s_cselect_b32 {sRo[r]}, {sRo[r]}, 0x40000000", f"s_cselect_b32 {sRq[r]}, {sRq[r]}, 0x40000000"])
        v = [f"v_lshrrev_b32 {t0}, 4, {l}", f"v_and_b32 {t1}, 15, {l}", f"v_lshlrev_b32 {t2}, 8, {t0}", f"v_lshl_add_u32 {t2}, {t1}, 3, {t2}", f"v_add_u32 v{vRb}, {sW6}, {t2}",
             f"v_lshrrev_b32 {t2}, 1, {t1}", f"v_mul_u32_u24 {t2}, 2560, {t2}", f"v_lshl_add_u32 {t2}, {t0}, 3, {t2}", f"v_and_b32 {t3}, 1, {l}", f"v_lshl_add_u32 {t2}, {t3}, 5, {t2}",
             f"v_add_u32 v{vOb}, {sDV}, {t2}",
             f"v_lshlrev_b32 {t3}, 4, {t3}", f"v_mov_b32 {t2}, 0x3f80", f"v_lshlrev_b32 {t2}, {t3}, {t2}", f"v_lshrrev_b32 {t1}, 1, {t1}", f"v_lshlrev_b32 {t0}, 1, {t0}",
             [f"v_cmp_eq_u32 vcc, {t0}, {t1}", f"v_cndmask_b32 v{vSel}, 0, {t2}, vcc"], f"v_add_u32 {t0}, 1, {t0}",
             [f"v_cmp_eq_u32 vcc, {t0}, {t1}", f"v_cndmask_b32 v{vSel+1}, 0, {t2}, vcc"], f"v_mov_b32 v{vSel+2}, v{vSel}", f"v_mov_b32 v{vSel+3}, v{vSel+1}",
             f"v_mov_b32 v{vZ}, 0", f"v_mov_b32 v{vZ+1}, 0", f"v_mov_b32 v{vZ+2}, v{vSel}", f"v_mov_b32 v{vZ+3}, v{vSel+1}", f"v_mov_b32 v{vZ+4}, 0", f"v_mov_b32 v{vZ+5}, 0"]
        return g, v
    def check1(n, load):
        p(f"L_c{n}:\nv_readfirstlane_b32 {sT1}, v{vIn}\ns_and_b32 {sT1}, {sT1}, 0xff\ns_cmp_ge_u32 {sT1}, {n}\ns_cbranch_scc0 L_s{n}\nL_k{n}:"); spin(n, load)
    ld_peer = lambda n: f"buffer_load_dword v{vIn}, off, {srd(sFG)}, {sPf[n == 3]} sc1"
    ld_all = f"buffer_load_dword v{vIn}, v{vFo}, {srd(sFG)}, 0 offen {OPT['pfl']}"
    PUB = {int(x): k + 1 for k, x in enumerate(str(OPT["pubs"]).split(","))}
    if OPT["sp"]: PUB[18] = 4
    POL = {int(x): k + 1 for k, x in enumerate(str(OPT["pols"]).split(","))}
    ADD = {int(x): k for k, x in enumerate(str(OPT["adds"]).split(","))}
    slot_of = {0: 0, 1: 1, 2: 2}
    free = []; nxt = 3; pend = []
    sCn = "s88"
    p(f"s_mov_b32 {sCnt}, 0")
    for sig in range(20):
        ci, kq = divmod(sig, 4)
        assert not any(t == sig + 1 for t, _ in pend)
        pub = PUB.get(sig, 0); chk = POL.get(sig - 1, 0)
        need = [f"w{sig+1}"]
        if pub: need.append(f"st{pub-1}")
        if sig == 2: need.append("ids")
        if 0 < pub < 4:
            p(f"s_cmp_eq_u32 {sLoc}, 0\ns_waitcnt lgkmcnt(0)\ns_cbranch_scc1 L_f{pub}\nL_g{pub}:")
            side.append(f"L_f{pub}:\n" + "".join(out1(pub - 1, q)[-1].split(";")[0] + " sc1 ; side\n" for q in range(6) if "sc1" not in out1(pub - 1, q)[-1]) + f"s_waitcnt vmcnt(0)\ns_barrier\n"
                        + " ; side\n".join(publish(pub)) + f" ; side\ns_branch L_h{pub}")
        if chk: need.append(f"poll{chk}")
        if sig < 19 or pub:
            p(f"s_waitcnt vmcnt(@{','.join(need)}) lgkmcnt(0)"); p("s_barrier")
        if 0 < pub < 4: p(f"L_h{pub}:")
        if sig == 0: stamp(p)
        elif kq == 0 and "c" in OPT["fine"]: stamp(p)
        else: stamp(p, "o")
        ops = []
        if chk: check1(chk, ld_peer(chk))
        if pub and not (OPT["plast"] and chk): ops.append(publish(pub, OPT['ffl'] if pub < 4 else 'sc1'))
        G = Gaps([f"{M16} {v4(OA(ci, q, nu))}, {v4(AF(sig, tp, nu))}, {BF(kq, tp, q)}, " + ("0" if kq == 0 and tp == 0 and ci < 4 else v4(OA(ci, q, nu)))
                  for tp, q, nu in ([(tp, q, nu) for q in range(6) for tp in range(3) for nu in range(2)] if sig == 19 else
                                    [(tp, q, nu) for tp in range(3) for nu in range(2) for q in (range(5, -1, -1) if nu else range(6))] if OPT["snake"] & 4 and sig > 3 else
                                    [(tp, q, nu ^ (q & 1 if OPT["snake"] & 2 else 0)) for tp in range(3) for q in range(6) for nu in range(2)])])
        if sig == 0: p.ext(reads_b(0))
        free.append(slot_of[sig])
        if sig == OPT["bfree"]: free += [3, 4, 5]
        while free and nxt < 20 and nxt - sig <= OPT["dmax"] + 1:
            slot_of[nxt] = free.pop(0); pend += [(nxt, tag(g, f"w{nxt}")) for g in dma_wo(nxt, slot_of[nxt])]; nxt += 1
        PT = {int(x): k for k, x in enumerate(str(OPT["pt"]).split(",")) if x}
        if sig in PT:
            ops.append([f"v_min_u32 {t4}, 47, {l}", f"v_lshl_add_u32 {t4}, {t4}, 7, {sW6}", f"buffer_load_dword v{vCd}, {t4}, {srd(sPG)}, {sBuf[PT[sig]]} offen"])
        if sig in POL: ops.append([ld_peer(POL[sig]) + f" ; vm=poll{POL[sig]}"])
        if chk: ops += [xload(chk - 1, q) for q in range(6)]
        if pub and OPT["plast"] and chk: ops.append(publish(pub, OPT['ffl'] if pub < 4 else 'sc1'))
        WS = [int(x) for x in str(OPT["ws"]).split(",")]
        sts = [out1(ci - 1, q) for q in range(6)] if sig in WS else []
        if sts: assert WS.index(sig) == ci - 1
        room = 9 - len(ops) - len(sts)
        if sig - 2 in POL and POL[sig - 2] < 3: room = min(room, OPT["cap"])
        if chk and chk < 3 and OPT["xl"]:
            k_ = min(len(pend), room); ops = [g for _, g in pend[:k_]] + ops; pend = pend[k_:]; room = 0
        nd = min(len(pend), max(room, sum(1 for t, _ in pend if t <= sig + 2)))
        ops += [g for _, g in pend[:nd]]; pend = pend[nd:]
        n = len(ops) + len(sts)
        slots = [1 + 5 * k for k in range(7)] if n <= 7 else DS9 if n <= 9 else list(range(0, 36, 3))
        if not ops: slots = slots[1:]
        G.vm(ops, slots)
        for k, g in enumerate(sts):
            at = slots[len(ops) + k]
            G.spread(g[:-1], at - 4 if n <= 9 else at - 3, at); G.put(at, g[-1])
        if sig in ADD:
            for q in range(6): G.put((1 + 6 * q) if sig == 19 else (OPT['a0'] + OPT['astep'] * q), xadd(ADD[sig], q))
        if sig == 19:
            for q in range(4): G.spread(out1(4, q), 10 + 6 * q, 16 + 6 * q)
        if sig == 0: G.spread(setup0(), 2, 30)
        if sig == 2:
            G.put(13, f"v_and_b32 v{vCo}, 0xff00, v{vCo}"); G.put(17, f"v_cmp_eq_u32 vcc, {sId}, v{vCo}")
            G.put(22, [f"s_cmp_eq_u32 vcc_lo, -1", f"s_cselect_b32 {sLoc}, {0 if OPT['forcefb'] else 1}, 0"])
        if sig in (5, 6, 7, 9):
            sg, vg = rsetup()
            G.spread({5: sg, 6: vg[:11], 7: vg[11:20], 9: vg[20:]}[sig], 2, 34)
        if sig == 19 and OPT["arr"]: G.put(33, [f"s_mov_b32 {sCn}, 0", ld_all + " ; vm=poll4"])
        ra = reads_wo(sig + 1, slot_of[sig + 1]) if sig < 19 else []
        if OPT["bfree"] < 4 and sig < OPT["bfree"]:
            allb = [x for k in range(1, 12) for x in reads_b(k)]
            n_ = len(allb) // OPT["bfree"]
            mine = allb[sig * n_:(sig + 1) * n_]
            G.mems(mine[:12] + ra + mine[12:], 0, 32)
        elif sig < 4 and OPT["bfree"] == 4:
            for tp in range(3): G.mems(reads_b(3 * sig + tp + 1) + ra[4*tp:4*tp+4], 12 * tp, 12 * tp + (12 if tp < 2 else 8))
        else: G.mems(ra, 0, 30)
        p.ext(G.out())
    for q in range(4, 6): p.ext(out1(4, q))
    stamp(p)
    sCol = ["s57", "s58", "s59", "s60"]
    for jj in range(4):
        p(f"s_add_u32 {sT0}, {sCrot}, {jj^3}\ns_cmp_ge_u32 {sT0}, 5\ns_cselect_b32 {sT3}, 5, 0\ns_sub_u32 {sT0}, {sT0}, {sT3}\ns_lshl_b32 {sCol[jj]}, {sT0}, 8")
    order = [jj + 4 * x for jj in range(4) for x in range(4)]
    def rloads(r, sfx=""):
        g = [f"v_add_u32 v{vRo}, {sRo[r]}, v{vRb}"]
        for k, h in enumerate(order):
            d = 48 + 32 * r + 2 * k
            g += [f"s_mov_b32 {sT1}, {h*PART}", f"buffer_load_dwordx2 v[{d}:{d+1}], v{vRo}, {srd(sPG)}, {sT1} offen {OPT['pld']} ; vm=r{r}_{k>>1}"]
        return g
    def check(n): p(f"L_c{n}:\nv_and_b32 v{vIn}, 0xff, v{vIn}\nv_cmp_le_u32 vcc, {n}, v{vIn}\ns_cmp_eq_u32 vcc_lo, 0xffff\ns_cbranch_scc0 L_s{n}\nL_k{n}:")
    if OPT["arr"]:
        sTodo, sFi, vLa, vMk, vRo2 = "s64", "s65", 206, 207, 208
        p(f"v_add_u32 v{vRo}, {sRo[0]}, v{vRb}\nv_add_u32 v{vRo2}, {sRo[1]}, v{vRb}\nv_mov_b32 v{vLa}, {S[slot_of[18]]}\ns_mov_b32 {sTodo}, 0x1111\ns_mov_b32 {sFi}, 1")
        if OPT["arr"] == 1: p("s_waitcnt vmcnt(@st4)")
        else: p("s_waitcnt vmcnt(@poll4)")
        p("L_r:")
        p(f"s_cmp_lg_u32 {sW}, 1\ns_cbranch_scc1 L_r1")
        p(f"v_and_b32 v{vIn}, 0xff, v{vIn}\nv_cmp_le_u32 vcc, 5, v{vIn}\nv_mov_b32 v{vMk}, vcc_lo\nds_write_b32 v{vLa}, v{vMk}\ns_waitcnt lgkmcnt(0)")
        p("L_r1:\ns_barrier")
        if OPT["arr"] == 1:
            p(f"s_cmp_eq_u32 {sFi}, 0\ns_cbranch_scc1 L_r2\n" + " ; side\n".join(publish(5)) + f" ; side\ns_mov_b32 {sFi}, 0\nL_r2:")
        p(f"ds_read_b32 v{vMk}, v{vLa}\nv_xor_b32 v{vLa}, 4, v{vLa}\nv_readfirstlane_b32 {sT0}, v{vMk}")
        p(f"s_lshr_b32 {sT1}, {sT0}, 1\ns_and_b32 {sT0}, {sT0}, {sT1}\ns_lshr_b32 {sT1}, {sT0}, 2\ns_and_b32 {sT0}, {sT0}, {sT1}\ns_and_b32 {sT0}, {sT0}, {sTodo}\ns_xor_b32 {sTodo}, {sTodo}, {sT0}")
        for x in range(4):
            p(f"s_bitcmp0_b32 {sT0}, {4*x}\ns_cbranch_scc1 L_rx{x}")
            for jj in range(4):
                p(f"s_mov_b32 {sT1}, {(4*x+jj)*PART}")
                for r in range(2):
                    d = 48 + 32 * r + 2 * (4 * jj + x)
                    p(f"buffer_load_dwordx2 v[{d}:{d+1}], v{vRo2 if r else vRo}, {srd(sPG)}, {sT1} offen {OPT['pld']} ; side")
            p(f"L_rx{x}:")
        p(f"s_cmp_eq_u32 {sTodo}, 0\ns_cbranch_scc1 L_re")
        p(f"s_add_u32 {sCn}, {sCn}, 1\ns_cmp_ge_u32 {sCn}, 200000\ns_cbranch_scc1 L_re")
        p(f"s_cmp_lg_u32 {sW}, 1\ns_cbranch_scc1 L_r1")
        if OPT["slp"]: p(f"s_sleep {OPT['slp']}")
        p(ld_all + " ; side\ns_waitcnt vmcnt(0)\ns_branch L_r")
        p("L_re:")
        stamp(p); stamp(p)
        p("s_waitcnt vmcnt(0)\n; vmq none*0")
    else:
        p("s_waitcnt vmcnt(@st4)\ns_barrier"); p.ext(publish(5))
        stamp(p)
        if OPT["w0p"]: p(f"s_cmp_lg_u32 {sW}, 1\ns_cbranch_scc1 L_k5")
        p(ld_all + " ; side\ns_waitcnt vmcnt(0)")
        check(5); spin(5, ld_all)
        if OPT["w0p"]: p("s_barrier")
        stamp(p)
        if not OPT["x4"]: p.ext(rloads(1) + rloads(0))
    if OPT["x4"]:
        p(f"s_cmp_eq_u32 {sW}, 3\ns_cbranch_scc1 L_fin")
        for k, h in enumerate(order):
            p(f"s_mov_b32 {sT1}, {h*PART}\nbuffer_load_dwordx4 {v4(48+4*k)}, v{vRo}, {srd(sPG)}, {sT1} offen {OPT['pld']}")
        def add4(k, acc, first): return [f"{M16} {v4(acc+4*nu)}, {v4(vZ+2-2*nu)}, {v4(48+4*k)}, " + ("0" if first else v4(acc+4*nu)) for nu in range(2)]
        def out4(acc, so):
            g = [f"v_cvt_pk_bf16_f32 v{acc+i}, v{acc+2*i}, v{acc+2*i+1}" for i in range(4)]
            for op in ("v_permlane32_swap_b32", "v_permlane16_swap_b32"): g += [f"{op} v{acc}, v{acc+2}", f"{op} v{acc+1}, v{acc+3}"]
            return g + [f"buffer_store_dwordx4 {v4(acc)}, v{vOo}, {srd(sOUT)}, {so} offen {OPT['ost']}"]
        p(f"s_cmp_lg_u32 {sRo[1]}, 0\ns_cbranch_scc1 L_sp")
        nst = 0
        for k in range(16):
            p(f"s_waitcnt vmcnt({15-k+nst})"); p.ext(add4(k, 120 + 8 * (k >> 2), k % 4 == 0))
            if k % 4 == 1 and k > 4: p.ext(out4(120 + 8 * ((k >> 2) - 1), sCol[(k >> 2) - 1])); nst += 1
        p.ext(out4(144, sCol[3]))
        p("s_branch L_fin\nL_sp:")
        for k in range(16):
            p(f"s_waitcnt vmcnt({15-k})"); p.ext(add4(k, 120, k == 0))
        p.ext(out4(120, sCo[3]))
        p("L_fin:")
    else:
        def rout(acc, pk, so): return [f"v_cvt_pk_bf16_f32 v{pk}, v{acc}, v{acc+1}", f"v_cvt_pk_bf16_f32 v{pk+1}, v{acc+2}, v{acc+3}",
                                       f"buffer_store_dwordx2 v[{pk}:{pk+1}], v{vOo}, {srd(sOUT)}, {so} offen {OPT['ost']}"]
        for k in range(8): p(f"s_waitcnt vmcnt(@r1_{k})\n{M16} v[120:123], {v4(vSel)}, {v4(80+4*k)}, " + ("0" if k == 0 else "v[120:123]"))
        p(f"v_add_u32 v{vOo}, {sRq[1]}, v{vOb}"); p.ext(rout(120, 144, sCo[3]))
        for k in range(8): p(f"s_waitcnt vmcnt(@r0_{k})\n{M16} {v4(124+4*(k>>1))}, {v4(vSel)}, {v4(48+4*k)}, " + ("0" if k % 2 == 0 else v4(124+4*(k>>1))))
        p(f"v_add_u32 v{vOo}, {sRq[0]}, v{vOb}")
        for jj in range(4): p.ext(rout(124 + 4 * jj, 146 + 2 * jj, sCol[jj]))
    if OPT["stamps"] == 1:
        p("s_waitcnt vmcnt(0)")
        stamp(p)
        p(f"s_lshl_b32 {sT0}, s2, 2\ns_add_u32 {sT0}, {sT0}, {sW}\ns_lshl_b32 {sT0}, {sT0}, 9\ns_add_u32 {sT0}, {sT0}, {STAMP_OFF}")
        p(f"v_lshlrev_b32 v0, 2, v{vLn}\nv_add_u32 v0, {sT0}, v0")
        p(f"global_store_dword v0, v255, s[{pWS}:{pWS+1}]\nglobal_store_dword v0, v254, s[{pWS}:{pWS+1}] offset:256")
    p("L_exit:\ns_endpgm")
    for x in side: p(x)
    p("L_end:")
    p.resolve_vm()
    d = OPT["drop"]
    def keep(i):
        if "m" in d and i.kind == "mfma": return False
        if "w" in d and i.lds_dma and i.src & {("s", sWQ), ("s", sX), ("s", sWO)}: return False
        if "r" in d and i.kind == "ds": return False
        if "s" in d and i.wide_store: return False
        return True
    p.auto_lgkm(); p.auto_nop(); p.lint_scc()
    p.ins = [i if keep(i) else Ins("s_nop 0") for i in p.ins]
    return p

def build():
    ref = open(f"cdna_kernels/{NAME}.s.ref").read().split("\n")
    head = [l for l in ref if l.startswith(";") and "@launch" not in l]
    out = "\n".join(head) + "\n"
    out += f"; @launch grid=(256,1,1) block=(256,1,1) lds={LDS_BYTES}\n"
    out += '.amdgcn_target "amdgcn-amd-amdhsa--gfx950"\n.text\n'
    nm = NAME + "_kernel"
    out += f".globl {nm}\n.p2align 8\n.type {nm},@function\n" + kernel().text()
    out += f""".section .rodata,"a"
.p2align 6
.amdhsa_kernel {nm}
  .amdhsa_next_free_vgpr 512
  .amdhsa_next_free_sgpr 102
  .amdhsa_accum_offset 256
  .amdhsa_group_segment_fixed_size 0
  .amdhsa_kernarg_size 104
  .amdhsa_user_sgpr_count 2
  .amdhsa_user_sgpr_kernarg_segment_ptr 1
  .amdhsa_system_sgpr_workgroup_id_x 1
  .amdhsa_float_denorm_mode_32 3
.end_amdhsa_kernel
"""
    return out

if __name__ == "__main__":
    txt = build()
    open(sys.argv[1], "w").write(txt)
```

```python
import sys, struct, math
from asmlib import *

NAME = "concat_heads__gqa_block_cached__mha_block_cached__near_ridge"
OPT = dict(stamps=0, fw=128, fs=7, fine="", drop="", kv="nt", wq="", x="", wo="", pst="sc1", pld="sc1", kburst=1, vburst=5, spread=2, dmax=5, pubfrom=99, code=3, cend=1, codeit=10, ost="sc1 nt", thr=0x41000000, skip0=2, skipn=8, lazy=1, wotouch=99, wotn=3, epoch=1, w3=1, touch="", tfl="", win=5, kst="01", vst="56", dynq=1, eps="55", pre=1, delay=0, tst="", tt="7", dist=3, wwin=0, tl=1, mid=0, fn=1, w2l=1, pub4=18, r0=20, mode=3, slp=0, tk=0, ntk=3, early=1, wnr=6, win2=0, fair=0, wbig=7, fth=6, fper=1, ann=1, pubs="6,10,14", pols="9,13,17", adds="11,15,19", cap=9, bfree=3, krot=0, qlast=1, both=1, gfl="", xfl="sc1", fb=1, forcefb=0, fresh=0, lay=1, arr=0, idm=1, w2n=0, thru=0, post=0, pk=1, late=2, x4=1, k0=1, tskip=1, fair2=0, ox=0, xl=0, snake=3, est=0, fastp=1, wm=0, two=0, fc=8, fd=3, fj=3, fwr=1, pt="", ffl="", plast=1, sp=0, pfl="sc1", w0p=1, a0=13, astep=4, ws="4,8,12,16")
for a in sys.argv[2:]:
    k, v = a.split("=", 1)
    assert k in OPT, k
    OPT[k] = int(v) if v.lstrip("-").isdigit() else v

if OPT['two']: OPT['fs'] = 8
FB_ = 128 if OPT['two'] else 0
SLOT = 24576
S = [i * SLOT for i in range(6)]
LDS_BYTES = 6 * SLOT
PART = {0: 49152, 1: 24576, 2: 24576, 3: 49152 + 1024}[OPT['lay']]
SL1 = {0: 24576, 1: 256 * 24576, 2: 16 * 24576, 3: 24576}[OPT['lay']]
GRP = {0: 16 * PART, 1: 16 * PART, 2: 32 * PART, 3: 16 * PART}[OPT['lay']]
FLAG_OFF = 32 << 20
STAMP_OFF = 64 << 20

sX, sWQ, sK, sV, sWO, sP = 28, 32, 36, 40, 44, 48
sFL, sFG, sFA, sDG = 4, 8, 12, 16
sPG, sOUT = 28, 32
pOUT, pDBG, pWS = 20, 22, 24
def srd(b): return f"s[{b}:{b+3}]"
sW, sB, sHP, sBR, sC = "s52", "s53", "s54", "s55", "s56"
sWQo, sWQlim, sXo, sWQm, sXm, sRd, sI = "s57", "s58", "s59", "s60", "s61", "s62", "s63"
sKo, sVo, sKm, sVm, sDK, sDV = "s64", "s65", "s66", "s67", "s68", "s69"
sT0, sT1, sT2, sT3 = "s70", "s71", "s72", "s73"
sW6, sXd, sCrot, sKrot = "s74", "s75", "s76", "s77"
sCo = ["s78", "s79", "s80", "s81", "s82"]
sKq = ["s83", "s84", "s85", "s86"]
sJ, sSk, sG, sRet = "s87", "s88", "s89", "s90"
sThr = "s91"; sKV0 = "s101"; sKb, sVb, sBm = "s3", "s90", "s69"; sId, sStop, sLoc = "s0", "s1", "s1"
sE = ["s97", "s58"]; sTb = 98
sNeed, sTodo, sReady, sPrev, sCur, sFirst, sCnt, sOo = "s57", "s58", "s59", "s60", "s61", "s62", "s63", "s64"
sST, sSI = 92, "s96"
def ACC(t, qb): return (t * 3 + qb) * 4
def SS(kb, qb): return 144 + (kb * 3 + qb) * 4
def PP(qb): return 168 + qb * 4
vM = [180, 181, 182]; vL = [183, 184, 185]; vAl = [186, 188, 190]; vMx = [192, 193, 194]; vTm = [195, 196, 197]; vMc = [187, 189, 191]
vKs = list(range(200, 206)); vVs = [206, 207, 208]; vWs = [209, 210, 211]; vXs = [212, 213, 214]; vOs = [215, 216, 217, 218, 219, 220]
vKr = [221, 222]; vVr = [223, 224, 225, 226]; vXr = [227, 228]; vOr = [[229, 230, 231], [232, 233, 234]]; vOw = 235; vBr = [236, 237, 198, 199]; vPs = [238, 239]
vPt = vWs + vXs + vXr
vLn = 240; vFo = 241; vFv = 242; vF4 = 243; vIn = 244; vCo = 245; vCd = 246; T = list(range(248, 254))
def v4(r): return f"v[{r}:{r+3}]"
def a4(r): return f"a[{r}:{r+3}]"
def QF(ks, qb): return (ks * 3 + qb) * 4
def FA(p, t): return 72 + 48 * p + 4 * t
def FB(p, qb): return 168 + 12 * p + 4 * qb

M16 = "v_mfma_f32_16x16x32_bf16"

class VM:
    def __init__(self, q): self.q = list(q)
    def issue(self, tag, n=1): self.q += [tag] * n
    def wait(self, *tags):
        idx = max((k for k, t in enumerate(self.q) if t in tags), default=-1)
        n = len(self.q) - 1 - idx
        self.q = self.q[idx + 1:]
        assert n <= 63
        return f"s_waitcnt vmcnt({n})"
    def done(self, tag): return tag not in self.q

def stamp(p, cls=""):
    if OPT["stamps"] == 2:
        if not cls and not getattr(stamp, "done", 0):
            stamp.done = 1
            p(f"s_memrealtime s[{sST}:{sST+1}]\ns_lshl_b32 {sT0}, s2, 2\ns_add_u32 {sT0}, {sT0}, {sW}\ns_lshl_b32 {sT0}, {sT0}, 9\ns_add_u32 {sT0}, {sT0}, {STAMP_OFF}\ns_waitcnt lgkmcnt(0)")
            p(f"v_writelane_b32 v255, s{sST}, 0\nv_writelane_b32 v255, s{sST}, 1\nv_lshlrev_b32 v254, 2, v{vLn}\nv_add_u32 v254, {sT0}, v254\nglobal_store_dword v254, v255, s[{pWS}:{pWS+1}] sc1")
        return
    if OPT["stamps"] and (not cls or cls in OPT["fine"]):
        p(f"s_memrealtime s[{sST}:{sST+1}]\ns_memtime s[{sST+2}:{sST+3}]\ns_mov_b32 s100, m0\ns_mov_b32 m0, {sSI}\ns_add_u32 {sSI}, {sSI}, 1\ns_waitcnt lgkmcnt(0)")
        p(f"v_writelane_b32 v255, s{sST}, m0\nv_writelane_b32 v254, s{sST+2}, m0\ns_mov_b32 m0, s100")

def dma6(vs, srdb, so, mbase, flags, src_step, six=False):
    def val(dst, x, extra):
        if isinstance(x, tuple): r, imm = x
        else: r, imm = x, 0
        imm += extra
        return f"s_add_u32 {dst}, {r}, {imm}" if imm else f"s_mov_b32 {dst}, {r}"
    g = []
    for j in range(6):
        pre = []
        sreg = so if (j < 3 or src_step == 0) else sT3
        if j % 3 == 0:
            pre = [val("m0", mbase, 3072 * (j // 3))]
            if j == 3 and src_step: pre.append(val(sT3, so, src_step))
        v = vs[j] if six else vs[j % 3]
        g.append(pre + [f"buffer_load_dwordx4 v{v}, {srd(srdb)}, {sreg} offen offset:{1024*(j%3)} {flags} lds"])
    return g
def dma_k(): return dma6(vKs, sK, sKo, sKm, OPT["kv"], 0, six=True)
def dma_v(): return dma6(vVs, sV, sVo, sVm, OPT["kv"], 3072)
def dma_wq(): return dma6(vWs, sWQ, sWQo, sWQm, OPT["wq"], 16 * 12288)
def dma_x():
    g = []
    for j in range(3):
        pre = [f"s_mov_b32 m0, {sXm}"] if j == 0 else []
        g.append(pre + [f"buffer_load_dwordx4 v{vXs[j]}, {srd(sX)}, {sXo} offen offset:{1024*j} {OPT['x']} lds"])
    return g
def dma_wo(sig, slot):
    ci, kq = divmod(sig, 4)
    g = dma6(vOs, sWO, sT2, (sW6, S[slot]), OPT["wo"], 0, six=True)
    g[0] = [g[0][0], f"s_add_u32 {sT2}, {sCo[ci]}, {sKq[kq]}"] + g[0][1:]
    return g
def set_wq(e): return [f"s_mul_i32 {sWQo}, {sXo}, 6144", f"s_add_u32 {sWQo}, {sWQo}, {sE[e]}"]
def adv_wqm(): return [f"s_add_u32 {sWQm}, {sWQm}, {SLOT}", f"s_cmp_ge_u32 {sWQm}, {3*SLOT}", f"s_cselect_b32 {sWQm}, {sW6}, {sWQm}"]
def next_pair():
    return [[f"s_lshr_b64 s[{sTb}:{sTb+1}], s[{sTb}:{sTb+1}], 4", f"s_and_b32 {sXo}, s{sTb}, 15", f"s_lshl_b32 {sXo}, {sXo}, 7"]]
def flip_x(): return [f"s_xor_b32 {sXm}, {sXm}, {sXd}"]
def adv_kv(so, sm, step="12288"):
    if step == "12288": a = [f"s_add_u32 {so}, {so}, 12288", f"s_add_u32 {sm}, {sm}, {2*SLOT}"]
    else: a = [f"s_add_u32 {so}, {so}, {step}", f"s_lshl2_add_u32 {sm}, {step}, {sm}"]
    g = [a, [f"s_cmp_ge_u32 {sm}, {6*SLOT}", f"s_cselect_b32 {sT0}, {6*SLOT}, 0", f"s_sub_u32 {sm}, {sm}, {sT0}"]]
    if OPT["krot"]: g.append([f"s_cmp_ge_u32 {so}, {sKV0}", f"s_cselect_b32 {sT0}, 196608, 0", f"s_sub_u32 {so}, {so}, {sT0}"])
    return g
def adv_k(step="12288"): return adv_kv(sKo, sKm, step)
def adv_v(step="12288"): return adv_kv(sVo, sVm, step)
def flat(g): return [x for y in g for x in ([y] if isinstance(y, str) else y)]

def reads_t(dstf, n=12):
    g = []
    for t in range(n):
        r = dstf(t); o = (t >> 2) * 128
        g.append(f"ds_read_b64_tr_b16 a[{r}:{r+1}], v{vVr[t&3]} offset:{o}")
        g.append(f"ds_read_b64_tr_b16 a[{r+2}:{r+3}], v{vVr[t&3]} offset:{o+6144}")
    return g
def reads_x(p, e): return [f"ds_read_b128 {a4(FB(p, qb))}, v{vXr[e]} offset:{qb*2048}" for qb in range(3)]
def adv_rd_wq():
    return [[f"s_add_u32 {sRd}, {sRd}, 1", f"s_cmp_ge_u32 {sRd}, 3", f"s_cselect_b32 {sRd}, 0, {sRd}",
             f"s_cselect_b32 {sT1}, {-2*SLOT & 0xffffffff}, {sT2}"]] + [f"v_add_u32 v{r}, {sT1}, v{r}" for r in vVr]

def kernel():
    p = Prog()
    p(f"{NAME}_kernel:")
    p("s_cmp_ge_u32 s2, 256\ns_cbranch_scc1 L_exit")
    if OPT["est"]: p("s_memrealtime s[40:41]\ns_memtime s[42:43]")
    p("s_bfe_u32 s55, s2, 0x10002\ns_mul_i32 s3, s55, 40")
    p("s_load_dwordx8 s[4:11], s[0:1], s3\ns_add_u32 s3, s3, 32\ns_load_dwordx2 s[12:13], s[0:1], s3")
    p(f"s_load_dwordx4 s[{pOUT}:{pOUT+3}], s[0:1], 80\ns_load_dwordx2 s[{pWS}:{pWS+1}], s[0:1], 96")
    if OPT["stamps"]: p(f"v_mov_b32 v255, 0\nv_mov_b32 v254, 0\ns_mov_b32 {sSI}, 0")
    l = f"v{vLn}"
    t0, t1, t2, t3, t4 = (f"v{r}" for r in T[:5])
    p(f"v_lshrrev_b32 {t0}, 6, v0\nv_and_b32 {l}, 63, v0")
    p(f"s_and_b32 {sT0}, s2, 3\ns_bfe_u32 {sB}, s2, 0x30003\ns_lshr_b32 {sJ}, s2, 6")
    p(f"v_readfirstlane_b32 {sW}, {t0}")
    p(f"s_lshl_b32 {sHP}, {sT0}, 2\ns_add_u32 {sHP}, {sHP}, {sJ}")
    if OPT["code"]:
        p("s_getpc_b64 s[26:27]\nL_pc:")
        p(f"s_sub_u32 s26, s26, L_pc-{NAME}_kernel\ns_subb_u32 s27, s27, 0")
        p(f"s_lshr_b32 {sT1}, s2, 3\ns_lshl_b32 {sT1}, {sT1}, 2\ns_add_u32 {sT1}, {sT1}, {sW}\ns_mul_i32 {sT1}, {sT1}, 384")
        p(f"v_and_b32 v{vCo}, 3, {l}\nv_lshlrev_b32 v{vCo}, 7, v{vCo}\nv_add_u32 v{vCo}, {sT1}, v{vCo}\nv_min_u32 v{vCo}, {'L_end-4' if OPT['cend'] else 'L_exit'}-{NAME}_kernel, v{vCo}")
        if OPT["code"] & 1: p(f"global_load_dword v{vCd}, v{vCo}, s[26:27]")
    def rowof(j): p(f"v_add_u32 {t0}, {64*j}, {l}\nv_mul_u32_u24 {t1}, 2731, {t0}\nv_lshrrev_b32 {t1}, 16, {t1}")
    def mk(b, ptr, off_s, size):
        p(f"s_add_u32 s{b}, s{ptr}, {off_s}\ns_addc_u32 s{b+1}, s{ptr+1}, 0\ns_and_b32 s{b+1}, s{b+1}, 0xffff")
        p(f"s_mov_b32 s{b+2}, {size}\ns_mov_b32 s{b+3}, 0x20000")
    if OPT["fastp"]:
        assert str(OPT["eps"]) == "55"
        p(f"s_lshr_b32 {sCrot}, {sB}, 1\ns_cmp_eq_u32 {sB}, 7\ns_addc_u32 {sRd}, {sCrot}, {sJ} ; carry-ok\ns_cmp_ge_u32 {sRd}, 5\ns_cselect_b32 {sT1}, 5, 0\ns_sub_u32 {sRd}, {sRd}, {sT1}")
        p(f"s_lshl_b32 {sXo}, {sRd}, 7\ns_mul_i32 {sXm}, {sW}, 3072\ns_add_u32 {sXm}, {sXm}, {S[3]}")
        p(f"s_mul_i32 {sT0}, {sW}, 24\nv_lshrrev_b32 {t0}, 3, {l}\nv_add_u32 {t0}, {sT0}, {t0}")
        p(f"v_lshrrev_b32 {t1}, 1, {t0}\nv_xor_b32 {t1}, {t1}, {l}\nv_and_b32 {t1}, 7, {t1}\nv_mul_u32_u24 {t0}, 1280, {t0}")
        p(f"v_lshl_add_u32 v{vXs[0]}, {t1}, 4, {t0}\nv_xor_b32 {t1}, 64, v{vXs[0]}")
        p(f"v_add_u32 v{vXs[1]}, {10240-1024}, {t1}\nv_add_u32 v{vXs[2]}, {2*(10240-1024)}, v{vXs[0]}")
        p(f"s_mul_i32 {sT0}, {sB}, 122880")
        if OPT["est"]: p("s_memrealtime s[44:45]\ns_memtime s[46:47]")
        p("s_waitcnt lgkmcnt(0)")
        if OPT["est"]: p(f"v_writelane_b32 v255, s40, 0\nv_writelane_b32 v254, s42, 0\nv_writelane_b32 v255, s44, 1\nv_writelane_b32 v254, s46, 1\ns_mov_b32 {sSI}, 2")
        mk(sX, 4, sT0, 122880)
        p.ext(flat(dma_x()))
        stamp(p)
        p(f"s_mul_i32 {sT0}, {sHP}, 768"); mk(sWQ, 10, sT0, 639 * 12288 + 768)
        p(f"s_mul_i32 {sW6}, {sW}, 6144\ns_add_u32 {sWQm}, {sW6}, {S[1]}")
        p(f"s_and_b32 {sT1}, {sW}, 1\ns_lshr_b32 {sT2}, {sW}, 1\ns_and_b32 {sKrot}, {sB}, 1")
        p(f"s_mul_i32 {sT0}, {sT1}, {4*12288}\ns_mul_i32 {sT3}, {sT2}, 384\ns_add_u32 {sT0}, {sT0}, {sT3}")
        p(f"s_mul_i32 {sE[0]}, {sKrot}, {32*12288}\ns_sub_u32 {sE[1]}, {32*12288}, {sE[0]}\ns_add_u32 {sE[0]}, {sE[0]}, {sT0}\ns_add_u32 {sE[1]}, {sE[1]}, {sT0}")
        p.ext(set_wq(0))
        g = dma_wq()
        p(f"s_movk_i32 {sT1}, 12288\ns_movk_i32 {sT2}, -384")
        for j in range(3):
            rowof(j)
            p(f"v_and_b32 {t2}, 6, {t1}\nv_xor_b32 {t3}, {t2}, {l}\nv_lshlrev_b32 v{vVs[j]}, 4, {t3}")
            p(f"v_and_b32 {t2}, 12, {t1}\nv_add_u32 {t2}, {t2}, {t1}\nv_mad_i32_i24 {t3}, {t1}, {sT2}, v{vVs[j]}\nv_mad_u32_u24 v{vWs[j]}, {t2}, {sT1}, {t3}")
            p.ext(g[j])
        p.ext(flat(g[3:]))
        p(f"s_add_u32 {sXd}, {sXm}, 12288\ns_xor_b32 {sXd}, {sXd}, {sXm}")
        p.ext(flat([adv_wqm(), set_wq(1), flip_x()]))
    else:
        p(f"s_lshr_b32 {sCrot}, {sB}, 1\ns_and_b32 {sKrot}, {sB}, 1\ns_add_u32 {sT1}, {sCrot}, {sJ}")
        p(f"s_mov_b64 s[{sTb}:{sTb+1}], 0")
        e0 = 0
        for n in (int(c) for c in str(OPT["eps"])):
            seq = [e0 + k % n for k in range(16)]
            lo = sum(v << (4 * k) for k, v in enumerate(seq[:8])); hi = sum(v << (4 * k) for k, v in enumerate(seq[8:]))
            if n == 5: p(f"s_cmp_eq_u32 {sB}, 7\ns_addc_u32 {sT0}, {sT1}, 0 ; carry-ok\ns_lshl_b32 {sT0}, {sT0}, 2")
            else: p(f"s_lshl_b32 {sT0}, {sT1}, 2")
            p(f"s_mov_b32 s72, {lo:#x}\ns_mov_b32 s73, {hi:#x}\ns_lshr_b64 s[72:73], s[72:73], {sT0}\ns_and_b32 s72, s72, {(1 << (4 * n)) - 1:#x}\ns_mov_b32 s73, 0")
            p(f"s_lshl_b64 s[72:73], s[72:73], {4*e0}\ns_or_b64 s[{sTb}:{sTb+1}], s[{sTb}:{sTb+1}], s[72:73]")
            e0 += n
        assert e0 == 10
        p(f"s_and_b32 {sXo}, s{sTb}, 15\ns_lshl_b32 {sXo}, {sXo}, 7\ns_mul_i32 {sW6}, {sW}, 6144")
        p(f"s_and_b32 {sT1}, {sW}, 1\ns_lshr_b32 {sT2}, {sW}, 1")
        p(f"s_mul_i32 {sT0}, {sT1}, {4*12288}\ns_mul_i32 {sT3}, {sT2}, 384\ns_add_u32 {sT0}, {sT0}, {sT3}")
        p(f"s_mul_i32 {sE[0]}, {sKrot}, {32*12288}\ns_sub_u32 {sE[1]}, {32*12288}, {sE[0]}\ns_add_u32 {sE[0]}, {sE[0]}, {sT0}\ns_add_u32 {sE[1]}, {sE[1]}, {sT0}")
        p.ext(set_wq(0))
        p(f"s_add_u32 {sWQm}, {sW6}, {S[1]}")
        p(f"s_mul_i32 {sXm}, {sW}, 3072\ns_add_u32 {sXm}, {sXm}, {S[3]}")
        p(f"s_add_u32 {sXd}, {sXm}, 12288\ns_xor_b32 {sXd}, {sXd}, {sXm}")
        p(f"s_mul_i32 {sT0}, {sW}, 24\nv_lshrrev_b32 {t0}, 3, {l}\nv_add_u32 {t0}, {sT0}, {t0}")
        p(f"v_lshrrev_b32 {t1}, 1, {t0}\nv_xor_b32 {t1}, {t1}, {l}\nv_and_b32 {t1}, 7, {t1}\nv_mul_u32_u24 {t0}, 1280, {t0}")
        p(f"v_lshl_add_u32 v{vXs[0]}, {t1}, 4, {t0}\nv_xor_b32 {t1}, 64, v{vXs[0]}")
        p(f"v_add_u32 v{vXs[1]}, {10240-1024}, {t1}\nv_add_u32 v{vXs[2]}, {2*(10240-1024)}, v{vXs[0]}")
        for j in range(3):
            rowof(j)
            p(f"v_and_b32 {t2}, 6, {t1}\nv_xor_b32 {t3}, {t2}, {l}\nv_lshlrev_b32 v{vVs[j]}, 4, {t3}")
            p(f"v_and_b32 {t2}, 12, {t1}\nv_add_u32 {t2}, {t2}, {t1}\nv_mul_u32_u24 {t2}, 12288, {t2}")
            p(f"v_mul_u32_u24 {t3}, 384, {t1}\nv_sub_u32 {t2}, {t2}, {t3}\nv_add_u32 v{vWs[j]}, {t2}, v{vVs[j]}")
        if OPT["est"]: p("s_memrealtime s[44:45]\ns_memtime s[46:47]")
        p("s_waitcnt lgkmcnt(0)")
        if OPT["est"]: p(f"v_writelane_b32 v255, s40, 0\nv_writelane_b32 v254, s42, 0\nv_writelane_b32 v255, s44, 1\nv_writelane_b32 v254, s46, 1\ns_mov_b32 {sSI}, 2")
        stamp(p)
        if OPT["delay"]:
            p(f"s_bitcmp0_b32 {sB}, 0\ns_cbranch_scc1 L_nd")
            for _ in range(OPT["delay"]): p("s_sleep 37")
            p("L_nd:")
        p(f"s_mul_i32 {sT0}, {sB}, 122880"); mk(sX, 4, sT0, 122880)
        p.ext(flat(dma_x()))
        p(f"s_mul_i32 {sT0}, {sHP}, 768"); mk(sWQ, 10, sT0, 639 * 12288 + 768)
        p.ext(flat(dma_wq() + [adv_wqm(), set_wq(1), flip_x()]))
    wq1 = dma_wq()
    p.ext(flat(wq1[:3]))
    if OPT["fastp"]:
        p(f"s_lshl_b32 {sT0}, {sRd}, 2\ns_mov_b32 s72, 0x21043210\ns_mov_b32 s73, 3\ns_lshr_b64 s[72:73], s[72:73], {sT0}\ns_and_b32 s{sTb}, s72, 0xfffff")
        p(f"s_add_u32 s72, s{sTb}, 0x55555\ns_lshr_b32 s{sTb+1}, s72, 12\ns_lshl_b32 s72, s72, 20\ns_or_b32 s{sTb}, s{sTb}, s72")
    p(f"s_and_b32 {sT1}, {sW}, 1\ns_lshr_b32 {sT2}, {sW}, 1")
    p(f"s_mul_i32 {sKo}, {sT2}, 196608\ns_mul_i32 {sT3}, {sT1}, 6144\ns_add_u32 {sKo}, {sKo}, {sT3}\ns_mov_b32 {sVo}, {sKo}\ns_mov_b32 {sKV0}, {sKo}")
    if OPT["krot"]:
        if OPT["krot"] == 1: p(f"s_lshr_b32 {sT0}, s2, 3\ns_add_u32 {sT0}, {sT0}, s2")
        if OPT["krot"] == 2: p(f"s_mul_i32 {sT0}, s2, 0x9e3779b1\ns_lshr_b32 {sT0}, {sT0}, 28\ns_lshl3_add_u32 {sT0}, {sT2}, {sT0}")
        if OPT["krot"] == 5: p(f"s_lshl_b32 {sT0}, {sT2}, 3")
        if OPT["krot"] == 6: p(f"s_lshl_b32 {sT0}, s2, 1\ns_add_u32 {sT0}, {sT0}, {sT2}\ns_mul_i32 {sT0}, {sT0}, 0x9e3779b1\ns_lshr_b32 {sT0}, {sT0}, 28")
        if OPT["krot"] == 7: p(f"s_mul_i32 {sT0}, s2, 0x9e3779b1\ns_lshr_b32 {sT0}, {sT0}, 28")
        if OPT["krot"] == 3: p(f"s_lshl_b32 {sT0}, {sHP}, 1\ns_add_u32 {sT0}, {sT0}, {sT2}")
        if OPT["krot"] == 4: p(f"s_lshl_b32 {sT0}, {sB}, 1\ns_add_u32 {sT0}, {sT0}, {sBR}")
        p(f"s_and_b32 {sT0}, {sT0}, 15\ns_mul_i32 {sT0}, {sT0}, 12288\ns_add_u32 {sKV0}, {sKo}, 196608\ns_add_u32 {sKo}, {sKo}, {sT0}\ns_mov_b32 {sVo}, {sKo}")
    p(f"s_add_u32 {sKm}, {sW6}, {S[4]}\ns_add_u32 {sVm}, {sW6}, {S[5]}")
    p(f"s_lshr_b32 {sSk}, s2, 3\ns_and_b32 {sSk}, {sSk}, {OPT['skipn']-1}\ns_add_u32 {sSk}, {sSk}, {OPT['skip0']}\ns_mov_b32 {sThr}, {OPT['thr']}")
    p(f"s_lshl_b32 {sT0}, {sB}, 4\ns_add_u32 {sT0}, {sT0}, {sHP}\ns_mul_i32 {sT3}, {sT0}, 393216")
    mk(sK, 6, sT3, 393216); mk(sV, 8, sT3, 393216)
    p(f"s_mul_i32 {sT3}, {sHP}, 491520"); mk(sWO, 12, sT3, 491520)
    p(f"s_lshl_b32 {sG}, {sBR}, 3\ns_add_u32 {sG}, {sG}, {sB}\ns_lshl_b32 {sT0}, {sG}, 4\ns_add_u32 {sT0}, {sT0}, {sHP}")
    p(f"s_lshl_b32 {sT3}, {sT0}, {OPT['fs']}\ns_add_u32 {sT3}, {sT3}, {FLAG_OFF}"); mk(sFL, pWS, sT3, OPT["fw"] + FB_)
    p(f"s_lshl_b32 {sT3}, {sG}, {OPT['fs']+4}\ns_add_u32 {sT3}, {sT3}, {FLAG_OFF}"); mk(sFG, pWS, sT3, 16 << OPT["fs"])
    mk(sFA, pWS, FLAG_OFF, 352 << OPT['fs'])
    mk(sDG, pDBG, 0, OPT['fw'] + FB_)
    p(f"s_cmp_eq_u32 {sW}, 0\ns_cselect_b32 s{sFL+2}, {OPT['fw'] + FB_}, 0")
    p(f"v_lshlrev_b32 v{vFo}, {OPT['fs']}, {l}\nv_lshlrev_b32 v{vF4}, 2, {l}")
    if OPT["two"]: p(f"v_and_b32 {t0}, 32, {l}\nv_lshl_add_u32 v{vF4}, {t0}, 8, v{vF4}\nv_and_b32 {t0}, 1, {l}\nv_lshlrev_b32 v247, 7, {t0}")
    c = (192 ** -0.5) * math.log2(math.e)
    p(f"s_mov_b32 {sC}, {struct.unpack('<I', struct.pack('<f', c))[0]:#x}")
    if OPT["wm"]:
        if OPT["wm"] == 1: p(f"s_and_b32 {sCrot}, {sB}, 1\ns_lshl_b32 {sCrot}, {sCrot}, 1\ns_lshr_b32 {sKrot}, {sB}, 1")
        else: p(f"s_mov_b32 {sCrot}, 0\ns_lshr_b32 {sKrot}, {sB}, 1")
        for ci, x in enumerate((3, 1, 2, None, 0)):
            if x is None: p(f"s_movk_i32 {sCo[ci]}, 1024")
            else: p(f"s_xor_b32 {sT0}, {sJ}, {x}\ns_xor_b32 {sT0}, {sT0}, {sCrot}\ns_lshl_b32 {sCo[ci]}, {sT0}, 8")
    else:
        p(f"s_xor_b32 {sT0}, {sB}, {OPT['ox']}\ns_lshr_b32 {sCrot}, {sT0}, 1\ns_and_b32 {sKrot}, {sT0}, 1\ns_lshl_b32 {sKrot}, {sKrot}, 1")
        p(f"s_cmp_eq_u32 {sT0}, 7\ns_cselect_b32 {sCrot}, 4, {sCrot}\ns_cselect_b32 {sKrot}, 0, {sKrot}")
        for ci, x in enumerate((3, 1, 2, None, 0)):
            p(f"s_mov_b32 {sT0}, 4" if x is None else f"s_xor_b32 {sT0}, {sJ}, {x}")
            p(f"s_add_u32 {sT0}, {sCrot}, {sT0}\ns_cmp_ge_u32 {sT0}, 5\ns_cselect_b32 {sT3}, 5, 0\ns_sub_u32 {sT0}, {sT0}, {sT3}\ns_lshl_b32 {sCo[ci]}, {sT0}, 8")
    for kq in range(4):
        p(f"s_xor_b32 {sT0}, {sKrot}, {kq}\ns_mul_i32 {sKq[kq]}, {sT0}, {96*1280}")
    p(f"s_mul_i32 {sT0}, {sT2}, 12288")
    for j in range(6):
        rowof(j)
        p(f"v_bfe_u32 {t2}, {t1}, 1, 3\nv_xor_b32 {t2}, {t2}, {l}\nv_lshlrev_b32 v{vKs[j]}, 4, {t2}")
        if j >= 3: p(f"v_add_u32 v{vKs[j]}, 3072, v{vKs[j]}")
    p(f"v_and_b32 {t0}, 15, {l}\nv_lshrrev_b32 {t1}, 4, {l}\nv_lshrrev_b32 {t2}, 1, {t0}\nv_xor_b32 {t2}, {t2}, {t1}")
    p(f"v_mul_u32_u24 {t3}, 384, {t0}\nv_add_u32 {t3}, {sT0}, {t3}\nv_add_u32 {t3}, {S[4]}, {t3}")
    p(f"v_lshl_add_u32 v{vKr[0]}, {t2}, 4, {t3}\nv_xor_b32 {t4}, 4, {t2}\nv_lshl_add_u32 v{vKr[1]}, {t4}, 4, {t3}")
    p(f"s_mul_i32 {sT3}, {sT1}, {48*128}\ns_add_u32 {sT3}, {sT3}, {S[3]}")
    p(f"v_lshlrev_b32 {t3}, 7, {t0}\nv_add_u32 {t3}, {sT3}, {t3}")
    p(f"v_lshl_add_u32 v{vXr[0]}, {t2}, 4, {t3}")
    p(f"s_and_b32 {sT3}, {sB}, 1\ns_lshl_b32 {sT3}, {sT3}, 6\nv_xor_b32 v{vXr[0]}, {sT3}, v{vXr[0]}")
    p(f"v_xor_b32 v{vXr[1]}, 64, v{vXr[0]}")
    p(f"s_mul_i32 {sT3}, {sW}, 24\nv_lshlrev_b32 {t2}, 1, {t1}\nv_xor_b32 {t2}, {t2}, {t0}\nv_add_u32 {t3}, {sT3}, {t1}")
    p(f"v_mul_u32_u24 {t3}, 1280, {t3}\nv_lshl_add_u32 v{vOs[0]}, {t2}, 4, {t3}\nv_xor_b32 {t2}, 128, v{vOs[0]}")
    for j in range(1, 6):
        p(f"v_add_u32 v{vOs[j]}, {5120*j-1024*(j%3)}, " + (t2 if j & 1 else f"v{vOs[0]}"))
    p(f"v_lshrrev_b32 {t0}, 2, {l}\nv_and_b32 {t1}, 3, {l}\nv_bfe_u32 {t2}, {l}, 3, 2")
    p(f"v_mul_u32_u24 {t3}, 384, {t0}\nv_lshl_add_u32 {t3}, {t1}, 3, {t3}\nv_add_u32 {t3}, {sT0}, {t3}\nv_add_u32 {t3}, {S[1]}, {t3}")
    for dl in range(4):
        p(f"v_xor_b32 {t4}, {dl}, {t2}\nv_lshl_add_u32 v{vVr[dl]}, {t4}, 5, {t3}")
    p(f"v_lshlrev_b32 {t3}, 8, {t0}\nv_lshl_add_u32 {t3}, {t1}, 3, {t3}\nv_and_b32 {t2}, 7, {t0}\ns_lshl_b32 {sT3}, {sW}, 1\nv_xor_b32 {t2}, {sT3}, {t2}")
    p(f"v_lshl_add_u32 v{vOr[0][0]}, {t2}, 5, {t3}\nv_xor_b32 v{vOr[1][0]}, 32, v{vOr[0][0]}")
    for nu in range(2): p(f"v_add_u32 v{vOr[nu][1]}, {S[2]}, v{vOr[nu][0]}\nv_add_u32 v{vOr[nu][2]}, {S[4]}, v{vOr[nu][0]}")
    p(f"v_lshlrev_b32 {t0}, 4, {l}")
    p(f"s_mul_i32 {sT3}, {sW}, 3072\ns_add_u32 {sT3}, {sT3}, {S[3]}\nv_add_u32 v{vOw}, {sT3}, {t0}")
    for kq in range(4):
        p(f"s_xor_b32 {sT0}, {sKrot}, {kq}\ns_lshr_b32 {sT3}, {sT0}, 1\ns_mul_i32 {sT3}, {sT3}, 6144\ns_and_b32 {sT0}, {sT0}, 1\ns_mul_i32 {sT0}, {sT0}, 36864")
        p(f"s_add_u32 {sT3}, {sT3}, {sT0}\ns_add_u32 {sT3}, {sT3}, {S[3]}\nv_add_u32 v{vBr[kq]}, {sT3}, {t0}")
    p(f"v_add_u32 v{vPs[0]}, {sW6}, {t0}\nv_add_u32 v{vPs[1]}, 3072, v{vPs[0]}")
    for r in range(144): p(f"v_mov_b32 v{r}, 0")
    for qb in range(3): p(f"v_mov_b32 v{vM[qb]}, 0xff7fffff\nv_mov_b32 v{vMc[qb]}, 0xff7fffff\nv_mov_b32 v{vL[qb]}, 0")
    p(f"s_mov_b32 {sRd}, 1\ns_mov_b32 {sT2}, {SLOT}\ns_mov_b32 {sI}, 0\ns_mov_b32 {sDK}, 12288")
    p(f"s_cmp_gt_u32 s2, {OPT['two']}\ns_cbranch_scc1 L_nc")
    lg = OPT["fw"].bit_length() - 5
    p(f"v_lshrrev_b32 {t0}, {lg}, {l}\nv_lshlrev_b32 {t0}, {OPT['fs']}, {t0}\nv_and_b32 {t1}, {(1 << lg) - 1}, {l}\nv_lshl_add_u32 {t0}, {t1}, 4, {t0}\ns_lshl_b32 {sT0}, {sW}, {OPT['fs']+6}\ns_lshl_b32 {sT3}, s2, 7\ns_add_u32 {sT0}, {sT0}, {sT3}")
    for k in range(1 << lg): p(f"buffer_store_dwordx4 v[0:3], {t0}, {srd(sFA)}, {sT0} offen sc1\ns_add_u32 {sT0}, {sT0}, {(64 >> lg) << OPT['fs']}")
    if OPT["tk"]:
        p(f"s_lshl_b32 {sT0}, {sW}, {OPT['fs']+4}\ns_add_u32 {sT0}, {sT0}, {256 << OPT['fs']}")
        for k in range(2): p(f"buffer_store_dwordx4 v[0:3], {t0}, {srd(sFA)}, {sT0} offen sc1\ns_add_u32 {sT0}, {sT0}, {8 << OPT['fs']}")
    if OPT["fair"]:
        p(f"s_lshl_b32 {sT0}, {sW}, {OPT['fs']+3}\ns_add_u32 {sT0}, {sT0}, {320 << OPT['fs']}\nbuffer_store_dwordx4 v[0:3], {t0}, {srd(sFA)}, {sT0} offen sc1")
    p("L_nc:")
    rd0 = reads_x(0, 0) + reads_t(lambda t: FA(0, t))
    rest = dma_x() + dma_wq() + [adv_wqm(), set_wq(1), flip_x()]
    if OPT["pre"] == 0:
        p("s_waitcnt vmcnt(3)\ns_barrier"); stamp(p)
        p.ext(weave(rd0, wq1[3:] + [adv_wqm(), flat(next_pair()), set_wq(0)] + rest))
    elif OPT["pre"] == 1:
        p.ext(flat(wq1[3:] + [adv_wqm(), flat(next_pair()), set_wq(0)] + rest[:3]))
        p("s_waitcnt vmcnt(9)\ns_barrier"); stamp(p)
        p.ext(weave(rd0, rest[3:]))
    else:
        p.ext(flat(wq1[3:] + [adv_wqm(), flat(next_pair()), set_wq(0)] + rest[:6]))
        p("s_waitcnt vmcnt(12)\ns_barrier"); stamp(p)
        p.ext(weave(rd0, rest[6:]))
    p.ext(flat(adv_rd_wq()))
    p(f"v_add_u32 v{vXr[0]}, {sDK}, v{vXr[0]}")
    DS9 = list(range(0, 36, 4))
    def conv(ks):
        g = []
        R = lambda qb: 144 + 4 * qb + 12 * (ks & 1)
        for qb in range(3):
            a, b, r = ACC(2 * ks, qb), ACC(2 * ks + 1, qb), R(qb)
            g += [f"v_cvt_pk_bf16_f32 v{r}, v{a}, v{a+1}", f"v_cvt_pk_bf16_f32 v{r+1}, v{a+2}, v{a+3}",
                  f"v_cvt_pk_bf16_f32 v{r+2}, v{b}, v{b+1}", f"v_cvt_pk_bf16_f32 v{r+3}, v{b+2}, v{b+3}"]
        for op in ("v_permlane32_swap_b32", "v_permlane16_swap_b32"):
            for qb in range(3): g += [f"{op} v{R(qb)}, v{R(qb)+2}", f"{op} v{R(qb)+1}, v{R(qb)+3}"]
        for qb in range(3): g += [f"v_accvgpr_write_b32 a{QF(ks, qb)+i}, v{R(qb)+i}" for i in range(4)]
        return g
    def qstep(par, wait, dmas, advs, do_reads=True, tail=[], valu=[]):
        if wait: p(wait + " lgkmcnt(0)")
        p("s_barrier")
        stamp(p, "q")
        G = Gaps([f"{M16} {v4(ACC(t, qb))}, {a4(FA(par, t))}, {a4(FB(par, qb))}, {v4(ACC(t, qb))}" for t in range(12) for qb in ((2, 1, 0) if OPT["snake"] & 1 and t & 1 else (0, 1, 2))])
        slots = DS9 if len(dmas) > 6 else [0, 5, 10, 15, 20, 25]
        G.vm(dmas, slots)
        for k, a in advs: G.put(k, a)
        if do_reads:
            pos = G.mems(reads_x(1 - par, 1 - par) + reads_t(lambda t: FA(1 - par, t)), 0, 32)
            ad = adv_rd_wq()
            G.put(17, ad[0][:2]); G.put(18, ad[0][2:])
            for k in range(4): G.put(pos[3 + 17 + 2 * k] + 1, ad[1 + k])
            if par == 0: G.put(9, f"v_add_u32 v{vXr[1]}, {sDK}, v{vXr[1]}")
            else: G.put(9, [f"s_sub_u32 {sDK}, 0, {sDK}", f"v_add_u32 v{vXr[0]}, {sDK}, v{vXr[0]}"])
        G.spread(valu, 10, 36)
        G.put(34, tail)
        p.ext(G.out())
    def announce():
        p(f"s_lshr_b32 {sT0}, s2, {OPT['two']}\ns_or_b32 {sT0}, {sT0}, {sW} ; scc-ok\ns_cbranch_scc1 L_na\ns_lshl_b32 {sT0}, s2, 7\nv_mov_b32 v{vFv}, 1\nbuffer_store_dword v{vFv}, v{vF4}, {srd(sDG)}, {sT0} offen sc1\nL_na:")
    sFo, sFt, sCn2 = "s0", "s1", "s3"
    npr = next_pair()
    def table(dst, digits):
        d = (str(digits) * 8)[:8]
        p(f"s_add_u32 {sT0}, {sB}, {sJ}\ns_and_b32 {sT0}, {sT0}, 7\ns_lshl_b32 {sT0}, {sT0}, 2\ns_lshr_b32 {dst}, {sum((int(c) + 1) << (4 * k) for k, c in enumerate(d)):#x}, {sT0}\ns_and_b32 {dst}, {dst}, 15")
    table(sKb, OPT["kst"]); table(sVb, OPT["vst"])
    p(f"s_mov_b32 {sBm}, 256\ns_bitset1_b32 {sBm}, {sKb}\ns_bitset1_b32 {sBm}, {sVb}")
    p(f"s_or_b32 {sStop}, {sBm}, 16\ns_getreg_b32 {sId}, hwreg(HW_REG_XCC_ID, 0, 4)\ns_add_u32 {sId}, {sId}, 1\ns_lshl_b32 {sId}, {sId}, 8")
    side = []
    ld_init = f"buffer_load_dword v{vIn}, v247, {srd(sDG)}, 0 offen sc1" if OPT["two"] else f"buffer_load_dword v{vIn}, off, {srd(sDG)}, 0 sc1"
    def publish(n, fl="sc1"): return [f"s_add_u32 {sT1}, {sId}, {n}", f"v_mov_b32 v{vFv}, {sT1}", f"buffer_store_dword v{vFv}, v{vF4}, {srd(sFL)}, 0 offen offset:{FB_ if n == 5 else 0} {fl}"]
    def spin(n, load, cnt=sCnt): side.append(f"L_s{n}:\n" + (f"s_sleep {OPT['slp']}\n" if OPT["slp"] else "") + f"{load} ; side\ns_add_u32 {cnt}, {cnt}, 1\ns_cmp_lt_u32 {cnt}, 200000\ns_waitcnt vmcnt(0)\ns_cbranch_scc1 L_c{n}\ns_branch L_k{n}")
    TS = list(zip([x for x in str(OPT["tst"]).split(",") if x], [int(x) for x in str(OPT["tt"]).split(",")], ["s87", "s0", "s1"][::-1]))
    for st, _, r in TS:
        table(r, st); p(f"s_bitset1_b32 {sBm}, {r}")
    if TS: p(f"v_and_b32 {t4}, 7, {l}\nv_lshlrev_b32 {t4}, 7, {t4}")
    def qwait(n, tag):
        if not OPT["dynq"]: return f"s_waitcnt vmcnt({n})"
        p(f"s_bitcmp1_b32 {sBm}, {sI}\ns_waitcnt vmcnt({n+6}) lgkmcnt(0)\ns_cbranch_scc1 L_qw{tag}\ns_waitcnt vmcnt({n})\nL_qw{tag}:")
        return None
    p("s_waitcnt lgkmcnt(0)")
    p("L_q:")
    qstep(0, qwait(9, "e"), dma_wq(), [(26, adv_wqm())] + [(27 + k, g) for k, g in enumerate(npr)] + [(33, set_wq(0))])
    qstep(1, qwait(6, "o"), dma_x() + dma_wq(), [(13, flip_x()), (29, adv_wqm()), (33, set_wq(1))],
          tail=[f"s_add_u32 {sI}, {sI}, 1", f"s_bitcmp0_b32 {sStop}, {sI}"])
    p("s_waitcnt lgkmcnt(0)")
    p("s_cbranch_scc1 L_q")
    p(f"s_cmp_lg_u32 {sI}, {sKb}\ns_cbranch_scc1 L_q1")
    if OPT["fair"] or OPT["ann"]: announce()
    p.ext(flat(dma_k() + adv_k()))
    p("L_q1:")
    p(f"s_cmp_lg_u32 {sI}, 4\ns_cbranch_scc1 L_q3\n{ld_init}\nL_q3:")
    p(f"s_cmp_lg_u32 {sI}, {sVb}\ns_cbranch_scc1 L_q2")
    assert min(int(c) for c in str(OPT["vst"])) >= 5 and max(int(c) for c in str(OPT["kst"])) <= 2 and int(str(OPT["kst"])[0]) <= 1
    p(f"s_mov_b32 {sT3}, 0\nL_c0:\nv_cmp_eq_u32 vcc, 1, v{vIn}\ns_cmp_eq_u32 vcc_lo, -1\ns_cbranch_scc0 L_s0\nL_k0:"); spin(0, ld_init, sT3)
    p.ext(publish(0))
    p.ext(flat(dma_v() + adv_v()))
    p("L_q2:")
    for k, (_, t, r) in enumerate(TS):
        p(f"s_cmp_lg_u32 {sI}, {r}\ns_cbranch_scc1 L_qt{k}\ns_add_u32 {sT0}, {sKV0}, {12288*(t>>1)}\ns_add_u32 {sT3}, {sT0}, 3072")
        for j in range(6): p(f"buffer_load_dword v{vCd}, {t4}, {srd(sV if t & 1 else sK)}, {sT0 if j < 3 else sT3} offen offset:{1024*(j%3)} {OPT['tfl']}")
        p(f"L_qt{k}:")
    p(f"s_cmp_lt_u32 {sI}, 8\ns_cbranch_scc1 L_q")
    vm = VM(["wq17"] * 6 + ["x9"] * 3 + ["wq18"] * 6)
    kv = lambda a: [(27 + 2 * k, x) for k, x in enumerate(a)]
    w = vm.wait("wq17"); vm.issue("wq19", 6); qstep(0, w, dma_wq(), [])
    if OPT["fair"]: p(f"buffer_load_dword v{vIn}, off, {srd(sDG)}, 0 sc1"); vm.issue("init")
    w = vm.wait("wq18"); vm.issue("t2", 6); qstep(1, w, dma_k(), kv(adv_k()))
    w = vm.wait("wq19"); vm.issue("t3", 6); qstep(0, w, dma_v(), kv(adv_v()))
    c01 = conv(0) + conv(1)[:12]
    if OPT["dist"] == 4: qstep(1, "s_waitcnt", [], [], do_reads=False, valu=c01)
    else: qstep(1, "s_waitcnt", dma_k(), kv(adv_k()), do_reads=False, valu=c01)
    stamp(p)
    p.ext(conv(1)[12:])
    for ks in range(2, 6): p.ext(conv(ks))
    for r in vVr: p(f"v_add_u32 v{r}, {S[5]}, v{r}")
    p(f"s_mov_b32 {sRd}, {S[4]}\ns_mov_b32 {sI}, 0\ns_mov_b32 {sRet}, 0")
    if OPT["fair"]:
        p(f"s_mov_b32 {sCn2}, 0\ns_waitcnt vmcnt(18)\nL_c0:\nv_readfirstlane_b32 {sT1}, v{vIn}\ns_cmp_eq_u32 {sT1}, 1\ns_cbranch_scc0 L_s0\nL_k0:")
        p(f"s_add_u32 {sFo}, {sB}, s2\ns_and_b32 {sFo}, {sFo}, 7\ns_lshl3_add_u32 {sFo}, {sW}, {sFo}\ns_add_u32 {sFo}, {sFo}, 320\ns_lshl_b32 {sFo}, {sFo}, {OPT['fs']}")
        p(f"s_mul_i32 {sFt}, {sW}, {OPT['fth']}\ns_add_u32 {sFt}, {sFt}, {16 - (3 * OPT['fth']) // 2 - 32}")
        p(f"v_lshlrev_b32 v247, 20, {l}\nv_mov_b32 v{vIn}, -16")
    elif not OPT["ann"]: announce()
    stamp(p)

    sv = lambda qb: [SS(0, qb) + i for i in range(4)] + [SS(1, qb) + i for i in range(4)]
    def probs(qb, check, dst=None, pack=True):
        x = sv(qb); y = dst or vPt; g = []
        g += [f"v_fma_f32 v{y[i]}, v{x[i]}, {sC}, -v{vMc[qb]}" for i in range(8)]
        if check:
            m = vMx[0]
            if qb == 0: g += [f"v_max3_f32 v{m}, v{y[0]}, v{y[1]}, v{y[2]}", f"v_max3_f32 v{m}, v{m}, v{y[3]}, v{y[4]}", f"v_max3_f32 v{m}, v{m}, v{y[5]}, v{y[6]}", f"v_max_f32 v{m}, v{m}, v{y[7]}"]
            else: g += [f"v_max3_f32 v{m}, v{m}, v{y[2*i]}, v{y[2*i+1]}" for i in range(4)]
        g += [f"v_exp_f32 v{y[i]}, v{y[i]}" for i in range(8)]
        t = vTm[qb]; u = vMx[1]
        g += [f"v_add_f32 v{t}, v{y[0]}, v{y[1]}", f"v_add_f32 v{u}, v{y[2]}, v{y[3]}", f"v_add_f32 v{t}, v{t}, v{y[4]}", f"v_add_f32 v{u}, v{u}, v{y[5]}",
              f"v_add_f32 v{t}, v{t}, v{y[6]}", f"v_add_f32 v{u}, v{u}, v{y[7]}"]
        if pack: g += [f"v_cvt_pk_bf16_f32 v{PP(qb)+i}, v{y[2*i]}, v{y[2*i+1]}" for i in range(4)]
        g += [f"v_add_f32 v{t}, v{t}, v{u}"]
        return g
    def rescale():
        return [f"v_pk_mul_f32 v[{ACC(t, qb)+h}:{ACC(t, qb)+h+1}], v[{ACC(t, qb)+h}:{ACC(t, qb)+h+1}], v[{vAl[qb]}:{vAl[qb]+1}] op_sel_hi:[1,0]"
                for t in range(12) for qb in range(3) for h in (0, 2)]
    def xlane(regs, op, vPt=vPt):
        g = []
        for sw in ("v_permlane32_swap_b32", "v_permlane16_swap_b32"):
            g += [f"v_mov_b32 v{vPt[qb]}, v{regs[qb]}" for qb in range(3)]
            g += [f"{sw} v{regs[qb]}, v{vPt[qb]}" for qb in range(3)]
            g += [f"{op} v{regs[qb]}, v{regs[qb]}, v{vPt[qb]}" for qb in range(3)]
        return g
    def slow_path():
        g = []
        for k in range(4):
            for qb in range(3):
                x = sv(qb)
                g.append(f"v_max3_f32 v{vMx[qb]}, v{vM[qb] if k == 0 else vMx[qb]}, v{x[2*k]}, v{x[2*k+1]}")
        g += xlane(vMx, "v_max_f32")
        g += [f"v_sub_f32 v{vTm[qb]}, v{vM[qb]}, v{vMx[qb]}" for qb in range(3)]
        g += [f"v_mul_f32 v{vMc[qb]}, {sC}, v{vMx[qb]}" for qb in range(3)]
        g += [f"v_mul_f32 v{vTm[qb]}, {sC}, v{vTm[qb]}" for qb in range(3)]
        g += [f"v_mov_b32 v{vM[qb]}, v{vMx[qb]}" for qb in range(3)]
        g += [f"v_exp_f32 v{vAl[qb]}, v{vTm[qb]}" for qb in range(3)]
        for qb in range(3): g += probs(qb, False)
        g += [f"v_mul_f32 v{vL[qb]}, v{vL[qb]}, v{vAl[qb]}" for qb in range(3)]
        return g + rescale()
    vKeep = [vPt, vKs + vVs[:2], [vVs[2]] + T[2:6] + [vFv, 247, vIn]]
    def kstep(dmas, advs, ret):
        last = ret == 1 and OPT["fn"] and not OPT["post"]
        pr = (lambda qb: probs(qb, True, vKeep[qb], False)) if last else (lambda qb: probs(qb, True))
        p("s_barrier")
        stamp(p, "a")
        rd = [f"ds_read_b128 {a4(FA(0, ks*2+kb))}, v{vKr[ks&1]} offset:{kb*6144+(ks>>1)*128}" for ks in range(6) for kb in range(2)]
        G = Gaps([f"{M16} {v4(SS(kb, qb))}, {a4(FA(0, ks*2+kb))}, {a4(QF(ks, qb))}, {'0' if ks == 0 else v4(SS(kb, qb))}"
                  for qb in range(3) for ks in range(6) for kb in range(2)])
        p.ext(rd[:7])
        G.mems(rd[7:], 0, 5)
        G.put(5, [f"s_add_u32 {sRd}, {sRd}, {2*SLOT}", f"s_cmp_ge_u32 {sRd}, {6*SLOT}"])
        G.put(6, [f"s_cselect_b32 {sRd}, 0, {sRd}", f"s_cselect_b32 {sDK}, {-4*SLOT & 0xffffffff}, {sT2}"])
        G.put(8, f"v_add_u32 v{vKr[0]}, {sDK}, v{vKr[0]}"); G.put(9, f"v_add_u32 v{vKr[1]}, {sDK}, v{vKr[1]}")
        if ret is None:
            G.vm(dmas, [8, 13, 18, 23, 28, 33])
            p.ext(G.out() + flat(advs)); p("s_branch L_slow")
            return
        G.vm(dmas[:4], [8, 14, 22, 30])
        G.spread(pr(0), 14, 25); G.spread(pr(1), 26, 36)
        p.ext(G.out())
        p.ext(weave(pr(2), dmas[4:] + advs, 2, 26))
        if OPT["lazy"]: p(f"v_cmp_lt_f32 vcc, {sThr}, v{vMx[0]}\ns_cbranch_vccnz L_slow")
        else: p("s_branch L_slow")
        p(f"L_ret{ret}:")
        for qb in range(3): p(f"v_add_f32 v{vL[qb]}, v{vL[qb]}, v{vTm[qb]}")
    def pv_mfmas(): return [f"{M16} {v4(ACC(t, qb))}, {a4(FA(1, t))}, {v4(PP(qb))}, {v4(ACC(t, qb))}" for t in range(12) for qb in range(3)]
    def vstep(dmas, advs, tail=[]):
        p("s_barrier")
        stamp(p, "a")
        rd = reads_t(lambda t: FA(1, t))
        p.ext(rd[:6])
        G = Gaps(pv_mfmas())
        G.vm(dmas, [3, 8, 13, 18, 23, 28])
        G.mems(rd[6:], 0, 23)
        for k in range(4): G.put(24 + k, f"v_add_u32 v{vVr[k]}, {sDK}, v{vVr[k]}")
        for k, a in enumerate(advs): G.put(30 + k, a)
        G.put(33, tail)
        p.ext(G.out())
    def dynwait(n, tag):
        p(f"s_add_u32 {sT0}, {sSk}, {n}\ns_cmp_le_u32 {sI}, {sT0}\ns_waitcnt vmcnt(24)\ns_cbranch_scc1 L_dw{tag}\ns_waitcnt vmcnt(12)\nL_dw{tag}:")
    p(f"s_mov_b32 {sT2}, {2*SLOT}")
    def windowed(g, n=OPT["win"]): return [x[:-1] + [f"s_waitcnt vmcnt({n})", x[-1]] for x in g] if n else g
    D = OPT["dist"]
    nxt_it = [f"s_add_u32 {sI}, {sI}, 1", f"s_cmp_lg_u32 {sI}, {OPT['codeit']}"]
    sBig, sRep, sFt = "s3", "s57", "s58"
    if OPT["fair2"]:
        p(f"s_lshl_b32 {sRep}, {sB}, 1\ns_add_u32 {sRep}, {sRep}, 1\ns_bitcmp1_b32 {(1 << OPT['fj']) | 1}, {sJ}\ns_cselect_b32 {sRep}, {sRep}, 99")
        p(f"s_mul_i32 {sFt}, {sW}, {OPT['fd']}\ns_add_u32 {sFt}, {sFt}, {OPT['fc'] - (3 * OPT['fd'] + 1) // 2}\ns_lshl_b32 {sBig}, {sW}, 2\ns_and_b32 {sBig}, {sBig}, 4")
        p(f"v_and_b32 {t0}, 1, {l}\nv_mul_u32_u24 {t0}, {OPT['fj']}, {t0}\nv_bfe_u32 {t1}, {l}, 1, 2\nv_lshl_add_u32 {t0}, {t1}, 2, {t0}\nv_lshrrev_b32 {t1}, 3, {l}")
        p(f"v_lshl_add_u32 {t0}, {t1}, 7, {t0}\nv_lshlrev_b32 v247, {OPT['fs']}, {t0}\ns_mov_b32 s{sFA+2}, {256 << OPT['fs']}")
    if OPT["k0"]:
        assert D == 3 and OPT["skip0"] > 0
        p(f"s_mov_b32 {sDV}, 12288"); kstep(dma_v(), adv_v(), None)
    p("L_a:")
    if OPT["tskip"]:
        assert D == 3 and OPT["k0"] and OPT["late"] and 0 < OPT["win"] <= 11 and OPT["skip0"] + OPT["skipn"] <= 13
        p(f"s_cmp_eq_u32 {sI}, 14\ns_cbranch_scc1 L_ae")
        mid = lambda t: None
        if OPT["fair2"]:
            p(f"s_bitcmp1_b32 {sI}, 0\ns_cbranch_scc1 L_f0")
            p(f"s_waitcnt vmcnt(6)\nv_cmp_lt_u32 vcc, 0xffff, v{vIn}\ns_bcnt1_i32_b32 {sT0}, vcc_lo\ns_cmp_gt_u32 {sT0}, {sFt}\ns_cselect_b32 {sBig}, 4, 0\ns_branch L_f9")
            p(f"L_f0:\ns_cmp_lg_u32 {sI}, {sRep}\ns_cbranch_scc1 L_f9")
            if OPT["fwr"]: p.ext(publish(0x10000))
            p("L_f9:")
            mid = lambda t: p(f"s_bitcmp0_b32 {sI}, 0\ns_cbranch_scc1 L_fm{t}\nbuffer_load_dword v{vIn}, v247, {srd(sFA)}, 0 offen sc1\nv_add_u32 v247, {16 << OPT['fs']}, v247\nL_fm{t}:")
        p(f"s_cmp_eq_u32 {sI}, {sSk}\ns_cselect_b32 {sRet}, 3, {sBig if OPT['fair2'] else 0}\ns_cbranch_scc1 L_sk")
        if OPT["fair2"]:
            p(f"s_cmp_eq_u32 {sBig}, 0\ns_cbranch_scc1 L_a0")
            kstep(windowed(dma_v(), OPT["wbig"]), adv_v(), 4); mid("b")
            vstep(windowed(dma_k(), OPT["wbig"]), adv_k(), nxt_it)
            p("s_branch L_a2\nL_a0:")
        kstep(windowed(dma_v()), adv_v(), 0); mid("a")
        vstep(windowed(dma_k()), adv_k(), nxt_it)
        p("L_a2:")
    elif D == 3:
        p(f"s_cmp_eq_u32 {sI}, {sSk}\ns_cselect_b32 {sDV}, 0, 12288\ns_cselect_b32 s{sK+2}, 0, 393216\ns_cselect_b32 s{sV+2}, 0, 393216")
        def body(n, n2, ret, tg):
            if OPT["late"]: p(f"s_cmp_eq_u32 {sI}, 14\ns_cbranch_scc1 L_ae")
            dynwait(2, "k" + tg)
            kstep(windowed(dma_v(), n), adv_v(sDV), ret)
            if not OPT["late"]: p(f"s_cmp_eq_u32 {sI}, 14\ns_cbranch_scc1 L_ae")
            dynwait(1, "v" + tg)
            vstep(windowed(dma_k(), n2), adv_k(sDV), nxt_it)
        if OPT["fair"]:
            if OPT["fper"] > 1: p(f"s_and_b32 {sT0}, {sI}, {OPT['fper']-1} ; scc-ok\ns_cbranch_scc1 L_f1")
            p(f"v_readfirstlane_b32 {sT0}, v{vIn}\nv_mov_b32 v{vIn}, 1\ns_cmp_gt_i32 {sT0}, {sFt}\ns_cselect_b32 {sRet}, 3, 0\ns_add_u32 {sFt}, {sFt}, 32")
            p(f"buffer_atomic_add v{vIn}, v247, {srd(sFA)}, {sFo} offen sc0 sc1")
            p(f"L_f1:\ns_cmp_eq_u32 {sRet}, 0\ns_cbranch_scc1 L_a0")
            body(OPT["wbig"], OPT["wbig"], 3, "b")
            p("s_branch L_a2\nL_a0:")
        body(OPT["win"], OPT["win2"] or OPT["win"], 0, "")
        p("L_a2:")
    elif D == 5:
        p("s_waitcnt vmcnt(24)")
        kstep(windowed(dma_v()), adv_v(), 0)
        p(f"s_cmp_eq_u32 {sI}, 13\ns_cbranch_scc1 L_ae\ns_waitcnt vmcnt(24)")
        vstep(windowed(dma_k()), adv_k(), nxt_it)
    else:
        p(f"s_cmp_eq_u32 {sI}, 14\ns_cbranch_scc1 L_ae\ns_waitcnt vmcnt(18)")
        kstep(windowed(dma_k()), adv_k(), 0)
        p("s_waitcnt vmcnt(18)")
        vstep(windowed(dma_v()), adv_v(), nxt_it)
    p("s_cbranch_scc1 L_a")
    def ids():
        p(f"v_and_b32 {t1}, 1, {l}\nv_add_u32 {t1}, 1, {t1}\nv_xor_b32 {t1}, {sHP}, {t1}\nv_lshlrev_b32 {t1}, {OPT['fs']}, {t1}")
        p(f"buffer_load_dword v{vCo}, {t1}, {srd(sFG)}, 0 offen sc1")
    if OPT["code"] & 2: p(f"global_load_dword v{vCd}, v{vCo}, s[26:27]")
    if OPT["idm"]: ids()
    p("s_branch L_a")
    if OPT["tskip"]:
        p("L_sk:")
        kstep([], [], 3); mid("c"); vstep([], [], nxt_it)
        if OPT["fair2"]: p("s_waitcnt vmcnt(0)")
        p("s_branch L_a2")
    p("L_slow:")
    p.ext(slow_path())
    p(f"s_cmp_eq_u32 {sRet}, 0\ns_cbranch_scc1 L_ret0")
    if D != 3 or OPT["late"]: p(f"s_cmp_eq_u32 {sRet}, 2\ns_cbranch_scc1 L_ret2")
    if OPT["fair2"]: p(f"s_cmp_eq_u32 {sRet}, 4\ns_cbranch_scc1 L_ret4")
    if OPT["fair"] or OPT["tskip"]: p(f"s_cmp_eq_u32 {sRet}, 3\ns_cbranch_scc1 L_ret3")
    if OPT["fn"] and not OPT["post"]:
        for qb in range(3): p.ext(probs(qb, False, vKeep[qb], False))
    p("s_branch L_ret1")
    p("L_ae:")
    if OPT["late"]:
        p(f"s_waitcnt vmcnt(12)\ns_mov_b32 {sRet}, 2"); kstep(dma_v(), [], 2)
    stamp(p)
    vm = VM([f"t{t}" for t in range(32 - D, 32) for _ in range(6)])
    def w3touch():
        nr = OPT["wnr"]
        p(f"s_lshr_b32 {sT0}, {sB}, 1\ns_lshl_b32 {sT0}, {sT0}, 2\ns_add_u32 {sT0}, {sT0}, {sW}\ns_mul_i32 {sT0}, {sT0}, {nr*1280}")
        p(f"s_and_b32 {sT1}, {sB}, 1\ns_xor_b32 {sT3}, {sJ}, 3\ns_add_u32 {sT1}, {sT1}, {sT3}\ns_add_u32 {sT1}, {sT1}, 3\ns_cmp_ge_u32 {sT1}, 5\ns_cselect_b32 {sT3}, 5, 0\ns_sub_u32 {sT1}, {sT1}, {sT3}")
        p(f"s_lshl_b32 {sT1}, {sT1}, 8\ns_add_u32 {sT0}, {sT0}, {sT1}\ns_add_u32 {sT0}, {sT0}, {(384-16*nr)*1280}")
        p(f"v_min_u32 {t0}, {2*nr-1}, {l}\nv_lshrrev_b32 {t1}, 1, {t0}\nv_and_b32 {t0}, 1, {t0}\nv_mul_u32_u24 {t1}, 1280, {t1}\nv_lshl_add_u32 {t0}, {t0}, 7, {t1}")
        p(f"buffer_load_dword v{vCd}, {t0}, {srd(sWO)}, {sT0} offen"); vm.issue("touch")
        if not OPT["idm"]: ids(); vm.issue("ids")
    if OPT["w3"] and not OPT["tl"]: w3touch()
    nw = 0
    for t in range(32 - D, 31):
        p(vm.wait(f"t{t}"))
        g = []
        if nw < 3 and not (OPT["late"] >= 2 and t == 29):
            vm.issue(f"w{nw}", 6); g = windowed(dma_wo(nw, nw), OPT["wwin"]); nw += 1
        if t & 1: vstep(g, [])
        else:
            r = 1 if t == 30 else 2
            stamp(p, "x")
            p(f"s_mov_b32 {sRet}, {r}\ns_mov_b32 {sT2}, {2*SLOT}"); kstep(g, [], r)
    stamp(p, "x")
    if OPT["w3"] and OPT["tl"] and not OPT["wm"]: w3touch()
    if OPT["post"]:
        p.ext(xlane(vL, "v_add_f32", vTm))
        for qb in range(3): p(f"v_rcp_f32 v{vAl[qb]}, v{vL[qb]}")
    elif OPT["fn"]:
        p.ext(xlane(vL, "v_add_f32", vTm))
        for qb in range(3): p(f"v_rcp_f32 v{vAl[qb]}, v{vL[qb]}")
        for qb in range(3):
            y = vKeep[qb]
            for r in y: p(f"v_mul_f32 v{r}, v{vAl[qb]}, v{r}")
            for i in range(4): p(f"v_cvt_pk_bf16_f32 v{PP(qb)+i}, v{y[2*i]}, v{y[2*i+1]}")
    else:
        p.ext(xlane(vL, "v_add_f32"))
        for qb in range(3): p(f"v_rcp_f32 v{vAl[qb]}, v{vL[qb]}\nv_log_f32 v{vTm[qb]}, v{vL[qb]}")
        for qb in range(3): p(f"v_add_f32 v{vMc[qb]}, v{vMc[qb]}, v{vTm[qb]}")
        for qb in range(3): p.ext([x for x in probs(qb, False) if not x.startswith("v_add")])
    if OPT["late"] >= 2:
        vm.issue("w1", 6); nw = 2
        p.ext(weave(rescale(), dma_wo(1, 1), *{2: (0, 72), 3: (40, 72)}[OPT["late"]]))
    elif OPT["w2n"] and nw < 3:
        vm.issue("w2", 6); nw = 3
        p.ext(weave(rescale(), dma_wo(2, 2), *{1: (0, 72), 2: (40, 72), 3: (71, 72)}[OPT["w2n"]]))
    elif not OPT["post"]: p.ext(rescale())
    p(f"s_mul_i32 {sT0}, {sG}, {GRP}"); mk(sPG, pWS, sT0, 15 * PART + (3 if OPT['fresh'] else 1) * SL1 + 24576)
    mk(sOUT, pOUT, 0, 1966080)
    stamp(p, "x")
    p(vm.wait("t31")); p("s_barrier")
    stamp(p)
    AB = [144, 96]
    def AF(sig, tp, nu): return AB[sig & 1] + 8 * tp + 4 * nu
    def reads_wo(sig, slot):
        g = []
        for tp in range(3):
            for nu in range(2):
                r = AF(sig, tp, nu); o = (slot & 1) * SLOT + 32 * tp * 256
                g.append(f"ds_read_b64_tr_b16 v[{r}:{r+1}], v{vOr[nu][slot>>1]} offset:{o}")
                g.append(f"ds_read_b64_tr_b16 v[{r+2}:{r+3}], v{vOr[nu][slot>>1]} offset:{o+4096}")
        return g
    def o_out(tp):
        g = []
        for qb in range(3):
            a, b = ACC(2 * tp, qb), ACC(2 * tp + 1, qb)
            if OPT["post"] and OPT["pk"]: g += [f"v_pk_mul_f32 v[{r}:{r+1}], v[{r}:{r+1}], v[{vAl[qb]}:{vAl[qb]+1}] op_sel_hi:[1,0]" for r in (a, a + 2, b, b + 2)]
            elif OPT["post"]: g += [f"v_mul_f32 v{r+i}, v{vAl[qb]}, v{r+i}" for r in (a, b) for i in range(4)]
            g += [f"v_cvt_pk_bf16_f32 v{a}, v{a}, v{a+1}", f"v_cvt_pk_bf16_f32 v{a+1}, v{a+2}, v{a+3}",
                  f"v_cvt_pk_bf16_f32 v{a+2}, v{b}, v{b+1}", f"v_cvt_pk_bf16_f32 v{a+3}, v{b+2}, v{b+3}",
                  f"ds_write_b128 v{vOw}, {v4(a)} offset:{tp*12288+qb*1024}"]
        return g
    rd = reads_t(lambda t: FA(1, t))
    p.ext(rd[:10])
    G = Gaps(pv_mfmas())
    G.mems(rd[10:], 0, 10)
    if nw < 3 and not OPT["w2l"]:
        vm.issue("w2", 6)
        G.vm(dma_wo(2, 2), [3, 9, 15, 21, 27, 33])
    if OPT["post"] == 2:
        for tp in range(4): G.spread(o_out(tp), 8 + 7 * tp, 15 + 7 * tp)
    else:
        for tp in range(4): G.spread(o_out(tp), 10 + 6 * tp, 16 + 6 * tp + (2 if tp == 3 else 0))
    p.ext(G.out())
    stamp(p, "x")
    p(vm.wait("w0")); p("s_barrier")
    stamp(p, "x")
    if nw < 3 and OPT["w2l"]:
        vm.issue("w2", 6)
        p.ext(weave2(o_out(4) + o_out(5), [(reads_wo(0, 0), 0, 30), (dma_wo(2, 2), 2, 30)]))
    else: p.ext(weave(o_out(4) + o_out(5), reads_wo(0, 0)))
    stamp(p, "x")
    p("; vmq " + " ".join(f"{t}*1" for t in vm.q))
    tag = lambda g, t: g[:-1] + [g[-1] + f" ; vm={t}"]
    def BF(kq, tp, q):
        f = (kq * 3 + tp) * 6 + q
        return a4(4 * f) if f < 64 else v4(168 + 4 * (f - 64))
    def reads_b(k): return [f"ds_read_b128 {BF(k//3, k%3, q)}, v{vBr[k//3]} offset:{(k%3)*12288+q*1024}" for q in range(6)] if k < 12 else []
    def OA(ci, q, nu): return 48 * (ci & 1) + 8 * q + 4 * nu
    sBuf = ["s57", "s58", "s59", "s60", "s61"]
    sPf = ["s64", "s65"]
    sRo = ["s66", "s67"]; sRq = ["s68", "s62"]
    def out1(ci, q):
        a = OA(ci, q, 0)
        g = [f"v_cvt_pk_bf16_f32 v{a+i}, v{a+2*i}, v{a+2*i+1}" for i in range(4)]
        if q == 0 and ci >= 3 and OPT["fresh"]: g = [f"s_add_u32 {sBuf[ci]}, {sBuf[ci]}, {2*SL1}"] + g
        return g + [f"buffer_store_dwordx4 {v4(a)}, v{vPs[q//3]}, {srd(sPG)}, {sBuf[ci]} offen offset:{1024*(q%3)} {OPT['gfl'] if ci < 3 and not OPT['thru'] >> ci & 1 else 'sc1'} ; vm=st{ci}"]
    vZ, vSel, vRb, vOb, vRo, vOo = 200, 224, 221, 222, 223, 214
    def xload(n, q): return [f"buffer_load_dwordx4 {v4(120+4*q)}, v{vPs[q//3]}, {srd(sPG)}, {sBuf[2+n]} offen offset:{1024*(q%3)} {OPT['xfl']} ; vm=x{n}_{q}"]
    def xadd(n, q): return [f"s_waitcnt vmcnt(@x{n}_{q})"] + [f"{M16} {v4(OA(0, q, nu))}, {v4(vZ+2-2*nu)}, {v4(120+4*q)}, " + ("0" if n == 1 else v4(OA(0, q, nu))) for nu in range(2)]
    def setup0():
        g = [[f"s_mul_i32 {sBuf[0]}, {sHP}, {PART}", f"s_add_u32 {sBuf[1]}, {sBuf[0]}, {SL1}", f"s_xor_b32 {sT1}, {sHP}, 1"],
             [f"s_mul_i32 {sBuf[2]}, {sT1}, {PART}", f"s_add_u32 {sBuf[3]}, {sBuf[2]}, {SL1}", f"s_lshl_b32 {sPf[0]}, {sT1}, {OPT['fs']}"],
             [f"s_xor_b32 {sT1}, {sHP}, 3", f"s_mul_i32 {sBuf[4]}, {sT1}, {PART}"], [f"s_xor_b32 {sT1}, {sHP}, 2", f"s_lshl_b32 {sPf[1]}, {sT1}, {OPT['fs']}"]]
        return g
    def rsetup4():
        g = [[f"s_mul_i32 {sT1}, {sHP}, 3", f"s_add_u32 {sT1}, {sT1}, {sW}"],
             [f"s_cmp_ge_u32 {sT1}, 24", f"s_cselect_b32 {sRo[0]}, {SL1}, 0", f"s_cselect_b32 {sRo[1]}, 24, 0"],
             [f"s_sub_u32 {sT1}, {sT1}, {sRo[1]}", f"s_and_b32 {sT3}, {sT1}, 1", f"s_lshr_b32 {sT1}, {sT1}, 1"],
             [f"s_lshl_b32 {sRq[0]}, {sT3}, 7", f"s_mul_i32 {sT3}, {sT3}, 12288", f"s_add_u32 {sRo[0]}, {sRo[0]}, {sT3}"],
             [f"s_lshr_b32 {sT3}, {sT1}, 1", f"s_mul_i32 {sT3}, {sT3}, 768", f"s_add_u32 {sRo[0]}, {sRo[0]}, {sT3}"],
             [f"s_lshl_b32 {sT3}, {sT1}, 7", f"s_add_u32 {sRo[0]}, {sRo[0]}, {sT3}", f"s_mul_i32 {sT3}, {sB}, 12"],
             [f"s_add_u32 {sT1}, {sT1}, {sT3}", f"s_mul_i32 {sT1}, {sT1}, {8*2560}", f"s_add_u32 {sRq[0]}, {sRq[0]}, {sT1}"],
             [f"s_mul_i32 {sT1}, {sBR}, 1280", f"s_add_u32 {sRq[0]}, {sRq[0]}, {sT1}", f"s_add_u32 {sRo[0]}, {sRo[0]}, {2*SL1 if OPT['fresh'] else 0}"]]
        v = [f"v_lshrrev_b32 {t0}, 4, {l}", f"v_and_b32 {t1}, 7, {l}", f"v_bfe_u32 {t3}, {l}, 3, 1", f"v_mul_u32_u24 {t2}, 6144, {t3}", f"v_lshl_add_u32 {t2}, {t0}, 8, {t2}",
             f"v_lshl_add_u32 {t2}, {t1}, 4, {t2}", f"v_add_u32 v{vRo}, {sRo[0]}, {t2}",
             f"v_mul_u32_u24 {t2}, 2560, {t1}", f"v_lshl_add_u32 {t2}, {t3}, 6, {t2}", f"v_lshl_add_u32 {t2}, {t0}, 4, {t2}", f"v_add_u32 v{vOo}, {sRq[0]}, {t2}",
             f"v_and_b32 {t3}, 1, {l}", f"v_lshlrev_b32 {t3}, 4, {t3}", f"v_mov_b32 {t2}, 0x3f80", f"v_lshlrev_b32 {t2}, {t3}, {t2}", f"v_bfe_u32 {t1}, {l}, 1, 3", f"v_lshlrev_b32 {t0}, 1, {t0}",
             f"v_cmp_eq_u32 vcc, {t0}, {t1}", f"v_add_u32 {t0}, 1, {t0}", f"v_cndmask_b32 v{vZ+2}, 0, {t2}, vcc",
             f"v_cmp_eq_u32 vcc, {t0}, {t1}", f"v_mov_b32 v{vZ}, 0", f"v_cndmask_b32 v{vZ+3}, 0, {t2}, vcc",
             f"v_mov_b32 v{vZ+1}, 0", f"v_mov_b32 v{vZ+4}, 0", f"v_mov_b32 v{vZ+5}, 0"]
        return g, v
    def rsetup():
        if OPT["x4"]: return rsetup4()
        g = []
        g.append([f"s_mul_i32 {sDV}, {sB}, {96*2560}", f"s_mul_i32 {sT1}, {sBR}, 1280", f"s_add_u32 {sDV}, {sDV}, {sT1}"])
        g.append([f"s_lshl_b32 {sT1}, {sW}, 6", f"s_add_u32 {sDV}, {sDV}, {sT1}"])
        for r in range(2):
            g.append([f"s_add_u32 {sT1}, {sW}, {2*r}", f"s_lshl2_add_u32 {sT1}, {sT1}, {sHP}", f"s_and_b32 {sT1}, {sT1}, 15"])
            g.append([f"s_mul_i32 {sRq[r]}, {sT1}, {8*2560}", f"s_lshr_b32 {sT3}, {sT1}, 1", f"s_mul_i32 {sT3}, {sT3}, 768"])
            g.append([f"s_lshl_b32 {sRo[r]}, {sT1}, 7", f"s_add_u32 {sRo[r]}, {sRo[r]}, {sT3}", f"s_add_u32 {sRo[r]}, {sRo[r]}, {SL1*r}"])
            g.append([f"s_cmp_lt_u32 {sT1}, 12", f"s_cselect_b32 {sRo[r]}, {sRo[r]}, 0x40000000", f"s_cselect_b32 {sRq[r]}, {sRq[r]}, 0x40000000"])
        v = [f"v_lshrrev_b32 {t0}, 4, {l}", f"v_and_b32 {t1}, 15, {l}", f"v_lshlrev_b32 {t2}, 8, {t0}", f"v_lshl_add_u32 {t2}, {t1}, 3, {t2}", f"v_add_u32 v{vRb}, {sW6}, {t2}",
             f"v_lshrrev_b32 {t2}, 1, {t1}", f"v_mul_u32_u24 {t2}, 2560, {t2}", f"v_lshl_add_u32 {t2}, {t0}, 3, {t2}", f"v_and_b32 {t3}, 1, {l}", f"v_lshl_add_u32 {t2}, {t3}, 5, {t2}",
             f"v_add_u32 v{vOb}, {sDV}, {t2}",
             f"v_lshlrev_b32 {t3}, 4, {t3}", f"v_mov_b32 {t2}, 0x3f80", f"v_lshlrev_b32 {t2}, {t3}, {t2}", f"v_lshrrev_b32 {t1}, 1, {t1}", f"v_lshlrev_b32 {t0}, 1, {t0}",
             [f"v_cmp_eq_u32 vcc, {t0}, {t1}", f"v_cndmask_b32 v{vSel}, 0, {t2}, vcc"], f"v_add_u32 {t0}, 1, {t0}",
             [f"v_cmp_eq_u32 vcc, {t0}, {t1}", f"v_cndmask_b32 v{vSel+1}, 0, {t2}, vcc"], f"v_mov_b32 v{vSel+2}, v{vSel}", f"v_mov_b32 v{vSel+3}, v{vSel+1}",
             f"v_mov_b32 v{vZ}, 0", f"v_mov_b32 v{vZ+1}, 0", f"v_mov_b32 v{vZ+2}, v{vSel}", f"v_mov_b32 v{vZ+3}, v{vSel+1}", f"v_mov_b32 v{vZ+4}, 0", f"v_mov_b32 v{vZ+5}, 0"]
        return g, v
    def check1(n, load):
        p(f"L_c{n}:\nv_readfirstlane_b32 {sT1}, v{vIn}\ns_and_b32 {sT1}, {sT1}, 0xff\ns_cmp_ge_u32 {sT1}, {n}\ns_cbranch_scc0 L_s{n}\nL_k{n}:"); spin(n, load)
    ld_peer = lambda n: f"buffer_load_dword v{vIn}, off, {srd(sFG)}, {sPf[n == 3]} sc1"
    ld_all = f"buffer_load_dword v{vIn}, v{vFo}, {srd(sFG)}, 0 offen offset:{FB_} {OPT['pfl']}"
    PUB = {int(x): k + 1 for k, x in enumerate(str(OPT["pubs"]).split(","))}
    if OPT["sp"]: PUB[18] = 4
    POL = {int(x): k + 1 for k, x in enumerate(str(OPT["pols"]).split(","))}
    ADD = {int(x): k for k, x in enumerate(str(OPT["adds"]).split(","))}
    slot_of = {0: 0, 1: 1, 2: 2}
    free = []; nxt = 3; pend = []
    sCn = "s88"
    p(f"s_mov_b32 {sCnt}, 0")
    for sig in range(20):
        ci, kq = divmod(sig, 4)
        assert not any(t == sig + 1 for t, _ in pend)
        pub = PUB.get(sig, 0); chk = POL.get(sig - 1, 0)
        need = [f"w{sig+1}"]
        if pub: need.append(f"st{pub-1}")
        if sig == 2: need.append("ids")
        if 0 < pub < 4:
            p(f"s_cmp_eq_u32 {sLoc}, 0\ns_waitcnt lgkmcnt(0)\ns_cbranch_scc1 L_f{pub}\nL_g{pub}:")
            side.append(f"L_f{pub}:\n" + "".join(out1(pub - 1, q)[-1].split(";")[0] + " sc1 ; side\n" for q in range(6) if "sc1" not in out1(pub - 1, q)[-1]) + f"s_waitcnt vmcnt(0)\ns_barrier\n"
                        + " ; side\n".join(publish(pub)) + f" ; side\ns_branch L_h{pub}")
        if chk: need.append(f"poll{chk}")
        if sig < 19 or pub:
            p(f"s_waitcnt vmcnt(@{','.join(need)}) lgkmcnt(0)"); p("s_barrier")
        if 0 < pub < 4: p(f"L_h{pub}:")
        if sig == 0: stamp(p)
        elif kq == 0 and "c" in OPT["fine"]: stamp(p)
        else: stamp(p, "o")
        ops = []
        if chk: check1(chk, ld_peer(chk))
        if pub and not (OPT["plast"] and chk): ops.append(publish(pub, OPT['ffl'] if pub < 4 else 'sc1'))
        G = Gaps([f"{M16} {v4(OA(ci, q, nu))}, {v4(AF(sig, tp, nu))}, {BF(kq, tp, q)}, " + ("0" if kq == 0 and tp == 0 and ci < 4 else v4(OA(ci, q, nu)))
                  for tp, q, nu in ([(tp, q, nu) for q in range(6) for tp in range(3) for nu in range(2)] if sig == 19 else
                                    [(tp, q, nu) for tp in range(3) for nu in range(2) for q in (range(5, -1, -1) if nu else range(6))] if OPT["snake"] & 4 and sig > 3 else
                                    [(tp, q, nu ^ (q & 1 if OPT["snake"] & 2 else 0)) for tp in range(3) for q in range(6) for nu in range(2)])])
        if sig == 0: p.ext(reads_b(0))
        free.append(slot_of[sig])
        if sig == OPT["bfree"]: free += [3, 4, 5]
        while free and nxt < 20 and nxt - sig <= OPT["dmax"] + 1:
            slot_of[nxt] = free.pop(0); pend += [(nxt, tag(g, f"w{nxt}")) for g in dma_wo(nxt, slot_of[nxt])]; nxt += 1
        PT = {int(x): k for k, x in enumerate(str(OPT["pt"]).split(",")) if x}
        if sig in PT:
            ops.append([f"v_min_u32 {t4}, 47, {l}", f"v_lshl_add_u32 {t4}, {t4}, 7, {sW6}", f"buffer_load_dword v{vCd}, {t4}, {srd(sPG)}, {sBuf[PT[sig]]} offen"])
        if sig in POL: ops.append([ld_peer(POL[sig]) + f" ; vm=poll{POL[sig]}"])
        if chk: ops += [xload(chk - 1, q) for q in range(6)]
        if pub and OPT["plast"] and chk: ops.append(publish(pub, OPT['ffl'] if pub < 4 else 'sc1'))
        WS = [int(x) for x in str(OPT["ws"]).split(",")]
        sts = [out1(ci - 1, q) for q in range(6)] if sig in WS else []
        if sts: assert WS.index(sig) == ci - 1
        room = 9 - len(ops) - len(sts)
        if sig - 2 in POL and POL[sig - 2] < 3: room = min(room, OPT["cap"])
        if chk and chk < 3 and OPT["xl"]:
            k_ = min(len(pend), room); ops = [g for _, g in pend[:k_]] + ops; pend = pend[k_:]; room = 0
        nd = min(len(pend), max(room, sum(1 for t, _ in pend if t <= sig + 2)))
        ops += [g for _, g in pend[:nd]]; pend = pend[nd:]
        n = len(ops) + len(sts)
        slots = [1 + 5 * k for k in range(7)] if n <= 7 else DS9 if n <= 9 else list(range(0, 36, 3))
        if not ops: slots = slots[1:]
        G.vm(ops, slots)
        for k, g in enumerate(sts):
            at = slots[len(ops) + k]
            G.spread(g[:-1], at - 4 if n <= 9 else at - 3, at); G.put(at, g[-1])
        if sig in ADD:
            for q in range(6): G.put((1 + 6 * q) if sig == 19 else (OPT['a0'] + OPT['astep'] * q), xadd(ADD[sig], q))
        if sig == 19:
            for q in range(4): G.spread(out1(4, q), 10 + 6 * q, 16 + 6 * q)
        if sig == 0: G.spread(setup0(), 2, 30)
        if sig == 2:
            G.put(13, f"v_and_b32 v{vCo}, 0xff00, v{vCo}"); G.put(17, f"v_cmp_eq_u32 vcc, {sId}, v{vCo}")
            G.put(22, [f"s_cmp_eq_u32 vcc_lo, -1", f"s_cselect_b32 {sLoc}, {0 if OPT['forcefb'] else 1}, 0"])
        if sig in (5, 6, 7, 9):
            sg, vg = rsetup()
            G.spread({5: sg, 6: vg[:11], 7: vg[11:20], 9: vg[20:]}[sig], 2, 34)
        if sig == 19 and OPT["arr"]: G.put(33, [f"s_mov_b32 {sCn}, 0", ld_all + " ; vm=poll4"])
        ra = reads_wo(sig + 1, slot_of[sig + 1]) if sig < 19 else []
        if OPT["bfree"] < 4 and sig < OPT["bfree"]:
            allb = [x for k in range(1, 12) for x in reads_b(k)]
            n_ = len(allb) // OPT["bfree"]
            mine = allb[sig * n_:(sig + 1) * n_]
            G.mems(mine[:12] + ra + mine[12:], 0, 32)
        elif sig < 4 and OPT["bfree"] == 4:
            for tp in range(3): G.mems(reads_b(3 * sig + tp + 1) + ra[4*tp:4*tp+4], 12 * tp, 12 * tp + (12 if tp < 2 else 8))
        else: G.mems(ra, 0, 30)
        p.ext(G.out())
    for q in range(4, 6): p.ext(out1(4, q))
    stamp(p)
    sCol = ["s57", "s58", "s59", "s60"]
    for jj in range(4):
        if OPT["wm"]: p(f"s_xor_b32 {sT0}, {sCrot}, {jj^3}\ns_lshl_b32 {sCol[jj]}, {sT0}, 8"); continue
        p(f"s_add_u32 {sT0}, {sCrot}, {jj^3}\ns_cmp_ge_u32 {sT0}, 5\ns_cselect_b32 {sT3}, 5, 0\ns_sub_u32 {sT0}, {sT0}, {sT3}\ns_lshl_b32 {sCol[jj]}, {sT0}, 8")
    order = [jj + 4 * x for jj in range(4) for x in range(4)]
    def rloads(r, sfx=""):
        g = [f"v_add_u32 v{vRo}, {sRo[r]}, v{vRb}"]
        for k, h in enumerate(order):
            d = 48 + 32 * r + 2 * k
            g += [f"s_mov_b32 {sT1}, {h*PART}", f"buffer_load_dwordx2 v[{d}:{d+1}], v{vRo}, {srd(sPG)}, {sT1} offen {OPT['pld']} ; vm=r{r}_{k>>1}"]
        return g
    def check(n): p(f"L_c{n}:\nv_and_b32 v{vIn}, 0xff, v{vIn}\nv_cmp_le_u32 vcc, {n}, v{vIn}\ns_cmp_eq_u32 vcc_lo, 0xffff\ns_cbranch_scc0 L_s{n}\nL_k{n}:")
    if OPT["arr"]:
        sTodo, sFi, vLa, vMk, vRo2 = "s64", "s65", 206, 207, 208
        p(f"v_add_u32 v{vRo}, {sRo[0]}, v{vRb}\nv_add_u32 v{vRo2}, {sRo[1]}, v{vRb}\nv_mov_b32 v{vLa}, {S[slot_of[18]]}\ns_mov_b32 {sTodo}, 0x1111\ns_mov_b32 {sFi}, 1")
        if OPT["arr"] == 1: p("s_waitcnt vmcnt(@st4)")
        else: p("s_waitcnt vmcnt(@poll4)")
        p("L_r:")
        p(f"s_cmp_lg_u32 {sW}, 1\ns_cbranch_scc1 L_r1")
        p(f"v_and_b32 v{vIn}, 0xff, v{vIn}\nv_cmp_le_u32 vcc, 5, v{vIn}\nv_mov_b32 v{vMk}, vcc_lo\nds_write_b32 v{vLa}, v{vMk}\ns_waitcnt lgkmcnt(0)")
        p("L_r1:\ns_barrier")
        if OPT["arr"] == 1:
            p(f"s_cmp_eq_u32 {sFi}, 0\ns_cbranch_scc1 L_r2\n" + " ; side\n".join(publish(5)) + f" ; side\ns_mov_b32 {sFi}, 0\nL_r2:")
        p(f"ds_read_b32 v{vMk}, v{vLa}\nv_xor_b32 v{vLa}, 4, v{vLa}\nv_readfirstlane_b32 {sT0}, v{vMk}")
        p(f"s_lshr_b32 {sT1}, {sT0}, 1\ns_and_b32 {sT0}, {sT0}, {sT1}\ns_lshr_b32 {sT1}, {sT0}, 2\ns_and_b32 {sT0}, {sT0}, {sT1}\ns_and_b32 {sT0}, {sT0}, {sTodo}\ns_xor_b32 {sTodo}, {sTodo}, {sT0}")
        for x in range(4):
            p(f"s_bitcmp0_b32 {sT0}, {4*x}\ns_cbranch_scc1 L_rx{x}")
            for jj in range(4):
                p(f"s_mov_b32 {sT1}, {(4*x+jj)*PART}")
                for r in range(2):
                    d = 48 + 32 * r + 2 * (4 * jj + x)
                    p(f"buffer_load_dwordx2 v[{d}:{d+1}], v{vRo2 if r else vRo}, {srd(sPG)}, {sT1} offen {OPT['pld']} ; side")
            p(f"L_rx{x}:")
        p(f"s_cmp_eq_u32 {sTodo}, 0\ns_cbranch_scc1 L_re")
        p(f"s_add_u32 {sCn}, {sCn}, 1\ns_cmp_ge_u32 {sCn}, 200000\ns_cbranch_scc1 L_re")
        p(f"s_cmp_lg_u32 {sW}, 1\ns_cbranch_scc1 L_r1")
        if OPT["slp"]: p(f"s_sleep {OPT['slp']}")
        p(ld_all + " ; side\ns_waitcnt vmcnt(0)\ns_branch L_r")
        p("L_re:")
        stamp(p); stamp(p)
        p("s_waitcnt vmcnt(0)\n; vmq none*0")
    else:
        p("s_waitcnt vmcnt(@st4)\ns_barrier"); p.ext(publish(5))
        stamp(p)
        if OPT["w0p"]: p(f"s_cmp_lg_u32 {sW}, 1\ns_cbranch_scc1 L_k5")
        p(ld_all + " ; side\ns_waitcnt vmcnt(0)")
        check(5); spin(5, ld_all)
        if OPT["w0p"]: p("s_barrier")
        stamp(p)
        if not OPT["x4"]: p.ext(rloads(1) + rloads(0))
    if OPT["x4"]:
        p(f"s_cmp_eq_u32 {sW}, 3\ns_cbranch_scc1 L_fin")
        for k, h in enumerate(order):
            p(f"s_mov_b32 {sT1}, {h*PART}\nbuffer_load_dwordx4 {v4(48+4*k)}, v{vRo}, {srd(sPG)}, {sT1} offen {OPT['pld']}")
        def add4(k, acc, first): return [f"{M16} {v4(acc+4*nu)}, {v4(vZ+2-2*nu)}, {v4(48+4*k)}, " + ("0" if first else v4(acc+4*nu)) for nu in range(2)]
        def out4(acc, so):
            g = [f"v_cvt_pk_bf16_f32 v{acc+i}, v{acc+2*i}, v{acc+2*i+1}" for i in range(4)]
            for op in ("v_permlane32_swap_b32", "v_permlane16_swap_b32"): g += [f"{op} v{acc}, v{acc+2}", f"{op} v{acc+1}, v{acc+3}"]
            return g + [f"buffer_store_dwordx4 {v4(acc)}, v{vOo}, {srd(sOUT)}, {so} offen {OPT['ost']}"]
        p(f"s_cmp_lg_u32 {sRo[1]}, 0\ns_cbranch_scc1 L_sp")
        nst = 0
        for k in range(16):
            p(f"s_waitcnt vmcnt({15-k+nst})"); p.ext(add4(k, 120 + 8 * (k >> 2), k % 4 == 0))
            if k % 4 == 1 and k > 4: p.ext(out4(120 + 8 * ((k >> 2) - 1), sCol[(k >> 2) - 1])); nst += 1
        p.ext(out4(144, sCol[3]))
        p("s_branch L_fin\nL_sp:")
        for k in range(16):
            p(f"s_waitcnt vmcnt({15-k})"); p.ext(add4(k, 120, k == 0))
        p.ext(out4(120, sCo[3]))
        p("L_fin:")
    else:
        def rout(acc, pk, so): return [f"v_cvt_pk_bf16_f32 v{pk}, v{acc}, v{acc+1}", f"v_cvt_pk_bf16_f32 v{pk+1}, v{acc+2}, v{acc+3}",
                                       f"buffer_store_dwordx2 v[{pk}:{pk+1}], v{vOo}, {srd(sOUT)}, {so} offen {OPT['ost']}"]
        for k in range(8): p(f"s_waitcnt vmcnt(@r1_{k})\n{M16} v[120:123], {v4(vSel)}, {v4(80+4*k)}, " + ("0" if k == 0 else "v[120:123]"))
        p(f"v_add_u32 v{vOo}, {sRq[1]}, v{vOb}"); p.ext(rout(120, 144, sCo[3]))
        for k in range(8): p(f"s_waitcnt vmcnt(@r0_{k})\n{M16} {v4(124+4*(k>>1))}, {v4(vSel)}, {v4(48+4*k)}, " + ("0" if k % 2 == 0 else v4(124+4*(k>>1))))
        p(f"v_add_u32 v{vOo}, {sRq[0]}, v{vOb}")
        for jj in range(4): p.ext(rout(124 + 4 * jj, 146 + 2 * jj, sCol[jj]))
    if OPT["stamps"] == 1:
        p("s_waitcnt vmcnt(0)")
        stamp(p)
        p(f"s_lshl_b32 {sT0}, s2, 2\ns_add_u32 {sT0}, {sT0}, {sW}\ns_lshl_b32 {sT0}, {sT0}, 9\ns_add_u32 {sT0}, {sT0}, {STAMP_OFF}")
        p(f"v_lshlrev_b32 v0, 2, v{vLn}\nv_add_u32 v0, {sT0}, v0")
        p(f"global_store_dword v0, v255, s[{pWS}:{pWS+1}]\nglobal_store_dword v0, v254, s[{pWS}:{pWS+1}] offset:256")
    p("L_exit:\ns_endpgm")
    for x in side: p(x)
    p("L_end:")
    p.resolve_vm()
    d = OPT["drop"]
    def keep(i):
        if "m" in d and i.kind == "mfma": return False
        if "w" in d and i.lds_dma and i.src & {("s", sWQ), ("s", sX), ("s", sWO)}: return False
        if "r" in d and i.kind == "ds": return False
        if "s" in d and i.wide_store: return False
        return True
    p.auto_lgkm(); p.auto_nop(); p.lint_scc()
    p.ins = [i if keep(i) else Ins("s_nop 0") for i in p.ins]
    return p

def build():
    ref = open(f"cdna_kernels/{NAME}.s.ref").read().split("\n")
    head = [l for l in ref if l.startswith(";") and "@launch" not in l]
    out = "\n".join(head) + "\n"
    out += f"; @launch grid=(256,1,1) block=(256,1,1) lds={LDS_BYTES}\n"
    out += '.amdgcn_target "amdgcn-amd-amdhsa--gfx950"\n.text\n'
    nm = NAME + "_kernel"
    out += f".globl {nm}\n.p2align 8\n.type {nm},@function\n" + kernel().text()
    out += f""".section .rodata,"a"
.p2align 6
.amdhsa_kernel {nm}
  .amdhsa_next_free_vgpr 512
  .amdhsa_next_free_sgpr 102
  .amdhsa_accum_offset 256
  .amdhsa_group_segment_fixed_size 0
  .amdhsa_kernarg_size 104
  .amdhsa_user_sgpr_count 2
  .amdhsa_user_sgpr_kernarg_segment_ptr 1
  .amdhsa_system_sgpr_workgroup_id_x 1
  .amdhsa_float_denorm_mode_32 3
.end_amdhsa_kernel
"""
    return out

if __name__ == "__main__":
    txt = build()
    open(sys.argv[1], "w").write(txt)
```
